```python
import torch

def _softmax(x, axis=-1):
    return torch.softmax(x, dim=axis)
def _gelu(x):
    return torch.nn.functional.gelu(x, approximate="tanh")
def _silu(x):
    return torch.nn.functional.silu(x)
def _sigmoid(x):
    return torch.sigmoid(x)
def _layernorm(x, axis=-1, eps=1e-5):
    m = x.mean(dim=axis, keepdim=True)
    v = x.var(dim=axis, keepdim=True, unbiased=False)
    return (x - m) / torch.sqrt(v + eps)
def _scatter_add(tgt, idx, src, axis=0):
    return tgt.clone().index_add_(axis, idx, src)
def _segment_sum(src, seg, n):
    out = torch.zeros((n,) + src.shape[1:], dtype=src.dtype)
    return out.index_add_(0, seg, src)
def _pad(x, pw):
    flat = tuple(v for pair in reversed(pw) for v in pair)
    return torch.nn.functional.pad(x, flat)

kernel_name = 'parallel_sum__gqa_block_cached__geglu_ffn__decode'

def setup_inputs():

    _w = (lambda a: (lambda t: t.to(torch.bfloat16) if t.is_floating_point() else t)(torch.as_tensor(a)))
    def _A_setup():
        B, Sq, D = 2, 1, 1024
        Hq, Hkv, Sk, Dh = 32, 4, 32768, 128
        assert Hq % Hkv == 0, (Hq, Hkv)
        return {
            "x": _w((lambda *s: torch.randn(*s, dtype=torch.bfloat16) * 0.05)(B, Sq, D)),
            "k_cache": _w((lambda *s: torch.randn(*s, dtype=torch.bfloat16) * 3.2)(B, Hkv, Sk, Dh)),
            "v_cache": _w((lambda *s: torch.randn(*s, dtype=torch.bfloat16) * 1.6)(B, Hkv, Sk, Dh)),
            "wq": _w((lambda *s: torch.randn(*s, dtype=torch.bfloat16) * 3.2)(D, Hq * Dh) * (D ** -0.5)),
            "wo": _w((lambda *s: torch.randn(*s, dtype=torch.bfloat16) * 1.6)(Hq * Dh, D) * ((Hq * Dh) ** -0.5)),
        }
    _A_in = _A_setup()

    def _B_setup():
        B, S, D, F = 2, 1, 1024, 3584
        return {
            "x": _w((lambda *s: torch.randn(*s, dtype=torch.bfloat16) * 0.05)(B, S, D)),
            "w_gate": _w((lambda *s: torch.randn(*s, dtype=torch.bfloat16) * 0.05)(D, F)),
            "w_up": _w((lambda *s: torch.randn(*s, dtype=torch.bfloat16) * 0.05)(D, F)),
            "w_down": _w((lambda *s: torch.randn(*s, dtype=torch.bfloat16) * 0.05)(F, D)),
        }
    _B_in = _B_setup()

    return {
        "A_x": _A_in["x"],
        "A_k_cache": _A_in["k_cache"],
        "A_v_cache": _A_in["v_cache"],
        "A_wq": _A_in["wq"],
        "A_wo": _A_in["wo"],
        "B_x": _B_in["x"],
        "B_w_gate": _B_in["w_gate"],
        "B_w_up": _B_in["w_up"],
        "B_w_down": _B_in["w_down"],
    }

def reference(A_x, A_k_cache, A_v_cache, A_wq, A_wo, B_x, B_w_gate, B_w_up, B_w_down):
    def _A_ref(x, k_cache, v_cache, wq, wo):
        B, Sq, D = x.shape
        Hq, Dh = 32, 128
        Hkv = k_cache.shape[1]
        rep = Hq // Hkv
        q = (lambda x, *d: x.permute(*d))((x @ wq).reshape(B, Sq, Hq, Dh), 0, 2, 1, 3)
        k = (lambda x, n, axis: torch.repeat_interleave(x, n, dim=axis))(k_cache, rep, axis=1)
        v = (lambda x, n, axis: torch.repeat_interleave(x, n, dim=axis))(v_cache, rep, axis=1)
        scores = torch.einsum("bhqd,bhkd->bhqk", q, k) * (Dh ** -0.5)
        p = _softmax(scores, axis=-1)
        o = torch.einsum("bhqk,bhkd->bhqd", p, v)
        return (lambda x, *d: x.permute(*d))(o, 0, 2, 1, 3).reshape(B, Sq, Hq * Dh) @ wo

    def _B_ref(x, w_gate, w_up, w_down):
        return (_gelu(x @ w_gate) * (x @ w_up)) @ w_down

    x = A_x
    xn = _layernorm(x, axis=-1)
    return x + _A_ref(xn, A_k_cache, A_v_cache, A_wq, A_wo) + _B_ref(xn, B_w_gate, B_w_up, B_w_down)
```

```python
import re


class Asm:
    def __init__(self):
        self.lines = []

    def __call__(self, s):
        for ln in s.split("\n"):
            ln = ln.strip()
            if ln:
                self.lines.append(ln)

    def label(self, name):
        self.lines.append(name + ":")

    def c(self, s):
        self.lines.append("; " + s)

    def text(self):
        out = []
        for ln in self.lines:
            if ln.endswith(":") or ln.startswith(".") or ln.startswith(";"):
                out.append(ln)
            else:
                out.append("    " + ln)
        return "\n".join(out) + "\n"


def vr(a, n=1):
    return f"v{a}" if n == 1 else f"v[{a}:{a+n-1}]"


def sr(a, n=1):
    return f"s{a}" if n == 1 else f"s[{a}:{a+n-1}]"


_REG = re.compile(r"^(-|abs\()?([vsa])(\d+)\)?$")
_RNG = re.compile(r"^(-)?([vsa])\[(\d+):(\d+)\]$")


def _regs(op):
    op = op.strip()
    if op == "vcc":
        return {("s", 106), ("s", 107)}
    if op == "exec":
        return {("s", 126), ("s", 127)}
    if op == "m0":
        return {("s", 124)}
    m = _REG.match(op)
    if m:
        return {(m.group(2), int(m.group(3)))}
    m = _RNG.match(op)
    if m:
        return {(m.group(2), i) for i in range(int(m.group(3)), int(m.group(4)) + 1)}
    return set()


TRANS = ("v_exp_f32", "v_log_f32", "v_rcp_f32", "v_rsq_f32", "v_sqrt_f32", "v_sin_f32", "v_cos_f32")


def parse(ln):
    ln = ln.split(";")[0].strip()
    if not ln or ln.endswith(":") or ln.startswith("."):
        return None
    parts = ln.split(None, 1)
    mn = parts[0]
    rest = parts[1] if len(parts) > 1 else ""
    ops = [o.strip() for o in re.split(r",(?![^\[]*\])", rest)] if rest else []
    mods = ""
    if ops:
        sp = ops[-1].split(None, 1)
        if len(sp) > 1:
            ops[-1] = sp[0]
            mods = sp[1]
    d = dict(mn=mn, ops=ops, mods=mods, w=set(), r=set(), text=ln)
    if mn.startswith("v_mfma"):
        d["cls"] = "mfma"
        d["w"] = _regs(ops[0])
        d["ab"] = _regs(ops[1]) | _regs(ops[2])
        d["c"] = _regs(ops[3])
        d["r"] = d["ab"] | d["c"]
        d["passes"] = 4 if "16x16x32" in mn else 8
    elif mn.startswith("v_"):
        d["cls"] = "valu"
        if mn.startswith("v_permlane"):
            d["w"] = _regs(ops[0]) | _regs(ops[1])
            d["r"] = set(d["w"])
        elif mn.startswith("v_cmp"):
            d["w"] = _regs(ops[0])
            for o in ops[1:]:
                d["r"] |= _regs(o)
        elif mn == "v_nop":
            pass
        else:
            d["w"] = _regs(ops[0])
            for o in ops[1:]:
                d["r"] |= _regs(o)
            if mn.startswith("v_fmac") or mn.startswith("v_dot2c") or mn.startswith("v_writelane"):
                d["r"] |= _regs(ops[0])
            if "_dpp" in mn:
                d["r"] |= _regs(ops[0])
    elif mn.startswith("buffer_") or mn.startswith("global_"):
        d["cls"] = "vmem"
        if "load" in mn:
            if "lds" in mods.split():
                for o in ops:
                    d["r"] |= _regs(o)
            else:
                d["w"] = _regs(ops[0])
                for o in ops[1:]:
                    d["r"] |= _regs(o)
        else:
            for o in ops:
                d["r"] |= _regs(o)
            if mn.startswith("buffer_"):
                d["sdata"] = _regs(ops[0])
            else:
                d["sdata"] = _regs(ops[1])
    elif mn.startswith("ds_"):
        d["cls"] = "ds"
        if "read" in mn or "permute" in mn or "swizzle" in mn:
            d["w"] = _regs(ops[0])
            for o in ops[1:]:
                d["r"] |= _regs(o)
        else:
            for o in ops:
                d["r"] |= _regs(o)
    else:
        d["cls"] = "salu"
        if mn == "s_nop":
            d["nop"] = int(ops[0], 0) + 1
    return d


def check_hazards(lines):
    ins = []
    for ln in lines:
        p = parse(ln)
        if p:
            ins.append(p)
    probs = []
    for i, c in enumerate(ins):
        dist = 0
        for k in range(i - 1, max(-1, i - 24), -1):
            p = ins[k]
            if p["mn"] in ("s_branch", "s_endpgm", "s_setpc_b64"):
                break
            need = 0
            vw = {x for x in p["w"] if x[0] in "va"}
            sw = {x for x in p["w"] if x[0] == "s"}
            if p["cls"] == "valu":
                if c["cls"] == "mfma" and vw & c["r"]:
                    need = max(need, 2)
                if c["cls"] == "valu":
                    if ("_dpp" in c["mn"]) and vw & c["r"]:
                        need = max(need, 2)
                    if c["mn"].startswith("v_permlane") and vw & c["r"]:
                        need = max(need, 2)
                    if c["mn"].startswith(("v_readlane", "v_readfirstlane")) and vw & c["r"]:
                        need = max(need, 1)
                    if p["mn"].startswith(TRANS) and not c["mn"].startswith(TRANS) and vw & c["r"]:
                        need = max(need, 1)
                    if sw & c["r"]:
                        need = max(need, 4 if c["mn"].startswith(("v_readlane", "v_writelane")) else 2)
                if c["cls"] == "vmem" and sw & c["r"]:
                    need = max(need, 5)
            if p["cls"] == "mfma":
                n = {4: 8, 8: 12}[p["passes"]]
                if c["cls"] == "mfma":
                    if p["w"] & c["ab"]:
                        need = max(need, n)
                    if p["w"] & c["c"] and p["w"] != c["c"]:
                        need = max(need, n - 2)
                elif c["cls"] in ("valu", "vmem", "ds"):
                    if p["w"] & (c["r"] | c["w"]):
                        need = max(need, n)
                    if c["cls"] == "valu" and p["c"] & c["w"]:
                        need = max(need, {4: 3, 8: 7}[p["passes"]])
            if p["cls"] == "vmem" and "sdata" in p and len(p["sdata"]) >= 3:
                if p["sdata"] & c["w"]:
                    need = max(need, 2)
            if need > dist:
                probs.append(f"hazard: need {need} have {dist}: [{p['text']}] -> [{c['text']}]")
            dist += p.get("nop", 1)
    return probs
```

```python
import sys
import argparse
from asmlib import Asm, vr, sr, check_hazards

NAME = "parallel_sum__gqa_block_cached__geglu_ffn__decode"

QP_OFF = 0x000000
GP_OFF = 0x020000
ML_OFF = 0x060000
OP_OFF = 0x080000
XP_OFF = 0x180000
ST_OFF = 0x200000
WS_SIZE = 0x400000
XN = 0x0000
QB = 0x0C00
MLB = 0x1480
FB = 0x1580
OB = 0x1600
HB = 0x1700
ORED = 0x1800
LDS_SIZE = 0x5A00

LOG2E = 0x3FB8AA3B
SCALE = 0x3DB504F3
EPS = 0x3727C5AC

HEADER = open("cdna_kernels/" + NAME + ".s.ref").read().split("; Override launch")[0]


def gen(cfg):
    a = Asm()
    R = cfg.ring
    KNT = " nt" if cfg.knt else ""
    VNT = " nt" if cfg.vnt else ""
    WNT = " nt" if cfg.wnt else ""
    stamp_idx = {}

    def stamp(k):
        if cfg.stamps:
            a(f"s_memrealtime s[{70+2*k}:{71+2*k}]")

    def dump_stamps(n):
        if not cfg.stamps:
            return
        a("s_waitcnt lgkmcnt(0)")
        a("s_mov_b64 exec, 1")
        a("s_lshl_b32 s4, s2, 10")
        a("s_lshl_b32 s5, s3, 7")
        a("s_add_u32 s4, s4, s5")
        a(f"s_add_u32 s4, s4, {ST_OFF}")
        a("v_mov_b32 v3, 0")
        for k in range(n):
            a(f"v_mov_b32 v1, s{70+2*k}")
            a(f"buffer_store_dword v1, v3, s[48:51], s4 offen offset:{4*k}")

    def srd(d, p, size):
        a(f"s_mov_b32 s{d}, s{p}")
        a(f"s_mov_b32 s{d+1}, s{p+1}")
        a(f"s_mov_b32 s{d+2}, {size:#x}")
        a(f"s_mov_b32 s{d+3}, 0x20000")

    uid = [0]

    def poll(loads, check, sleep=cfg.sleep):
        uid[0] += 1
        n = uid[0]
        a(f"s_mov_b32 s15, {cfg.spin}")
        a.label(f"L_poll{n}")
        loads()
        a("s_waitcnt vmcnt(0)")
        check()
        a(f"s_cbranch_scc1 L_pdone{n}")
        a("s_sub_u32 s15, s15, 1")
        a(f"s_cbranch_scc1 L_pdone{n}")
        if sleep:
            a(f"s_sleep {sleep}")
        a(f"s_branch L_poll{n}")
        a.label(f"L_pdone{n}")

    def check_sentinel(regs, tmp):
        regs = list(regs)
        a(f"v_max3_u32 v{tmp}, v{regs[0]}, v{regs[1]}, v{regs[2]}")
        regs = regs[3:]
        while len(regs) >= 2:
            a(f"v_max3_u32 v{tmp}, v{tmp}, v{regs[0]}, v{regs[1]}")
            regs = regs[2:]
        if regs:
            a(f"v_max_u32 v{tmp}, v{tmp}, v{regs[0]}")
        a(f"v_cmp_ne_u32 vcc, -1, v{tmp}")
        a("s_cmp_eq_u64 vcc, -1")

    def xlane(op, x, t, steps):
        for s in steps:
            if s in (1, 2, 4, 8):
                a("s_nop 1")
                a(f"{op}_dpp v{x}, v{x}, v{x} row_ror:{s} row_mask:0xf bank_mask:0xf")
            else:
                a(f"v_mov_b32 v{t}, v{x}")
                a("s_nop 1")
                a(f"v_permlane{s}_swap_b32 v{x}, v{t}")
                a(f"{op} v{x}, v{x}, v{t}")

    def round_bf16(d, s):
        a(f"v_cvt_pk_bf16_f32 v{d}, v{s}, v{s}")
        a(f"v_lshlrev_b32 v{d}, 16, v{d}")

    def perms(dst, src_e, i):
        for p in range(4):
            a(f"v_perm_b32 v{dst+p}, v{src_e(2*p+1)+i}, v{src_e(2*p)+i}, s64")
        for p in range(4):
            a(f"v_perm_b32 v{dst+4+p}, v{src_e(2*p+1)+i}, v{src_e(2*p)+i}, s65")

    def consts():
        a("s_mov_b32 s64, 0x05040100")
        a("s_mov_b32 s65, 0x07060302")
        a("s_mov_b32 s66, 0xffff0000")
        a(f"s_mov_b32 s67, {LOG2E:#x}")
        a(f"s_mov_b32 s68, {SCALE:#x}")

    a("s_cmp_ge_u32 s2, 256")
    a("s_cbranch_scc1 L_END")
    a("s_load_dwordx16 s[16:31], s[0:1], 0")
    a("s_load_dwordx8 s[32:39], s[0:1], 64")
    stamp(0)
    if cfg.codepf:
        a("s_getpc_b64 s[4:5]")
        a(f"v_lshlrev_b32 v1, {cfg.codepf}, v0")
        a("global_load_dword v2, v1, s[4:5]")
    a("v_lshrrev_b32 v3, 6, v0")
    a("v_and_b32 v0, 63, v0")
    a("v_readfirstlane_b32 s3, v3")
    a("v_and_b32 v4, 15, v0")
    a("v_lshrrev_b32 v5, 4, v0")
    a("s_cmp_ge_u32 s3, 4")
    a("s_cbranch_scc1 L_ATT")
    a("s_lshr_b32 s6, s2, 2")
    a("s_and_b32 s7, s2, 3")
    consts()
    a("s_cmp_eq_u32 s3, 3")
    a("s_cbranch_scc1 L_S3")

    XA = 16
    XO = 32
    XU = 36
    WR = 72
    ACC = 200
    PT = 232
    XV = 248
    a("s_waitcnt lgkmcnt(0)")
    srd(48, 38, WS_SIZE)
    srd(52, 36, 256)
    srd(56, 16, 4096)
    a("s_cmp_eq_u32 s3, 0")
    a("s_cselect_b64 s[40:41], s[22:23], s[28:29]")
    a("s_cselect_b32 s8, 8, 7")
    a("s_mul_i32 s42, s8, 0x100000")
    a("s_mov_b32 s43, 0x20000")
    a("s_mul_i32 s8, s8, 1024")
    a("s_cselect_b32 s9, 14, 8")
    a("s_cbranch_scc1 L_S_go")
    a("s_cmp_ge_u32 s6, 56")
    a("s_cbranch_scc1 L_S_B1")
    a("s_cmp_eq_u32 s3, 2")
    a("s_cselect_b64 s[40:41], s[30:31], s[40:41]")
    a.label("L_S_go")
    a("v_lshlrev_b32 v6, 6, v0")
    for i in range(4):
        a(f"buffer_load_dwordx4 {vr(XA+4*i,4)}, v6, s[56:59], 0 offen offset:{16*i}")
    a("v_lshrrev_b32 v7, 5, v0")
    a("v_lshlrev_b32 v7, 11, v7")
    a("v_and_b32 v8, 31, v0")
    a("v_lshl_add_u32 v7, v8, 4, v7")
    a("s_lshl_b32 s10, s7, 9")
    a(f"buffer_load_dwordx4 {vr(XO,4)}, v7, s[56:59], s10 offen")
    a("v_lshrrev_b32 v8, 3, v4")
    a("v_and_b32 v9, 7, v4")
    a("v_lshlrev_b32 v10, 3, v8")
    a("v_lshl_add_u32 v10, v5, 4, v10")
    a("v_mul_lo_u32 v10, v10, s8")
    a("v_lshl_add_u32 v10, v9, 4, v10")
    a("s_lshl_b32 s10, s7, 8")
    a("s_mul_i32 s10, s10, s8")
    a("s_lshl_b32 s11, s6, 7")
    a("s_add_u32 s10, s10, s11")
    a("s_mul_i32 s11, s8, 57")
    for T in range(4):
        for e in range(8):
            a(f"buffer_load_dwordx4 {vr(WR+32*T+4*e,4)}, v10, s[40:43], s10 offen{WNT}")
            if not (T == 3 and e == 7):
                a(f"s_add_u32 s10, s10, {'s11' if e == 7 else 's8'}")
    stamp(1)
    a("s_waitcnt vmcnt(32)")
    stamp(2)
    for i in range(16):
        a(f"v_lshlrev_b32 v{XU+2*i}, 16, v{XA+i}")
        a(f"v_and_b32 v{XU+2*i+1}, s66, v{XA+i}")
    for k in range(4):
        a(f"v_add_f32 v{11+k}, v{XU+k}, v{XU+4+k}")
    for i in range(8, 32):
        a(f"v_add_f32 v{11+(i&3)}, v{11+(i&3)}, v{XU+i}")
    a("v_add_f32 v11, v11, v12")
    a("v_add_f32 v13, v13, v14")
    a("v_add_f32 v11, v11, v13")
    xlane("v_add_f32", 11, 12, [8, 4, 2, 1, 16])
    a("v_mul_f32 v11, 0x3a800000, v11")
    for i in range(32):
        a(f"v_sub_f32 v{XU+i}, v{XU+i}, v11")
    for k in range(4):
        a(f"v_mul_f32 v{12+k}, v{XU+k}, v{XU+k}")
    for i in range(4, 32):
        a(f"v_fmac_f32 v{12+(i&3)}, v{XU+i}, v{XU+i}")
    a("v_add_f32 v12, v12, v13")
    a("v_add_f32 v14, v14, v15")
    a("v_add_f32 v12, v12, v14")
    xlane("v_add_f32", 12, 13, [8, 4, 2, 1, 16])
    a("v_mul_f32 v12, 0x3a800000, v12")
    round_bf16(11, 11)
    round_bf16(12, 12)
    a(f"v_add_f32 v12, {EPS:#x}, v12")
    round_bf16(12, 12)
    a("v_sqrt_f32 v12, v12")
    a("s_nop 0")
    round_bf16(12, 12)
    a("v_rcp_f32 v13, v12")
    for i in range(4):
        a(f"v_lshlrev_b32 v{XU+2*i}, 16, v{XO+i}")
        a(f"v_and_b32 v{XU+2*i+1}, s66, v{XO+i}")
    for i in range(8):
        a(f"v_sub_f32 v{XU+i}, v{XU+i}, v11")
    for i in range(4):
        a(f"v_cvt_pk_bf16_f32 v{XO+i}, v{XU+2*i}, v{XU+2*i+1}")
    for i in range(4):
        a(f"v_lshlrev_b32 v{XU+2*i}, 16, v{XO+i}")
        a(f"v_and_b32 v{XU+2*i+1}, s66, v{XO+i}")
    for i in range(8):
        a(f"v_mul_f32 v{XU+8+i}, v{XU+i}, v13")
    for i in range(8):
        a(f"v_fma_f32 v{XU+i}, -v{XU+8+i}, v12, v{XU+i}")
    for i in range(8):
        a(f"v_fmac_f32 v{XU+8+i}, v{XU+i}, v13")
    for i in range(4):
        a(f"v_cvt_pk_bf16_f32 v{XO+i}, v{XU+8+2*i}, v{XU+8+2*i+1}")
    a("s_lshl_b32 s10, s3, 10")
    a("v_lshlrev_b32 v11, 4, v0")
    a("v_add_u32 v11, s10, v11")
    a(f"ds_write_b128 v11, {vr(XO,4)} offset:{XN}")
    a("v_bfe_u32 v11, v4, 2, 1")
    a("v_lshlrev_b32 v11, 9, v11")
    a("v_lshl_add_u32 v11, v5, 5, v11")
    a("v_and_b32 v12, 1, v4")
    a("v_lshl_add_u32 v11, v12, 4, v11")
    a("v_add_u32 v11, s10, v11")
    a("s_waitcnt lgkmcnt(0)")
    for T in range(4):
        a(f"ds_read_b128 {vr(XU+4*T,4)}, v11 offset:{XN+128*T}")
    stamp(3)
    a("v_lshlrev_b32 v12, s9, v5")
    a("v_lshl_add_u32 v12, v9, 5, v12")
    a("s_lshl_b32 s10, s7, 15")
    a("s_lshl_b32 s11, s6, 8")
    a("s_add_u32 s10, s10, s11")
    a("s_lshl_b32 s11, s2, 10")
    a("s_lshl_b32 s12, s3, 9")
    a("s_add_u32 s11, s11, s12")
    a(f"s_add_u32 s11, s11, {GP_OFF-512}")
    a("s_cmp_eq_u32 s3, 0")
    a("s_cselect_b32 s10, s10, s11")
    a("s_waitcnt lgkmcnt(0)")
    for T in range(4):
        a(f"s_waitcnt vmcnt({24-8*T})")
        src = lambda e, T=T: WR + 32 * T + 4 * e

        def M(i, T=T):
            for h in range(2):
                j = 2 * i + h
                c = "0" if T == 0 else vr(ACC + 4 * j, 4)
                a(f"v_mfma_f32_16x16x32_bf16 {vr(ACC+4*j,4)}, {vr(XU+4*T,4)}, {vr(PT+8*(i&1)+4*h,4)}, {c}")
        perms(PT, src, 0)
        perms(PT + 8, src, 1)
        M(0)
        perms(PT, src, 2)
        M(1)
        perms(PT + 8, src, 3)
        M(2)
        M(3)
    stamp(4)
    a("s_nop 7")
    for j in range(8):
        a(f"v_add_f32_dpp v{PT+j}, v{ACC+4*j+1}, v{ACC+4*j} row_ror:8 row_mask:0xf bank_mask:0xf")
    a("s_mov_b64 exec, 0x00ff00ff")
    a(f"buffer_store_dwordx4 {vr(PT,4)}, v12, s[48:51], s10 offen sc1")
    a(f"buffer_store_dwordx4 {vr(PT+4,4)}, v12, s[48:51], s10 offen offset:16 sc1")
    a("s_mov_b64 exec, -1")
    a("s_waitcnt vmcnt(0)")
    a("s_cmp_lg_u32 s3, 0")
    a("s_cbranch_scc1 L_S_B1")
    a("s_mov_b64 exec, 1")
    a("v_mov_b32 v11, 1")
    a("v_mov_b32 v12, 0")
    a("buffer_store_byte v11, v12, s[52:55], s2 offen sc1")
    a("s_mov_b64 exec, -1")
    a("s_waitcnt vmcnt(0)")
    a.label("L_S_B1")
    stamp(5)
    a("s_barrier")
    a("s_cmp_eq_u32 s3, 1")
    a("s_cbranch_scc1 L_S1_h")
    a("s_cmp_lg_u32 s3, 0")
    a("s_cbranch_scc1 L_S_B2")
    a("s_mov_b64 exec, 1")
    a("v_mov_b32 v11, 3")
    a("v_mov_b32 v12, 0")
    a("buffer_store_byte v11, v12, s[52:55], s2 offen sc1")
    a("s_mov_b64 exec, -1")
    a("s_branch L_S_B2")

    a.label("L_S1_h")
    a("s_cmp_ge_u32 s6, 56")
    a("s_cbranch_scc1 L_S_B2")
    a("s_lshl_b32 s10, s6, 2")
    a("v_mov_b32 v12, 0")
    a("s_mov_b32 s11, 0x03030303")

    def ld():
        a("buffer_load_dword v11, v12, s[52:55], s10 offen sc1")

    def ck():
        a("v_cmp_eq_u32 vcc, s11, v11")
        a("s_cmp_eq_u64 vcc, -1")
    poll(ld, ck)
    a("v_lshlrev_b32 v12, 3, v0")
    a("s_lshl_b32 s10, s6, 12")
    a(f"s_add_u32 s10, s10, {GP_OFF}")
    for kq in range(4):
        for m in range(2):
            a(f"buffer_load_dwordx2 {vr(16+4*kq+2*m,2)}, v12, s[48:51], s10 offen offset:{kq*1024+m*512} sc1")
    a("s_waitcnt vmcnt(0)")
    for k in range(4):
        a(f"v_add_f32 v{16+k}, v{16+k}, v{20+k}")
        a(f"v_add_f32 v{24+k}, v{24+k}, v{28+k}")
    for k in range(4):
        a(f"v_add_f32 v{16+k}, v{16+k}, v{24+k}")
    a("v_cvt_pk_bf16_f32 v20, v16, v17")
    a("v_cvt_pk_bf16_f32 v21, v18, v19")
    a("v_lshlrev_b32 v16, 16, v20")
    a("v_and_b32 v17, s66, v20")
    a("v_lshlrev_b32 v18, 16, v21")
    a("v_and_b32 v19, s66, v21")
    c1 = 0x3D372713
    import struct
    import math
    c2 = struct.unpack("<I", struct.pack("<f", -2.0 * math.sqrt(2.0 / math.pi) * math.log2(math.e)))[0]
    a(f"s_mov_b32 s10, {c1:#x}")
    a(f"s_mov_b32 s11, {c2:#x}")
    for k in range(2):
        a(f"v_mul_f32 v{20+k}, v{16+k}, v{16+k}")
    for k in range(2):
        a(f"v_mul_f32 v{20+k}, v{20+k}, v{16+k}")
    for k in range(2):
        a(f"v_fma_f32 v{20+k}, v{20+k}, s10, v{16+k}")
    for k in range(2):
        a(f"v_mul_f32 v{20+k}, s11, v{20+k}")
    for k in range(2):
        a(f"v_exp_f32 v{20+k}, v{20+k}")
    a("s_nop 0")
    for k in range(2):
        a(f"v_add_f32 v{20+k}, 1.0, v{20+k}")
    for k in range(2):
        a(f"v_rcp_f32 v{20+k}, v{20+k}")
    a("s_nop 0")
    for k in range(2):
        a(f"v_mul_f32 v{20+k}, v{20+k}, v{16+k}")
    a("v_cvt_pk_bf16_f32 v22, v20, v21")
    a("v_lshlrev_b32 v20, 16, v22")
    a("v_and_b32 v21, s66, v22")
    a("v_mul_f32 v20, v20, v18")
    a("v_mul_f32 v21, v21, v19")
    a("v_cvt_pk_bf16_f32 v22, v20, v21")
    a("v_lshlrev_b32 v12, 2, v0")
    a(f"ds_write_b32 v12, v22 offset:{HB}")
    a("s_waitcnt lgkmcnt(0)")
    a.label("L_S_B2")
    stamp(6)
    a("s_barrier")
    a("s_branch L_S_X")

    a.label("L_S3")
    a("v_lshlrev_b32 v6, 4, v0")
    for k in range(4):
        a(f"v_mov_b32 v{16+k}, -1")
    a("s_lshl_b32 s10, s2, 12")
    a(f"s_add_u32 s10, s10, {OP_OFF}")
    a("s_lshl_b32 s11, s6, 13")
    a("s_lshl_b32 s12, s7, 10")
    a("s_add_u32 s11, s11, s12")
    a(f"s_add_u32 s11, s11, {XP_OFF}")
    a("s_add_u32 s12, s11, 4096")
    a("s_lshl_b32 s13, s2, 6")
    a(f"s_add_u32 s13, s13, {ML_OFF}")
    a("s_waitcnt lgkmcnt(0)")
    srd(48, 38, WS_SIZE)
    srd(52, 36, 256)
    for i in range(4):
        a(f"buffer_store_dwordx4 v[16:19], v6, s[48:51], s10 offen offset:{1024*i} sc1")
    a("buffer_store_dwordx4 v[16:19], v6, s[48:51], s11 offen sc1")
    a("buffer_store_dwordx4 v[16:19], v6, s[48:51], s12 offen sc1")
    a("s_mov_b64 exec, 15")
    a("buffer_store_dwordx4 v[16:19], v6, s[48:51], s13 offen sc1")
    a("s_mov_b64 exec, -1")
    a("s_lshr_b32 s10, s2, 5")
    a("s_and_b32 s10, s10, 3")
    a("s_lshl_b32 s10, s10, 4")
    a("s_mov_b64 s[8:9], 0xffff")
    a("s_lshl_b64 s[8:9], s[8:9], s10")
    a("s_mov_b32 s11, 0x01010101")
    a("v_lshlrev_b32 v7, 2, v0")

    def ld():
        a("buffer_load_dword v11, v7, s[52:55], 0 offen sc1")

    def ck():
        a("v_and_b32 v11, s11, v11")
        a("v_cmp_eq_u32 vcc, s11, v11")
        a("s_and_b64 vcc, vcc, s[8:9]")
        a("s_cmp_eq_u64 vcc, s[8:9]")
    stamp(1)
    poll(ld, ck)
    stamp(2)
    a("s_lshr_b32 s10, s2, 5")
    a("s_lshl_b32 s10, s10, 12")
    if QP_OFF:
        a(f"s_add_u32 s10, s10, {QP_OFF}")
    for kq in range(4):
        for i in range(4):
            a(f"buffer_load_dwordx4 {vr(32+16*kq+4*i,4)}, v6, s[48:51], s10 offen offset:{1024*i} sc1")
        if kq < 3:
            a("s_add_u32 s10, s10, 32768")
    a("v_lshrrev_b32 v8, 5, v0")
    a("v_mul_u32_u24 v8, 272, v8")
    a("v_and_b32 v9, 31, v0")
    a("v_lshl_add_u32 v8, v9, 3, v8")
    a("s_waitcnt vmcnt(0)")
    stamp(3)
    for k in range(16):
        a(f"v_add_f32 v{32+k}, v{32+k}, v{48+k}")
        a(f"v_add_f32 v{64+k}, v{64+k}, v{80+k}")
    for k in range(16):
        a(f"v_add_f32 v{32+k}, v{32+k}, v{64+k}")
    for i in range(4):
        a(f"v_cvt_pk_bf16_f32 v{48+2*i}, v{32+4*i}, v{33+4*i}")
        a(f"v_cvt_pk_bf16_f32 v{49+2*i}, v{34+4*i}, v{35+4*i}")
        a(f"ds_write_b64 v8, {vr(48+2*i,2)} offset:{QB+544*i}")
    a("s_waitcnt lgkmcnt(0)")
    stamp(5)
    a("s_barrier")
    a("s_mov_b32 s11, 0x03030303")

    def ck():
        a("v_cmp_eq_u32 vcc, s11, v11")
        a("s_cmp_eq_u64 vcc, -1")
    poll(ld, ck)
    stamp(6)
    a("s_barrier")
    a("v_and_b32 v8, 7, v0")
    a("v_lshlrev_b32 v8, 3, v8")
    for w in range(4):
        a(f"ds_read_b64 {vr(16+2*w,2)}, v8 offset:{MLB+64*w}")
    a("v_and_b32 v9, 31, v0")
    a("v_lshlrev_b32 v9, 3, v9")
    a(f"ds_read_b32 v30, v9 offset:{MLB}")
    a("s_waitcnt lgkmcnt(0)")

    def combine4(mo, lo):
        a(f"v_max3_f32 v{mo}, v16, v18, v20")
        a(f"v_max_f32 v{mo}, v{mo}, v22")

    def wsum4(mo, lo):
        for w in range(4):
            a(f"v_sub_f32 v{16+2*w}, v{16+2*w}, v{mo}")
        for w in range(4):
            a(f"v_mul_f32 v{16+2*w}, s67, v{16+2*w}")
        for w in range(4):
            a(f"v_exp_f32 v{16+2*w}, v{16+2*w}")
        a("s_nop 0")
        a(f"v_mul_f32 v{lo}, v16, v17")
        for w in range(1, 4):
            a(f"v_fmac_f32 v{lo}, v{16+2*w}, v{17+2*w}")
    combine4(24, 25)
    wsum4(24, 25)
    a("v_min_u32 v24, -2, v24")
    a("v_min_u32 v25, -2, v25")
    a("s_mov_b64 exec, 0xff")
    a("buffer_store_dwordx2 v[24:25], v8, s[48:51], s13 offen sc1")
    a("s_mov_b64 exec, -1")
    a("s_lshr_b32 s10, s2, 5")
    a("s_lshl_b32 s10, s10, 11")
    a(f"s_add_u32 s10, s10, {ML_OFF}")
    a("v_lshlrev_b32 v9, 3, v0")

    def ld2():
        for i in range(4):
            a(f"buffer_load_dwordx2 {vr(16+2*i,2)}, v9, s[48:51], s10 offen offset:{512*i} sc1")
    poll(ld2, lambda: check_sentinel(range(16, 24), 11))
    stamp(7)
    combine4(26, 27)
    xlane("v_max_f32", 26, 11, [8, 16, 32])
    wsum4(26, 27)
    xlane("v_add_f32", 27, 11, [8, 16, 32])
    a("v_sub_f32 v30, v30, v26")
    a("v_mul_f32 v30, s67, v30")
    a("v_exp_f32 v30, v30")
    a("v_rcp_f32 v27, v27")
    a("v_bfe_u32 v9, v0, 3, 2")
    a("v_lshlrev_b32 v9, 2, v9")
    a("v_lshl_add_u32 v9, v8, 1, v9")
    a("v_mul_f32 v30, v30, v27")
    a(f"ds_write_b32 v9, v30 offset:{FB}")
    a("s_waitcnt lgkmcnt(0)")

    a.label("L_S_X")
    TW = 32
    TP = 96
    XACC = 160
    srd(40, 24, 0x800000)
    srd(44, 32, 0x700000)
    a("v_lshrrev_b32 v8, 3, v4")
    a("v_and_b32 v9, 7, v4")
    a("v_lshrrev_b32 v10, 1, v5")
    a("v_lshlrev_b32 v10, 5, v10")
    a("v_and_b32 v11, 1, v5")
    a("v_lshl_add_u32 v10, v11, 2, v10")
    a("v_lshl_add_u32 v10, v8, 1, v10")
    a("v_lshlrev_b32 v10, 11, v10")
    a("v_lshl_add_u32 v10, v9, 4, v10")
    a("v_lshlrev_b32 v11, 3, v8")
    a("v_lshl_add_u32 v11, v5, 4, v11")
    a("v_lshlrev_b32 v11, 11, v11")
    a("v_lshl_add_u32 v11, v9, 4, v11")
    a("s_lshl_b32 s10, s6, 17")
    a("s_lshl_b32 s11, s7, 9")
    a("s_add_u32 s10, s10, s11")
    a("s_lshl_b32 s11, s3, 7")
    a("s_add_u32 s10, s10, s11")
    if cfg.b2b:
        a("s_barrier")
    a("s_mov_b32 s11, s10")
    for r in range(4):
        for hi in range(2):
            e = 4 * hi + r
            a(f"buffer_load_dwordx4 {vr(TW+4*e,4)}, v10, s[40:43], s11 offen offset:{2048*hi}{WNT}")
        if r < 3:
            a("s_add_u32 s11, s11, 16384")
    for e in range(8):
        a(f"buffer_load_dwordx4 {vr(TW+32+4*e,4)}, v11, s[44:47], s10 offen offset:{2048*(e&1)}{WNT}")
        if (e & 1) and e < 7:
            a("s_add_u32 s10, s10, 4096")
    a("v_bfe_u32 v12, v4, 2, 1")
    a("v_lshlrev_b32 v12, 7, v12")
    a("v_lshl_add_u32 v12, v5, 5, v12")
    a("v_and_b32 v13, 1, v4")
    a("v_lshl_add_u32 v12, v13, 4, v12")
    a("v_lshlrev_b32 v13, 12, v5")
    a("v_lshl_add_u32 v13, v9, 5, v13")
    a("s_lshl_b32 s10, s6, 13")
    a("s_lshl_b32 s11, s7, 10")
    a("s_add_u32 s10, s10, s11")
    a("s_lshl_b32 s11, s3, 8")
    a("s_add_u32 s10, s10, s11")
    a(f"s_add_u32 s10, s10, {XP_OFF}")
    if not cfg.late_perm:
        pass
    a("s_barrier") if cfg.late_perm else None
    a("s_waitcnt vmcnt(8)")
    for i in range(4):
        perms(TP + 8 * i, lambda e: TW + 4 * e, i)
    a("s_waitcnt vmcnt(0)")
    for i in range(4):
        perms(TP + 32 + 8 * i, lambda e: TW + 32 + 4 * e, i)
    stamp(8)
    if not cfg.late_perm:
        a("s_barrier")
    a("s_cmp_ge_u32 s6, 56")
    a("s_cbranch_scc1 L_S_noffn")
    a(f"ds_read_b128 v[20:23], v12 offset:{HB}")
    a("s_waitcnt lgkmcnt(0)")
    for j in range(8):
        a(f"v_mfma_f32_16x16x32_bf16 {vr(XACC+4*j,4)}, v[20:23], {vr(TP+32+4*j,4)}, 0")
    a("s_branch L_S_B4")
    a.label("L_S_noffn")
    for k in range(32):
        a(f"v_mov_b32 v{XACC+k}, 0")
    a.label("L_S_B4")
    a("s_barrier")
    stamp(9)
    a(f"ds_read_b128 v[16:19], v12 offset:{OB}")
    a("s_waitcnt lgkmcnt(0)")
    for j in range(8):
        a(f"v_mfma_f32_16x16x32_bf16 {vr(XACC+4*j,4)}, v[16:19], {vr(TP+4*j,4)}, {vr(XACC+4*j,4)}")
    a("s_nop 1")
    for j in range(8):
        if j == 7:
            a("s_nop 0")
        a(f"v_add_f32_dpp v{24+j}, v{XACC+4*j+1}, v{XACC+4*j} row_ror:8 row_mask:0xf bank_mask:0xf")
    for j in range(8):
        a(f"v_min_u32 v{24+j}, -2, v{24+j}")
    a("s_mov_b64 exec, 0x00ff00ff")
    a("buffer_store_dwordx4 v[24:27], v13, s[48:51], s10 offen sc1")
    a("buffer_store_dwordx4 v[28:31], v13, s[48:51], s10 offen offset:16 sc1")
    stamp(10)
    dump_stamps(11)
    a("s_endpgm")

    a.label("L_ATT")
    RING = 16
    SC = RING + 16 * R
    QR = SC + 32
    ST = QR + 16
    AC = QR
    PTA = AC + 32
    assert PTA + 16 <= 256
    a("s_sub_u32 s6, s3, 4")
    a("v_and_b32 v6, 3, v4")
    a("v_lshrrev_b32 v7, 2, v4")
    a("v_lshl_add_u32 v6, v6, 2, v7")
    a("v_lshlrev_b32 v6, 8, v6")
    a("v_lshl_add_u32 v6, v5, 4, v6")
    a("v_lshlrev_b32 v7, 4, v0")
    a("s_lshl_b32 s7, s2, 18")
    a("s_lshl_b32 s8, s6, 16")
    a("s_add_u32 s7, s7, s8")
    a("s_mov_b32 s8, s7")
    a("s_waitcnt lgkmcnt(0)")
    srd(40, 18, 0x4000000)
    srd(44, 20, 0x4000000)
    issued = [0]

    def issue(item):
        assert item == issued[0]
        slot = RING + 16 * (item % R)
        if item < 16:
            for c in range(4):
                a(f"buffer_load_dwordx4 {vr(slot+4*c,4)}, v6, s[40:43], s7 offen offset:{64*c}{KNT}")
            if item < 15:
                a("s_add_u32 s7, s7, 4096")
        else:
            for r in range(4):
                a(f"buffer_load_dwordx4 {vr(slot+4*r,4)}, v7, s[44:47], s8 offen offset:{1024*r}{VNT}")
            if item < 31:
                a("s_add_u32 s8, s8, 4096")
        issued[0] += 1

    def wait_item(item):
        n = (issued[0] - item - 1) * 4
        a(f"s_waitcnt vmcnt({n})")

    for it in range(R):
        issue(it)
    stamp(1)
    srd(48, 38, WS_SIZE)
    consts()
    a("v_and_b32 v8, 7, v4")
    a("v_mul_u32_u24 v9, 272, v8")
    a("v_lshl_add_u32 v9, v5, 4, v9")
    a("v_mov_b32 v10, 0xff800000")
    a("s_barrier")
    stamp(2)
    for c in range(4):
        a(f"ds_read_b128 {vr(QR+4*c,4)}, v9 offset:{QB+64*c}")
    a("s_waitcnt lgkmcnt(0)")

    def post(i):
        t = ST + 4 * (i & 1)
        w = ST + 8
        a(f"v_max3_f32 v10, v10, v{t}, v{t+1}")
        a(f"v_cvt_pk_bf16_f32 v{w+4}, v{t}, v{t+1}")
        a(f"v_cvt_pk_bf16_f32 v{w+5}, v{t+2}, v{t+3}")
        a(f"v_max3_f32 v10, v10, v{t+2}, v{t+3}")
        a(f"v_lshlrev_b32 v{w}, 16, v{w+4}")
        a(f"v_and_b32 v{w+1}, s66, v{w+4}")
        a(f"v_lshlrev_b32 v{w+2}, 16, v{w+5}")
        a(f"v_and_b32 v{w+3}, s66, v{w+5}")
        for k in range(4):
            a(f"v_mul_f32 v{w+k}, s68, v{w+k}")
        a(f"v_cvt_pk_bf16_f32 v{SC+2*i}, v{w}, v{w+1}")
        a(f"v_cvt_pk_bf16_f32 v{SC+2*i+1}, v{w+2}, v{w+3}")

    for i in range(16):
        wait_item(i)
        slot = RING + 16 * (i % R)
        t = ST + 4 * (i & 1)
        for c in range(4):
            cc = "0" if c == 0 else vr(t, 4)
            a(f"v_mfma_f32_16x16x32_bf16 {vr(t,4)}, {vr(slot+4*c,4)}, {vr(QR+4*c,4)}, {cc}")
        issue(i + R)
        if i >= 1:
            post(i - 1)
    post(15)
    stamp(3)
    xlane("v_max_f32", 10, 11, [16, 32])
    round_bf16(12, 10)
    a("v_mul_f32 v12, s68, v12")
    round_bf16(12, 12)
    a("v_mul_f32 v11, s67, v12")
    a("v_mov_b32 v13, 0")
    a("v_mov_b32 v14, 0")
    w = ST
    for k in range(0, 32, 2):
        for q in range(2):
            a(f"v_lshlrev_b32 v{w+2*q}, 16, v{SC+k+q}")
            a(f"v_and_b32 v{w+2*q+1}, s66, v{SC+k+q}")
        for q in range(4):
            a(f"v_fma_f32 v{w+q}, v{w+q}, s67, -v11")
        for q in range(4):
            a(f"v_exp_f32 v{w+q}, v{w+q}")
        a(f"v_add_f32 v13, v13, v{w}")
        a(f"v_add_f32 v14, v14, v{w+1}")
        a(f"v_cvt_pk_bf16_f32 v{SC+k}, v{w}, v{w+1}")
        a(f"v_add_f32 v13, v13, v{w+2}")
        a(f"v_add_f32 v14, v14, v{w+3}")
        a(f"v_cvt_pk_bf16_f32 v{SC+k+1}, v{w+2}, v{w+3}")
    a("v_add_f32 v13, v13, v14")
    xlane("v_add_f32", 13, 14, [16, 32])
    a("s_lshl_b32 s9, s6, 6")
    a("v_lshlrev_b32 v14, 3, v0")
    a("v_add_u32 v14, s9, v14")
    a("s_mov_b64 exec, 0xff")
    a(f"ds_write_b64 v14, v[12:13] offset:{MLB}")
    a("s_mov_b64 exec, -1")
    a("s_waitcnt lgkmcnt(0)")
    stamp(4)
    a("s_barrier")
    for u in range(8):
        wait_item(17 + 2 * u)
        s0 = RING + 16 * ((16 + 2 * u) % R)
        s1 = RING + 16 * ((17 + 2 * u) % R)
        src = lambda e, s0=s0, s1=s1: (s0 if e < 4 else s1) + 4 * (e & 3)

        def M(i, u=u):
            for h in range(2):
                j = 2 * i + h
                c = "0" if u == 0 else vr(AC + 4 * j, 4)
                a(f"v_mfma_f32_16x16x32_bf16 {vr(AC+4*j,4)}, {vr(PTA+8*(i&1)+4*h,4)}, {vr(SC+4*u,4)}, {c}")
        perms(PTA, src, 0)
        perms(PTA + 8, src, 1)
        M(0)
        perms(PTA, src, 2)
        M(1)
        perms(PTA + 8, src, 3)
        M(2)
        M(3)
        did = False
        for it in (16 + 2 * u + R, 17 + 2 * u + R):
            if it < 32:
                issue(it)
                did = True
        if cfg.b2b and u == cfg.b2b - 1:
            a("s_barrier")
    stamp(5)
    a("s_mul_i32 s9, s6, 4224")
    a("v_mul_u32_u24 v11, 528, v4")
    a("v_lshl_add_u32 v11, v5, 7, v11")
    a("v_add_u32 v11, s9, v11")
    a("v_lshrrev_b32 v12, 5, v0")
    a("s_lshl_b32 s9, s6, 1")
    a("v_add_u32 v12, s9, v12")
    a("v_lshlrev_b32 v13, 4, v12")
    a("v_mul_u32_u24 v12, 528, v12")
    a("v_and_b32 v14, 31, v0")
    a("v_lshl_add_u32 v12, v14, 4, v12")
    a("s_mov_b64 exec, 0x00ff00ff00ff00ff") if False else None
    a("s_mov_b32 exec_lo, 0x00ff00ff")
    a("s_mov_b32 exec_hi, 0x00ff00ff")
    for j in range(8):
        a(f"ds_write_b128 v11, {vr(AC+4*j,4)} offset:{ORED+16*j}")
    a("s_mov_b64 exec, -1")
    a("s_lshl_b32 s9, s2, 12")
    a("s_lshl_b32 s10, s6, 10")
    a("s_add_u32 s9, s9, s10")
    a(f"s_add_u32 s9, s9, {OP_OFF}")
    a("s_waitcnt lgkmcnt(0)")
    a("s_barrier")
    stamp(6)
    a(f"ds_read_b128 v[16:19], v13 offset:{FB}")
    for w_ in range(4):
        a(f"ds_read_b128 {vr(20+4*w_,4)}, v12 offset:{ORED+4224*w_}")
    a("v_and_b32 v11, 7, v0")
    a("v_lshlrev_b32 v11, 4, v11")
    a("v_lshrrev_b32 v14, 3, v0")
    a("v_lshl_add_u32 v11, v14, 12, v11")
    a("s_lshr_b32 s10, s6, 1")
    a("s_lshl_b32 s10, s10, 2")
    a("s_lshr_b32 s11, s2, 6")
    a("s_add_u32 s10, s10, s11")
    a("s_lshl_b32 s10, s10, 17")
    a("s_bfe_u32 s11, s2, 0x40002")
    a("s_lshl_b32 s11, s11, 8")
    a("s_add_u32 s10, s10, s11")
    a("s_and_b32 s11, s6, 1")
    a("s_lshl_b32 s11, s11, 7")
    a("s_add_u32 s10, s10, s11")
    a(f"s_add_u32 s10, s10, {OP_OFF}")
    a("s_add_u32 s11, s10, 32768")
    a("s_add_u32 s12, s10, 65536")
    a("s_add_u32 s13, s10, 98304")
    a("s_waitcnt lgkmcnt(0)")
    for k in range(4):
        a(f"v_mul_f32 v{20+k}, v16, v{20+k}")
    for w_ in range(1, 4):
        for k in range(4):
            a(f"v_fmac_f32 v{20+k}, v{16+w_}, v{20+4*w_+k}")
    for k in range(4):
        a(f"v_min_u32 v{20+k}, -2, v{20+k}")
    a("buffer_store_dwordx4 v[20:23], v7, s[48:51], s9 offen sc1")
    stamp(7)
    a("v_and_b32 v12, 7, v0")
    a("v_lshlrev_b32 v12, 3, v12")
    a("v_lshl_add_u32 v12, v5, 1, v12")
    a("s_lshl_b32 s9, s6, 6")
    a("v_add_u32 v12, s9, v12")

    def ld3():
        for i in range(4):
            a(f"buffer_load_dwordx4 {vr(40+4*i,4)}, v11, s[48:51], s{10+i} offen sc1")
    poll(ld3, lambda: check_sentinel(range(40, 56), 14), sleep=cfg.sleep_tail)
    stamp(8)
    for k in range(4):
        a(f"v_add_f32 v{40+k}, v{40+k}, v{44+k}")
        a(f"v_add_f32 v{48+k}, v{48+k}, v{52+k}")
    for k in range(4):
        a(f"v_add_f32 v{40+k}, v{40+k}, v{48+k}")
    a("s_nop 0")
    a("v_permlane32_swap_b32 v40, v42")
    a("v_permlane32_swap_b32 v41, v43")
    a("v_add_f32 v40, v40, v42")
    a("v_add_f32 v41, v41, v43")
    a("s_nop 1")
    a("v_permlane16_swap_b32 v40, v41")
    a("v_add_f32 v40, v40, v41")
    a("s_nop 1")
    a("v_add_f32_dpp v40, v40, v40 row_ror:8 row_mask:0xf bank_mask:0xf")
    a("v_cvt_pk_bf16_f32 v40, v40, v40")
    a(f"ds_write_b16 v12, v40 offset:{OB}")
    a("s_waitcnt lgkmcnt(0)")
    a("s_barrier")
    stamp(9)
    a("s_cmp_lg_u32 s6, 0")
    a("s_cbranch_scc1 L_ATT_END")
    srd(56, 16, 4096)
    srd(60, 34, 4096)
    a("v_lshlrev_b32 v12, 2, v5")
    a("s_lshl_b32 s9, s2, 4")
    a("buffer_load_dword v13, v12, s[56:59], s9 offen")
    a("v_lshlrev_b32 v11, 13, v0")
    a("s_lshl_b32 s10, s2, 5")
    a(f"s_add_u32 s10, s10, {XP_OFF}")

    def ld4():
        a("buffer_load_dwordx4 v[40:43], v11, s[48:51], s10 offen sc1")
        a("buffer_load_dwordx4 v[44:47], v11, s[48:51], s10 offen offset:16 sc1")
    poll(ld4, lambda: check_sentinel(range(40, 48), 14), sleep=cfg.sleep_tail)
    stamp(10)
    for k in range(4):
        a(f"v_permlane32_swap_b32 v{40+k}, v{44+k}")
    for k in range(4):
        a(f"v_add_f32 v{40+k}, v{40+k}, v{44+k}")
    a("s_nop 0")
    a("v_permlane16_swap_b32 v40, v42")
    a("v_permlane16_swap_b32 v41, v43")
    a("v_add_f32 v40, v40, v42")
    a("v_add_f32 v41, v41, v43")
    for s in (8, 4, 2, 1):
        a("s_nop 0")
        a(f"v_add_f32_dpp v40, v40, v40 row_ror:{s} row_mask:0xf bank_mask:0xf")
        a(f"v_add_f32_dpp v41, v41, v41 row_ror:{s} row_mask:0xf bank_mask:0xf")
    a("v_lshlrev_b32 v42, 16, v13")
    a("v_and_b32 v43, s66, v13")
    a("v_add_f32 v40, v40, v42")
    a("v_add_f32 v41, v41, v43")
    a("v_cvt_pk_bf16_f32 v40, v40, v41")
    a("s_mov_b32 exec_lo, 0x00010001")
    a("s_mov_b32 exec_hi, 0x00010001")
    a("buffer_store_dword v40, v12, s[60:63], s9 offen")
    stamp(11)
    a.label("L_ATT_END")
    dump_stamps(12)
    a.label("L_END")
    a("s_endpgm")

    probs = check_hazards(a.lines)
    for p in probs:
        print(p, file=sys.stderr)
    if probs:
        raise SystemExit("hazards found")

    pad = ""
    if cfg.codepf:
        pad = f".org {NAME}_kernel + {(512 << cfg.codepf) + 256}\n"
        pad = f".fill ({(512 << cfg.codepf) + 256} - (. - {NAME}_kernel)) / 4, 4, 0xBF800000\n"
    out = HEADER
    out += "; Generated by work/gen.py (hand-written generator). One persistent launch, 256 workgroups x 8 waves.\n"
    out += f"; @launch grid=(256,1,1) block=(512,1,1) lds={LDS_SIZE}\n"
    out += f""".amdgcn_target "amdgcn-amd-amdhsa--gfx950"
.text
.globl {NAME}_kernel
.p2align 8
.type {NAME}_kernel,@function
{NAME}_kernel:
"""
    out += a.text()
    out += pad
    out += f""".section .rodata,"a"
.p2align 6
.amdhsa_kernel {NAME}_kernel
  .amdhsa_next_free_vgpr 256
  .amdhsa_next_free_sgpr 102
  .amdhsa_accum_offset 256
  .amdhsa_group_segment_fixed_size 0
  .amdhsa_kernarg_size 96
  .amdhsa_user_sgpr_count 2
  .amdhsa_user_sgpr_kernarg_segment_ptr 1
  .amdhsa_system_sgpr_workgroup_id_x 1
  .amdhsa_float_denorm_mode_32 3
.end_amdhsa_kernel
"""
    return out


def parse_args(argv=None):
    p = argparse.ArgumentParser()
    p.add_argument("-o", default="cdna_kernels/" + NAME + ".s")
    p.add_argument("--ring", type=int, default=10)
    p.add_argument("--knt", type=int, default=0)
    p.add_argument("--vnt", type=int, default=0)
    p.add_argument("--wnt", type=int, default=0)
    p.add_argument("--stamps", type=int, default=0)
    p.add_argument("--codepf", type=int, default=5)
    p.add_argument("--sleep", type=int, default=2)
    p.add_argument("--sleep_tail", type=int, default=0)
    p.add_argument("--spin", type=int, default=200000)
    p.add_argument("--b2b", type=int, default=0)
    p.add_argument("--late_perm", type=int, default=0)
    return p.parse_args(argv)


if __name__ == "__main__":
    cfg = parse_args()
    open(cfg.o, "w").write(gen(cfg))
    print("wrote", cfg.o)
```

```python
import sys
import argparse
import struct
import math
from asmlib import Asm, vr, sr, check_hazards

NAME = "parallel_sum__gqa_block_cached__geglu_ffn__decode"

QP_OFF = 0x000000
GP_OFF = 0x020000
ML_OFF = 0x060000
EP_OFF = 0x070000
OP_OFF = 0x080000
XP_OFF = 0x180000
ST_OFF = 0x200000
WS_SIZE = 0x400000
XN = 0x0000
QB = 0x0400
MLB = 0x0C80
TF = 0x0D80
FB = 0x0E00
OB = 0x0E80
HB = 0x0F80
ORED = 0x1080
LDS_SIZE = ORED + 4 * 4224

LOG2E = 0x3FB8AA3B
SCALE = 0x3DB504F3
EPS = 0x3727C5AC

HEADER = open("cdna_kernels/" + NAME + ".s.ref").read().split("; Override launch")[0]


def f32bits(x):
    return struct.unpack("<I", struct.pack("<f", x))[0]


def gen(cfg):
    a = Asm()
    R = cfg.ring
    D = cfg.depth
    NT = " nt"

    def stamp(k):
        if cfg.stamps:
            a(f"s_memrealtime s[{70+2*k}:{71+2*k}]")

    def dump_stamps(n):
        if not cfg.stamps:
            return
        a("s_waitcnt lgkmcnt(0)")
        a("s_mov_b64 exec, 1")
        a("s_lshl_b32 s4, s2, 10")
        a("s_lshl_b32 s5, s3, 7")
        a("s_add_u32 s4, s4, s5")
        a(f"s_add_u32 s4, s4, {ST_OFF}")
        a("v_mov_b32 v3, 0")
        for k in range(n):
            a(f"v_mov_b32 v1, s{70+2*k}")
            a(f"buffer_store_dword v1, v3, s[48:51], s4 offen offset:{4*k}")

    def srd(d, p, size):
        a(f"s_mov_b32 s{d}, s{p}")
        a(f"s_mov_b32 s{d+1}, s{p+1}")
        a(f"s_mov_b32 s{d+2}, {size:#x}")
        a(f"s_mov_b32 s{d+3}, 0x20000")

    uid = [0]

    def poll(loads, check, sleep, cnt="vmcnt"):
        uid[0] += 1
        n = uid[0]
        a(f"s_mov_b32 s15, {cfg.spin}")
        a.label(f"L_poll{n}")
        loads()
        a(f"s_waitcnt {cnt}(0)")
        check()
        a(f"s_cbranch_scc1 L_pdone{n}")
        a("s_sub_u32 s15, s15, 1")
        a(f"s_cbranch_scc1 L_pdone{n}")
        if sleep:
            a(f"s_sleep {sleep}")
        a(f"s_branch L_poll{n}")
        a.label(f"L_pdone{n}")

    def check_tag(regs, t0, t1):
        regs = list(regs)
        a(f"v_xor_b32 v{t0}, s14, v{regs[0]}")
        a(f"v_xor_b32 v{t1}, s14, v{regs[1]}")
        for k, r in enumerate(regs[2:]):
            t = t0 if k % 2 == 0 else t1
            a(f"v_bitop3_b32 v{t}, v{r}, s14, v{t} bitop3:0xbe")
        a(f"v_or_b32 v{t0}, v{t0}, v{t1}")
        a(f"v_and_b32 v{t0}, s69, v{t0}")
        a(f"v_cmp_eq_u32 vcc, 0, v{t0}")
        a("s_cmp_eq_u64 vcc, -1")

    def check_sentinel(regs, tmp):
        regs = list(regs)
        a(f"v_max3_u32 v{tmp}, v{regs[0]}, v{regs[1]}, v{regs[2]}")
        regs = regs[3:]
        while len(regs) >= 2:
            a(f"v_max3_u32 v{tmp}, v{tmp}, v{regs[0]}, v{regs[1]}")
            regs = regs[2:]
        if regs:
            a(f"v_max_u32 v{tmp}, v{tmp}, v{regs[0]}")
        a(f"v_cmp_ne_u32 vcc, -1, v{tmp}")
        a("s_cmp_eq_u64 vcc, -1")

    def put_tag(r):
        a(f"v_bfi_b32 v{r}, s69, v15, v{r}")

    def load_tag():
        a(f"s_load_dword s14, s[38:39], {EP_OFF:#x}")

    def make_tag():
        a("s_add_u32 s14, s14, 1")
        a("s_and_b32 s14, s14, 0xff")
        a("v_mov_b32 v15, s14")

    def xlane(op, x, t, steps):
        for s in steps:
            if s in (1, 2, 4, 8):
                a("s_nop 1")
                a(f"{op}_dpp v{x}, v{x}, v{x} row_ror:{s} row_mask:0xf bank_mask:0xf")
            else:
                a(f"v_mov_b32 v{t}, v{x}")
                a("s_nop 1")
                a(f"v_permlane{s}_swap_b32 v{x}, v{t}")
                a(f"{op} v{x}, v{x}, v{t}")

    def round_bf16(d, s):
        a(f"v_cvt_pk_bf16_f32 v{d}, v{s}, v{s}")
        a(f"v_lshlrev_b32 v{d}, 16, v{d}")

    def perms(dst, src_e, i):
        for p in range(4):
            a(f"v_perm_b32 v{dst+p}, v{src_e(2*p+1)+i}, v{src_e(2*p)+i}, s64")
        for p in range(4):
            a(f"v_perm_b32 v{dst+4+p}, v{src_e(2*p+1)+i}, v{src_e(2*p)+i}, s65")

    def consts():
        a("s_mov_b32 s64, 0x05040100")
        a("s_mov_b32 s65, 0x07060302")
        a("s_mov_b32 s66, 0xffff0000")
        a(f"s_mov_b32 s67, {LOG2E:#x}")
        a(f"s_mov_b32 s68, {SCALE:#x}")
        a("s_movk_i32 s69, 0xff")

    a("s_cmp_ge_u32 s2, 256")
    a("s_cbranch_scc1 L_END")
    a("s_load_dwordx16 s[16:31], s[0:1], 0")
    a("s_load_dwordx8 s[32:39], s[0:1], 64")
    stamp(0)
    if cfg.codepf:
        a("s_getpc_b64 s[4:5]")
        a(f"v_lshlrev_b32 v1, {cfg.codepf}, v0")
        a("global_load_dword v2, v1, s[4:5]")
    a("v_lshrrev_b32 v3, 6, v0")
    a("v_and_b32 v0, 63, v0")
    a("v_readfirstlane_b32 s3, v3")
    a("v_and_b32 v4, 15, v0")
    a("v_lshrrev_b32 v5, 4, v0")
    a("s_cmp_ge_u32 s3, 4")
    a("s_cbranch_scc1 L_ATT")
    a("s_lshr_b32 s6, s2, 2")
    a("s_and_b32 s7, s2, 3")
    a("v_lshrrev_b32 v8, 3, v4")
    a("v_and_b32 v9, 7, v4")
    a("v_lshlrev_b32 v10, 3, v8")
    a("v_lshl_add_u32 v10, v5, 4, v10")
    a("s_cmp_lg_u32 s3, 0")
    a("s_cbranch_scc1 L_S123")

    XA = 16
    XO = 32
    XU = 36
    WR = 72
    ACC = 200
    PT = 232

    a("s_mov_b32 s8, 8192")
    a("s_mov_b32 s9, 14")
    a("v_lshlrev_b32 v6, 6, v0")
    a("v_lshrrev_b32 v7, 5, v0")
    a("v_lshlrev_b32 v7, 11, v7")
    a("v_and_b32 v11, 31, v0")
    a("v_lshl_add_u32 v7, v11, 4, v7")
    a("s_lshl_b32 s12, s7, 9")
    a("s_waitcnt lgkmcnt(0)")
    srd(56, 16, 4096)
    srd(40, 22, 0x800000)
    load_tag()
    for i in range(4):
        a(f"buffer_load_dwordx4 {vr(XA+4*i,4)}, v6, s[56:59], 0 offen offset:{16*i}")
    a(f"buffer_load_dwordx4 {vr(XO,4)}, v7, s[56:59], s12 offen")

    a.label("L_S_wload")
    a("v_mul_lo_u32 v10, v10, s8")
    a("s_lshl_b32 s10, s7, 8")
    a("s_mul_i32 s10, s10, s8")
    a("s_lshl_b32 s11, s6, 7")
    a("v_lshl_add_u32 v10, v9, 4, v10")
    a("s_add_u32 s10, s10, s11")
    a("s_mul_i32 s11, s8, 57")
    for T in range(4):
        for e in range(8):
            a(f"buffer_load_dwordx4 {vr(WR+32*T+4*e,4)}, v10, s[40:43], s10 offen{NT}")
            if not (T == 3 and e == 7):
                a(f"s_add_u32 s10, s10, {'s11' if e == 7 else 's8'}")
    stamp(1)
    a("s_cmp_lg_u32 s3, 0")
    a("s_cbranch_scc1 L_S_gemv")
    a("s_barrier")
    srd(48, 38, WS_SIZE)
    consts()
    a("s_waitcnt vmcnt(32)")
    stamp(2)
    for i in range(16):
        a(f"v_lshlrev_b32 v{XU+2*i}, 16, v{XA+i}")
        a(f"v_and_b32 v{XU+2*i+1}, s66, v{XA+i}")
    for k in range(4):
        a(f"v_add_f32 v{11+k}, v{XU+k}, v{XU+4+k}")
    for i in range(8, 32):
        a(f"v_add_f32 v{11+(i&3)}, v{11+(i&3)}, v{XU+i}")
    a("v_add_f32 v11, v11, v12")
    a("v_add_f32 v13, v13, v14")
    a("v_add_f32 v11, v11, v13")
    xlane("v_add_f32", 11, 12, [8, 4, 2, 1, 16])
    a("v_mul_f32 v11, 0x3a800000, v11")
    for i in range(32):
        a(f"v_sub_f32 v{XU+i}, v{XU+i}, v11")
    for k in range(4):
        a(f"v_mul_f32 v{XA+k}, v{XU+k}, v{XU+k}")
    for i in range(4, 32):
        a(f"v_fmac_f32 v{XA+(i&3)}, v{XU+i}, v{XU+i}")
    a(f"v_add_f32 v12, v{XA}, v{XA+1}")
    a(f"v_add_f32 v14, v{XA+2}, v{XA+3}")
    a("v_add_f32 v12, v12, v14")
    xlane("v_add_f32", 12, 13, [8, 4, 2, 1, 16])
    a("v_mul_f32 v12, 0x3a800000, v12")
    round_bf16(11, 11)
    round_bf16(12, 12)
    a(f"v_add_f32 v12, {EPS:#x}, v12")
    round_bf16(12, 12)
    a("v_sqrt_f32 v12, v12")
    a("s_nop 0")
    round_bf16(12, 12)
    a("v_rcp_f32 v13, v12")
    for i in range(4):
        a(f"v_lshlrev_b32 v{XU+2*i}, 16, v{XO+i}")
        a(f"v_and_b32 v{XU+2*i+1}, s66, v{XO+i}")
    for i in range(8):
        a(f"v_sub_f32 v{XU+i}, v{XU+i}, v11")
    for i in range(4):
        a(f"v_cvt_pk_bf16_f32 v{XO+i}, v{XU+2*i}, v{XU+2*i+1}")
    for i in range(4):
        a(f"v_lshlrev_b32 v{XU+2*i}, 16, v{XO+i}")
        a(f"v_and_b32 v{XU+2*i+1}, s66, v{XO+i}")
    for i in range(8):
        a(f"v_mul_f32 v{XU+8+i}, v{XU+i}, v13")
    for i in range(8):
        a(f"v_fma_f32 v{XU+i}, -v{XU+8+i}, v12, v{XU+i}")
    for i in range(8):
        a(f"v_fmac_f32 v{XU+8+i}, v{XU+i}, v13")
    for i in range(4):
        a(f"v_cvt_pk_bf16_f32 v{XO+i}, v{XU+8+2*i}, v{XU+8+2*i+1}")
    a("v_lshlrev_b32 v11, 4, v0")
    a(f"ds_write_b128 v11, {vr(XO,4)} offset:{XN}")
    a("s_waitcnt lgkmcnt(0)")
    make_tag()

    a.label("L_S_gemv")
    a("v_bfe_u32 v11, v4, 2, 1")
    a("v_lshlrev_b32 v11, 9, v11")
    a("v_lshl_add_u32 v11, v5, 5, v11")
    a("v_and_b32 v12, 1, v4")
    a("v_lshl_add_u32 v11, v12, 4, v11")
    for T in range(4):
        a(f"ds_read_b128 {vr(XU+4*T,4)}, v11 offset:{XN+128*T}")
    stamp(3)
    a("v_lshlrev_b32 v12, s9, v5")
    a("v_lshl_add_u32 v12, v9, 5, v12")
    a("s_lshl_b32 s10, s7, 15")
    a("s_lshl_b32 s11, s6, 8")
    a("s_add_u32 s10, s10, s11")
    a("s_lshl_b32 s11, s2, 10")
    a("s_lshl_b32 s12, s3, 9")
    a("s_add_u32 s11, s11, s12")
    a(f"s_add_u32 s11, s11, {GP_OFF-512}")
    a("s_cmp_eq_u32 s3, 0")
    a("s_cselect_b32 s10, s10, s11")
    a("s_waitcnt lgkmcnt(0)")
    for T in range(4):
        a(f"s_waitcnt vmcnt({24-8*T})")
        src = lambda e, T=T: WR + 32 * T + 4 * e

        def M(i, T=T):
            for h in range(2):
                j = 2 * i + h
                c = "0" if T == 0 else vr(ACC + 4 * j, 4)
                a(f"v_mfma_f32_16x16x32_bf16 {vr(ACC+4*j,4)}, {vr(XU+4*T,4)}, {vr(PT+8*(i&1)+4*h,4)}, {c}")
        perms(PT, src, 0)
        perms(PT + 8, src, 1)
        M(0)
        perms(PT, src, 2)
        M(1)
        perms(PT + 8, src, 3)
        M(2)
        M(3)
    stamp(4)
    a("s_nop 3")
    for j in range(8):
        if j >= 6:
            a("s_nop 0")
        a(f"v_add_f32_dpp v{PT+j}, v{ACC+4*j+1}, v{ACC+4*j} row_ror:8 row_mask:0xf bank_mask:0xf")
    for j in range(8):
        put_tag(PT + j)
    a("s_mov_b64 exec, 0x00ff00ff")
    a(f"buffer_store_dwordx4 {vr(PT,4)}, v12, s[48:51], s10 offen sc1")
    a(f"buffer_store_dwordx4 {vr(PT+4,4)}, v12, s[48:51], s10 offen offset:16 sc1")
    a("s_mov_b64 exec, -1")
    a("s_cmp_eq_u32 s3, 1")
    a("s_cbranch_scc1 L_S1_h")
    a("s_cmp_eq_u32 s3, 2")
    a("s_cbranch_scc1 L_S_X")
    a("v_lshlrev_b32 v6, 4, v0")
    a("s_lshr_b32 s10, s2, 5")
    a("s_lshl_b32 s10, s10, 12")
    if QP_OFF:
        a(f"s_add_u32 s10, s10, {QP_OFF}")
    a("s_add_u32 s11, s10, 32768")
    a("s_add_u32 s12, s10, 65536")
    a("s_add_u32 s13, s10, 98304")
    a("v_lshrrev_b32 v7, 5, v0")
    a("v_mul_u32_u24 v7, 272, v7")
    a("v_and_b32 v11, 31, v0")
    a("v_lshl_add_u32 v7, v11, 3, v7")

    def ldq():
        for kq in range(4):
            for i in range(4):
                a(f"buffer_load_dwordx4 {vr(32+16*kq+4*i,4)}, v6, s[48:51], s{10+kq} offen offset:{1024*i} sc1")
    poll(ldq, lambda: check_tag(range(32, 96), 11, 12), cfg.sleep_q)
    stamp(5)
    for k in range(16):
        a(f"v_add_f32 v{32+k}, v{32+k}, v{48+k}")
        a(f"v_add_f32 v{64+k}, v{64+k}, v{80+k}")
    for k in range(16):
        a(f"v_add_f32 v{32+k}, v{32+k}, v{64+k}")
    for i in range(4):
        a(f"v_cvt_pk_bf16_f32 v{48+2*i}, v{32+4*i}, v{33+4*i}")
        a(f"v_cvt_pk_bf16_f32 v{49+2*i}, v{34+4*i}, v{35+4*i}")
        a(f"ds_write_b64 v7, {vr(48+2*i,2)} offset:{QB+544*i}")
    a("s_waitcnt lgkmcnt(0)")
    a("s_barrier")
    a("s_branch L_S_X")

    a.label("L_S123")
    a("s_barrier")
    consts()
    a("s_mov_b32 s8, 7168")
    a("s_mov_b32 s9, 8")
    a("s_waitcnt lgkmcnt(0)")
    load_tag()
    srd(48, 38, WS_SIZE)
    a("s_cmp_eq_u32 s3, 2")
    a("s_cselect_b64 s[40:41], s[30:31], s[28:29]")
    a("s_mov_b32 s42, 0x700000")
    a("s_mov_b32 s43, 0x20000")
    a("v_mov_b32 v11, -1")
    a("v_lshlrev_b32 v12, 2, v0")
    a(f"ds_write_b32 v12, v11 offset:{MLB}")
    a(f"ds_write_b32 v12, v11 offset:{MLB+128}")
    a("s_waitcnt lgkmcnt(0)")
    make_tag()
    a("s_barrier")
    a("s_cmp_eq_u32 s3, 3")
    a("s_cbranch_scc1 L_S3")
    a("s_cmp_lt_u32 s6, 56")
    a("s_cbranch_scc1 L_S_wload")
    a("s_branch L_S_X")

    a.label("L_S1_h")
    a("v_lshlrev_b32 v12, 3, v0")
    a("s_lshl_b32 s10, s6, 12")
    a(f"s_add_u32 s10, s10, {GP_OFF}")

    def ldg():
        for kq in range(4):
            for m in range(2):
                a(f"buffer_load_dwordx2 {vr(16+4*kq+2*m,2)}, v12, s[48:51], s10 offen offset:{kq*1024+m*512} sc1")
    poll(ldg, lambda: check_tag(range(16, 32), 11, 13), cfg.sleep)
    stamp(5)
    for k in range(4):
        a(f"v_add_f32 v{16+k}, v{16+k}, v{20+k}")
        a(f"v_add_f32 v{24+k}, v{24+k}, v{28+k}")
    for k in range(4):
        a(f"v_add_f32 v{16+k}, v{16+k}, v{24+k}")
    a("v_cvt_pk_bf16_f32 v20, v16, v17")
    a("v_cvt_pk_bf16_f32 v21, v18, v19")
    a("v_lshlrev_b32 v16, 16, v20")
    a("v_and_b32 v17, s66, v20")
    a("v_lshlrev_b32 v18, 16, v21")
    a("v_and_b32 v19, s66, v21")
    a(f"s_mov_b32 s10, {f32bits(0.044715):#x}")
    a(f"s_mov_b32 s11, {f32bits(-2.0 * math.sqrt(2.0 / math.pi) * math.log2(math.e)):#x}")
    for k in range(2):
        a(f"v_mul_f32 v{20+k}, v{16+k}, v{16+k}")
    for k in range(2):
        a(f"v_mul_f32 v{20+k}, v{20+k}, v{16+k}")
    for k in range(2):
        a(f"v_fma_f32 v{20+k}, v{20+k}, s10, v{16+k}")
    for k in range(2):
        a(f"v_mul_f32 v{20+k}, s11, v{20+k}")
    for k in range(2):
        a(f"v_exp_f32 v{20+k}, v{20+k}")
    a("s_nop 0")
    for k in range(2):
        a(f"v_add_f32 v{20+k}, 1.0, v{20+k}")
    for k in range(2):
        a(f"v_rcp_f32 v{20+k}, v{20+k}")
    a("s_nop 0")
    for k in range(2):
        a(f"v_mul_f32 v{20+k}, v{20+k}, v{16+k}")
    a("v_cvt_pk_bf16_f32 v22, v20, v21")
    a("v_lshlrev_b32 v20, 16, v22")
    a("v_and_b32 v21, s66, v22")
    a("v_mul_f32 v20, v20, v18")
    a("v_mul_f32 v21, v21, v19")
    a("v_cvt_pk_bf16_f32 v22, v20, v21")
    a("v_lshlrev_b32 v12, 2, v0")
    a(f"ds_write_b32 v12, v22 offset:{HB}")
    a("s_branch L_S_X")

    a.label("L_S3")
    a("v_and_b32 v6, 7, v0")
    a("v_lshlrev_b32 v6, 3, v6")
    a("v_and_b32 v7, 31, v0")
    a("v_lshlrev_b32 v7, 3, v7")
    a("s_lshl_b32 s13, s2, 6")
    a(f"s_add_u32 s13, s13, {ML_OFF}")

    def ldm():
        for w in range(4):
            a(f"ds_read_b64 {vr(16+2*w,2)}, v6 offset:{MLB+64*w}")
    poll(ldm, lambda: check_sentinel(range(16, 24), 11), cfg.sleep_lds, cnt="lgkmcnt")
    stamp(5)
    a(f"ds_read_b32 v30, v7 offset:{MLB}")

    def combine4(mo):
        a(f"v_max3_f32 v{mo}, v16, v18, v20")
        a(f"v_max_f32 v{mo}, v{mo}, v22")

    def wsum4(mo, lo):
        for w in range(4):
            a(f"v_sub_f32 v{16+2*w}, v{16+2*w}, v{mo}")
        for w in range(4):
            a(f"v_mul_f32 v{16+2*w}, s67, v{16+2*w}")
        for w in range(4):
            a(f"v_exp_f32 v{16+2*w}, v{16+2*w}")
        a("s_nop 0")
        a(f"v_mul_f32 v{lo}, v16, v17")
        for w in range(1, 4):
            a(f"v_fmac_f32 v{lo}, v{16+2*w}, v{17+2*w}")
    combine4(24)
    wsum4(24, 25)
    put_tag(24)
    put_tag(25)
    a("s_mov_b64 exec, 0xff")
    a("buffer_store_dwordx2 v[24:25], v6, s[48:51], s13 offen sc1")
    a("s_mov_b64 exec, -1")
    a("s_lshr_b32 s10, s2, 5")
    a("s_lshl_b32 s10, s10, 11")
    a(f"s_add_u32 s10, s10, {ML_OFF}")
    a("v_lshlrev_b32 v7, 3, v0")

    def ld2():
        for i in range(4):
            a(f"buffer_load_dwordx2 {vr(16+2*i,2)}, v7, s[48:51], s10 offen offset:{512*i} sc1")
    poll(ld2, lambda: check_tag(range(16, 24), 11, 12), cfg.sleep)
    stamp(6)
    for w in range(4):
        a(f"v_and_b32 v{16+2*w}, s66, v{16+2*w}")
    combine4(26)
    xlane("v_max_f32", 26, 11, [8, 16, 32])
    wsum4(26, 27)
    xlane("v_add_f32", 27, 11, [8, 16, 32])
    a("s_waitcnt lgkmcnt(0)")
    a("v_sub_f32 v30, v30, v26")
    a("v_mul_f32 v30, s67, v30")
    a("v_exp_f32 v30, v30")
    a("v_rcp_f32 v27, v27")
    a("v_bfe_u32 v7, v0, 3, 2")
    a("v_lshlrev_b32 v7, 2, v7")
    a("v_lshl_add_u32 v7, v6, 1, v7")
    a("v_mul_f32 v30, v30, v27")
    a(f"ds_write_b32 v7, v30 offset:{FB}")

    a.label("L_S_X")
    TW = 32
    TP = 96
    XACC = 160
    srd(40, 24, 0x800000)
    srd(44, 32, 0x700000)
    a("v_lshrrev_b32 v10, 1, v5")
    a("v_lshlrev_b32 v10, 5, v10")
    a("v_and_b32 v11, 1, v5")
    a("v_lshl_add_u32 v10, v11, 2, v10")
    a("v_lshl_add_u32 v10, v8, 1, v10")
    a("v_lshlrev_b32 v10, 11, v10")
    a("v_lshl_add_u32 v10, v9, 4, v10")
    a("v_lshlrev_b32 v11, 3, v8")
    a("v_lshl_add_u32 v11, v5, 4, v11")
    a("v_lshlrev_b32 v11, 11, v11")
    a("v_lshl_add_u32 v11, v9, 4, v11")
    a("s_lshl_b32 s10, s6, 17")
    a("s_lshl_b32 s11, s7, 9")
    a("s_add_u32 s10, s10, s11")
    a("s_lshl_b32 s11, s3, 7")
    a("s_add_u32 s10, s10, s11")
    a("s_mov_b32 s11, s10")
    a("s_lshl_b32 s12, s3, 2")
    a("v_mov_b32 v12, s12")

    def ldt():
        a(f"ds_read_b32 v13, v12 offset:{TF}")

    def ckt():
        a("v_cmp_eq_u32 vcc, 0, v13")
        a("s_cmp_eq_u64 vcc, -1")
    poll(ldt, ckt, cfg.sleep_lds, cnt="lgkmcnt")
    stamp(7)

    def ld_wo():
        for r in range(4):
            for hi in range(2):
                e = 4 * hi + r
                a(f"buffer_load_dwordx4 {vr(TW+4*e,4)}, v10, s[40:43], s11 offen offset:{2048*hi}{NT}")
            if r < 3:
                a("s_add_u32 s11, s11, 16384")

    def ld_wd():
        for e in range(8):
            a(f"buffer_load_dwordx4 {vr(TW+32+4*e,4)}, v11, s[44:47], s10 offen offset:{2048*(e&1)}{NT}")
            if (e & 1) and e < 7:
                a("s_add_u32 s10, s10, 4096")
    ld_wd()
    ld_wo()
    a("v_bfe_u32 v12, v4, 2, 1")
    a("v_lshlrev_b32 v12, 7, v12")
    a("v_lshl_add_u32 v12, v5, 5, v12")
    a("v_and_b32 v13, 1, v4")
    a("v_lshl_add_u32 v12, v13, 4, v12")
    a("v_lshlrev_b32 v13, 12, v5")
    a("v_lshl_add_u32 v13, v9, 5, v13")
    a("s_lshl_b32 s10, s6, 13")
    a("s_lshl_b32 s11, s7, 10")
    a("s_add_u32 s10, s10, s11")
    a("s_lshl_b32 s11, s3, 8")
    a("s_add_u32 s10, s10, s11")
    a(f"s_add_u32 s10, s10, {XP_OFF}")
    a("s_barrier")
    a(f"ds_read_b128 v[20:23], v12 offset:{HB}")
    a("s_waitcnt vmcnt(8)")
    for i in range(4):
        perms(TP + 32 + 8 * i, lambda e: TW + 32 + 4 * e, i)
    a("s_waitcnt lgkmcnt(0)")
    a("s_cmp_ge_u32 s6, 56")
    a("s_cbranch_scc1 L_S_noffn")
    for j in range(8):
        a(f"v_mfma_f32_16x16x32_bf16 {vr(XACC+4*j,4)}, v[20:23], {vr(TP+32+4*j,4)}, 0")
    a("s_branch L_S_wo")
    a.label("L_S_noffn")
    for k in range(8):
        a(f"v_mov_b32 v{XACC+4*k}, 0")
        a(f"v_mov_b32 v{XACC+4*k+1}, 0")
    a.label("L_S_wo")
    a("s_waitcnt vmcnt(0)")
    for i in range(4):
        perms(TP + 8 * i, lambda e: TW + 4 * e, i)
    stamp(8)
    a("s_barrier")
    stamp(9)
    a(f"ds_read_b128 v[16:19], v12 offset:{OB}")
    a("s_waitcnt lgkmcnt(0)")
    for j in range(8):
        a(f"v_mfma_f32_16x16x32_bf16 {vr(XACC+4*j,4)}, v[16:19], {vr(TP+4*j,4)}, {vr(XACC+4*j,4)}")
    a("s_nop 1")
    for j in range(8):
        if j == 7:
            a("s_nop 0")
        a(f"v_add_f32_dpp v{24+j}, v{XACC+4*j+1}, v{XACC+4*j} row_ror:8 row_mask:0xf bank_mask:0xf")
    for j in range(8):
        put_tag(24 + j)
    a("s_mov_b64 exec, 0x00ff00ff")
    a("buffer_store_dwordx4 v[24:27], v13, s[48:51], s10 offen sc1")
    a("buffer_store_dwordx4 v[28:31], v13, s[48:51], s10 offen offset:16 sc1")
    stamp(10)
    dump_stamps(11)
    a("s_endpgm")

    a.label("L_ATT")
    RING = 16
    SC = RING + 16 * R
    QR = SC + 32
    ST = QR + 8
    AC = QR
    PTA = AC + 32
    assert PTA + 16 <= 256 and ST + 26 <= 256
    a("s_sub_u32 s6, s3, 4")
    a("v_bfe_u32 v6, v4, 1, 1")
    a("v_lshrrev_b32 v7, 2, v4")
    a("v_lshl_add_u32 v6, v6, 2, v7")
    a("v_lshlrev_b32 v6, 8, v6")
    a("v_lshl_add_u32 v6, v5, 5, v6")
    a("v_and_b32 v7, 1, v4")
    a("v_lshl_add_u32 v6, v7, 4, v6")
    a("v_lshlrev_b32 v7, 4, v0")
    a("s_lshl_b32 s7, s2, 18")
    a("s_lshl_b32 s8, s6, 12")
    a("s_add_u32 s7, s7, s8")
    a("s_mov_b32 s8, s7")
    a("s_waitcnt lgkmcnt(0)")
    load_tag()
    srd(40, 18, 0x4000000)
    srd(44, 20, 0x4000000)
    a("s_barrier")
    issued = [0]

    def issue():
        item = issued[0]
        slot = RING + 16 * (item % R)
        if item < 16:
            for k in range(4):
                a(f"buffer_load_dwordx4 {vr(slot+4*k,4)}, v6, s[40:43], s7 offen offset:{128*(k&1)+2048*(k>>1)}{NT}")
            if item < 15:
                a("s_add_u32 s7, s7, 16384")
        else:
            for r in range(4):
                a(f"buffer_load_dwordx4 {vr(slot+4*r,4)}, v7, s[44:47], s8 offen offset:{1024*r}{NT}")
            if item < 31:
                a("s_add_u32 s8, s8, 16384")
        issued[0] += 1
        if item == cfg.trig:
            a(f"ds_write_b32 v8, v9 offset:{TF}")

    def wait_item(item):
        n = (issued[0] - item - 1) * 4
        a(f"s_waitcnt vmcnt({n})")

    def throttle():
        a(f"s_waitcnt vmcnt({4*(D-1)})")

    for it in range(R):
        if it >= D:
            throttle()
        issue()
        if it == D - 1:
            srd(48, 38, WS_SIZE)
            consts()
            a("v_and_b32 v8, 7, v4")
            a("v_mul_u32_u24 v11, 272, v8")
            a("v_lshl_add_u32 v11, v5, 5, v11")
            a("v_lshrrev_b32 v8, 3, v4")
            a("v_lshl_add_u32 v11, v8, 4, v11")
            a("v_mov_b32 v10, 0xff800000")
            a("s_lshl_b32 s9, s6, 2")
            a("v_mov_b32 v8, s9")
            a("v_mov_b32 v9, 0")
            a("s_waitcnt lgkmcnt(0)")
            make_tag()
    stamp(1)
    a("s_barrier")
    stamp(2)
    for c in range(2):
        a(f"ds_read_b128 {vr(QR+4*c,4)}, v11 offset:{QB+128*c}")
    a("s_waitcnt lgkmcnt(0)")

    def post(i):
        t = ST + 8 * (i & 1)
        w = ST + 16
        for q in range(4):
            a(f"v_add_f32_dpp v{w+6+q}, v{t+2*q+1}, v{t+2*q} row_ror:8 row_mask:0xf bank_mask:0xf")
        s = w + 6
        a(f"v_max3_f32 v10, v10, v{s}, v{s+1}")
        a(f"v_cvt_pk_bf16_f32 v{w+4}, v{s}, v{s+1}")
        a(f"v_cvt_pk_bf16_f32 v{w+5}, v{s+2}, v{s+3}")
        a(f"v_max3_f32 v10, v10, v{s+2}, v{s+3}")
        a(f"v_lshlrev_b32 v{w}, 16, v{w+4}")
        a(f"v_and_b32 v{w+1}, s66, v{w+4}")
        a(f"v_lshlrev_b32 v{w+2}, 16, v{w+5}")
        a(f"v_and_b32 v{w+3}, s66, v{w+5}")
        for k in range(4):
            a(f"v_mul_f32 v{w+k}, s68, v{w+k}")
        a(f"v_cvt_pk_bf16_f32 v{SC+2*i}, v{w}, v{w+1}")
        a(f"v_cvt_pk_bf16_f32 v{SC+2*i+1}, v{w+2}, v{w+3}")

    for i in range(16):
        wait_item(i)
        slot = RING + 16 * (i % R)
        t = ST + 8 * (i & 1)
        for st_ in range(2):
            for ln in range(2):
                cc = "0" if ln == 0 else vr(t + 4 * st_, 4)
                a(f"v_mfma_f32_16x16x32_bf16 {vr(t+4*st_,4)}, {vr(slot+4*(2*st_+ln),4)}, {vr(QR+4*ln,4)}, {cc}")
        if i < D:
            throttle()
            issue()
        elif issued[0] - (i + 1) < D:
            issue()
        if i >= 1:
            if i == 1 or True:
                a("s_nop 3")
            post(i - 1)
    a("s_nop 7")
    post(15)
    stamp(3)
    issue()
    xlane("v_max_f32", 10, 11, [16, 32])
    round_bf16(12, 10)
    a("v_mul_f32 v12, s68, v12")
    round_bf16(12, 12)
    a("v_mul_f32 v11, s67, v12")
    a("v_mov_b32 v13, 0")
    a("v_mov_b32 v14, 0")
    w = ST
    for k in range(0, 32, 2):
        if k == 16:
            issue()
        for q in range(2):
            a(f"v_lshlrev_b32 v{w+2*q}, 16, v{SC+k+q}")
            a(f"v_and_b32 v{w+2*q+1}, s66, v{SC+k+q}")
        for q in range(4):
            a(f"v_fma_f32 v{w+q}, v{w+q}, s67, -v11")
        for q in range(4):
            a(f"v_exp_f32 v{w+q}, v{w+q}")
        a(f"v_add_f32 v13, v13, v{w}")
        a(f"v_add_f32 v14, v14, v{w+1}")
        a(f"v_cvt_pk_bf16_f32 v{SC+k}, v{w}, v{w+1}")
        a(f"v_add_f32 v13, v13, v{w+2}")
        a(f"v_add_f32 v14, v14, v{w+3}")
        a(f"v_cvt_pk_bf16_f32 v{SC+k+1}, v{w+2}, v{w+3}")
    a("v_add_f32 v13, v13, v14")
    xlane("v_add_f32", 13, 14, [16, 32])
    a("v_min_u32 v13, -2, v13")
    a("s_lshl_b32 s9, s6, 6")
    a("v_lshlrev_b32 v14, 3, v0")
    a("v_add_u32 v14, s9, v14")
    a("s_mov_b64 exec, 0xff")
    a(f"ds_write_b64 v14, v[12:13] offset:{MLB}")
    a("s_mov_b64 exec, -1")
    stamp(4)
    a("s_mul_i32 s9, s6, 4224")
    a("v_mul_u32_u24 v10, 528, v4")
    a("v_lshl_add_u32 v10, v5, 7, v10")
    a("v_add_u32 v10, s9, v10")
    a("v_lshrrev_b32 v12, 5, v0")
    a("s_lshl_b32 s9, s6, 1")
    a("v_add_u32 v12, s9, v12")
    a("v_lshlrev_b32 v13, 4, v12")
    a("v_mul_u32_u24 v12, 528, v12")
    a("v_and_b32 v14, 31, v0")
    a("v_lshl_add_u32 v12, v14, 4, v12")
    a("v_and_b32 v11, 7, v0")
    a("v_lshlrev_b32 v6, 3, v11")
    a("v_lshlrev_b32 v11, 4, v11")
    a("v_lshrrev_b32 v14, 3, v0")
    a("v_lshl_add_u32 v11, v14, 12, v11")
    a("v_lshl_add_u32 v6, v5, 1, v6")
    a("s_lshl_b32 s9, s6, 6")
    a("v_add_u32 v6, s9, v6")
    a("s_lshr_b32 s10, s6, 1")
    a("s_lshl_b32 s10, s10, 2")
    a("s_lshr_b32 s11, s2, 6")
    a("s_add_u32 s10, s10, s11")
    a("s_lshl_b32 s10, s10, 17")
    a("s_bfe_u32 s11, s2, 0x40002")
    a("s_lshl_b32 s11, s11, 8")
    a("s_add_u32 s10, s10, s11")
    a("s_and_b32 s11, s6, 1")
    a("s_lshl_b32 s11, s11, 7")
    a("s_add_u32 s10, s10, s11")
    a(f"s_add_u32 s10, s10, {OP_OFF}")
    a("s_add_u32 s11, s10, 32768")
    a("s_add_u32 s12, s10, 65536")
    a("s_add_u32 s13, s10, 98304")
    a("s_lshl_b32 s9, s2, 12")
    a("s_lshl_b32 s4, s6, 10")
    a("s_add_u32 s9, s9, s4")
    a(f"s_add_u32 s9, s9, {OP_OFF}")
    for it in range(16, 32):
        wait_item(it)
        if issued[0] < 32 and issued[0] - (it + 1) < D:
            issue()
        if it & 1:
            u = (it - 16) // 2
            s0 = RING + 16 * ((16 + 2 * u) % R)
            s1 = RING + 16 * ((17 + 2 * u) % R)
            src = lambda e, s0=s0, s1=s1: (s0 if e < 4 else s1) + 4 * (e & 3)

            def M(i, u=u):
                for h in range(2):
                    j = 2 * i + h
                    c = "0" if u == 0 else vr(AC + 4 * j, 4)
                    a(f"v_mfma_f32_16x16x32_bf16 {vr(AC+4*j,4)}, {vr(PTA+8*(i&1)+4*h,4)}, {vr(SC+4*u,4)}, {c}")
            perms(PTA, src, 0)
            perms(PTA + 8, src, 1)
            M(0)
            perms(PTA, src, 2)
            M(1)
            perms(PTA + 8, src, 3)
            M(2)
            M(3)
    assert issued[0] == 32
    stamp(5)
    a("s_mov_b32 exec_lo, 0x00ff00ff")
    a("s_mov_b32 exec_hi, 0x00ff00ff")
    for j in range(8):
        if j == 4:
            a("s_nop 0")
        if j == 7:
            pass
        a(f"ds_write_b128 v10, {vr(AC+4*j,4)} offset:{ORED+16*j}")
    a("s_mov_b64 exec, -1")
    a("s_waitcnt lgkmcnt(0)")
    a("s_barrier")
    stamp(6)
    a(f"ds_read_b128 v[16:19], v13 offset:{FB}")
    for w_ in range(4):
        a(f"ds_read_b128 {vr(20+4*w_,4)}, v12 offset:{ORED+4224*w_}")
    a("s_waitcnt lgkmcnt(0)")
    for k in range(4):
        a(f"v_mul_f32 v{20+k}, v16, v{20+k}")
    for w_ in range(1, 4):
        for k in range(4):
            a(f"v_fmac_f32 v{20+k}, v{16+w_}, v{20+4*w_+k}")
    for k in range(4):
        put_tag(20 + k)
    a("buffer_store_dwordx4 v[20:23], v7, s[48:51], s9 offen sc1")
    stamp(7)

    def ld3():
        for i in range(4):
            a(f"buffer_load_dwordx4 {vr(40+4*i,4)}, v11, s[48:51], s{10+i} offen sc1")
    poll(ld3, lambda: check_tag(range(40, 56), 14, 13), cfg.sleep_tail)
    stamp(8)
    for k in range(4):
        a(f"v_add_f32 v{40+k}, v{40+k}, v{44+k}")
        a(f"v_add_f32 v{48+k}, v{48+k}, v{52+k}")
    for k in range(4):
        a(f"v_add_f32 v{40+k}, v{40+k}, v{48+k}")
    a("s_nop 0")
    a("v_permlane32_swap_b32 v40, v42")
    a("v_permlane32_swap_b32 v41, v43")
    a("v_add_f32 v40, v40, v42")
    a("v_add_f32 v41, v41, v43")
    a("s_nop 1")
    a("v_permlane16_swap_b32 v40, v41")
    a("v_add_f32 v40, v40, v41")
    a("s_nop 1")
    a("v_add_f32_dpp v40, v40, v40 row_ror:8 row_mask:0xf bank_mask:0xf")
    a("v_cvt_pk_bf16_f32 v40, v40, v40")
    a(f"ds_write_b16 v6, v40 offset:{OB}")
    a("s_waitcnt lgkmcnt(0)")
    a("s_barrier")
    stamp(9)
    a("s_cmp_lg_u32 s6, 0")
    a("s_cbranch_scc1 L_ATT_END")
    srd(56, 16, 4096)
    srd(60, 34, 4096)
    a("v_lshlrev_b32 v12, 2, v5")
    a("s_lshl_b32 s9, s2, 4")
    a("buffer_load_dword v16, v12, s[56:59], s9 offen")
    a("v_lshlrev_b32 v11, 13, v0")
    a("s_lshl_b32 s10, s2, 5")
    a(f"s_add_u32 s10, s10, {XP_OFF}")

    def ld4():
        a("buffer_load_dwordx4 v[40:43], v11, s[48:51], s10 offen sc1")
        a("buffer_load_dwordx4 v[44:47], v11, s[48:51], s10 offen offset:16 sc1")
    poll(ld4, lambda: check_tag(range(40, 48), 14, 13), cfg.sleep_tail)
    stamp(10)
    for k in range(4):
        a(f"v_permlane32_swap_b32 v{40+k}, v{44+k}")
    for k in range(4):
        a(f"v_add_f32 v{40+k}, v{40+k}, v{44+k}")
    a("s_nop 0")
    a("v_permlane16_swap_b32 v40, v42")
    a("v_permlane16_swap_b32 v41, v43")
    a("v_add_f32 v40, v40, v42")
    a("v_add_f32 v41, v41, v43")
    for s in (8, 4, 2, 1):
        a("s_nop 0")
        a(f"v_add_f32_dpp v40, v40, v40 row_ror:{s} row_mask:0xf bank_mask:0xf")
        a(f"v_add_f32_dpp v41, v41, v41 row_ror:{s} row_mask:0xf bank_mask:0xf")
    a("v_lshlrev_b32 v42, 16, v16")
    a("v_and_b32 v43, s66, v16")
    a("v_add_f32 v40, v40, v42")
    a("v_add_f32 v41, v41, v43")
    a("v_cvt_pk_bf16_f32 v40, v40, v41")
    a("s_mov_b32 exec_lo, 0x00010001")
    a("s_mov_b32 exec_hi, 0x00010001")
    a("buffer_store_dword v40, v12, s[60:63], s9 offen")
    stamp(11)
    a("s_cmp_lg_u32 s2, 0")
    a("s_cbranch_scc1 L_ATT_END")
    a("s_mov_b64 exec, 1")
    a(f"s_mov_b32 s9, {EP_OFF:#x}")
    a("buffer_store_dword v15, v12, s[48:51], s9 offen")
    a.label("L_ATT_END")
    dump_stamps(12)
    a.label("L_END")
    a("s_endpgm")

    probs = check_hazards(a.lines)
    for p in probs:
        print(p, file=sys.stderr)
    if probs:
        raise SystemExit("hazards found")

    pad = ""
    if cfg.codepf:
        pad = f".fill ({(512 << cfg.codepf) + 256} - (. - {NAME}_kernel)) / 4, 4, 0xBF800000\n"
    out = HEADER
    out += "; Generated by work/gen2.py (hand-written generator). One persistent launch, 256 workgroups x 8 waves.\n"
    out += f"; @launch grid=(256,1,1) block=(512,1,1) lds={LDS_SIZE}\n"
    out += f""".amdgcn_target "amdgcn-amd-amdhsa--gfx950"
.text
.globl {NAME}_kernel
.p2align 8
.type {NAME}_kernel,@function
{NAME}_kernel:
"""
    out += a.text()
    out += pad
    out += f""".section .rodata,"a"
.p2align 6
.amdhsa_kernel {NAME}_kernel
  .amdhsa_next_free_vgpr 256
  .amdhsa_next_free_sgpr 102
  .amdhsa_accum_offset 256
  .amdhsa_group_segment_fixed_size 0
  .amdhsa_kernarg_size 96
  .amdhsa_user_sgpr_count 2
  .amdhsa_user_sgpr_kernarg_segment_ptr 1
  .amdhsa_system_sgpr_workgroup_id_x 1
  .amdhsa_float_denorm_mode_32 3
.end_amdhsa_kernel
"""
    return out


def parse_args(argv=None):
    p = argparse.ArgumentParser()
    p.add_argument("-o", default="cdna_kernels/" + NAME + ".s")
    p.add_argument("--ring", type=int, default=10)
    p.add_argument("--depth", type=int, default=3)
    p.add_argument("--stamps", type=int, default=0)
    p.add_argument("--codepf", type=int, default=5)
    p.add_argument("--sleep", type=int, default=8)
    p.add_argument("--sleep_q", type=int, default=0)
    p.add_argument("--sleep_lds", type=int, default=2)
    p.add_argument("--sleep_tail", type=int, default=0)
    p.add_argument("--spin", type=int, default=400000)
    p.add_argument("--trig", type=int, default=31)
    return p.parse_args(argv)


if __name__ == "__main__":
    cfg = parse_args()
    open(cfg.o, "w").write(gen(cfg))
    print("wrote", cfg.o)
```

```python
import sys
import argparse
import struct
import math
from asmlib import Asm, vr, sr, check_hazards

NAME = "parallel_sum__gqa_block_cached__geglu_ffn__decode"

QP_OFF = 0x000000
GP_OFF = 0x020000
ML_OFF = 0x060000
EP_OFF = 0x070000
OP_OFF = 0x080000
XP_OFF = 0x180000
ST_OFF = 0x200000
WS_SIZE = 0x400000
XN = 0x0000
QB = 0x0400
MLB = 0x0C80
TF = 0x0D80
FB = 0x0E00
OB = 0x0E80
HB = 0x0F80
ORED = 0x1080
LDS_SIZE = ORED + 4 * 4224

LOG2E = 0x3FB8AA3B
SCALE = 0x3DB504F3
EPS = 0x3727C5AC

HEADER = open("cdna_kernels/" + NAME + ".s.ref").read().split("; Override launch")[0]


def f32bits(x):
    return struct.unpack("<I", struct.pack("<f", x))[0]


def gen(cfg):
    a = Asm()
    R = cfg.ring
    D = cfg.depth
    NT = " nt"
    uid = [0]

    def stamp(k):
        if cfg.stamps:
            a(f"s_memrealtime s[{70+2*k}:{71+2*k}]")

    def dump_dbg(role):
        srd(52, 36, 256)
        a("v_mov_b32 v3, 0")
        def amax(slot, k, inv=False):
            a(f"v_mov_b32 v1, s{70+2*k}")
            if inv:
                a("v_not_b32 v1, v1")
            a(f"buffer_atomic_umax v1, v3, s[52:55], 0 offen offset:{4*slot}")
        amax(0, 0, True)
        amax(1, 0)
        if role == "S":
            uid[0] += 1
            a("s_cmp_lg_u32 s3, 0")
            a(f"s_cbranch_scc1 L_dbg{uid[0]}")
            amax(2, 1); amax(3, 4); amax(4, 5); amax(11, 2); amax(12, 4, True); amax(13, 5, True)
            a.label(f"L_dbg{uid[0]}")
            amax(9, 10)
        else:
            amax(5, 2); amax(6, 4); amax(7, 5); amax(8, 8); amax(14, 5, True); amax(15, 1)
            uid[0] += 1
            a("s_cmp_lg_u32 s6, 0")
            a(f"s_cbranch_scc1 L_dbg{uid[0]}")
            amax(10, 11)
            a.label(f"L_dbg{uid[0]}")

    def dump_stamps(n):
        if not cfg.stamps:
            return
        a("s_waitcnt lgkmcnt(0)")
        a("s_mov_b64 exec, 1")
        if cfg.stamps == 2:
            dump_dbg("S" if n == 11 else "A")
            return
        a("s_lshl_b32 s4, s2, 10")
        a("s_lshl_b32 s5, s3, 7")
        a("s_add_u32 s4, s4, s5")
        a(f"s_add_u32 s4, s4, {ST_OFF}")
        a("v_mov_b32 v3, 0")
        for k in range(n):
            a(f"v_mov_b32 v1, s{70+2*k}")
            a(f"buffer_store_dword v1, v3, s[48:51], s4 offen offset:{4*k}")

    def srd(d, p, size):
        a(f"s_mov_b32 s{d}, s{p}")
        a(f"s_mov_b32 s{d+1}, s{p+1}")
        a(f"s_mov_b32 s{d+2}, {size:#x}")
        a(f"s_mov_b32 s{d+3}, 0x20000")

    def poll(loads, check, sleep, cnt="vmcnt"):
        uid[0] += 1
        n = uid[0]
        a(f"s_mov_b32 s15, {cfg.spin}")
        a.label(f"L_poll{n}")
        loads()
        a(f"s_waitcnt {cnt}(0)")
        check()
        a(f"s_cbranch_scc1 L_pdone{n}")
        a("s_sub_u32 s15, s15, 1")
        a(f"s_cbranch_scc1 L_pdone{n}")
        if sleep:
            a(f"s_sleep {sleep}")
        a(f"s_branch L_poll{n}")
        a.label(f"L_pdone{n}")

    def check_tag(regs, t0, t1):
        regs = list(regs)
        a(f"v_xor_b32 v{t0}, s14, v{regs[0]}")
        a(f"v_xor_b32 v{t1}, s14, v{regs[1]}")
        for k, r in enumerate(regs[2:]):
            t = t0 if k % 2 == 0 else t1
            a(f"v_bitop3_b32 v{t}, v{r}, s14, v{t} bitop3:0xbe")
        a(f"v_or_b32 v{t0}, v{t0}, v{t1}")
        a(f"v_and_b32 v{t0}, s69, v{t0}")
        a(f"v_cmp_eq_u32 vcc, 0, v{t0}")
        a("s_cmp_eq_u64 vcc, -1")

    def check_sentinel(regs, tmp):
        regs = list(regs)
        a(f"v_max3_u32 v{tmp}, v{regs[0]}, v{regs[1]}, v{regs[2]}")
        regs = regs[3:]
        while len(regs) >= 2:
            a(f"v_max3_u32 v{tmp}, v{tmp}, v{regs[0]}, v{regs[1]}")
            regs = regs[2:]
        if regs:
            a(f"v_max_u32 v{tmp}, v{tmp}, v{regs[0]}")
        a(f"v_cmp_ne_u32 vcc, -1, v{tmp}")
        a("s_cmp_eq_u64 vcc, -1")

    def put_tag(r):
        a(f"v_bfi_b32 v{r}, s69, v15, v{r}")

    def load_tag():
        a(f"s_load_dword s14, s[38:39], {EP_OFF:#x}")

    def make_tag():
        a("s_add_u32 s14, s14, 1")
        a("s_and_b32 s14, s14, 0xff")
        a("v_mov_b32 v15, s14")

    def xlane(op, x, t, steps):
        for s in steps:
            if s in (1, 2, 4, 8):
                a("s_nop 1")
                a(f"{op}_dpp v{x}, v{x}, v{x} row_ror:{s} row_mask:0xf bank_mask:0xf")
            else:
                a(f"v_mov_b32 v{t}, v{x}")
                a("s_nop 1")
                a(f"v_permlane{s}_swap_b32 v{x}, v{t}")
                a(f"{op} v{x}, v{x}, v{t}")

    def round_bf16(d, s):
        a(f"v_cvt_pk_bf16_f32 v{d}, v{s}, v{s}")
        a(f"v_lshlrev_b32 v{d}, 16, v{d}")

    def perms(dst, src_e, i):
        for p in range(4):
            a(f"v_perm_b32 v{dst+p}, v{src_e(2*p+1)+i}, v{src_e(2*p)+i}, s64")
        for p in range(4):
            a(f"v_perm_b32 v{dst+4+p}, v{src_e(2*p+1)+i}, v{src_e(2*p)+i}, s65")

    def consts():
        a("s_mov_b32 s64, 0x05040100")
        a("s_mov_b32 s65, 0x07060302")
        a("s_mov_b32 s66, 0xffff0000")
        a(f"s_mov_b32 s67, {LOG2E:#x}")
        a(f"s_mov_b32 s68, {SCALE:#x}")
        a("s_movk_i32 s69, 0xff")

    a("s_cmp_ge_u32 s2, 256")
    a("s_cbranch_scc1 L_END")
    a("s_load_dwordx16 s[16:31], s[0:1], 0")
    a("s_load_dwordx8 s[32:39], s[0:1], 64")
    stamp(0)
    if cfg.codepf:
        a("s_getpc_b64 s[4:5]")
        a(f"v_lshlrev_b32 v1, {cfg.codepf}, v0")
        a("global_load_dword v2, v1, s[4:5]")
    a("v_lshrrev_b32 v3, 6, v0")
    a("v_and_b32 v0, 63, v0")
    a("v_readfirstlane_b32 s3, v3")
    a("v_and_b32 v4, 15, v0")
    a("v_lshrrev_b32 v5, 4, v0")
    a("s_cmp_ge_u32 s3, 4")
    a("s_cbranch_scc1 L_ATT")
    a("s_lshr_b32 s6, s2, 2")
    a("s_and_b32 s7, s2, 3")
    a("v_lshrrev_b32 v8, 3, v4")
    a("v_and_b32 v9, 7, v4")
    a("v_lshlrev_b32 v10, 3, v8")
    a("v_lshl_add_u32 v10, v5, 4, v10")
    a("s_cmp_lg_u32 s3, 0")
    a("s_cbranch_scc1 L_S123")

    XA = 16
    XO = 32
    XU = 36
    WR = 72
    ACC = 200
    PT = 232

    a("s_mov_b32 s8, 8192")
    a("s_mov_b32 s9, 14")
    a("v_lshlrev_b32 v6, 6, v0")
    a("v_lshrrev_b32 v7, 5, v0")
    a("v_lshlrev_b32 v7, 11, v7")
    a("v_and_b32 v11, 31, v0")
    a("v_lshl_add_u32 v7, v11, 4, v7")
    a("s_lshl_b32 s12, s7, 9")
    a("s_waitcnt lgkmcnt(0)")
    srd(56, 16, 4096)
    srd(40, 22, 0x800000)
    load_tag()
    for i in range(4):
        a(f"buffer_load_dwordx4 {vr(XA+4*i,4)}, v6, s[56:59], 0 offen offset:{16*i}")
    a(f"buffer_load_dwordx4 {vr(XO,4)}, v7, s[56:59], s12 offen")

    a.label("L_S_wload")
    a("v_mul_lo_u32 v10, v10, s8")
    a("s_lshl_b32 s10, s7, 8")
    a("s_mul_i32 s10, s10, s8")
    a("s_lshl_b32 s11, s6, 7")
    a("v_lshl_add_u32 v10, v9, 4, v10")
    a("s_add_u32 s10, s10, s11")
    a("s_mul_i32 s11, s8, 57")
    for T in range(4):
        for e in range(8):
            a(f"buffer_load_dwordx4 {vr(WR+32*T+4*e,4)}, v10, s[40:43], s10 offen{NT}")
            if not (T == 3 and e == 7):
                a(f"s_add_u32 s10, s10, {'s11' if e == 7 else 's8'}")
    stamp(1)
    a("s_cmp_lg_u32 s3, 0")
    a("s_cbranch_scc1 L_S_gemv")
    a("s_barrier")
    srd(48, 38, WS_SIZE)
    consts()
    a("s_waitcnt vmcnt(32)")
    stamp(2)
    for i in range(16):
        a(f"v_lshlrev_b32 v{XU+2*i}, 16, v{XA+i}")
        a(f"v_and_b32 v{XU+2*i+1}, s66, v{XA+i}")
    for k in range(4):
        a(f"v_add_f32 v{11+k}, v{XU+k}, v{XU+4+k}")
    for i in range(8, 32):
        a(f"v_add_f32 v{11+(i&3)}, v{11+(i&3)}, v{XU+i}")
    a("v_add_f32 v11, v11, v12")
    a("v_add_f32 v13, v13, v14")
    a("v_add_f32 v11, v11, v13")
    xlane("v_add_f32", 11, 12, [8, 4, 2, 1, 16])
    a("v_mul_f32 v11, 0x3a800000, v11")
    for i in range(32):
        a(f"v_sub_f32 v{XU+i}, v{XU+i}, v11")
    for k in range(4):
        a(f"v_mul_f32 v{XA+k}, v{XU+k}, v{XU+k}")
    for i in range(4, 32):
        a(f"v_fmac_f32 v{XA+(i&3)}, v{XU+i}, v{XU+i}")
    a(f"v_add_f32 v12, v{XA}, v{XA+1}")
    a(f"v_add_f32 v14, v{XA+2}, v{XA+3}")
    a("v_add_f32 v12, v12, v14")
    xlane("v_add_f32", 12, 13, [8, 4, 2, 1, 16])
    a("v_mul_f32 v12, 0x3a800000, v12")
    round_bf16(11, 11)
    round_bf16(12, 12)
    a(f"v_add_f32 v12, {EPS:#x}, v12")
    round_bf16(12, 12)
    a("v_sqrt_f32 v12, v12")
    a("s_nop 0")
    round_bf16(12, 12)
    a("v_rcp_f32 v13, v12")
    for i in range(4):
        a(f"v_lshlrev_b32 v{XU+2*i}, 16, v{XO+i}")
        a(f"v_and_b32 v{XU+2*i+1}, s66, v{XO+i}")
    for i in range(8):
        a(f"v_sub_f32 v{XU+i}, v{XU+i}, v11")
    for i in range(4):
        a(f"v_cvt_pk_bf16_f32 v{XO+i}, v{XU+2*i}, v{XU+2*i+1}")
    for i in range(4):
        a(f"v_lshlrev_b32 v{XU+2*i}, 16, v{XO+i}")
        a(f"v_and_b32 v{XU+2*i+1}, s66, v{XO+i}")
    for i in range(8):
        a(f"v_mul_f32 v{XU+8+i}, v{XU+i}, v13")
    for i in range(8):
        a(f"v_fma_f32 v{XU+i}, -v{XU+8+i}, v12, v{XU+i}")
    for i in range(8):
        a(f"v_fmac_f32 v{XU+8+i}, v{XU+i}, v13")
    for i in range(4):
        a(f"v_cvt_pk_bf16_f32 v{XO+i}, v{XU+8+2*i}, v{XU+8+2*i+1}")
    a("v_lshlrev_b32 v11, 4, v0")
    a(f"ds_write_b128 v11, {vr(XO,4)} offset:{XN}")
    a("s_waitcnt lgkmcnt(0)")
    make_tag()

    a.label("L_S_gemv")
    a("v_bfe_u32 v11, v4, 2, 1")
    a("v_lshlrev_b32 v11, 9, v11")
    a("v_lshl_add_u32 v11, v5, 5, v11")
    a("v_and_b32 v12, 1, v4")
    a("v_lshl_add_u32 v11, v12, 4, v11")
    for T in range(4):
        a(f"ds_read_b128 {vr(XU+4*T,4)}, v11 offset:{XN+128*T}")
    stamp(3)
    a("v_lshlrev_b32 v12, s9, v5")
    a("v_lshl_add_u32 v12, v9, 5, v12")
    a("s_lshl_b32 s10, s7, 15")
    a("s_lshl_b32 s11, s6, 8")
    a("s_add_u32 s10, s10, s11")
    a("s_lshl_b32 s11, s2, 10")
    a("s_lshl_b32 s12, s3, 9")
    a("s_add_u32 s11, s11, s12")
    a(f"s_add_u32 s11, s11, {GP_OFF-512}")
    a("s_cmp_eq_u32 s3, 0")
    a("s_cselect_b32 s10, s10, s11")
    a("s_waitcnt lgkmcnt(0)")
    for T in range(4):
        a(f"s_waitcnt vmcnt({24-8*T})")
        src = lambda e, T=T: WR + 32 * T + 4 * e

        def M(i, T=T):
            for h in range(2):
                j = 2 * i + h
                c = "0" if T == 0 else vr(ACC + 4 * j, 4)
                a(f"v_mfma_f32_16x16x32_bf16 {vr(ACC+4*j,4)}, {vr(XU+4*T,4)}, {vr(PT+8*(i&1)+4*h,4)}, {c}")
        perms(PT, src, 0)
        perms(PT + 8, src, 1)
        M(0)
        perms(PT, src, 2)
        M(1)
        perms(PT + 8, src, 3)
        M(2)
        M(3)
    stamp(4)
    a("s_nop 3")
    for j in range(8):
        if j >= 6:
            a("s_nop 0")
        a(f"v_add_f32_dpp v{PT+j}, v{ACC+4*j+1}, v{ACC+4*j} row_ror:8 row_mask:0xf bank_mask:0xf")
    for j in range(8):
        put_tag(PT + j)
    a("s_mov_b64 exec, 0x00ff00ff")
    a(f"buffer_store_dwordx4 {vr(PT,4)}, v12, s[48:51], s10 offen sc1")
    a(f"buffer_store_dwordx4 {vr(PT+4,4)}, v12, s[48:51], s10 offen offset:16 sc1")
    a("s_mov_b64 exec, -1")
    a("s_cmp_eq_u32 s3, 1")
    a("s_cbranch_scc1 L_S1_h")
    a("s_cmp_eq_u32 s3, 2")
    a("s_cbranch_scc1 L_S_X")
    a("v_lshlrev_b32 v6, 4, v0")
    a("s_lshr_b32 s10, s2, 5")
    a("s_lshl_b32 s10, s10, 12")
    if QP_OFF:
        a(f"s_add_u32 s10, s10, {QP_OFF}")
    a("s_add_u32 s11, s10, 32768")
    a("s_add_u32 s12, s10, 65536")
    a("s_add_u32 s13, s10, 98304")
    a("v_lshrrev_b32 v7, 5, v0")
    a("v_mul_u32_u24 v7, 272, v7")
    a("v_and_b32 v11, 31, v0")
    a("v_lshl_add_u32 v7, v11, 3, v7")

    def ldq():
        for kq in range(4):
            for i in range(4):
                a(f"buffer_load_dwordx4 {vr(32+16*kq+4*i,4)}, v6, s[48:51], s{10+kq} offen offset:{1024*i} sc1")
    poll(ldq, lambda: check_tag(range(32, 96), 11, 12), cfg.sleep_q)
    stamp(5)
    for k in range(16):
        a(f"v_add_f32 v{32+k}, v{32+k}, v{48+k}")
        a(f"v_add_f32 v{64+k}, v{64+k}, v{80+k}")
    for k in range(16):
        a(f"v_add_f32 v{32+k}, v{32+k}, v{64+k}")
    for i in range(4):
        a(f"v_cvt_pk_bf16_f32 v{48+2*i}, v{32+4*i}, v{33+4*i}")
        a(f"v_cvt_pk_bf16_f32 v{49+2*i}, v{34+4*i}, v{35+4*i}")
        a(f"ds_write_b64 v7, {vr(48+2*i,2)} offset:{QB+544*i}")
    a("s_waitcnt lgkmcnt(0)")
    a("s_barrier")
    a("s_branch L_S_X")

    a.label("L_S123")
    a("s_barrier")
    consts()
    a("s_mov_b32 s8, 7168")
    a("s_mov_b32 s9, 8")
    a("s_waitcnt lgkmcnt(0)")
    load_tag()
    srd(48, 38, WS_SIZE)
    a("s_cmp_eq_u32 s3, 2")
    a("s_cselect_b64 s[40:41], s[30:31], s[28:29]")
    a("s_mov_b32 s42, 0x700000")
    a("s_mov_b32 s43, 0x20000")
    a("v_mov_b32 v11, -1")
    a("v_lshlrev_b32 v12, 2, v0")
    a(f"ds_write_b32 v12, v11 offset:{MLB}")
    a(f"ds_write_b32 v12, v11 offset:{MLB+128}")
    a("s_waitcnt lgkmcnt(0)")
    make_tag()
    a("s_barrier")
    a("s_cmp_eq_u32 s3, 3")
    a("s_cbranch_scc1 L_S3")
    a("s_cmp_lt_u32 s6, 56")
    a("s_cbranch_scc1 L_S_wload")
    a("s_branch L_S_X")

    a.label("L_S1_h")
    a("v_lshlrev_b32 v12, 3, v0")
    a("s_lshl_b32 s10, s6, 12")
    a(f"s_add_u32 s10, s10, {GP_OFF}")

    def ldg():
        for kq in range(4):
            for m in range(2):
                a(f"buffer_load_dwordx2 {vr(16+4*kq+2*m,2)}, v12, s[48:51], s10 offen offset:{kq*1024+m*512} sc1")
    poll(ldg, lambda: check_tag(range(16, 32), 11, 13), cfg.sleep)
    stamp(5)
    for k in range(4):
        a(f"v_add_f32 v{16+k}, v{16+k}, v{20+k}")
        a(f"v_add_f32 v{24+k}, v{24+k}, v{28+k}")
    for k in range(4):
        a(f"v_add_f32 v{16+k}, v{16+k}, v{24+k}")
    a("v_cvt_pk_bf16_f32 v20, v16, v17")
    a("v_cvt_pk_bf16_f32 v21, v18, v19")
    a("v_lshlrev_b32 v16, 16, v20")
    a("v_and_b32 v17, s66, v20")
    a("v_lshlrev_b32 v18, 16, v21")
    a("v_and_b32 v19, s66, v21")
    a(f"s_mov_b32 s10, {f32bits(0.044715):#x}")
    a(f"s_mov_b32 s11, {f32bits(-2.0 * math.sqrt(2.0 / math.pi) * math.log2(math.e)):#x}")
    for k in range(2):
        a(f"v_mul_f32 v{20+k}, v{16+k}, v{16+k}")
    for k in range(2):
        a(f"v_mul_f32 v{20+k}, v{20+k}, v{16+k}")
    for k in range(2):
        a(f"v_fma_f32 v{20+k}, v{20+k}, s10, v{16+k}")
    for k in range(2):
        a(f"v_mul_f32 v{20+k}, s11, v{20+k}")
    for k in range(2):
        a(f"v_exp_f32 v{20+k}, v{20+k}")
    a("s_nop 0")
    for k in range(2):
        a(f"v_add_f32 v{20+k}, 1.0, v{20+k}")
    for k in range(2):
        a(f"v_rcp_f32 v{20+k}, v{20+k}")
    a("s_nop 0")
    for k in range(2):
        a(f"v_mul_f32 v{20+k}, v{20+k}, v{16+k}")
    a("v_cvt_pk_bf16_f32 v22, v20, v21")
    a("v_lshlrev_b32 v20, 16, v22")
    a("v_and_b32 v21, s66, v22")
    a("v_mul_f32 v20, v20, v18")
    a("v_mul_f32 v21, v21, v19")
    a("v_cvt_pk_bf16_f32 v22, v20, v21")
    a("v_lshlrev_b32 v12, 2, v0")
    a(f"ds_write_b32 v12, v22 offset:{HB}")
    a("s_branch L_S_X")

    a.label("L_S3")
    a("v_and_b32 v6, 7, v0")
    a("v_lshlrev_b32 v6, 3, v6")
    a("v_and_b32 v7, 31, v0")
    a("v_lshlrev_b32 v7, 3, v7")
    a("s_lshl_b32 s13, s2, 6")
    a(f"s_add_u32 s13, s13, {ML_OFF}")

    def ldm():
        for w in range(4):
            a(f"ds_read_b64 {vr(16+2*w,2)}, v6 offset:{MLB+64*w}")
    poll(ldm, lambda: check_sentinel(range(16, 24), 11), cfg.sleep_lds, cnt="lgkmcnt")
    stamp(5)
    a(f"ds_read_b32 v30, v7 offset:{MLB}")

    def combine4(mo):
        a(f"v_max3_f32 v{mo}, v16, v18, v20")
        a(f"v_max_f32 v{mo}, v{mo}, v22")

    def wsum4(mo, lo):
        for w in range(4):
            a(f"v_sub_f32 v{16+2*w}, v{16+2*w}, v{mo}")
        for w in range(4):
            a(f"v_mul_f32 v{16+2*w}, s67, v{16+2*w}")
        for w in range(4):
            a(f"v_exp_f32 v{16+2*w}, v{16+2*w}")
        a("s_nop 0")
        a(f"v_mul_f32 v{lo}, v16, v17")
        for w in range(1, 4):
            a(f"v_fmac_f32 v{lo}, v{16+2*w}, v{17+2*w}")
    combine4(24)
    wsum4(24, 25)
    put_tag(24)
    put_tag(25)
    a("s_mov_b64 exec, 0xff")
    a("buffer_store_dwordx2 v[24:25], v6, s[48:51], s13 offen sc1")
    a("s_mov_b64 exec, -1")
    a("s_lshr_b32 s10, s2, 5")
    a("s_lshl_b32 s10, s10, 11")
    a(f"s_add_u32 s10, s10, {ML_OFF}")
    a("v_lshlrev_b32 v7, 3, v0")

    def ld2():
        for i in range(4):
            a(f"buffer_load_dwordx2 {vr(16+2*i,2)}, v7, s[48:51], s10 offen offset:{512*i} sc1")
    poll(ld2, lambda: check_tag(range(16, 24), 11, 12), cfg.sleep)
    stamp(6)
    for w in range(4):
        a(f"v_and_b32 v{16+2*w}, s66, v{16+2*w}")
    combine4(26)
    xlane("v_max_f32", 26, 11, [8, 16, 32])
    wsum4(26, 27)
    xlane("v_add_f32", 27, 11, [8, 16, 32])
    a("s_waitcnt lgkmcnt(0)")
    a("v_sub_f32 v30, v30, v26")
    a("v_mul_f32 v30, s67, v30")
    a("v_exp_f32 v30, v30")
    a("v_rcp_f32 v27, v27")
    a("v_bfe_u32 v7, v0, 3, 2")
    a("v_lshlrev_b32 v7, 2, v7")
    a("v_lshl_add_u32 v7, v6, 1, v7")
    a("v_mul_f32 v30, v30, v27")
    a(f"ds_write_b32 v7, v30 offset:{FB}")

    a.label("L_S_X")
    TW = 32
    TP = 96
    XACC = 160
    srd(40, 24, 0x800000)
    srd(44, 32, 0x700000)
    a("v_lshrrev_b32 v10, 1, v5")
    a("v_lshlrev_b32 v10, 5, v10")
    a("v_and_b32 v11, 1, v5")
    a("v_lshl_add_u32 v10, v11, 2, v10")
    a("v_lshl_add_u32 v10, v8, 1, v10")
    a("v_lshlrev_b32 v10, 11, v10")
    a("v_lshl_add_u32 v10, v9, 4, v10")
    a("v_lshlrev_b32 v11, 3, v8")
    a("v_lshl_add_u32 v11, v5, 4, v11")
    a("v_lshlrev_b32 v11, 11, v11")
    a("v_lshl_add_u32 v11, v9, 4, v11")
    a("s_lshl_b32 s10, s6, 17")
    a("s_lshl_b32 s11, s7, 9")
    a("s_add_u32 s10, s10, s11")
    a("s_lshl_b32 s11, s3, 7")
    a("s_add_u32 s10, s10, s11")
    a("s_mov_b32 s11, s10")
    a("s_lshl_b32 s12, s3, 2")
    a("v_mov_b32 v12, s12")

    def ldt():
        a(f"ds_read_b32 v13, v12 offset:{TF}")

    def ckt():
        a("v_cmp_eq_u32 vcc, 0, v13")
        a("s_cmp_eq_u64 vcc, -1")
    poll(ldt, ckt, cfg.sleep_lds, cnt="lgkmcnt")
    stamp(7)

    def ld_wo():
        for r in range(4):
            for hi in range(2):
                e = 4 * hi + r
                a(f"buffer_load_dwordx4 {vr(TW+4*e,4)}, v10, s[40:43], s11 offen offset:{2048*hi}{NT}")
            if r < 3:
                a("s_add_u32 s11, s11, 16384")

    def ld_wd():
        for e in range(8):
            a(f"buffer_load_dwordx4 {vr(TW+32+4*e,4)}, v11, s[44:47], s10 offen offset:{2048*(e&1)}{NT}")
            if (e & 1) and e < 7:
                a("s_add_u32 s10, s10, 4096")
    ld_wd()
    ld_wo()
    a("v_bfe_u32 v12, v4, 2, 1")
    a("v_lshlrev_b32 v12, 7, v12")
    a("v_lshl_add_u32 v12, v5, 5, v12")
    a("v_and_b32 v13, 1, v4")
    a("v_lshl_add_u32 v12, v13, 4, v12")
    a("v_lshlrev_b32 v13, 12, v5")
    a("v_lshl_add_u32 v13, v9, 5, v13")
    a("s_lshl_b32 s10, s6, 13")
    a("s_lshl_b32 s11, s7, 10")
    a("s_add_u32 s10, s10, s11")
    a("s_lshl_b32 s11, s3, 8")
    a("s_add_u32 s10, s10, s11")
    a(f"s_add_u32 s10, s10, {XP_OFF}")
    a("s_barrier")
    a(f"ds_read_b128 v[20:23], v12 offset:{HB}")
    a("s_waitcnt vmcnt(8)")
    for i in range(4):
        perms(TP + 32 + 8 * i, lambda e: TW + 32 + 4 * e, i)
    a("s_waitcnt lgkmcnt(0)")
    a("s_cmp_ge_u32 s6, 56")
    a("s_cbranch_scc1 L_S_noffn")
    for j in range(8):
        a(f"v_mfma_f32_16x16x32_bf16 {vr(XACC+4*j,4)}, v[20:23], {vr(TP+32+4*j,4)}, 0")
    a("s_branch L_S_wo")
    a.label("L_S_noffn")
    for k in range(8):
        a(f"v_mov_b32 v{XACC+4*k}, 0")
        a(f"v_mov_b32 v{XACC+4*k+1}, 0")
    a.label("L_S_wo")
    a("s_waitcnt vmcnt(0)")
    for i in range(4):
        perms(TP + 8 * i, lambda e: TW + 4 * e, i)
    stamp(8)
    a("s_barrier")
    stamp(9)
    a(f"ds_read_b128 v[16:19], v12 offset:{OB}")
    a("s_waitcnt lgkmcnt(0)")
    for j in range(8):
        a(f"v_mfma_f32_16x16x32_bf16 {vr(XACC+4*j,4)}, v[16:19], {vr(TP+4*j,4)}, {vr(XACC+4*j,4)}")
    a("s_nop 1")
    for j in range(8):
        if j == 7:
            a("s_nop 0")
        a(f"v_add_f32_dpp v{24+j}, v{XACC+4*j+1}, v{XACC+4*j} row_ror:8 row_mask:0xf bank_mask:0xf")
    for j in range(8):
        put_tag(24 + j)
    a("s_mov_b64 exec, 0x00ff00ff")
    a("buffer_store_dwordx4 v[24:27], v13, s[48:51], s10 offen sc1")
    a("buffer_store_dwordx4 v[28:31], v13, s[48:51], s10 offen offset:16 sc1")
    stamp(10)
    dump_stamps(11)
    a("s_endpgm")

    a.label("L_ATT")
    RING = 16
    SC = RING + 16 * R
    QR = SC + 32
    ST = QR + 8
    AC = QR
    PTA = AC + 32
    assert PTA + 16 <= 256 and ST + 26 <= 256
    a("s_sub_u32 s6, s3, 4")
    a("v_bfe_u32 v6, v4, 1, 1")
    a("v_lshrrev_b32 v7, 2, v4")
    a("v_lshl_add_u32 v6, v6, 2, v7")
    a("v_lshlrev_b32 v6, 8, v6")
    a("v_lshl_add_u32 v6, v5, 5, v6")
    a("v_and_b32 v7, 1, v4")
    a("v_lshl_add_u32 v6, v7, 4, v6")
    a("v_lshlrev_b32 v7, 4, v0")
    a("s_lshl_b32 s7, s2, 18")
    a("s_lshl_b32 s8, s6, 12")
    a("s_add_u32 s7, s7, s8")
    a("s_mov_b32 s8, s7")
    a("s_waitcnt lgkmcnt(0)")
    load_tag()
    srd(40, 18, 0x4000000)
    srd(44, 20, 0x4000000)
    a("s_barrier")
    issued = [0]

    def issue():
        item = issued[0]
        slot = RING + 16 * (item % R)
        if item < 16:
            for k in range(4):
                a(f"buffer_load_dwordx4 {vr(slot+4*k,4)}, v6, s[40:43], s7 offen offset:{128*(k&1)+2048*(k>>1)}{NT}")
            if item < 15:
                a("s_add_u32 s7, s7, 16384")
        else:
            for r in range(4):
                a(f"buffer_load_dwordx4 {vr(slot+4*r,4)}, v7, s[44:47], s8 offen offset:{1024*r}{NT}")
            if item < 31:
                a("s_add_u32 s8, s8, 16384")
        issued[0] += 1
        if item == cfg.trig:
            a(f"ds_write_b32 v8, v9 offset:{TF}")

    def wait_item(item):
        n = (issued[0] - item - 1) * 4
        a(f"s_waitcnt vmcnt({n})")

    def throttle():
        a(f"s_waitcnt vmcnt({4*(D-1)})")

    for it in range(R):
        if it >= D:
            throttle()
        issue()
        if it == D - 1:
            srd(48, 38, WS_SIZE)
            consts()
            a("v_and_b32 v8, 7, v4")
            a("v_mul_u32_u24 v11, 272, v8")
            a("v_lshl_add_u32 v11, v5, 5, v11")
            a("v_lshrrev_b32 v8, 3, v4")
            a("v_lshl_add_u32 v11, v8, 4, v11")
            a("v_mov_b32 v10, 0xff800000")
            a("s_lshl_b32 s9, s6, 2")
            a("v_mov_b32 v8, s9")
            a("v_mov_b32 v9, 0")
            a("s_waitcnt lgkmcnt(0)")
            make_tag()
    stamp(1)
    a("s_barrier")
    stamp(2)
    for c in range(2):
        a(f"ds_read_b128 {vr(QR+4*c,4)}, v11 offset:{QB+128*c}")
    a("s_waitcnt lgkmcnt(0)")

    def post(i):
        t = ST + 8 * (i & 1)
        w = ST + 16
        for q in range(4):
            a(f"v_add_f32_dpp v{w+6+q}, v{t+2*q+1}, v{t+2*q} row_ror:8 row_mask:0xf bank_mask:0xf")
        s = w + 6
        a(f"v_max3_f32 v10, v10, v{s}, v{s+1}")
        a(f"v_cvt_pk_bf16_f32 v{w+4}, v{s}, v{s+1}")
        a(f"v_cvt_pk_bf16_f32 v{w+5}, v{s+2}, v{s+3}")
        a(f"v_max3_f32 v10, v10, v{s+2}, v{s+3}")
        a(f"v_lshlrev_b32 v{w}, 16, v{w+4}")
        a(f"v_and_b32 v{w+1}, s66, v{w+4}")
        a(f"v_lshlrev_b32 v{w+2}, 16, v{w+5}")
        a(f"v_and_b32 v{w+3}, s66, v{w+5}")
        for k in range(4):
            a(f"v_mul_f32 v{w+k}, s68, v{w+k}")
        a(f"v_cvt_pk_bf16_f32 v{SC+2*i}, v{w}, v{w+1}")
        a(f"v_cvt_pk_bf16_f32 v{SC+2*i+1}, v{w+2}, v{w+3}")

    for i in range(16):
        wait_item(i)
        slot = RING + 16 * (i % R)
        t = ST + 8 * (i & 1)
        for st_ in range(2):
            for ln in range(2):
                cc = "0" if ln == 0 else vr(t + 4 * st_, 4)
                a(f"v_mfma_f32_16x16x32_bf16 {vr(t+4*st_,4)}, {vr(slot+4*(2*st_+ln),4)}, {vr(QR+4*ln,4)}, {cc}")
        if i < D:
            throttle()
            issue()
        elif issued[0] - (i + 1) < D:
            issue()
        if i >= 1:
            if i == 1 or True:
                a("s_nop 3")
            post(i - 1)
    a("s_nop 7")
    post(15)
    stamp(3)
    issue()
    xlane("v_max_f32", 10, 11, [16, 32])
    round_bf16(12, 10)
    a("v_mul_f32 v12, s68, v12")
    round_bf16(12, 12)
    a("v_mul_f32 v11, s67, v12")
    a("v_mov_b32 v13, 0")
    a("v_mov_b32 v14, 0")
    w = ST
    for k in range(0, 32, 2):
        if k == 16:
            issue()
        for q in range(2):
            a(f"v_lshlrev_b32 v{w+2*q}, 16, v{SC+k+q}")
            a(f"v_and_b32 v{w+2*q+1}, s66, v{SC+k+q}")
        for q in range(4):
            a(f"v_fma_f32 v{w+q}, v{w+q}, s67, -v11")
        for q in range(4):
            a(f"v_exp_f32 v{w+q}, v{w+q}")
        a(f"v_add_f32 v13, v13, v{w}")
        a(f"v_add_f32 v14, v14, v{w+1}")
        a(f"v_cvt_pk_bf16_f32 v{SC+k}, v{w}, v{w+1}")
        a(f"v_add_f32 v13, v13, v{w+2}")
        a(f"v_add_f32 v14, v14, v{w+3}")
        a(f"v_cvt_pk_bf16_f32 v{SC+k+1}, v{w+2}, v{w+3}")
    a("v_add_f32 v13, v13, v14")
    xlane("v_add_f32", 13, 14, [16, 32])
    a("v_min_u32 v13, -2, v13")
    a("s_lshl_b32 s9, s6, 6")
    a("v_lshlrev_b32 v14, 3, v0")
    a("v_add_u32 v14, s9, v14")
    a("s_mov_b64 exec, 0xff")
    a(f"ds_write_b64 v14, v[12:13] offset:{MLB}")
    a("s_mov_b64 exec, -1")
    stamp(4)
    a("s_mul_i32 s9, s6, 4224")
    a("v_mul_u32_u24 v10, 528, v4")
    a("v_lshl_add_u32 v10, v5, 7, v10")
    a("v_add_u32 v10, s9, v10")
    a("v_lshrrev_b32 v12, 5, v0")
    a("s_lshl_b32 s9, s6, 1")
    a("v_add_u32 v12, s9, v12")
    a("v_lshlrev_b32 v13, 4, v12")
    a("v_mul_u32_u24 v12, 528, v12")
    a("v_and_b32 v14, 31, v0")
    a("v_lshl_add_u32 v12, v14, 4, v12")
    a("v_and_b32 v11, 7, v0")
    a("v_lshlrev_b32 v6, 3, v11")
    a("v_lshlrev_b32 v11, 4, v11")
    a("v_lshrrev_b32 v14, 3, v0")
    a("v_lshl_add_u32 v11, v14, 12, v11")
    a("v_lshl_add_u32 v6, v5, 1, v6")
    a("s_lshl_b32 s9, s6, 6")
    a("v_add_u32 v6, s9, v6")
    a("s_lshr_b32 s10, s6, 1")
    a("s_lshl_b32 s10, s10, 2")
    a("s_lshr_b32 s11, s2, 6")
    a("s_add_u32 s10, s10, s11")
    a("s_lshl_b32 s10, s10, 17")
    a("s_bfe_u32 s11, s2, 0x40002")
    a("s_lshl_b32 s11, s11, 8")
    a("s_add_u32 s10, s10, s11")
    a("s_and_b32 s11, s6, 1")
    a("s_lshl_b32 s11, s11, 7")
    a("s_add_u32 s10, s10, s11")
    a(f"s_add_u32 s10, s10, {OP_OFF}")
    a("s_add_u32 s11, s10, 32768")
    a("s_add_u32 s12, s10, 65536")
    a("s_add_u32 s13, s10, 98304")
    a("s_lshl_b32 s9, s2, 12")
    a("s_lshl_b32 s4, s6, 10")
    a("s_add_u32 s9, s9, s4")
    a(f"s_add_u32 s9, s9, {OP_OFF}")
    for it in range(16, 32):
        wait_item(it)
        if issued[0] < 32 and issued[0] - (it + 1) < D:
            issue()
        if it & 1:
            u = (it - 16) // 2
            s0 = RING + 16 * ((16 + 2 * u) % R)
            s1 = RING + 16 * ((17 + 2 * u) % R)
            src = lambda e, s0=s0, s1=s1: (s0 if e < 4 else s1) + 4 * (e & 3)

            def M(i, u=u):
                for h in range(2):
                    j = 2 * i + h
                    c = "0" if u == 0 else vr(AC + 4 * j, 4)
                    a(f"v_mfma_f32_16x16x32_bf16 {vr(AC+4*j,4)}, {vr(PTA+8*(i&1)+4*h,4)}, {vr(SC+4*u,4)}, {c}")
            perms(PTA, src, 0)
            perms(PTA + 8, src, 1)
            M(0)
            perms(PTA, src, 2)
            M(1)
            perms(PTA + 8, src, 3)
            M(2)
            M(3)
    assert issued[0] == 32
    stamp(5)
    a("s_mov_b32 exec_lo, 0x00ff00ff")
    a("s_mov_b32 exec_hi, 0x00ff00ff")
    for j in range(8):
        if j == 4:
            a("s_nop 0")
        if j == 7:
            pass
        a(f"ds_write_b128 v10, {vr(AC+4*j,4)} offset:{ORED+16*j}")
    a("s_mov_b64 exec, -1")
    a("s_waitcnt lgkmcnt(0)")
    a("s_barrier")
    stamp(6)
    a(f"ds_read_b128 v[16:19], v13 offset:{FB}")
    for w_ in range(4):
        a(f"ds_read_b128 {vr(20+4*w_,4)}, v12 offset:{ORED+4224*w_}")
    a("s_waitcnt lgkmcnt(0)")
    for k in range(4):
        a(f"v_mul_f32 v{20+k}, v16, v{20+k}")
    for w_ in range(1, 4):
        for k in range(4):
            a(f"v_fmac_f32 v{20+k}, v{16+w_}, v{20+4*w_+k}")
    for k in range(4):
        put_tag(20 + k)
    a("buffer_store_dwordx4 v[20:23], v7, s[48:51], s9 offen sc1")
    stamp(7)

    def ld3():
        for i in range(4):
            a(f"buffer_load_dwordx4 {vr(40+4*i,4)}, v11, s[48:51], s{10+i} offen sc1")
    poll(ld3, lambda: check_tag(range(40, 56), 14, 13), cfg.sleep_tail)
    stamp(8)
    for k in range(4):
        a(f"v_add_f32 v{40+k}, v{40+k}, v{44+k}")
        a(f"v_add_f32 v{48+k}, v{48+k}, v{52+k}")
    for k in range(4):
        a(f"v_add_f32 v{40+k}, v{40+k}, v{48+k}")
    a("s_nop 0")
    a("v_permlane32_swap_b32 v40, v42")
    a("v_permlane32_swap_b32 v41, v43")
    a("v_add_f32 v40, v40, v42")
    a("v_add_f32 v41, v41, v43")
    a("s_nop 1")
    a("v_permlane16_swap_b32 v40, v41")
    a("v_add_f32 v40, v40, v41")
    a("s_nop 1")
    a("v_add_f32_dpp v40, v40, v40 row_ror:8 row_mask:0xf bank_mask:0xf")
    a("v_cvt_pk_bf16_f32 v40, v40, v40")
    a(f"ds_write_b16 v6, v40 offset:{OB}")
    a("s_waitcnt lgkmcnt(0)")
    a("s_barrier")
    stamp(9)
    a("s_cmp_lg_u32 s6, 0")
    a("s_cbranch_scc1 L_ATT_END")
    srd(56, 16, 4096)
    srd(60, 34, 4096)
    a("v_lshlrev_b32 v12, 2, v5")
    a("s_lshl_b32 s9, s2, 4")
    a("buffer_load_dword v16, v12, s[56:59], s9 offen")
    a("v_lshlrev_b32 v11, 13, v0")
    a("s_lshl_b32 s10, s2, 5")
    a(f"s_add_u32 s10, s10, {XP_OFF}")

    def ld4():
        a("buffer_load_dwordx4 v[40:43], v11, s[48:51], s10 offen sc1")
        a("buffer_load_dwordx4 v[44:47], v11, s[48:51], s10 offen offset:16 sc1")
    poll(ld4, lambda: check_tag(range(40, 48), 14, 13), cfg.sleep_tail)
    stamp(10)
    for k in range(4):
        a(f"v_permlane32_swap_b32 v{40+k}, v{44+k}")
    for k in range(4):
        a(f"v_add_f32 v{40+k}, v{40+k}, v{44+k}")
    a("s_nop 0")
    a("v_permlane16_swap_b32 v40, v42")
    a("v_permlane16_swap_b32 v41, v43")
    a("v_add_f32 v40, v40, v42")
    a("v_add_f32 v41, v41, v43")
    for s in (8, 4, 2, 1):
        a("s_nop 0")
        a(f"v_add_f32_dpp v40, v40, v40 row_ror:{s} row_mask:0xf bank_mask:0xf")
        a(f"v_add_f32_dpp v41, v41, v41 row_ror:{s} row_mask:0xf bank_mask:0xf")
    a("v_lshlrev_b32 v42, 16, v16")
    a("v_and_b32 v43, s66, v16")
    a("v_add_f32 v40, v40, v42")
    a("v_add_f32 v41, v41, v43")
    a("v_cvt_pk_bf16_f32 v40, v40, v41")
    a("s_mov_b32 exec_lo, 0x00010001")
    a("s_mov_b32 exec_hi, 0x00010001")
    a("buffer_store_dword v40, v12, s[60:63], s9 offen")
    stamp(11)
    a("s_cmp_lg_u32 s2, 0")
    a("s_cbranch_scc1 L_ATT_END")
    a("s_mov_b64 exec, 1")
    a(f"s_mov_b32 s9, {EP_OFF:#x}")
    a("buffer_store_dword v15, v12, s[48:51], s9 offen")
    a.label("L_ATT_END")
    dump_stamps(12)
    a.label("L_END")
    a("s_endpgm")

    probs = check_hazards(a.lines)
    for p in probs:
        print(p, file=sys.stderr)
    if probs:
        raise SystemExit("hazards found")

    pad = ""
    if cfg.codepf:
        pad = f".fill ({(512 << cfg.codepf) + 256} - (. - {NAME}_kernel)) / 4, 4, 0xBF800000\n"
    out = HEADER
    out += "; Generated by work/gen2.py (hand-written generator). One persistent launch, 256 workgroups x 8 waves.\n"
    out += f"; @launch grid=(256,1,1) block=(512,1,1) lds={LDS_SIZE}\n"
    out += f""".amdgcn_target "amdgcn-amd-amdhsa--gfx950"
.text
.globl {NAME}_kernel
.p2align 8
.type {NAME}_kernel,@function
{NAME}_kernel:
"""
    out += a.text()
    out += pad
    out += f""".section .rodata,"a"
.p2align 6
.amdhsa_kernel {NAME}_kernel
  .amdhsa_next_free_vgpr 256
  .amdhsa_next_free_sgpr 102
  .amdhsa_accum_offset 256
  .amdhsa_group_segment_fixed_size 0
  .amdhsa_kernarg_size 96
  .amdhsa_user_sgpr_count 2
  .amdhsa_user_sgpr_kernarg_segment_ptr 1
  .amdhsa_system_sgpr_workgroup_id_x 1
  .amdhsa_float_denorm_mode_32 3
.end_amdhsa_kernel
"""
    return out


def parse_args(argv=None):
    p = argparse.ArgumentParser()
    p.add_argument("-o", default="cdna_kernels/" + NAME + ".s")
    p.add_argument("--ring", type=int, default=10)
    p.add_argument("--depth", type=int, default=3)
    p.add_argument("--stamps", type=int, default=0)
    p.add_argument("--codepf", type=int, default=5)
    p.add_argument("--sleep", type=int, default=8)
    p.add_argument("--sleep_q", type=int, default=0)
    p.add_argument("--sleep_lds", type=int, default=2)
    p.add_argument("--sleep_tail", type=int, default=0)
    p.add_argument("--spin", type=int, default=400000)
    p.add_argument("--trig", type=int, default=31)
    return p.parse_args(argv)


if __name__ == "__main__":
    cfg = parse_args()
    open(cfg.o, "w").write(gen(cfg))
    print("wrote", cfg.o)
```

```python
import sys
import argparse
import struct
import math
from asmlib import Asm, vr, sr, check_hazards

NAME = "parallel_sum__gqa_block_cached__geglu_ffn__decode"

QP_OFF = 0x000000
GP_OFF = 0x020000
ML_OFF = 0x060000
EP_OFF = 0x070000
OP_OFF = 0x080000
XP_OFF = 0x180000
ST_OFF = 0x200000
WS_SIZE = 0x400000
XN = 0x0000
QB = 0x0400
MLB = 0x0C80
TF = 0x0D80
FB = 0x0E00
OB = 0x0E80
HB = 0x0F80
ORED = 0x1080
LDS_SIZE = ORED + 4 * 4224

LOG2E = 0x3FB8AA3B
SCALE = 0x3DB504F3
EPS = 0x3727C5AC

HEADER = open("cdna_kernels/" + NAME + ".s.ref").read().split("; Override launch")[0]


def f32bits(x):
    return struct.unpack("<I", struct.pack("<f", x))[0]


def gen(cfg):
    a = Asm()
    R = cfg.ring
    D = cfg.depth
    NT = " nt"
    uid = [0]

    def stamp(k):
        if cfg.stamps:
            a(f"s_memrealtime s[{70+2*k}:{71+2*k}]")

    def dump_dbg(role):
        srd(52, 36, 256)
        a("v_mov_b32 v3, 0")
        def amax(slot, k, inv=False):
            a(f"v_mov_b32 v1, s{70+2*k}")
            if inv:
                a("v_not_b32 v1, v1")
            a(f"buffer_atomic_umax v1, v3, s[52:55], 0 offen offset:{4*slot}")
        amax(0, 0, True)
        amax(1, 0)
        if role == "S":
            uid[0] += 1
            a("s_cmp_lg_u32 s3, 0")
            a(f"s_cbranch_scc1 L_dbg{uid[0]}")
            amax(2, 1); amax(3, 4); amax(4, 5); amax(11, 2); amax(12, 4, True); amax(13, 5, True)
            a.label(f"L_dbg{uid[0]}")
            amax(9, 10)
        else:
            amax(5, 2); amax(6, 4); amax(7, 5); amax(8, 8); amax(14, 5, True); amax(15, 1)
            uid[0] += 1
            a("s_cmp_lg_u32 s6, 0")
            a(f"s_cbranch_scc1 L_dbg{uid[0]}")
            amax(10, 11)
            a.label(f"L_dbg{uid[0]}")

    def dump_stamps(n):
        if not cfg.stamps:
            return
        a("s_waitcnt lgkmcnt(0)")
        a("s_mov_b64 exec, 1")
        if cfg.stamps == 2:
            dump_dbg("S" if n == 11 else "A")
            return
        if cfg.stamps == 3:
            uid[0] += 1
            srd(52, 36, 256)
            a(f"s_cmp_lg_u32 s2, {cfg.dbgwg}")
            a(f"s_cbranch_scc1 L_dbg{uid[0]}")
            a(f"s_cmp_lg_u32 s3, {0 if n == 11 else 4}")
            a(f"s_cbranch_scc1 L_dbg{uid[0]}")
            a("v_mov_b32 v3, 0")
            lst = [(12, 4), (13, 5), (14, 8), (15, 10)] if n == 11 else [(k, k) for k in range(12)]
            for slot, k in lst:
                a(f"v_mov_b32 v1, s{70+2*k}")
                a(f"buffer_store_dword v1, v3, s[52:55], 0 offen offset:{4*slot}")
            a.label(f"L_dbg{uid[0]}")
            return
        a("s_lshl_b32 s4, s2, 10")
        a("s_lshl_b32 s5, s3, 7")
        a("s_add_u32 s4, s4, s5")
        a(f"s_add_u32 s4, s4, {ST_OFF}")
        a("v_mov_b32 v3, 0")
        for k in range(n):
            a(f"v_mov_b32 v1, s{70+2*k}")
            a(f"buffer_store_dword v1, v3, s[48:51], s4 offen offset:{4*k}")

    def srd(d, p, size):
        a(f"s_mov_b32 s{d}, s{p}")
        a(f"s_mov_b32 s{d+1}, s{p+1}")
        a(f"s_mov_b32 s{d+2}, {size:#x}")
        a(f"s_mov_b32 s{d+3}, 0x20000")

    def poll(loads, check, sleep, cnt="vmcnt"):
        uid[0] += 1
        n = uid[0]
        a(f"s_mov_b32 s15, {cfg.spin}")
        a.label(f"L_poll{n}")
        loads()
        a(f"s_waitcnt {cnt}(0)")
        check()
        a(f"s_cbranch_scc1 L_pdone{n}")
        a("s_sub_u32 s15, s15, 1")
        a(f"s_cbranch_scc1 L_pdone{n}")
        if sleep:
            a(f"s_sleep {sleep}")
        a(f"s_branch L_poll{n}")
        a.label(f"L_pdone{n}")

    def check_tag(regs, t0, t1):
        regs = list(regs)
        a(f"v_xor_b32 v{t0}, s14, v{regs[0]}")
        a(f"v_xor_b32 v{t1}, s14, v{regs[1]}")
        for k, r in enumerate(regs[2:]):
            t = t0 if k % 2 == 0 else t1
            a(f"v_bitop3_b32 v{t}, v{r}, s14, v{t} bitop3:0xbe")
        a(f"v_or_b32 v{t0}, v{t0}, v{t1}")
        a(f"v_and_b32 v{t0}, s69, v{t0}")
        a(f"v_cmp_eq_u32 vcc, 0, v{t0}")
        a("s_cmp_eq_u64 vcc, -1")

    def check_sentinel(regs, tmp):
        regs = list(regs)
        a(f"v_max3_u32 v{tmp}, v{regs[0]}, v{regs[1]}, v{regs[2]}")
        regs = regs[3:]
        while len(regs) >= 2:
            a(f"v_max3_u32 v{tmp}, v{tmp}, v{regs[0]}, v{regs[1]}")
            regs = regs[2:]
        if regs:
            a(f"v_max_u32 v{tmp}, v{tmp}, v{regs[0]}")
        a(f"v_cmp_ne_u32 vcc, -1, v{tmp}")
        a("s_cmp_eq_u64 vcc, -1")

    def put_tag(r):
        a(f"v_bfi_b32 v{r}, s69, v15, v{r}")

    def load_tag():
        a(f"s_load_dword s14, s[38:39], {EP_OFF:#x}")

    def make_tag():
        a("s_add_u32 s14, s14, 1")
        a("s_and_b32 s14, s14, 0xff")
        a("v_mov_b32 v15, s14")

    def xlane(op, x, t, steps):
        for s in steps:
            if s in (1, 2, 4, 8):
                a("s_nop 1")
                a(f"{op}_dpp v{x}, v{x}, v{x} row_ror:{s} row_mask:0xf bank_mask:0xf")
            else:
                a(f"v_mov_b32 v{t}, v{x}")
                a("s_nop 1")
                a(f"v_permlane{s}_swap_b32 v{x}, v{t}")
                a(f"{op} v{x}, v{x}, v{t}")

    def round_bf16(d, s):
        a(f"v_cvt_pk_bf16_f32 v{d}, v{s}, v{s}")
        a(f"v_lshlrev_b32 v{d}, 16, v{d}")

    def perms(dst, src_e, i):
        for p in range(4):
            a(f"v_perm_b32 v{dst+p}, v{src_e(2*p+1)+i}, v{src_e(2*p)+i}, s64")
        for p in range(4):
            a(f"v_perm_b32 v{dst+4+p}, v{src_e(2*p+1)+i}, v{src_e(2*p)+i}, s65")

    def consts():
        a("s_mov_b32 s64, 0x05040100")
        a("s_mov_b32 s65, 0x07060302")
        a("s_mov_b32 s66, 0xffff0000")
        a(f"s_mov_b32 s67, {LOG2E:#x}")
        a(f"s_mov_b32 s68, {SCALE:#x}")
        a("s_movk_i32 s69, 0xff")

    a("s_cmp_ge_u32 s2, 256")
    a("s_cbranch_scc1 L_END")
    a("s_load_dwordx16 s[16:31], s[0:1], 0")
    a("s_load_dwordx8 s[32:39], s[0:1], 64")
    stamp(0)
    if cfg.codepf:
        a("s_getpc_b64 s[4:5]")
        a(f"v_lshlrev_b32 v1, {cfg.codepf}, v0")
        a("global_load_dword v2, v1, s[4:5]")
    a("v_lshrrev_b32 v3, 6, v0")
    a("v_and_b32 v0, 63, v0")
    a("v_readfirstlane_b32 s3, v3")
    a("v_and_b32 v4, 15, v0")
    a("v_lshrrev_b32 v5, 4, v0")
    a("s_cmp_ge_u32 s3, 4")
    a("s_cbranch_scc1 L_ATT")
    a("s_lshr_b32 s6, s2, 2")
    a("s_and_b32 s7, s2, 3")
    a("v_lshrrev_b32 v8, 3, v4")
    a("v_and_b32 v9, 7, v4")
    a("v_lshlrev_b32 v10, 3, v8")
    a("v_lshl_add_u32 v10, v5, 4, v10")
    a("s_cmp_lg_u32 s3, 0")
    a("s_cbranch_scc1 L_S123")

    XA = 16
    XO = 32
    XU = 36
    WR = 72
    ACC = 200
    PT = 232

    a("s_mov_b32 s8, 8192")
    a("s_mov_b32 s9, 14")
    a("v_lshlrev_b32 v6, 6, v0")
    a("v_lshrrev_b32 v7, 5, v0")
    a("v_lshlrev_b32 v7, 11, v7")
    a("v_and_b32 v11, 31, v0")
    a("v_lshl_add_u32 v7, v11, 4, v7")
    a("s_lshl_b32 s12, s7, 9")
    a("s_waitcnt lgkmcnt(0)")
    srd(56, 16, 4096)
    srd(40, 22, 0x800000)
    load_tag()
    for i in range(4):
        a(f"buffer_load_dwordx4 {vr(XA+4*i,4)}, v6, s[56:59], 0 offen offset:{16*i}")
    a(f"buffer_load_dwordx4 {vr(XO,4)}, v7, s[56:59], s12 offen")

    a.label("L_S_wload")
    a("v_mul_lo_u32 v10, v10, s8")
    a("s_lshl_b32 s10, s7, 8")
    a("s_mul_i32 s10, s10, s8")
    a("s_lshl_b32 s11, s6, 7")
    a("v_lshl_add_u32 v10, v9, 4, v10")
    a("s_add_u32 s10, s10, s11")
    a("s_mul_i32 s11, s8, 57")
    for T in range(4):
        for e in range(8):
            a(f"buffer_load_dwordx4 {vr(WR+32*T+4*e,4)}, v10, s[40:43], s10 offen{NT}")
            if not (T == 3 and e == 7):
                a(f"s_add_u32 s10, s10, {'s11' if e == 7 else 's8'}")
    stamp(1)
    a("s_cmp_lg_u32 s3, 0")
    a("s_cbranch_scc1 L_S_gemv")
    a("s_barrier")
    srd(48, 38, WS_SIZE)
    consts()
    a("s_waitcnt vmcnt(32)")
    stamp(2)
    for i in range(16):
        a(f"v_lshlrev_b32 v{XU+2*i}, 16, v{XA+i}")
        a(f"v_and_b32 v{XU+2*i+1}, s66, v{XA+i}")
    for k in range(4):
        a(f"v_add_f32 v{11+k}, v{XU+k}, v{XU+4+k}")
    for i in range(8, 32):
        a(f"v_add_f32 v{11+(i&3)}, v{11+(i&3)}, v{XU+i}")
    a("v_add_f32 v11, v11, v12")
    a("v_add_f32 v13, v13, v14")
    a("v_add_f32 v11, v11, v13")
    xlane("v_add_f32", 11, 12, [8, 4, 2, 1, 16])
    a("v_mul_f32 v11, 0x3a800000, v11")
    for i in range(32):
        a(f"v_sub_f32 v{XU+i}, v{XU+i}, v11")
    for k in range(4):
        a(f"v_mul_f32 v{XA+k}, v{XU+k}, v{XU+k}")
    for i in range(4, 32):
        a(f"v_fmac_f32 v{XA+(i&3)}, v{XU+i}, v{XU+i}")
    a(f"v_add_f32 v12, v{XA}, v{XA+1}")
    a(f"v_add_f32 v14, v{XA+2}, v{XA+3}")
    a("v_add_f32 v12, v12, v14")
    xlane("v_add_f32", 12, 13, [8, 4, 2, 1, 16])
    a("v_mul_f32 v12, 0x3a800000, v12")
    round_bf16(11, 11)
    round_bf16(12, 12)
    a(f"v_add_f32 v12, {EPS:#x}, v12")
    round_bf16(12, 12)
    a("v_sqrt_f32 v12, v12")
    a("s_nop 0")
    round_bf16(12, 12)
    a("v_rcp_f32 v13, v12")
    for i in range(4):
        a(f"v_lshlrev_b32 v{XU+2*i}, 16, v{XO+i}")
        a(f"v_and_b32 v{XU+2*i+1}, s66, v{XO+i}")
    for i in range(8):
        a(f"v_sub_f32 v{XU+i}, v{XU+i}, v11")
    for i in range(4):
        a(f"v_cvt_pk_bf16_f32 v{XO+i}, v{XU+2*i}, v{XU+2*i+1}")
    for i in range(4):
        a(f"v_lshlrev_b32 v{XU+2*i}, 16, v{XO+i}")
        a(f"v_and_b32 v{XU+2*i+1}, s66, v{XO+i}")
    for i in range(8):
        a(f"v_mul_f32 v{XU+8+i}, v{XU+i}, v13")
    for i in range(8):
        a(f"v_fma_f32 v{XU+i}, -v{XU+8+i}, v12, v{XU+i}")
    for i in range(8):
        a(f"v_fmac_f32 v{XU+8+i}, v{XU+i}, v13")
    for i in range(4):
        a(f"v_cvt_pk_bf16_f32 v{XO+i}, v{XU+8+2*i}, v{XU+8+2*i+1}")
    a("v_lshlrev_b32 v11, 4, v0")
    a(f"ds_write_b128 v11, {vr(XO,4)} offset:{XN}")
    a("s_waitcnt lgkmcnt(0)")
    make_tag()

    a.label("L_S_gemv")
    a("v_bfe_u32 v11, v4, 2, 1")
    a("v_lshlrev_b32 v11, 9, v11")
    a("v_lshl_add_u32 v11, v5, 5, v11")
    a("v_and_b32 v12, 1, v4")
    a("v_lshl_add_u32 v11, v12, 4, v11")
    for T in range(4):
        a(f"ds_read_b128 {vr(XU+4*T,4)}, v11 offset:{XN+128*T}")
    stamp(3)
    a("v_lshlrev_b32 v12, s9, v5")
    a("v_lshl_add_u32 v12, v9, 5, v12")
    a("s_lshl_b32 s10, s7, 15")
    a("s_lshl_b32 s11, s6, 8")
    a("s_add_u32 s10, s10, s11")
    a("s_lshl_b32 s11, s2, 10")
    a("s_lshl_b32 s12, s3, 9")
    a("s_add_u32 s11, s11, s12")
    a(f"s_add_u32 s11, s11, {GP_OFF-512}")
    a("s_cmp_eq_u32 s3, 0")
    a("s_cselect_b32 s10, s10, s11")
    a("s_waitcnt lgkmcnt(0)")
    for T in range(4):
        a(f"s_waitcnt vmcnt({24-8*T})")
        src = lambda e, T=T: WR + 32 * T + 4 * e

        def M(i, T=T):
            for h in range(2):
                j = 2 * i + h
                c = "0" if T == 0 else vr(ACC + 4 * j, 4)
                a(f"v_mfma_f32_16x16x32_bf16 {vr(ACC+4*j,4)}, {vr(XU+4*T,4)}, {vr(PT+8*(i&1)+4*h,4)}, {c}")
        perms(PT, src, 0)
        perms(PT + 8, src, 1)
        M(0)
        perms(PT, src, 2)
        M(1)
        perms(PT + 8, src, 3)
        M(2)
        M(3)
    stamp(4)
    a("s_nop 3")
    for j in range(8):
        if j >= 6:
            a("s_nop 0")
        a(f"v_add_f32_dpp v{PT+j}, v{ACC+4*j+1}, v{ACC+4*j} row_ror:8 row_mask:0xf bank_mask:0xf")
    for j in range(8):
        put_tag(PT + j)
    a("s_mov_b64 exec, 0x00ff00ff")
    a(f"buffer_store_dwordx4 {vr(PT,4)}, v12, s[48:51], s10 offen sc1")
    a(f"buffer_store_dwordx4 {vr(PT+4,4)}, v12, s[48:51], s10 offen offset:16 sc1")
    a("s_mov_b64 exec, -1")
    a("s_cmp_eq_u32 s3, 1")
    a("s_cbranch_scc1 L_S1_h")
    a("s_cmp_eq_u32 s3, 2")
    a("s_cbranch_scc1 L_S_X")
    a("v_lshlrev_b32 v6, 4, v0")
    a("s_lshr_b32 s10, s2, 5")
    a("s_lshl_b32 s10, s10, 12")
    if QP_OFF:
        a(f"s_add_u32 s10, s10, {QP_OFF}")
    a("s_add_u32 s11, s10, 32768")
    a("s_add_u32 s12, s10, 65536")
    a("s_add_u32 s13, s10, 98304")
    a("v_lshrrev_b32 v7, 5, v0")
    a("v_mul_u32_u24 v7, 272, v7")
    a("v_and_b32 v11, 31, v0")
    a("v_lshl_add_u32 v7, v11, 3, v7")

    def ldq():
        for kq in range(4):
            for i in range(4):
                a(f"buffer_load_dwordx4 {vr(32+16*kq+4*i,4)}, v6, s[48:51], s{10+kq} offen offset:{1024*i} sc1")
    poll(ldq, lambda: check_tag(range(32, 96), 11, 12), cfg.sleep_q)
    stamp(5)
    for k in range(16):
        a(f"v_add_f32 v{32+k}, v{32+k}, v{48+k}")
        a(f"v_add_f32 v{64+k}, v{64+k}, v{80+k}")
    for k in range(16):
        a(f"v_add_f32 v{32+k}, v{32+k}, v{64+k}")
    for i in range(4):
        a(f"v_cvt_pk_bf16_f32 v{48+2*i}, v{32+4*i}, v{33+4*i}")
        a(f"v_cvt_pk_bf16_f32 v{49+2*i}, v{34+4*i}, v{35+4*i}")
        a(f"ds_write_b64 v7, {vr(48+2*i,2)} offset:{QB+544*i}")
    a("s_waitcnt lgkmcnt(0)")
    a("s_barrier")
    a("s_branch L_S_X")

    a.label("L_S123")
    a("s_barrier")
    consts()
    a("s_mov_b32 s8, 7168")
    a("s_mov_b32 s9, 8")
    a("s_waitcnt lgkmcnt(0)")
    load_tag()
    srd(48, 38, WS_SIZE)
    a("s_cmp_eq_u32 s3, 2")
    a("s_cselect_b64 s[40:41], s[30:31], s[28:29]")
    a("s_mov_b32 s42, 0x700000")
    a("s_mov_b32 s43, 0x20000")
    a("v_mov_b32 v11, -1")
    a("v_lshlrev_b32 v12, 2, v0")
    a(f"ds_write_b32 v12, v11 offset:{MLB}")
    a(f"ds_write_b32 v12, v11 offset:{MLB+128}")
    a("s_waitcnt lgkmcnt(0)")
    make_tag()
    a("s_barrier")
    a("s_cmp_eq_u32 s3, 3")
    a("s_cbranch_scc1 L_S3")
    a("s_cmp_lt_u32 s6, 56")
    a("s_cbranch_scc1 L_S_wload")
    a("s_branch L_S_X")

    a.label("L_S1_h")
    a("v_lshlrev_b32 v12, 3, v0")
    a("s_lshl_b32 s10, s6, 12")
    a(f"s_add_u32 s10, s10, {GP_OFF}")

    def ldg():
        for kq in range(4):
            for m in range(2):
                a(f"buffer_load_dwordx2 {vr(16+4*kq+2*m,2)}, v12, s[48:51], s10 offen offset:{kq*1024+m*512} sc1")
    poll(ldg, lambda: check_tag(range(16, 32), 11, 13), cfg.sleep)
    stamp(5)
    for k in range(4):
        a(f"v_add_f32 v{16+k}, v{16+k}, v{20+k}")
        a(f"v_add_f32 v{24+k}, v{24+k}, v{28+k}")
    for k in range(4):
        a(f"v_add_f32 v{16+k}, v{16+k}, v{24+k}")
    a("v_cvt_pk_bf16_f32 v20, v16, v17")
    a("v_cvt_pk_bf16_f32 v21, v18, v19")
    a("v_lshlrev_b32 v16, 16, v20")
    a("v_and_b32 v17, s66, v20")
    a("v_lshlrev_b32 v18, 16, v21")
    a("v_and_b32 v19, s66, v21")
    a(f"s_mov_b32 s10, {f32bits(0.044715):#x}")
    a(f"s_mov_b32 s11, {f32bits(-2.0 * math.sqrt(2.0 / math.pi) * math.log2(math.e)):#x}")
    for k in range(2):
        a(f"v_mul_f32 v{20+k}, v{16+k}, v{16+k}")
    for k in range(2):
        a(f"v_mul_f32 v{20+k}, v{20+k}, v{16+k}")
    for k in range(2):
        a(f"v_fma_f32 v{20+k}, v{20+k}, s10, v{16+k}")
    for k in range(2):
        a(f"v_mul_f32 v{20+k}, s11, v{20+k}")
    for k in range(2):
        a(f"v_exp_f32 v{20+k}, v{20+k}")
    a("s_nop 0")
    for k in range(2):
        a(f"v_add_f32 v{20+k}, 1.0, v{20+k}")
    for k in range(2):
        a(f"v_rcp_f32 v{20+k}, v{20+k}")
    a("s_nop 0")
    for k in range(2):
        a(f"v_mul_f32 v{20+k}, v{20+k}, v{16+k}")
    a("v_cvt_pk_bf16_f32 v22, v20, v21")
    a("v_lshlrev_b32 v20, 16, v22")
    a("v_and_b32 v21, s66, v22")
    a("v_mul_f32 v20, v20, v18")
    a("v_mul_f32 v21, v21, v19")
    a("v_cvt_pk_bf16_f32 v22, v20, v21")
    a("v_lshlrev_b32 v12, 2, v0")
    a(f"ds_write_b32 v12, v22 offset:{HB}")
    a("s_branch L_S_X")

    a.label("L_S3")
    a("v_and_b32 v6, 7, v0")
    a("v_lshlrev_b32 v6, 3, v6")
    a("v_and_b32 v7, 31, v0")
    a("v_lshlrev_b32 v7, 3, v7")
    a("s_lshl_b32 s13, s2, 6")
    a(f"s_add_u32 s13, s13, {ML_OFF}")

    def ldm():
        for w in range(4):
            a(f"ds_read_b64 {vr(16+2*w,2)}, v6 offset:{MLB+64*w}")
    poll(ldm, lambda: check_sentinel(range(16, 24), 11), cfg.sleep_lds, cnt="lgkmcnt")
    stamp(5)
    a(f"ds_read_b32 v30, v7 offset:{MLB}")

    def combine4(mo):
        a(f"v_max3_f32 v{mo}, v16, v18, v20")
        a(f"v_max_f32 v{mo}, v{mo}, v22")

    def wsum4(mo, lo):
        for w in range(4):
            a(f"v_sub_f32 v{16+2*w}, v{16+2*w}, v{mo}")
        for w in range(4):
            a(f"v_mul_f32 v{16+2*w}, s67, v{16+2*w}")
        for w in range(4):
            a(f"v_exp_f32 v{16+2*w}, v{16+2*w}")
        a("s_nop 0")
        a(f"v_mul_f32 v{lo}, v16, v17")
        for w in range(1, 4):
            a(f"v_fmac_f32 v{lo}, v{16+2*w}, v{17+2*w}")
    combine4(24)
    wsum4(24, 25)
    put_tag(24)
    put_tag(25)
    a("s_mov_b64 exec, 0xff")
    a("buffer_store_dwordx2 v[24:25], v6, s[48:51], s13 offen sc1")
    a("s_mov_b64 exec, -1")
    a("s_lshr_b32 s10, s2, 5")
    a("s_lshl_b32 s10, s10, 11")
    a(f"s_add_u32 s10, s10, {ML_OFF}")
    a("v_lshlrev_b32 v7, 3, v0")

    def ld2():
        for i in range(4):
            a(f"buffer_load_dwordx2 {vr(16+2*i,2)}, v7, s[48:51], s10 offen offset:{512*i} sc1")
    poll(ld2, lambda: check_tag(range(16, 24), 11, 12), cfg.sleep)
    stamp(6)
    for w in range(4):
        a(f"v_and_b32 v{16+2*w}, s66, v{16+2*w}")
    combine4(26)
    xlane("v_max_f32", 26, 11, [8, 16, 32])
    wsum4(26, 27)
    xlane("v_add_f32", 27, 11, [8, 16, 32])
    a("s_waitcnt lgkmcnt(0)")
    a("v_sub_f32 v30, v30, v26")
    a("v_mul_f32 v30, s67, v30")
    a("v_exp_f32 v30, v30")
    a("v_rcp_f32 v27, v27")
    a("v_bfe_u32 v7, v0, 3, 2")
    a("v_lshlrev_b32 v7, 2, v7")
    a("v_lshl_add_u32 v7, v6, 1, v7")
    a("v_mul_f32 v30, v30, v27")
    a(f"ds_write_b32 v7, v30 offset:{FB}")

    a.label("L_S_X")
    TW = 32
    TP = 96
    XACC = 160
    srd(40, 24, 0x800000)
    srd(44, 32, 0x700000)
    a("v_lshrrev_b32 v10, 1, v5")
    a("v_lshlrev_b32 v10, 5, v10")
    a("v_and_b32 v11, 1, v5")
    a("v_lshl_add_u32 v10, v11, 2, v10")
    a("v_lshl_add_u32 v10, v8, 1, v10")
    a("v_lshlrev_b32 v10, 11, v10")
    a("v_lshl_add_u32 v10, v9, 4, v10")
    a("v_lshlrev_b32 v11, 3, v8")
    a("v_lshl_add_u32 v11, v5, 4, v11")
    a("v_lshlrev_b32 v11, 11, v11")
    a("v_lshl_add_u32 v11, v9, 4, v11")
    a("s_lshl_b32 s10, s6, 17")
    a("s_lshl_b32 s11, s7, 9")
    a("s_add_u32 s10, s10, s11")
    a("s_lshl_b32 s11, s3, 7")
    a("s_add_u32 s10, s10, s11")
    a("s_mov_b32 s11, s10")
    a("s_lshl_b32 s12, s3, 2")
    a("v_mov_b32 v12, s12")

    def ldt():
        a(f"ds_read_b32 v13, v12 offset:{TF}")

    def ckt():
        a("v_cmp_eq_u32 vcc, 0, v13")
        a("s_cmp_eq_u64 vcc, -1")
    poll(ldt, ckt, cfg.sleep_lds, cnt="lgkmcnt")
    stamp(7)

    def ld_wo():
        for r in range(4):
            for hi in range(2):
                e = 4 * hi + r
                a(f"buffer_load_dwordx4 {vr(TW+4*e,4)}, v10, s[40:43], s11 offen offset:{2048*hi}{NT}")
            if r < 3:
                a("s_add_u32 s11, s11, 16384")

    def ld_wd():
        for e in range(8):
            a(f"buffer_load_dwordx4 {vr(TW+32+4*e,4)}, v11, s[44:47], s10 offen offset:{2048*(e&1)}{NT}")
            if (e & 1) and e < 7:
                a("s_add_u32 s10, s10, 4096")
    ld_wd()
    ld_wo()
    a("v_bfe_u32 v12, v4, 2, 1")
    a("v_lshlrev_b32 v12, 7, v12")
    a("v_lshl_add_u32 v12, v5, 5, v12")
    a("v_and_b32 v13, 1, v4")
    a("v_lshl_add_u32 v12, v13, 4, v12")
    a("v_lshlrev_b32 v13, 12, v5")
    a("v_lshl_add_u32 v13, v9, 5, v13")
    a("s_lshl_b32 s10, s6, 13")
    a("s_lshl_b32 s11, s7, 10")
    a("s_add_u32 s10, s10, s11")
    a("s_lshl_b32 s11, s3, 8")
    a("s_add_u32 s10, s10, s11")
    a(f"s_add_u32 s10, s10, {XP_OFF}")
    a("s_barrier")
    a(f"ds_read_b128 v[20:23], v12 offset:{HB}")
    a("s_waitcnt vmcnt(8)")
    for i in range(4):
        perms(TP + 32 + 8 * i, lambda e: TW + 32 + 4 * e, i)
    a("s_waitcnt lgkmcnt(0)")
    a("s_cmp_ge_u32 s6, 56")
    a("s_cbranch_scc1 L_S_noffn")
    for j in range(8):
        a(f"v_mfma_f32_16x16x32_bf16 {vr(XACC+4*j,4)}, v[20:23], {vr(TP+32+4*j,4)}, 0")
    a("s_branch L_S_wo")
    a.label("L_S_noffn")
    for k in range(8):
        a(f"v_mov_b32 v{XACC+4*k}, 0")
        a(f"v_mov_b32 v{XACC+4*k+1}, 0")
    a.label("L_S_wo")
    a("s_waitcnt vmcnt(0)")
    for i in range(4):
        perms(TP + 8 * i, lambda e: TW + 4 * e, i)
    stamp(8)
    a("s_barrier")
    stamp(9)
    a(f"ds_read_b128 v[16:19], v12 offset:{OB}")
    a("s_waitcnt lgkmcnt(0)")
    for j in range(8):
        a(f"v_mfma_f32_16x16x32_bf16 {vr(XACC+4*j,4)}, v[16:19], {vr(TP+4*j,4)}, {vr(XACC+4*j,4)}")
    a("s_nop 1")
    for j in range(8):
        if j == 7:
            a("s_nop 0")
        a(f"v_add_f32_dpp v{24+j}, v{XACC+4*j+1}, v{XACC+4*j} row_ror:8 row_mask:0xf bank_mask:0xf")
    for j in range(8):
        put_tag(24 + j)
    a("s_mov_b64 exec, 0x00ff00ff")
    a("buffer_store_dwordx4 v[24:27], v13, s[48:51], s10 offen sc1")
    a("buffer_store_dwordx4 v[28:31], v13, s[48:51], s10 offen offset:16 sc1")
    stamp(10)
    dump_stamps(11)
    a("s_endpgm")

    a.label("L_ATT")
    RING = 16
    SC = RING + 16 * R
    QR = SC + 32
    ST = QR + 8
    AC = QR
    PTA = AC + 32
    assert PTA + 16 <= 256 and ST + 26 <= 256
    a("s_sub_u32 s6, s3, 4")
    a("v_bfe_u32 v6, v4, 1, 1")
    a("v_lshrrev_b32 v7, 2, v4")
    a("v_lshl_add_u32 v6, v6, 2, v7")
    a("v_lshlrev_b32 v6, 8, v6")
    a("v_lshl_add_u32 v6, v5, 5, v6")
    a("v_and_b32 v7, 1, v4")
    a("v_lshl_add_u32 v6, v7, 4, v6")
    a("v_lshlrev_b32 v7, 4, v0")
    a("s_lshl_b32 s7, s2, 18")
    a("s_lshl_b32 s8, s6, 12")
    a("s_add_u32 s7, s7, s8")
    a("s_mov_b32 s8, s7")
    a("s_waitcnt lgkmcnt(0)")
    load_tag()
    srd(40, 18, 0x4000000)
    srd(44, 20, 0x4000000)
    a("s_barrier")
    issued = [0]

    def issue():
        item = issued[0]
        slot = RING + 16 * (item % R)
        if item < 16:
            for k in range(4):
                a(f"buffer_load_dwordx4 {vr(slot+4*k,4)}, v6, s[40:43], s7 offen offset:{128*(k&1)+2048*(k>>1)}{NT}")
            if item < 15:
                a("s_add_u32 s7, s7, 16384")
        else:
            for r in range(4):
                a(f"buffer_load_dwordx4 {vr(slot+4*r,4)}, v7, s[44:47], s8 offen offset:{1024*r}{NT}")
            if item < 31:
                a("s_add_u32 s8, s8, 16384")
        issued[0] += 1
        if item == cfg.trig:
            a(f"ds_write_b32 v8, v9 offset:{TF}")

    def wait_item(item):
        n = (issued[0] - item - 1) * 4
        a(f"s_waitcnt vmcnt({n})")

    def throttle():
        a(f"s_waitcnt vmcnt({4*(D-1)})")

    for it in range(R):
        if it >= D:
            throttle()
        issue()
        if it == D - 1:
            srd(48, 38, WS_SIZE)
            consts()
            a("v_and_b32 v8, 7, v4")
            a("v_mul_u32_u24 v11, 272, v8")
            a("v_lshl_add_u32 v11, v5, 5, v11")
            a("v_lshrrev_b32 v8, 3, v4")
            a("v_lshl_add_u32 v11, v8, 4, v11")
            a("v_mov_b32 v10, 0xff800000")
            a("s_lshl_b32 s9, s6, 2")
            a("v_mov_b32 v8, s9")
            a("v_mov_b32 v9, 0")
            a("s_waitcnt lgkmcnt(0)")
            make_tag()
    stamp(1)
    a("s_barrier")
    stamp(2)
    for c in range(2):
        a(f"ds_read_b128 {vr(QR+4*c,4)}, v11 offset:{QB+128*c}")
    a("s_waitcnt lgkmcnt(0)")

    def post(i):
        t = ST + 8 * (i & 1)
        w = ST + 16
        for q in range(4):
            a(f"v_add_f32_dpp v{w+6+q}, v{t+2*q+1}, v{t+2*q} row_ror:8 row_mask:0xf bank_mask:0xf")
        s = w + 6
        a(f"v_max3_f32 v10, v10, v{s}, v{s+1}")
        a(f"v_cvt_pk_bf16_f32 v{w+4}, v{s}, v{s+1}")
        a(f"v_cvt_pk_bf16_f32 v{w+5}, v{s+2}, v{s+3}")
        a(f"v_max3_f32 v10, v10, v{s+2}, v{s+3}")
        a(f"v_lshlrev_b32 v{w}, 16, v{w+4}")
        a(f"v_and_b32 v{w+1}, s66, v{w+4}")
        a(f"v_lshlrev_b32 v{w+2}, 16, v{w+5}")
        a(f"v_and_b32 v{w+3}, s66, v{w+5}")
        for k in range(4):
            a(f"v_mul_f32 v{w+k}, s68, v{w+k}")
        a(f"v_cvt_pk_bf16_f32 v{SC+2*i}, v{w}, v{w+1}")
        a(f"v_cvt_pk_bf16_f32 v{SC+2*i+1}, v{w+2}, v{w+3}")

    for i in range(16):
        wait_item(i)
        slot = RING + 16 * (i % R)
        t = ST + 8 * (i & 1)
        for st_ in range(2):
            for ln in range(2):
                cc = "0" if ln == 0 else vr(t + 4 * st_, 4)
                a(f"v_mfma_f32_16x16x32_bf16 {vr(t+4*st_,4)}, {vr(slot+4*(2*st_+ln),4)}, {vr(QR+4*ln,4)}, {cc}")
        if i < D:
            throttle()
            issue()
        elif issued[0] - (i + 1) < D:
            issue()
        if i >= 1:
            if i == 1 or True:
                a("s_nop 3")
            post(i - 1)
    a("s_nop 7")
    post(15)
    stamp(3)
    issue()
    xlane("v_max_f32", 10, 11, [16, 32])
    round_bf16(12, 10)
    a("v_mul_f32 v12, s68, v12")
    round_bf16(12, 12)
    a("v_mul_f32 v11, s67, v12")
    a("v_mov_b32 v13, 0")
    a("v_mov_b32 v14, 0")
    w = ST
    for k in range(0, 32, 2):
        if k == 16:
            issue()
        for q in range(2):
            a(f"v_lshlrev_b32 v{w+2*q}, 16, v{SC+k+q}")
            a(f"v_and_b32 v{w+2*q+1}, s66, v{SC+k+q}")
        for q in range(4):
            a(f"v_fma_f32 v{w+q}, v{w+q}, s67, -v11")
        for q in range(4):
            a(f"v_exp_f32 v{w+q}, v{w+q}")
        a(f"v_add_f32 v13, v13, v{w}")
        a(f"v_add_f32 v14, v14, v{w+1}")
        a(f"v_cvt_pk_bf16_f32 v{SC+k}, v{w}, v{w+1}")
        a(f"v_add_f32 v13, v13, v{w+2}")
        a(f"v_add_f32 v14, v14, v{w+3}")
        a(f"v_cvt_pk_bf16_f32 v{SC+k+1}, v{w+2}, v{w+3}")
    a("v_add_f32 v13, v13, v14")
    xlane("v_add_f32", 13, 14, [16, 32])
    a("v_min_u32 v13, -2, v13")
    a("s_lshl_b32 s9, s6, 6")
    a("v_lshlrev_b32 v14, 3, v0")
    a("v_add_u32 v14, s9, v14")
    a("s_mov_b64 exec, 0xff")
    a(f"ds_write_b64 v14, v[12:13] offset:{MLB}")
    a("s_mov_b64 exec, -1")
    stamp(4)
    a("s_mul_i32 s9, s6, 4224")
    a("v_mul_u32_u24 v10, 528, v4")
    a("v_lshl_add_u32 v10, v5, 7, v10")
    a("v_add_u32 v10, s9, v10")
    a("v_lshrrev_b32 v12, 5, v0")
    a("s_lshl_b32 s9, s6, 1")
    a("v_add_u32 v12, s9, v12")
    a("v_lshlrev_b32 v13, 4, v12")
    a("v_mul_u32_u24 v12, 528, v12")
    a("v_and_b32 v14, 31, v0")
    a("v_lshl_add_u32 v12, v14, 4, v12")
    a("v_and_b32 v11, 7, v0")
    a("v_lshlrev_b32 v6, 3, v11")
    a("v_lshlrev_b32 v11, 4, v11")
    a("v_lshrrev_b32 v14, 3, v0")
    a("v_lshl_add_u32 v11, v14, 12, v11")
    a("v_lshl_add_u32 v6, v5, 1, v6")
    a("s_lshl_b32 s9, s6, 6")
    a("v_add_u32 v6, s9, v6")
    a("s_lshr_b32 s10, s6, 1")
    a("s_lshl_b32 s10, s10, 2")
    a("s_lshr_b32 s11, s2, 6")
    a("s_add_u32 s10, s10, s11")
    a("s_lshl_b32 s10, s10, 17")
    a("s_bfe_u32 s11, s2, 0x40002")
    a("s_lshl_b32 s11, s11, 8")
    a("s_add_u32 s10, s10, s11")
    a("s_and_b32 s11, s6, 1")
    a("s_lshl_b32 s11, s11, 7")
    a("s_add_u32 s10, s10, s11")
    a(f"s_add_u32 s10, s10, {OP_OFF}")
    a("s_add_u32 s11, s10, 32768")
    a("s_add_u32 s12, s10, 65536")
    a("s_add_u32 s13, s10, 98304")
    a("s_lshl_b32 s9, s2, 12")
    a("s_lshl_b32 s4, s6, 10")
    a("s_add_u32 s9, s9, s4")
    a(f"s_add_u32 s9, s9, {OP_OFF}")
    for it in range(16, 32):
        wait_item(it)
        if issued[0] < 32 and issued[0] - (it + 1) < D:
            issue()
        if it & 1:
            u = (it - 16) // 2
            s0 = RING + 16 * ((16 + 2 * u) % R)
            s1 = RING + 16 * ((17 + 2 * u) % R)
            src = lambda e, s0=s0, s1=s1: (s0 if e < 4 else s1) + 4 * (e & 3)

            def M(i, u=u):
                for h in range(2):
                    j = 2 * i + h
                    c = "0" if u == 0 else vr(AC + 4 * j, 4)
                    a(f"v_mfma_f32_16x16x32_bf16 {vr(AC+4*j,4)}, {vr(PTA+8*(i&1)+4*h,4)}, {vr(SC+4*u,4)}, {c}")
            perms(PTA, src, 0)
            perms(PTA + 8, src, 1)
            M(0)
            perms(PTA, src, 2)
            M(1)
            perms(PTA + 8, src, 3)
            M(2)
            M(3)
    assert issued[0] == 32
    stamp(5)
    a("s_mov_b32 exec_lo, 0x00ff00ff")
    a("s_mov_b32 exec_hi, 0x00ff00ff")
    for j in range(8):
        if j == 4:
            a("s_nop 0")
        if j == 7:
            pass
        a(f"ds_write_b128 v10, {vr(AC+4*j,4)} offset:{ORED+16*j}")
    a("s_mov_b64 exec, -1")
    a("s_waitcnt lgkmcnt(0)")
    a("s_barrier")
    stamp(6)
    a(f"ds_read_b128 v[16:19], v13 offset:{FB}")
    for w_ in range(4):
        a(f"ds_read_b128 {vr(20+4*w_,4)}, v12 offset:{ORED+4224*w_}")
    a("s_waitcnt lgkmcnt(0)")
    for k in range(4):
        a(f"v_mul_f32 v{20+k}, v16, v{20+k}")
    for w_ in range(1, 4):
        for k in range(4):
            a(f"v_fmac_f32 v{20+k}, v{16+w_}, v{20+4*w_+k}")
    for k in range(4):
        put_tag(20 + k)
    a("buffer_store_dwordx4 v[20:23], v7, s[48:51], s9 offen sc1")
    stamp(7)

    def ld3():
        for i in range(4):
            a(f"buffer_load_dwordx4 {vr(40+4*i,4)}, v11, s[48:51], s{10+i} offen sc1")
    poll(ld3, lambda: check_tag(range(40, 56), 14, 13), cfg.sleep_tail)
    stamp(8)
    for k in range(4):
        a(f"v_add_f32 v{40+k}, v{40+k}, v{44+k}")
        a(f"v_add_f32 v{48+k}, v{48+k}, v{52+k}")
    for k in range(4):
        a(f"v_add_f32 v{40+k}, v{40+k}, v{48+k}")
    a("s_nop 0")
    a("v_permlane32_swap_b32 v40, v42")
    a("v_permlane32_swap_b32 v41, v43")
    a("v_add_f32 v40, v40, v42")
    a("v_add_f32 v41, v41, v43")
    a("s_nop 1")
    a("v_permlane16_swap_b32 v40, v41")
    a("v_add_f32 v40, v40, v41")
    a("s_nop 1")
    a("v_add_f32_dpp v40, v40, v40 row_ror:8 row_mask:0xf bank_mask:0xf")
    a("v_cvt_pk_bf16_f32 v40, v40, v40")
    a(f"ds_write_b16 v6, v40 offset:{OB}")
    a("s_waitcnt lgkmcnt(0)")
    a("s_barrier")
    stamp(9)
    a("s_cmp_lg_u32 s6, 0")
    a("s_cbranch_scc1 L_ATT_END")
    srd(56, 16, 4096)
    srd(60, 34, 4096)
    a("v_lshlrev_b32 v12, 2, v5")
    a("s_lshl_b32 s9, s2, 4")
    a("buffer_load_dword v16, v12, s[56:59], s9 offen")
    a("v_lshlrev_b32 v11, 13, v0")
    a("s_lshl_b32 s10, s2, 5")
    a(f"s_add_u32 s10, s10, {XP_OFF}")

    def ld4():
        a("buffer_load_dwordx4 v[40:43], v11, s[48:51], s10 offen sc1")
        a("buffer_load_dwordx4 v[44:47], v11, s[48:51], s10 offen offset:16 sc1")
    poll(ld4, lambda: check_tag(range(40, 48), 14, 13), cfg.sleep_tail)
    stamp(10)
    for k in range(4):
        a(f"v_permlane32_swap_b32 v{40+k}, v{44+k}")
    for k in range(4):
        a(f"v_add_f32 v{40+k}, v{40+k}, v{44+k}")
    a("s_nop 0")
    a("v_permlane16_swap_b32 v40, v42")
    a("v_permlane16_swap_b32 v41, v43")
    a("v_add_f32 v40, v40, v42")
    a("v_add_f32 v41, v41, v43")
    for s in (8, 4, 2, 1):
        a("s_nop 0")
        a(f"v_add_f32_dpp v40, v40, v40 row_ror:{s} row_mask:0xf bank_mask:0xf")
        a(f"v_add_f32_dpp v41, v41, v41 row_ror:{s} row_mask:0xf bank_mask:0xf")
    a("v_lshlrev_b32 v42, 16, v16")
    a("v_and_b32 v43, s66, v16")
    a("v_add_f32 v40, v40, v42")
    a("v_add_f32 v41, v41, v43")
    a("v_cvt_pk_bf16_f32 v40, v40, v41")
    a("s_mov_b32 exec_lo, 0x00010001")
    a("s_mov_b32 exec_hi, 0x00010001")
    a("buffer_store_dword v40, v12, s[60:63], s9 offen")
    stamp(11)
    a("s_cmp_lg_u32 s2, 0")
    a("s_cbranch_scc1 L_ATT_END")
    a("s_mov_b64 exec, 1")
    a(f"s_mov_b32 s9, {EP_OFF:#x}")
    a("buffer_store_dword v15, v12, s[48:51], s9 offen")
    a.label("L_ATT_END")
    dump_stamps(12)
    a.label("L_END")
    a("s_endpgm")

    probs = check_hazards(a.lines)
    for p in probs:
        print(p, file=sys.stderr)
    if probs:
        raise SystemExit("hazards found")

    pad = ""
    if cfg.codepf:
        pad = f".fill ({(512 << cfg.codepf) + 256} - (. - {NAME}_kernel)) / 4, 4, 0xBF800000\n"
    out = HEADER
    out += "; Generated by work/gen2.py (hand-written generator). One persistent launch, 256 workgroups x 8 waves.\n"
    out += f"; @launch grid=(256,1,1) block=(512,1,1) lds={LDS_SIZE}\n"
    out += f""".amdgcn_target "amdgcn-amd-amdhsa--gfx950"
.text
.globl {NAME}_kernel
.p2align 8
.type {NAME}_kernel,@function
{NAME}_kernel:
"""
    out += a.text()
    out += pad
    out += f""".section .rodata,"a"
.p2align 6
.amdhsa_kernel {NAME}_kernel
  .amdhsa_next_free_vgpr 256
  .amdhsa_next_free_sgpr 102
  .amdhsa_accum_offset 256
  .amdhsa_group_segment_fixed_size 0
  .amdhsa_kernarg_size 96
  .amdhsa_user_sgpr_count 2
  .amdhsa_user_sgpr_kernarg_segment_ptr 1
  .amdhsa_system_sgpr_workgroup_id_x 1
  .amdhsa_float_denorm_mode_32 3
.end_amdhsa_kernel
"""
    return out


def parse_args(argv=None):
    p = argparse.ArgumentParser()
    p.add_argument("-o", default="cdna_kernels/" + NAME + ".s")
    p.add_argument("--ring", type=int, default=10)
    p.add_argument("--depth", type=int, default=3)
    p.add_argument("--stamps", type=int, default=0)
    p.add_argument("--codepf", type=int, default=5)
    p.add_argument("--sleep", type=int, default=8)
    p.add_argument("--sleep_q", type=int, default=0)
    p.add_argument("--sleep_lds", type=int, default=2)
    p.add_argument("--sleep_tail", type=int, default=0)
    p.add_argument("--spin", type=int, default=400000)
    p.add_argument("--trig", type=int, default=31)
    p.add_argument("--dbgwg", type=int, default=0)
    return p.parse_args(argv)


if __name__ == "__main__":
    cfg = parse_args()
    open(cfg.o, "w").write(gen(cfg))
    print("wrote", cfg.o)
```

```python
import sys
import argparse
import struct
import math
from asmlib import Asm, vr, sr, check_hazards

NAME = "parallel_sum__gqa_block_cached__geglu_ffn__decode"

QP_OFF = 0x000000
GP_OFF = 0x020000
ML_OFF = 0x060000
EP_OFF = 0x070000
OP_OFF = 0x080000
XP_OFF = 0x180000
ST_OFF = 0x200000
WS_SIZE = 0x400000
XN = 0x0000
QB = 0x0400
MLB = 0x0C80
TF = 0x0D80
FB = 0x0E00
OB = 0x0E80
HB = 0x0F80
ORED = 0x1080
LDS_SIZE = ORED + 4 * 4224

LOG2E = 0x3FB8AA3B
SCALE = 0x3DB504F3
EPS = 0x3727C5AC

HEADER = open("cdna_kernels/" + NAME + ".s.ref").read().split("; Override launch")[0]


def f32bits(x):
    return struct.unpack("<I", struct.pack("<f", x))[0]


def gen(cfg):
    a = Asm()
    R = cfg.ring
    D = cfg.depth
    NT = " nt"
    uid = [0]

    def stamp(k):
        if cfg.stamps:
            a(f"s_memrealtime s[{70+2*k}:{71+2*k}]")

    def dump_dbg(role):
        srd(52, 36, 256)
        a("v_mov_b32 v3, 0")
        def amax(slot, k, inv=False):
            a(f"v_mov_b32 v1, s{70+2*k}")
            if inv:
                a("v_not_b32 v1, v1")
            a(f"buffer_atomic_umax v1, v3, s[52:55], 0 offen offset:{4*slot}")
        amax(0, 0, True)
        amax(1, 0)
        if role == "S":
            uid[0] += 1
            a("s_cmp_lg_u32 s3, 0")
            a(f"s_cbranch_scc1 L_dbg{uid[0]}")
            amax(2, 1); amax(3, 4); amax(4, 5); amax(11, 2); amax(12, 4, True); amax(13, 5, True)
            a.label(f"L_dbg{uid[0]}")
            amax(9, 10)
        else:
            amax(5, 2); amax(6, 4); amax(7, 5); amax(8, 8); amax(14, 5, True); amax(15, 1)
            uid[0] += 1
            a("s_cmp_lg_u32 s6, 0")
            a(f"s_cbranch_scc1 L_dbg{uid[0]}")
            amax(10, 11)
            a.label(f"L_dbg{uid[0]}")

    def dump_stamps(n):
        if not cfg.stamps:
            return
        a("s_waitcnt lgkmcnt(0)")
        a("s_mov_b64 exec, 1")
        if cfg.stamps == 2:
            dump_dbg("S" if n == 11 else "A")
            return
        if cfg.stamps == 3:
            uid[0] += 1
            srd(52, 36, 256)
            a(f"s_cmp_lg_u32 s2, {cfg.dbgwg}")
            a(f"s_cbranch_scc1 L_dbg{uid[0]}")
            a(f"s_cmp_lg_u32 s3, {0 if n == 11 else 4}")
            a(f"s_cbranch_scc1 L_dbg{uid[0]}")
            a("v_mov_b32 v3, 0")
            lst = [(12, 4), (13, 5), (14, 8), (15, 10)] if n == 11 else [(k, k) for k in range(12)]
            for slot, k in lst:
                a(f"v_mov_b32 v1, s{70+2*k}")
                a(f"buffer_store_dword v1, v3, s[52:55], 0 offen offset:{4*slot}")
            a.label(f"L_dbg{uid[0]}")
            return
        a("s_lshl_b32 s4, s2, 10")
        a("s_lshl_b32 s5, s3, 7")
        a("s_add_u32 s4, s4, s5")
        a(f"s_add_u32 s4, s4, {ST_OFF}")
        a("v_mov_b32 v3, 0")
        for k in range(n):
            a(f"v_mov_b32 v1, s{70+2*k}")
            a(f"buffer_store_dword v1, v3, s[48:51], s4 offen offset:{4*k}")

    def srd(d, p, size):
        a(f"s_mov_b32 s{d}, s{p}")
        a(f"s_mov_b32 s{d+1}, s{p+1}")
        a(f"s_mov_b32 s{d+2}, {size:#x}")
        a(f"s_mov_b32 s{d+3}, 0x20000")

    def poll(loads, check, sleep, cnt="vmcnt"):
        uid[0] += 1
        n = uid[0]
        a(f"s_mov_b32 s15, {cfg.spin}")
        a.label(f"L_poll{n}")
        loads()
        a(f"s_waitcnt {cnt}(0)")
        check()
        a(f"s_cbranch_scc1 L_pdone{n}")
        a("s_sub_u32 s15, s15, 1")
        a(f"s_cbranch_scc1 L_pdone{n}")
        if sleep:
            a(f"s_sleep {sleep}")
        a(f"s_branch L_poll{n}")
        a.label(f"L_pdone{n}")

    def check_tag(regs, t0, t1):
        regs = list(regs)
        a(f"v_xor_b32 v{t0}, s14, v{regs[0]}")
        a(f"v_xor_b32 v{t1}, s14, v{regs[1]}")
        for k, r in enumerate(regs[2:]):
            t = t0 if k % 2 == 0 else t1
            a(f"v_bitop3_b32 v{t}, v{r}, s14, v{t} bitop3:0xbe")
        a(f"v_or_b32 v{t0}, v{t0}, v{t1}")
        a(f"v_and_b32 v{t0}, s69, v{t0}")
        a(f"v_cmp_eq_u32 vcc, 0, v{t0}")
        a("s_cmp_eq_u64 vcc, -1")

    def check_sentinel(regs, tmp):
        regs = list(regs)
        a(f"v_max3_u32 v{tmp}, v{regs[0]}, v{regs[1]}, v{regs[2]}")
        regs = regs[3:]
        while len(regs) >= 2:
            a(f"v_max3_u32 v{tmp}, v{tmp}, v{regs[0]}, v{regs[1]}")
            regs = regs[2:]
        if regs:
            a(f"v_max_u32 v{tmp}, v{tmp}, v{regs[0]}")
        a(f"v_cmp_ne_u32 vcc, -1, v{tmp}")
        a("s_cmp_eq_u64 vcc, -1")

    def put_tag(r):
        a(f"v_bfi_b32 v{r}, s69, v15, v{r}")

    def load_tag():
        a(f"s_load_dword s14, s[38:39], {EP_OFF:#x}")

    def make_tag():
        a("s_add_u32 s14, s14, 1")
        a("s_and_b32 s14, s14, 0xff")
        a("v_mov_b32 v15, s14")

    def xlane(op, x, t, steps):
        for s in steps:
            if s in (1, 2, 4, 8):
                a("s_nop 1")
                a(f"{op}_dpp v{x}, v{x}, v{x} row_ror:{s} row_mask:0xf bank_mask:0xf")
            else:
                a(f"v_mov_b32 v{t}, v{x}")
                a("s_nop 1")
                a(f"v_permlane{s}_swap_b32 v{x}, v{t}")
                a(f"{op} v{x}, v{x}, v{t}")

    def round_bf16(d, s):
        a(f"v_cvt_pk_bf16_f32 v{d}, v{s}, v{s}")
        a(f"v_lshlrev_b32 v{d}, 16, v{d}")

    def perms(dst, src_e, i):
        for p in range(4):
            a(f"v_perm_b32 v{dst+p}, v{src_e(2*p+1)+i}, v{src_e(2*p)+i}, s64")
        for p in range(4):
            a(f"v_perm_b32 v{dst+4+p}, v{src_e(2*p+1)+i}, v{src_e(2*p)+i}, s65")

    def consts():
        a("s_mov_b32 s64, 0x05040100")
        a("s_mov_b32 s65, 0x07060302")
        a("s_mov_b32 s66, 0xffff0000")
        a(f"s_mov_b32 s67, {LOG2E:#x}")
        a(f"s_mov_b32 s68, {SCALE:#x}")
        a("s_movk_i32 s69, 0xff")

    a("s_cmp_ge_u32 s2, 256")
    a("s_cbranch_scc1 L_END")
    a("s_load_dwordx16 s[16:31], s[0:1], 0")
    a("s_load_dwordx8 s[32:39], s[0:1], 64")
    stamp(0)
    if cfg.codepf:
        a("s_getpc_b64 s[4:5]")
        a(f"v_lshlrev_b32 v1, {cfg.codepf}, v0")
        a("global_load_dword v2, v1, s[4:5]")
    a("v_lshrrev_b32 v3, 6, v0")
    a("v_and_b32 v0, 63, v0")
    a("v_readfirstlane_b32 s3, v3")
    a("v_and_b32 v4, 15, v0")
    a("v_lshrrev_b32 v5, 4, v0")
    a("s_cmp_ge_u32 s3, 4")
    a("s_cbranch_scc1 L_ATT")
    a("s_lshr_b32 s6, s2, 2")
    a("s_and_b32 s7, s2, 3")
    a("v_lshrrev_b32 v8, 3, v4")
    a("v_and_b32 v9, 7, v4")
    a("v_lshlrev_b32 v10, 3, v8")
    a("v_lshl_add_u32 v10, v5, 4, v10")
    a("s_cmp_lg_u32 s3, 0")
    a("s_cbranch_scc1 L_S123")

    XA = 16
    XO = 32
    XU = 36
    WR = 72
    ACC = 200
    PT = 232

    a("s_mov_b32 s8, 8192")
    a("s_mov_b32 s9, 14")
    a("v_lshlrev_b32 v6, 6, v0")
    a("v_lshrrev_b32 v7, 5, v0")
    a("v_lshlrev_b32 v7, 11, v7")
    a("v_and_b32 v11, 31, v0")
    a("v_lshl_add_u32 v7, v11, 4, v7")
    a("s_lshl_b32 s12, s7, 9")
    a("s_waitcnt lgkmcnt(0)")
    srd(56, 16, 4096)
    srd(40, 22, 0x800000)
    load_tag()
    for i in range(4):
        a(f"buffer_load_dwordx4 {vr(XA+4*i,4)}, v6, s[56:59], 0 offen offset:{16*i}")
    a(f"buffer_load_dwordx4 {vr(XO,4)}, v7, s[56:59], s12 offen")

    a.label("L_S_wload")
    a("v_mul_lo_u32 v10, v10, s8")
    a("s_lshl_b32 s10, s7, 8")
    a("s_mul_i32 s10, s10, s8")
    a("s_lshl_b32 s11, s6, 7")
    a("v_lshl_add_u32 v10, v9, 4, v10")
    a("s_add_u32 s10, s10, s11")
    a("s_mul_i32 s11, s8, 57")
    for T in range(4):
        for e in range(8):
            a(f"buffer_load_dwordx4 {vr(WR+32*T+4*e,4)}, v10, s[40:43], s10 offen{NT}")
            if not (T == 3 and e == 7):
                a(f"s_add_u32 s10, s10, {'s11' if e == 7 else 's8'}")
    stamp(1)
    a("s_cmp_lg_u32 s3, 0")
    a("s_cbranch_scc1 L_S_gemv")
    a("s_barrier")
    srd(48, 38, WS_SIZE)
    consts()
    a("s_waitcnt vmcnt(32)")
    stamp(2)
    for i in range(16):
        a(f"v_lshlrev_b32 v{XU+2*i}, 16, v{XA+i}")
        a(f"v_and_b32 v{XU+2*i+1}, s66, v{XA+i}")
    for k in range(4):
        a(f"v_add_f32 v{11+k}, v{XU+k}, v{XU+4+k}")
    for i in range(8, 32):
        a(f"v_add_f32 v{11+(i&3)}, v{11+(i&3)}, v{XU+i}")
    a("v_add_f32 v11, v11, v12")
    a("v_add_f32 v13, v13, v14")
    a("v_add_f32 v11, v11, v13")
    xlane("v_add_f32", 11, 12, [8, 4, 2, 1, 16])
    a("v_mul_f32 v11, 0x3a800000, v11")
    for i in range(32):
        a(f"v_sub_f32 v{XU+i}, v{XU+i}, v11")
    for k in range(4):
        a(f"v_mul_f32 v{XA+k}, v{XU+k}, v{XU+k}")
    for i in range(4, 32):
        a(f"v_fmac_f32 v{XA+(i&3)}, v{XU+i}, v{XU+i}")
    a(f"v_add_f32 v12, v{XA}, v{XA+1}")
    a(f"v_add_f32 v14, v{XA+2}, v{XA+3}")
    a("v_add_f32 v12, v12, v14")
    xlane("v_add_f32", 12, 13, [8, 4, 2, 1, 16])
    a("v_mul_f32 v12, 0x3a800000, v12")
    round_bf16(11, 11)
    round_bf16(12, 12)
    a(f"v_add_f32 v12, {EPS:#x}, v12")
    round_bf16(12, 12)
    a("v_sqrt_f32 v12, v12")
    a("s_nop 0")
    round_bf16(12, 12)
    a("v_rcp_f32 v13, v12")
    for i in range(4):
        a(f"v_lshlrev_b32 v{XU+2*i}, 16, v{XO+i}")
        a(f"v_and_b32 v{XU+2*i+1}, s66, v{XO+i}")
    for i in range(8):
        a(f"v_sub_f32 v{XU+i}, v{XU+i}, v11")
    for i in range(4):
        a(f"v_cvt_pk_bf16_f32 v{XO+i}, v{XU+2*i}, v{XU+2*i+1}")
    for i in range(4):
        a(f"v_lshlrev_b32 v{XU+2*i}, 16, v{XO+i}")
        a(f"v_and_b32 v{XU+2*i+1}, s66, v{XO+i}")
    for i in range(8):
        a(f"v_mul_f32 v{XU+8+i}, v{XU+i}, v13")
    for i in range(8):
        a(f"v_fma_f32 v{XU+i}, -v{XU+8+i}, v12, v{XU+i}")
    for i in range(8):
        a(f"v_fmac_f32 v{XU+8+i}, v{XU+i}, v13")
    for i in range(4):
        a(f"v_cvt_pk_bf16_f32 v{XO+i}, v{XU+8+2*i}, v{XU+8+2*i+1}")
    a("v_lshlrev_b32 v11, 4, v0")
    a(f"ds_write_b128 v11, {vr(XO,4)} offset:{XN}")
    a("s_waitcnt lgkmcnt(0)")
    make_tag()

    a.label("L_S_gemv")
    a("v_bfe_u32 v11, v4, 2, 1")
    a("v_lshlrev_b32 v11, 9, v11")
    a("v_lshl_add_u32 v11, v5, 5, v11")
    a("v_and_b32 v12, 1, v4")
    a("v_lshl_add_u32 v11, v12, 4, v11")
    for T in range(4):
        a(f"ds_read_b128 {vr(XU+4*T,4)}, v11 offset:{XN+128*T}")
    stamp(3)
    a("v_lshlrev_b32 v12, s9, v5")
    a("v_lshl_add_u32 v12, v9, 5, v12")
    a("s_lshl_b32 s10, s7, 15")
    a("s_lshl_b32 s11, s6, 8")
    a("s_add_u32 s10, s10, s11")
    a("s_lshl_b32 s11, s2, 10")
    a("s_lshl_b32 s12, s3, 9")
    a("s_add_u32 s11, s11, s12")
    a(f"s_add_u32 s11, s11, {GP_OFF-512}")
    a("s_cmp_eq_u32 s3, 0")
    a("s_cselect_b32 s10, s10, s11")
    a("s_waitcnt lgkmcnt(0)")
    for T in range(4):
        a(f"s_waitcnt vmcnt({24-8*T})")
        src = lambda e, T=T: WR + 32 * T + 4 * e

        def M(i, T=T):
            for h in range(2):
                j = 2 * i + h
                c = "0" if T == 0 else vr(ACC + 4 * j, 4)
                a(f"v_mfma_f32_16x16x32_bf16 {vr(ACC+4*j,4)}, {vr(XU+4*T,4)}, {vr(PT+8*(i&1)+4*h,4)}, {c}")
        perms(PT, src, 0)
        perms(PT + 8, src, 1)
        M(0)
        perms(PT, src, 2)
        M(1)
        perms(PT + 8, src, 3)
        M(2)
        M(3)
    stamp(4)
    a("s_nop 3")
    for j in range(8):
        if j >= 6:
            a("s_nop 0")
        a(f"v_add_f32_dpp v{PT+j}, v{ACC+4*j+1}, v{ACC+4*j} row_ror:8 row_mask:0xf bank_mask:0xf")
    for j in range(8):
        put_tag(PT + j)
    a("s_mov_b64 exec, 0x00ff00ff")
    a(f"buffer_store_dwordx4 {vr(PT,4)}, v12, s[48:51], s10 offen sc1")
    a(f"buffer_store_dwordx4 {vr(PT+4,4)}, v12, s[48:51], s10 offen offset:16 sc1")
    a("s_mov_b64 exec, -1")
    a("s_cmp_eq_u32 s3, 1")
    a("s_cbranch_scc1 L_S1_h")
    a("s_cmp_eq_u32 s3, 2")
    a("s_cbranch_scc1 L_S_X")
    a("v_lshlrev_b32 v6, 4, v0")
    a("s_lshr_b32 s10, s2, 5")
    a("s_lshl_b32 s10, s10, 12")
    if QP_OFF:
        a(f"s_add_u32 s10, s10, {QP_OFF}")
    a("s_add_u32 s11, s10, 32768")
    a("s_add_u32 s12, s10, 65536")
    a("s_add_u32 s13, s10, 98304")
    a("v_lshrrev_b32 v7, 5, v0")
    a("v_mul_u32_u24 v7, 272, v7")
    a("v_and_b32 v11, 31, v0")
    a("v_lshl_add_u32 v7, v11, 3, v7")

    def ldq():
        for kq in range(4):
            for i in range(4):
                a(f"buffer_load_dwordx4 {vr(32+16*kq+4*i,4)}, v6, s[48:51], s{10+kq} offen offset:{1024*i} sc1")
    poll(ldq, lambda: check_tag(range(32, 96), 11, 12), cfg.sleep_q)
    stamp(5)
    for k in range(16):
        a(f"v_add_f32 v{32+k}, v{32+k}, v{48+k}")
        a(f"v_add_f32 v{64+k}, v{64+k}, v{80+k}")
    for k in range(16):
        a(f"v_add_f32 v{32+k}, v{32+k}, v{64+k}")
    for i in range(4):
        a(f"v_cvt_pk_bf16_f32 v{48+2*i}, v{32+4*i}, v{33+4*i}")
        a(f"v_cvt_pk_bf16_f32 v{49+2*i}, v{34+4*i}, v{35+4*i}")
        a(f"ds_write_b64 v7, {vr(48+2*i,2)} offset:{QB+544*i}")
    a("s_waitcnt lgkmcnt(0)")
    a("s_barrier")
    a("s_branch L_S_X")

    a.label("L_S123")
    a("s_barrier")
    consts()
    a("s_mov_b32 s8, 7168")
    a("s_mov_b32 s9, 8")
    a("s_waitcnt lgkmcnt(0)")
    load_tag()
    srd(48, 38, WS_SIZE)
    a("s_cmp_eq_u32 s3, 2")
    a("s_cselect_b64 s[40:41], s[30:31], s[28:29]")
    a("s_mov_b32 s42, 0x700000")
    a("s_mov_b32 s43, 0x20000")
    a("v_mov_b32 v11, -1")
    a("v_lshlrev_b32 v12, 2, v0")
    a(f"ds_write_b32 v12, v11 offset:{MLB}")
    a(f"ds_write_b32 v12, v11 offset:{MLB+128}")
    a("s_waitcnt lgkmcnt(0)")
    make_tag()
    a("s_barrier")
    a("s_cmp_eq_u32 s3, 3")
    a("s_cbranch_scc1 L_S3")
    a("s_cmp_lt_u32 s6, 56")
    a("s_cbranch_scc1 L_S_wload")
    a("s_branch L_S_X")

    a.label("L_S1_h")
    a("v_lshlrev_b32 v12, 3, v0")
    a("s_lshl_b32 s10, s6, 12")
    a(f"s_add_u32 s10, s10, {GP_OFF}")

    def ldg():
        for kq in range(4):
            for m in range(2):
                a(f"buffer_load_dwordx2 {vr(16+4*kq+2*m,2)}, v12, s[48:51], s10 offen offset:{kq*1024+m*512} sc1")
    poll(ldg, lambda: check_tag(range(16, 32), 11, 13), cfg.sleep)
    stamp(5)
    for k in range(4):
        a(f"v_add_f32 v{16+k}, v{16+k}, v{20+k}")
        a(f"v_add_f32 v{24+k}, v{24+k}, v{28+k}")
    for k in range(4):
        a(f"v_add_f32 v{16+k}, v{16+k}, v{24+k}")
    a("v_cvt_pk_bf16_f32 v20, v16, v17")
    a("v_cvt_pk_bf16_f32 v21, v18, v19")
    a("v_lshlrev_b32 v16, 16, v20")
    a("v_and_b32 v17, s66, v20")
    a("v_lshlrev_b32 v18, 16, v21")
    a("v_and_b32 v19, s66, v21")
    a(f"s_mov_b32 s10, {f32bits(0.044715):#x}")
    a(f"s_mov_b32 s11, {f32bits(-2.0 * math.sqrt(2.0 / math.pi) * math.log2(math.e)):#x}")
    for k in range(2):
        a(f"v_mul_f32 v{20+k}, v{16+k}, v{16+k}")
    for k in range(2):
        a(f"v_mul_f32 v{20+k}, v{20+k}, v{16+k}")
    for k in range(2):
        a(f"v_fma_f32 v{20+k}, v{20+k}, s10, v{16+k}")
    for k in range(2):
        a(f"v_mul_f32 v{20+k}, s11, v{20+k}")
    for k in range(2):
        a(f"v_exp_f32 v{20+k}, v{20+k}")
    a("s_nop 0")
    for k in range(2):
        a(f"v_add_f32 v{20+k}, 1.0, v{20+k}")
    for k in range(2):
        a(f"v_rcp_f32 v{20+k}, v{20+k}")
    a("s_nop 0")
    for k in range(2):
        a(f"v_mul_f32 v{20+k}, v{20+k}, v{16+k}")
    a("v_cvt_pk_bf16_f32 v22, v20, v21")
    a("v_lshlrev_b32 v20, 16, v22")
    a("v_and_b32 v21, s66, v22")
    a("v_mul_f32 v20, v20, v18")
    a("v_mul_f32 v21, v21, v19")
    a("v_cvt_pk_bf16_f32 v22, v20, v21")
    a("v_lshlrev_b32 v12, 2, v0")
    a(f"ds_write_b32 v12, v22 offset:{HB}")
    a("s_branch L_S_X")

    a.label("L_S3")
    a("v_and_b32 v6, 7, v0")
    a("v_lshlrev_b32 v6, 3, v6")
    a("v_and_b32 v7, 31, v0")
    a("v_lshlrev_b32 v7, 3, v7")
    a("s_lshl_b32 s13, s2, 6")
    a(f"s_add_u32 s13, s13, {ML_OFF}")

    def ldm():
        for w in range(4):
            a(f"ds_read_b64 {vr(16+2*w,2)}, v6 offset:{MLB+64*w}")
    poll(ldm, lambda: check_sentinel(range(16, 24), 11), cfg.sleep_lds, cnt="lgkmcnt")
    stamp(5)
    a(f"ds_read_b32 v30, v7 offset:{MLB}")

    def combine4(mo):
        a(f"v_max3_f32 v{mo}, v16, v18, v20")
        a(f"v_max_f32 v{mo}, v{mo}, v22")

    def wsum4(mo, lo):
        for w in range(4):
            a(f"v_sub_f32 v{16+2*w}, v{16+2*w}, v{mo}")
        for w in range(4):
            a(f"v_mul_f32 v{16+2*w}, s67, v{16+2*w}")
        for w in range(4):
            a(f"v_exp_f32 v{16+2*w}, v{16+2*w}")
        a("s_nop 0")
        a(f"v_mul_f32 v{lo}, v16, v17")
        for w in range(1, 4):
            a(f"v_fmac_f32 v{lo}, v{16+2*w}, v{17+2*w}")
    combine4(24)
    wsum4(24, 25)
    put_tag(24)
    put_tag(25)
    a("s_mov_b64 exec, 0xff")
    a("buffer_store_dwordx2 v[24:25], v6, s[48:51], s13 offen sc1")
    a("s_mov_b64 exec, -1")
    a("s_lshr_b32 s10, s2, 5")
    a("s_lshl_b32 s10, s10, 11")
    a(f"s_add_u32 s10, s10, {ML_OFF}")
    a("v_lshlrev_b32 v7, 3, v0")

    def ld2():
        for i in range(4):
            a(f"buffer_load_dwordx2 {vr(16+2*i,2)}, v7, s[48:51], s10 offen offset:{512*i} sc1")
    poll(ld2, lambda: check_tag(range(16, 24), 11, 12), cfg.sleep)
    stamp(6)
    for w in range(4):
        a(f"v_and_b32 v{16+2*w}, s66, v{16+2*w}")
    combine4(26)
    xlane("v_max_f32", 26, 11, [8, 16, 32])
    wsum4(26, 27)
    xlane("v_add_f32", 27, 11, [8, 16, 32])
    a("s_waitcnt lgkmcnt(0)")
    a("v_sub_f32 v30, v30, v26")
    a("v_mul_f32 v30, s67, v30")
    a("v_exp_f32 v30, v30")
    a("v_rcp_f32 v27, v27")
    a("v_bfe_u32 v7, v0, 3, 2")
    a("v_lshlrev_b32 v7, 2, v7")
    a("v_lshl_add_u32 v7, v6, 1, v7")
    a("v_mul_f32 v30, v30, v27")
    a(f"ds_write_b32 v7, v30 offset:{FB}")

    a.label("L_S_X")
    TW = 32
    TP = 96
    XACC = 160
    srd(40, 24, 0x800000)
    srd(44, 32, 0x700000)
    a("v_lshrrev_b32 v10, 1, v5")
    a("v_lshlrev_b32 v10, 5, v10")
    a("v_and_b32 v11, 1, v5")
    a("v_lshl_add_u32 v10, v11, 2, v10")
    a("v_lshl_add_u32 v10, v8, 1, v10")
    a("v_lshlrev_b32 v10, 11, v10")
    a("v_lshl_add_u32 v10, v9, 4, v10")
    a("v_lshlrev_b32 v11, 3, v8")
    a("v_lshl_add_u32 v11, v5, 4, v11")
    a("v_lshlrev_b32 v11, 11, v11")
    a("v_lshl_add_u32 v11, v9, 4, v11")
    a("s_lshl_b32 s10, s6, 17")
    a("s_lshl_b32 s11, s7, 9")
    a("s_add_u32 s10, s10, s11")
    a("s_lshl_b32 s11, s3, 7")
    a("s_add_u32 s10, s10, s11")
    a("s_mov_b32 s11, s10")
    a("s_lshl_b32 s12, s3, 2")
    a("v_mov_b32 v12, s12")

    def ldt():
        a(f"ds_read_b32 v13, v12 offset:{TF}")

    def ckt():
        a("v_cmp_eq_u32 vcc, 0, v13")
        a("s_cmp_eq_u64 vcc, -1")
    poll(ldt, ckt, cfg.sleep_lds, cnt="lgkmcnt")
    stamp(7)

    def ld_wo():
        for r in range(4):
            for hi in range(2):
                e = 4 * hi + r
                a(f"buffer_load_dwordx4 {vr(TW+4*e,4)}, v10, s[40:43], s11 offen offset:{2048*hi}{NT}")
            if r < 3:
                a("s_add_u32 s11, s11, 16384")

    def ld_wd():
        for e in range(8):
            a(f"buffer_load_dwordx4 {vr(TW+32+4*e,4)}, v11, s[44:47], s10 offen offset:{2048*(e&1)}{NT}")
            if (e & 1) and e < 7:
                a("s_add_u32 s10, s10, 4096")
    ld_wd()
    ld_wo()
    a("v_bfe_u32 v12, v4, 2, 1")
    a("v_lshlrev_b32 v12, 7, v12")
    a("v_lshl_add_u32 v12, v5, 5, v12")
    a("v_and_b32 v13, 1, v4")
    a("v_lshl_add_u32 v12, v13, 4, v12")
    a("v_lshlrev_b32 v13, 12, v5")
    a("v_lshl_add_u32 v13, v9, 5, v13")
    a("s_lshl_b32 s10, s6, 13")
    a("s_lshl_b32 s11, s7, 10")
    a("s_add_u32 s10, s10, s11")
    a("s_lshl_b32 s11, s3, 8")
    a("s_add_u32 s10, s10, s11")
    a(f"s_add_u32 s10, s10, {XP_OFF}")
    a("s_barrier")
    a(f"ds_read_b128 v[20:23], v12 offset:{HB}")
    a("s_waitcnt vmcnt(8)")
    for i in range(4):
        perms(TP + 32 + 8 * i, lambda e: TW + 32 + 4 * e, i)
    a("s_waitcnt lgkmcnt(0)")
    a("s_cmp_ge_u32 s6, 56")
    a("s_cbranch_scc1 L_S_noffn")
    for j in range(8):
        a(f"v_mfma_f32_16x16x32_bf16 {vr(XACC+4*j,4)}, v[20:23], {vr(TP+32+4*j,4)}, 0")
    a("s_branch L_S_wo")
    a.label("L_S_noffn")
    for k in range(8):
        a(f"v_mov_b32 v{XACC+4*k}, 0")
        a(f"v_mov_b32 v{XACC+4*k+1}, 0")
    a.label("L_S_wo")
    a("s_waitcnt vmcnt(0)")
    for i in range(4):
        perms(TP + 8 * i, lambda e: TW + 4 * e, i)
    stamp(8)
    a("s_barrier")
    stamp(9)
    a(f"ds_read_b128 v[16:19], v12 offset:{OB}")
    a("s_waitcnt lgkmcnt(0)")
    for j in range(8):
        a(f"v_mfma_f32_16x16x32_bf16 {vr(XACC+4*j,4)}, v[16:19], {vr(TP+4*j,4)}, {vr(XACC+4*j,4)}")
    a("s_nop 1")
    for j in range(8):
        if j == 7:
            a("s_nop 0")
        a(f"v_add_f32_dpp v{24+j}, v{XACC+4*j+1}, v{XACC+4*j} row_ror:8 row_mask:0xf bank_mask:0xf")
    for j in range(8):
        put_tag(24 + j)
    a("s_mov_b64 exec, 0x00ff00ff")
    a("buffer_store_dwordx4 v[24:27], v13, s[48:51], s10 offen sc1")
    a("buffer_store_dwordx4 v[28:31], v13, s[48:51], s10 offen offset:16 sc1")
    stamp(10)
    dump_stamps(11)
    a("s_endpgm")

    a.label("L_ATT")
    RING = 16
    SC = RING + 16 * R
    QR = SC + 32
    ST = QR + 8
    AC = QR
    PTA = AC + 32
    assert PTA + 16 <= 256 and ST + 26 <= 256
    a("s_sub_u32 s6, s3, 4")
    a("v_bfe_u32 v6, v4, 1, 1")
    a("v_lshrrev_b32 v7, 2, v4")
    a("v_lshl_add_u32 v6, v6, 2, v7")
    a("v_lshlrev_b32 v6, 8, v6")
    a("v_lshl_add_u32 v6, v5, 5, v6")
    a("v_and_b32 v7, 1, v4")
    a("v_lshl_add_u32 v6, v7, 4, v6")
    a("v_lshlrev_b32 v7, 4, v0")
    a("s_lshl_b32 s7, s2, 18")
    a("s_lshl_b32 s8, s6, 12")
    a("s_add_u32 s7, s7, s8")
    a("s_mov_b32 s8, s7")
    a("s_waitcnt lgkmcnt(0)")
    load_tag()
    srd(40, 18, 0x4000000)
    srd(44, 20, 0x4000000)
    a("s_barrier")
    issued = [0]

    def issue():
        item = issued[0]
        slot = RING + 16 * (item % R)
        if item < 16:
            for k in range(4):
                a(f"buffer_load_dwordx4 {vr(slot+4*k,4)}, v6, s[40:43], s7 offen offset:{128*(k&1)+2048*(k>>1)}{NT}")
            if item < 15:
                a("s_add_u32 s7, s7, 16384")
        else:
            for r in range(4):
                a(f"buffer_load_dwordx4 {vr(slot+4*r,4)}, v7, s[44:47], s8 offen offset:{1024*r}{NT}")
            if item < 31:
                a("s_add_u32 s8, s8, 16384")
        issued[0] += 1
        if item == cfg.trig:
            a(f"ds_write_b32 v8, v9 offset:{TF}")

    def wait_item(item):
        n = (issued[0] - item - 1) * 4
        a(f"s_waitcnt vmcnt({n})")

    def throttle():
        a(f"s_waitcnt vmcnt({4*(D-1)})")

    for it in range(R):
        if it >= D:
            throttle()
        issue()
        if it == D - 1:
            srd(48, 38, WS_SIZE)
            consts()
            a("v_and_b32 v8, 7, v4")
            a("v_mul_u32_u24 v11, 272, v8")
            a("v_lshl_add_u32 v11, v5, 5, v11")
            a("v_lshrrev_b32 v8, 3, v4")
            a("v_lshl_add_u32 v11, v8, 4, v11")
            a("v_mov_b32 v10, 0xff800000")
            a("s_lshl_b32 s9, s6, 2")
            a("v_mov_b32 v8, s9")
            a("v_mov_b32 v9, 0")
            a("s_waitcnt lgkmcnt(0)")
            make_tag()
    stamp(1)
    a("s_barrier")
    stamp(2)
    for c in range(2):
        a(f"ds_read_b128 {vr(QR+4*c,4)}, v11 offset:{QB+128*c}")
    a("s_waitcnt lgkmcnt(0)")

    def post(i):
        t = ST + 8 * (i & 1)
        w = ST + 16
        for q in range(4):
            a(f"v_add_f32_dpp v{w+6+q}, v{t+2*q+1}, v{t+2*q} row_ror:8 row_mask:0xf bank_mask:0xf")
        s = w + 6
        a(f"v_max3_f32 v10, v10, v{s}, v{s+1}")
        a(f"v_cvt_pk_bf16_f32 v{w+4}, v{s}, v{s+1}")
        a(f"v_cvt_pk_bf16_f32 v{w+5}, v{s+2}, v{s+3}")
        a(f"v_max3_f32 v10, v10, v{s+2}, v{s+3}")
        a(f"v_lshlrev_b32 v{w}, 16, v{w+4}")
        a(f"v_and_b32 v{w+1}, s66, v{w+4}")
        a(f"v_lshlrev_b32 v{w+2}, 16, v{w+5}")
        a(f"v_and_b32 v{w+3}, s66, v{w+5}")
        for k in range(4):
            a(f"v_mul_f32 v{w+k}, s68, v{w+k}")
        a(f"v_cvt_pk_bf16_f32 v{SC+2*i}, v{w}, v{w+1}")
        a(f"v_cvt_pk_bf16_f32 v{SC+2*i+1}, v{w+2}, v{w+3}")

    for i in range(16):
        wait_item(i)
        slot = RING + 16 * (i % R)
        t = ST + 8 * (i & 1)
        for st_ in range(2):
            for ln in range(2):
                cc = "0" if ln == 0 else vr(t + 4 * st_, 4)
                a(f"v_mfma_f32_16x16x32_bf16 {vr(t+4*st_,4)}, {vr(slot+4*(2*st_+ln),4)}, {vr(QR+4*ln,4)}, {cc}")
        if i < D:
            throttle()
            issue()
        elif issued[0] - (i + 1) < D:
            issue()
        if i >= 1:
            if i == 1 or True:
                a("s_nop 3")
            post(i - 1)
    a("s_nop 7")
    post(15)
    stamp(3)
    issue()
    xlane("v_max_f32", 10, 11, [16, 32])
    round_bf16(12, 10)
    a("v_mul_f32 v12, s68, v12")
    round_bf16(12, 12)
    a("v_mul_f32 v11, s67, v12")
    a("v_mov_b32 v13, 0")
    a("v_mov_b32 v14, 0")
    w = ST
    for k in range(0, 32, 2):
        if k == 16:
            issue()
        for q in range(2):
            a(f"v_lshlrev_b32 v{w+2*q}, 16, v{SC+k+q}")
            a(f"v_and_b32 v{w+2*q+1}, s66, v{SC+k+q}")
        for q in range(4):
            a(f"v_fma_f32 v{w+q}, v{w+q}, s67, -v11")
        for q in range(4):
            a(f"v_exp_f32 v{w+q}, v{w+q}")
        a(f"v_add_f32 v13, v13, v{w}")
        a(f"v_add_f32 v14, v14, v{w+1}")
        a(f"v_cvt_pk_bf16_f32 v{SC+k}, v{w}, v{w+1}")
        a(f"v_add_f32 v13, v13, v{w+2}")
        a(f"v_add_f32 v14, v14, v{w+3}")
        a(f"v_cvt_pk_bf16_f32 v{SC+k+1}, v{w+2}, v{w+3}")
    a("v_add_f32 v13, v13, v14")
    xlane("v_add_f32", 13, 14, [16, 32])
    a("v_min_u32 v13, -2, v13")
    a("s_lshl_b32 s9, s6, 6")
    a("v_lshlrev_b32 v14, 3, v0")
    a("v_add_u32 v14, s9, v14")
    a("s_mov_b64 exec, 0xff")
    a(f"ds_write_b64 v14, v[12:13] offset:{MLB}")
    a("s_mov_b64 exec, -1")
    stamp(4)
    a("s_mul_i32 s9, s6, 4224")
    a("v_mul_u32_u24 v10, 528, v4")
    a("v_lshl_add_u32 v10, v5, 7, v10")
    a("v_add_u32 v10, s9, v10")
    a("v_lshrrev_b32 v12, 5, v0")
    a("s_lshl_b32 s9, s6, 1")
    a("v_add_u32 v12, s9, v12")
    a("v_lshlrev_b32 v13, 4, v12")
    a("v_mul_u32_u24 v12, 528, v12")
    a("v_and_b32 v14, 31, v0")
    a("v_lshl_add_u32 v12, v14, 4, v12")
    a("v_and_b32 v11, 7, v0")
    a("v_lshlrev_b32 v6, 3, v11")
    a("v_lshlrev_b32 v11, 4, v11")
    a("v_lshrrev_b32 v14, 3, v0")
    a("v_lshl_add_u32 v11, v14, 12, v11")
    a("v_lshl_add_u32 v6, v5, 1, v6")
    a("s_lshl_b32 s9, s6, 6")
    a("v_add_u32 v6, s9, v6")
    a("s_lshr_b32 s10, s6, 1")
    a("s_lshl_b32 s10, s10, 2")
    a("s_lshr_b32 s11, s2, 6")
    a("s_add_u32 s10, s10, s11")
    a("s_lshl_b32 s10, s10, 17")
    a("s_bfe_u32 s11, s2, 0x40002")
    a("s_lshl_b32 s11, s11, 8")
    a("s_add_u32 s10, s10, s11")
    a("s_and_b32 s11, s6, 1")
    a("s_lshl_b32 s11, s11, 7")
    a("s_add_u32 s10, s10, s11")
    a(f"s_add_u32 s10, s10, {OP_OFF}")
    a("s_add_u32 s11, s10, 32768")
    a("s_add_u32 s12, s10, 65536")
    a("s_add_u32 s13, s10, 98304")
    a("s_lshl_b32 s9, s2, 12")
    a("s_lshl_b32 s4, s6, 10")
    a("s_add_u32 s9, s9, s4")
    a(f"s_add_u32 s9, s9, {OP_OFF}")
    for it in range(16, 32):
        wait_item(it)
        if issued[0] < 32 and issued[0] - (it + 1) < D:
            issue()
        if it & 1:
            u = (it - 16) // 2
            s0 = RING + 16 * ((16 + 2 * u) % R)
            s1 = RING + 16 * ((17 + 2 * u) % R)
            src = lambda e, s0=s0, s1=s1: (s0 if e < 4 else s1) + 4 * (e & 3)

            def M(i, u=u):
                for h in range(2):
                    j = 2 * i + h
                    c = "0" if u == 0 else vr(AC + 4 * j, 4)
                    a(f"v_mfma_f32_16x16x32_bf16 {vr(AC+4*j,4)}, {vr(PTA+8*(i&1)+4*h,4)}, {vr(SC+4*u,4)}, {c}")
            perms(PTA, src, 0)
            perms(PTA + 8, src, 1)
            M(0)
            perms(PTA, src, 2)
            M(1)
            perms(PTA + 8, src, 3)
            M(2)
            M(3)
    assert issued[0] == 32
    stamp(5)
    a("s_mov_b32 exec_lo, 0x00ff00ff")
    a("s_mov_b32 exec_hi, 0x00ff00ff")
    for j in range(8):
        if j == 4:
            a("s_nop 0")
        if j == 7:
            pass
        a(f"ds_write_b128 v10, {vr(AC+4*j,4)} offset:{ORED+16*j}")
    a("s_mov_b64 exec, -1")
    a("s_waitcnt lgkmcnt(0)")
    a("s_barrier")
    stamp(6)
    a(f"ds_read_b128 v[16:19], v13 offset:{FB}")
    for w_ in range(4):
        a(f"ds_read_b128 {vr(20+4*w_,4)}, v12 offset:{ORED+4224*w_}")
    a("s_waitcnt lgkmcnt(0)")
    for k in range(4):
        a(f"v_mul_f32 v{20+k}, v16, v{20+k}")
    for w_ in range(1, 4):
        for k in range(4):
            a(f"v_fmac_f32 v{20+k}, v{16+w_}, v{20+4*w_+k}")
    for k in range(4):
        put_tag(20 + k)
    a("buffer_store_dwordx4 v[20:23], v7, s[48:51], s9 offen sc1")
    stamp(7)

    def ld3():
        for i in range(4):
            a(f"buffer_load_dwordx4 {vr(40+4*i,4)}, v11, s[48:51], s{10+i} offen sc1")
    poll(ld3, lambda: check_tag(range(40, 56), 14, 13), cfg.sleep_tail)
    stamp(8)
    for k in range(4):
        a(f"v_add_f32 v{40+k}, v{40+k}, v{44+k}")
        a(f"v_add_f32 v{48+k}, v{48+k}, v{52+k}")
    for k in range(4):
        a(f"v_add_f32 v{40+k}, v{40+k}, v{48+k}")
    a("s_nop 0")
    a("v_permlane32_swap_b32 v40, v42")
    a("v_permlane32_swap_b32 v41, v43")
    a("v_add_f32 v40, v40, v42")
    a("v_add_f32 v41, v41, v43")
    a("s_nop 1")
    a("v_permlane16_swap_b32 v40, v41")
    a("v_add_f32 v40, v40, v41")
    a("s_nop 1")
    a("v_add_f32_dpp v40, v40, v40 row_ror:8 row_mask:0xf bank_mask:0xf")
    a("v_cvt_pk_bf16_f32 v40, v40, v40")
    a(f"ds_write_b16 v6, v40 offset:{OB}")
    a("s_waitcnt lgkmcnt(0)")
    a("s_barrier")
    stamp(9)
    a("s_cmp_lg_u32 s6, 0")
    a("s_cbranch_scc1 L_ATT_END")
    srd(56, 16, 4096)
    srd(60, 34, 4096)
    a("v_lshlrev_b32 v12, 2, v5")
    a("s_lshl_b32 s9, s2, 4")
    a("buffer_load_dword v16, v12, s[56:59], s9 offen")
    a("v_lshlrev_b32 v11, 13, v0")
    a("s_lshl_b32 s10, s2, 5")
    a(f"s_add_u32 s10, s10, {XP_OFF}")

    def ld4():
        a("buffer_load_dwordx4 v[40:43], v11, s[48:51], s10 offen sc1")
        a("buffer_load_dwordx4 v[44:47], v11, s[48:51], s10 offen offset:16 sc1")
    poll(ld4, lambda: check_tag(range(40, 48), 14, 13), cfg.sleep_tail)
    stamp(10)
    for k in range(4):
        a(f"v_permlane32_swap_b32 v{40+k}, v{44+k}")
    for k in range(4):
        a(f"v_add_f32 v{40+k}, v{40+k}, v{44+k}")
    a("s_nop 0")
    a("v_permlane16_swap_b32 v40, v42")
    a("v_permlane16_swap_b32 v41, v43")
    a("v_add_f32 v40, v40, v42")
    a("v_add_f32 v41, v41, v43")
    for s in (8, 4, 2, 1):
        a("s_nop 0")
        a(f"v_add_f32_dpp v40, v40, v40 row_ror:{s} row_mask:0xf bank_mask:0xf")
        a(f"v_add_f32_dpp v41, v41, v41 row_ror:{s} row_mask:0xf bank_mask:0xf")
    a("v_lshlrev_b32 v42, 16, v16")
    a("v_and_b32 v43, s66, v16")
    a("v_add_f32 v40, v40, v42")
    a("v_add_f32 v41, v41, v43")
    a("v_cvt_pk_bf16_f32 v40, v40, v41")
    a("s_mov_b32 exec_lo, 0x00010001")
    a("s_mov_b32 exec_hi, 0x00010001")
    a("buffer_store_dword v40, v12, s[60:63], s9 offen")
    stamp(11)
    if cfg.padto:
        a.label("L_pad")
        a("s_memrealtime s[96:97]")
        a("s_waitcnt lgkmcnt(0)")
        a("s_sub_u32 s96, s96, s70")
        a(f"s_cmp_lt_u32 s96, {cfg.padto}")
        a("s_cbranch_scc1 L_pad")
    a("s_cmp_lg_u32 s2, 0")
    a("s_cbranch_scc1 L_ATT_END")
    a("s_mov_b64 exec, 1")
    a(f"s_mov_b32 s9, {EP_OFF:#x}")
    a("buffer_store_dword v15, v12, s[48:51], s9 offen")
    a.label("L_ATT_END")
    dump_stamps(12)
    a.label("L_END")
    a("s_endpgm")

    probs = check_hazards(a.lines)
    for p in probs:
        print(p, file=sys.stderr)
    if probs:
        raise SystemExit("hazards found")

    pad = ""
    if cfg.codepf:
        pad = f".fill ({(512 << cfg.codepf) + 256} - (. - {NAME}_kernel)) / 4, 4, 0xBF800000\n"
    out = HEADER
    out += "; Generated by work/gen2.py (hand-written generator). One persistent launch, 256 workgroups x 8 waves.\n"
    out += f"; @launch grid=(256,1,1) block=(512,1,1) lds={LDS_SIZE}\n"
    out += f""".amdgcn_target "amdgcn-amd-amdhsa--gfx950"
.text
.globl {NAME}_kernel
.p2align 8
.type {NAME}_kernel,@function
{NAME}_kernel:
"""
    out += a.text()
    out += pad
    out += f""".section .rodata,"a"
.p2align 6
.amdhsa_kernel {NAME}_kernel
  .amdhsa_next_free_vgpr 256
  .amdhsa_next_free_sgpr 102
  .amdhsa_accum_offset 256
  .amdhsa_group_segment_fixed_size 0
  .amdhsa_kernarg_size 96
  .amdhsa_user_sgpr_count 2
  .amdhsa_user_sgpr_kernarg_segment_ptr 1
  .amdhsa_system_sgpr_workgroup_id_x 1
  .amdhsa_float_denorm_mode_32 3
.end_amdhsa_kernel
"""
    return out


def parse_args(argv=None):
    p = argparse.ArgumentParser()
    p.add_argument("-o", default="cdna_kernels/" + NAME + ".s")
    p.add_argument("--ring", type=int, default=10)
    p.add_argument("--depth", type=int, default=3)
    p.add_argument("--stamps", type=int, default=0)
    p.add_argument("--codepf", type=int, default=5)
    p.add_argument("--sleep", type=int, default=8)
    p.add_argument("--sleep_q", type=int, default=0)
    p.add_argument("--sleep_lds", type=int, default=2)
    p.add_argument("--sleep_tail", type=int, default=0)
    p.add_argument("--spin", type=int, default=400000)
    p.add_argument("--trig", type=int, default=31)
    p.add_argument("--dbgwg", type=int, default=0)
    p.add_argument("--padto", type=int, default=0)
    return p.parse_args(argv)


if __name__ == "__main__":
    cfg = parse_args()
    open(cfg.o, "w").write(gen(cfg))
    print("wrote", cfg.o)
```

```python
import sys
import argparse
import struct
import math
from asmlib import Asm, vr, sr, check_hazards

NAME = "parallel_sum__gqa_block_cached__geglu_ffn__decode"

QP_OFF = 0x000000
GP_OFF = 0x020000
ML_OFF = 0x060000
EP_OFF = 0x070000
OP_OFF = 0x080000
XP_OFF = 0x180000
ST_OFF = 0x200000
WS_SIZE = 0x400000
XN = 0x0000
QB = 0x0400
MLB = 0x0C80
FL = 0x0D80
OF = FL + 0
FF = FL + 16
GF = FL + 24
QF = FL + 32
XF = FL + 36
PF = FL + 40
HF = FL + 44
WF = FL + 48
FB = 0x0E00
OB = 0x0E80
HB = 0x0F80
ORED = 0x1080
LDS_SIZE = ORED + 4 * 4224

LOG2E = 0x3FB8AA3B
SCALE = 0x3DB504F3
EPS = 0x3727C5AC

HEADER = open("cdna_kernels/" + NAME + ".s.ref").read().split("; Override launch")[0]


def f32bits(x):
    return struct.unpack("<I", struct.pack("<f", x))[0]


def gen(cfg):
    a = Asm()
    R = cfg.ring
    NT = " nt"
    MNT = " nt" if cfg.hnt & 1 else ""
    ONT = " nt" if cfg.hnt & 2 else ""
    XNT = " nt" if cfg.hnt & 4 else ""
    SNT = " nt" if cfg.hnt & 8 else ""
    TNT = " nt" if cfg.hnt & 16 else ""
    uid = [0]

    def stamp(k):
        if cfg.stamps:
            a(f"s_memrealtime s[{70+2*k}:{71+2*k}]")

    def srd(d, p, size):
        a(f"s_mov_b32 s{d}, s{p}")
        a(f"s_mov_b32 s{d+1}, s{p+1}")
        a(f"s_mov_b32 s{d+2}, {size:#x}")
        a(f"s_mov_b32 s{d+3}, 0x20000")

    def dump_stamps():
        if not cfg.stamps:
            return
        a("s_waitcnt lgkmcnt(0)")
        for _ in range(3):
            a("s_sleep 127")
        a("s_mov_b64 exec, 1")
        a("s_lshl_b32 s4, s2, 10")
        a("s_lshl_b32 s5, s3, 7")
        a("s_add_u32 s4, s4, s5")
        a(f"s_add_u32 s4, s4, {ST_OFF}")
        a("v_mov_b32 v3, 0")
        for k in range(14):
            a(f"v_mov_b32 v1, s{70+2*k}")
            a(f"buffer_store_dword v1, v3, s[48:51], s4 offen offset:{4*k}")

    def poll(loads, check, sleep, cnt="vmcnt", rec=None):
        uid[0] += 1
        n = uid[0]
        a(f"s_mov_b32 s15, {cfg.spin}")
        a.label(f"L_poll{n}")
        loads()
        a(f"s_waitcnt {cnt}(0)")
        check()
        a(f"s_cbranch_scc1 L_pdone{n}")
        a("s_sub_u32 s15, s15, 1")
        a(f"s_cbranch_scc1 L_pdone{n}")
        if sleep:
            a(f"s_sleep {sleep}")
        a(f"s_branch L_poll{n}")
        a.label(f"L_pdone{n}")
        if rec is not None and cfg.stamps:
            a(f"s_sub_u32 s{70+2*rec}, {cfg.spin+1}, s15")

    def wait_flags(reads, t, sleep):
        regs = []

        def ld():
            r = t
            regs.clear()
            for off, n, av in reads:
                op = {1: "ds_read_b32", 2: "ds_read_b64", 4: "ds_read_b128"}[n]
                a(f"{op} {vr(r,n)}, v{av} offset:{off}")
                regs.extend(range(r, r + n))
                r += (n + 1) & ~1

        def ck():
            rs = list(regs)
            while len(rs) >= 3:
                a(f"v_or3_b32 v{rs[0]}, v{rs[0]}, v{rs[1]}, v{rs[2]}")
                rs = [rs[0]] + rs[3:]
            if len(rs) == 2:
                a(f"v_or_b32 v{rs[0]}, v{rs[0]}, v{rs[1]}")
            a(f"v_cmp_eq_u32 vcc, 0, v{rs[0]}")
            a("s_cmp_eq_u64 vcc, -1")
        poll(ld, ck, sleep, cnt="lgkmcnt")

    def set_flag(off, av=14):
        a(f"ds_write_b32 v{av}, v14 offset:{off}")

    def check_tag(regs, t0, t1):
        regs = list(regs)
        a(f"v_xor_b32 v{t0}, s14, v{regs[0]}")
        a(f"v_xor_b32 v{t1}, s14, v{regs[1]}")
        for k, r in enumerate(regs[2:]):
            t = t0 if k % 2 == 0 else t1
            a(f"v_bitop3_b32 v{t}, v{r}, s14, v{t} bitop3:0xbe")
        a(f"v_or_b32 v{t0}, v{t0}, v{t1}")
        a(f"v_and_b32 v{t0}, s69, v{t0}")
        a(f"v_cmp_eq_u32 vcc, 0, v{t0}")
        a("s_cmp_eq_u64 vcc, -1")

    def check_sentinel(regs, tmp):
        regs = list(regs)
        a(f"v_max3_u32 v{tmp}, v{regs[0]}, v{regs[1]}, v{regs[2]}")
        regs = regs[3:]
        while len(regs) >= 2:
            a(f"v_max3_u32 v{tmp}, v{tmp}, v{regs[0]}, v{regs[1]}")
            regs = regs[2:]
        if regs:
            a(f"v_max_u32 v{tmp}, v{tmp}, v{regs[0]}")
        a(f"v_cmp_ne_u32 vcc, -1, v{tmp}")
        a("s_cmp_eq_u64 vcc, -1")

    def put_tag(r):
        a(f"v_bfi_b32 v{r}, s69, v15, v{r}")

    def load_tag():
        a(f"s_load_dword s14, s[38:39], {EP_OFF:#x}")

    def make_tag():
        a("s_add_u32 s14, s14, 1")
        a("s_and_b32 s14, s14, 0xff")
        a("v_mov_b32 v15, s14")

    def xlane(op, x, t, steps):
        for s in steps:
            if s in (1, 2, 4, 8):
                a("s_nop 1")
                a(f"{op}_dpp v{x}, v{x}, v{x} row_ror:{s} row_mask:0xf bank_mask:0xf")
            else:
                a(f"v_mov_b32 v{t}, v{x}")
                a("s_nop 1")
                a(f"v_permlane{s}_swap_b32 v{x}, v{t}")
                a(f"{op} v{x}, v{x}, v{t}")

    def round_bf16(d, s):
        a(f"v_cvt_pk_bf16_f32 v{d}, v{s}, v{s}")
        a(f"v_lshlrev_b32 v{d}, 16, v{d}")

    def perms(dst, src_e, i):
        for p in range(4):
            a(f"v_perm_b32 v{dst+p}, v{src_e(2*p+1)+i}, v{src_e(2*p)+i}, s64")
        for p in range(4):
            a(f"v_perm_b32 v{dst+4+p}, v{src_e(2*p+1)+i}, v{src_e(2*p)+i}, s65")

    def fold(dst, acc):
        for k in range(4):
            a(f"v_add_f32_dpp v{dst+k}, v{acc+4*k+1}, v{acc+4*k} row_ror:8 row_mask:0xf bank_mask:0x3")
        for k in range(4):
            if k >= 2:
                a("s_nop 0")
            a(f"v_add_f32_dpp v{dst+k}, v{acc+4*(k+4)}, v{acc+4*(k+4)+1} row_ror:8 row_mask:0xf bank_mask:0xc")
        for k in range(4):
            put_tag(dst + k)

    def consts():
        a("s_mov_b32 s64, 0x05040100")
        a("s_mov_b32 s65, 0x07060302")
        a("s_mov_b32 s66, 0xffff0000")
        a(f"s_mov_b32 s67, {LOG2E:#x}")
        a(f"s_mov_b32 s68, {SCALE:#x}")
        a("s_movk_i32 s69, 0xff")

    a("s_cmp_ge_u32 s2, 256")
    a("s_cbranch_scc1 L_END")
    a("s_load_dwordx16 s[16:31], s[0:1], 0")
    a("s_load_dwordx8 s[32:39], s[0:1], 64")
    stamp(0)
    if cfg.codepf:
        a("s_getpc_b64 s[4:5]")
        a(f"v_lshlrev_b32 v1, {cfg.codepf}, v0")
        a("global_load_dword v2, v1, s[4:5]")
    a("v_lshrrev_b32 v3, 6, v0")
    a("v_and_b32 v0, 63, v0")
    a("v_readfirstlane_b32 s3, v3")
    a("v_and_b32 v4, 15, v0")
    a("v_lshrrev_b32 v5, 4, v0")
    a("v_mov_b32 v14, 0")
    a("v_lshrrev_b32 v8, 3, v4")
    a("v_and_b32 v9, 7, v4")
    a("s_cmp_ge_u32 s3, 4")
    a("s_cbranch_scc1 L_ATT")
    a("s_lshr_b32 s6, s2, 2")
    a("s_and_b32 s7, s2, 3")
    a("v_lshlrev_b32 v10, 3, v8")
    a("v_lshl_add_u32 v10, v5, 4, v10")
    a("s_cmp_lg_u32 s3, 0")
    a("s_cbranch_scc1 L_S123")

    XA = 16
    XO = 32
    XU = 36
    WR = 72
    ACC = 200
    PT = 232

    def wloads(stride, throttle, gate):
        for T in range(4):
            for e in range(8):
                k = 8 * T + e
                if throttle and k >= throttle:
                    a(f"s_waitcnt vmcnt({throttle-1})")
                a(f"buffer_load_dwordx4 {vr(WR+32*T+4*e,4)}, v10, s[40:43], s10 offen{NT}")
                if k < 31:
                    a(f"s_add_u32 s10, s10, {stride * (57 if e == 7 else 1)}")
                if gate and k == gate - 1:
                    set_flag(GF - 4, 13)

    a("s_mov_b32 s9, 14")
    a("v_lshlrev_b32 v6, 6, v0")
    a("v_lshrrev_b32 v7, 5, v0")
    a("v_lshlrev_b32 v7, 11, v7")
    a("v_and_b32 v11, 31, v0")
    a("v_lshl_add_u32 v7, v11, 4, v7")
    a("s_lshl_b32 s12, s7, 9")
    a("v_lshlrev_b32 v10, 13, v10")
    a("v_lshl_add_u32 v10, v9, 4, v10")
    a("s_lshl_b32 s10, s7, 21")
    a("s_lshl_b32 s11, s6, 7")
    a("s_add_u32 s10, s10, s11")
    a("s_waitcnt lgkmcnt(0)")
    srd(56, 16, 4096)
    srd(40, 22, 0x800000)
    load_tag()
    for i in range(4):
        a(f"buffer_load_dwordx4 {vr(XA+4*i,4)}, v6, s[56:59], 0 offen offset:{16*i}")
    a(f"buffer_load_dwordx4 {vr(XO,4)}, v7, s[56:59], s12 offen")
    wloads(8192, 0, 0)
    stamp(1)
    a("s_barrier")
    srd(48, 38, WS_SIZE)
    consts()
    a("s_lshl_b32 s10, s7, 15")
    a("s_lshl_b32 s11, s6, 8")
    a("s_add_u32 s10, s10, s11")
    if QP_OFF:
        a(f"s_add_u32 s10, s10, {QP_OFF}")
    a("s_waitcnt vmcnt(32)")
    stamp(2)
    for i in range(16):
        a(f"v_lshlrev_b32 v{XU+2*i}, 16, v{XA+i}")
        a(f"v_and_b32 v{XU+2*i+1}, s66, v{XA+i}")
    for k in range(4):
        a(f"v_add_f32 v{XA+k}, v{XU+k}, v{XU+4+k}")
    for i in range(8, 32):
        a(f"v_add_f32 v{XA+(i&3)}, v{XA+(i&3)}, v{XU+i}")
    a(f"v_add_f32 v11, v{XA}, v{XA+1}")
    a(f"v_add_f32 v13, v{XA+2}, v{XA+3}")
    a("v_add_f32 v11, v11, v13")
    xlane("v_add_f32", 11, 12, [8, 4, 2, 1, 16])
    a("v_mul_f32 v11, 0x3a800000, v11")
    for i in range(32):
        a(f"v_sub_f32 v{XU+i}, v{XU+i}, v11")
    for k in range(4):
        a(f"v_mul_f32 v{XA+k}, v{XU+k}, v{XU+k}")
    for i in range(4, 32):
        a(f"v_fmac_f32 v{XA+(i&3)}, v{XU+i}, v{XU+i}")
    a(f"v_add_f32 v12, v{XA}, v{XA+1}")
    a(f"v_add_f32 v13, v{XA+2}, v{XA+3}")
    a("v_add_f32 v12, v12, v13")
    xlane("v_add_f32", 12, 13, [8, 4, 2, 1, 16])
    a("v_mul_f32 v12, 0x3a800000, v12")
    round_bf16(11, 11)
    round_bf16(12, 12)
    a(f"v_add_f32 v12, {EPS:#x}, v12")
    round_bf16(12, 12)
    a("v_sqrt_f32 v12, v12")
    a("s_nop 0")
    round_bf16(12, 12)
    a("v_rcp_f32 v13, v12")
    for i in range(4):
        a(f"v_lshlrev_b32 v{XU+2*i}, 16, v{XO+i}")
        a(f"v_and_b32 v{XU+2*i+1}, s66, v{XO+i}")
    for i in range(8):
        a(f"v_sub_f32 v{XU+i}, v{XU+i}, v11")
    for i in range(4):
        a(f"v_cvt_pk_bf16_f32 v{XO+i}, v{XU+2*i}, v{XU+2*i+1}")
    for i in range(4):
        a(f"v_lshlrev_b32 v{XU+2*i}, 16, v{XO+i}")
        a(f"v_and_b32 v{XU+2*i+1}, s66, v{XO+i}")
    for i in range(8):
        a(f"v_mul_f32 v{XU+8+i}, v{XU+i}, v13")
    for i in range(8):
        a(f"v_fma_f32 v{XU+i}, -v{XU+8+i}, v12, v{XU+i}")
    for i in range(8):
        a(f"v_fmac_f32 v{XU+8+i}, v{XU+i}, v13")
    for i in range(4):
        a(f"v_cvt_pk_bf16_f32 v{XO+i}, v{XU+8+2*i}, v{XU+8+2*i+1}")
    a("v_lshlrev_b32 v11, 4, v0")
    a(f"ds_write_b128 v11, {vr(XO,4)} offset:{XN}")
    set_flag(XF)
    a("s_waitcnt lgkmcnt(0)")
    make_tag()

    a.label("L_S_gemv")
    a("v_bfe_u32 v11, v4, 2, 1")
    a("v_lshlrev_b32 v11, 9, v11")
    a("v_lshl_add_u32 v11, v5, 5, v11")
    a("v_and_b32 v12, 1, v4")
    a("v_lshl_add_u32 v11, v12, 4, v11")
    for T in range(4):
        a(f"ds_read_b128 {vr(XU+4*T,4)}, v11 offset:{XN+128*T}")
    stamp(3)
    a("v_lshlrev_b32 v12, s9, v5")
    a("v_lshl_add_u32 v12, v9, 5, v12")
    a("v_lshl_add_u32 v12, v8, 4, v12")
    a("s_waitcnt lgkmcnt(0)")
    for T in range(4):
        a(f"s_waitcnt vmcnt({24-8*T})")
        src = lambda e, T=T: WR + 32 * T + 4 * e

        def M(i, T=T):
            for h in range(2):
                j = 2 * i + h
                c = "0" if T == 0 else vr(ACC + 4 * j, 4)
                a(f"v_mfma_f32_16x16x32_bf16 {vr(ACC+4*j,4)}, {vr(XU+4*T,4)}, {vr(PT+8*(i&1)+4*h,4)}, {c}")
        perms(PT, src, 0)
        perms(PT + 8, src, 1)
        M(0)
        perms(PT, src, 2)
        M(1)
        perms(PT + 8, src, 3)
        M(2)
        M(3)
    stamp(4)
    a("s_nop 3")
    fold(PT, ACC)
    a("s_mov_b32 exec_hi, 0")
    if not (cfg.abl & 8):
        a(f"buffer_store_dwordx4 {vr(PT,4)}, v12, s[48:51], s10 offen sc1{SNT}")
    a("s_mov_b64 exec, -1")
    a("s_cmp_eq_u32 s3, 1")
    a("s_cbranch_scc1 L_S1_h")
    a("s_cmp_eq_u32 s3, 2")
    a("s_cbranch_scc1 L_S_tail")
    a("v_lshlrev_b32 v6, 4, v0")
    a("s_lshr_b32 s10, s2, 5")
    a("s_lshl_b32 s10, s10, 12")
    if QP_OFF:
        a(f"s_add_u32 s10, s10, {QP_OFF}")
    a("s_add_u32 s11, s10, 32768")
    a("s_add_u32 s12, s10, 65536")
    a("s_add_u32 s13, s10, 98304")
    a("v_lshrrev_b32 v7, 5, v0")
    a("v_mul_u32_u24 v7, 272, v7")
    a("v_and_b32 v11, 31, v0")
    a("v_lshl_add_u32 v7, v11, 3, v7")
    if cfg.pf:
        wait_flags([(PF, 1, 14)], 16, cfg.sleep_lds)
    stamp(6)

    def ldq():
        for kq in range(4):
            for i in range(4):
                if (cfg.abl & 16) and i: continue
                a(f"buffer_load_dwordx4 {vr(32+16*kq+4*i,4)}, v6, s[48:51], s{10+kq} offen offset:{1024*i} sc1{MNT}")
    if not (cfg.abl & 1):
        poll(ldq, lambda: check_tag([r for r in range(32, 96) if not (cfg.abl & 16) or (r - 32) % 16 < 4], 11, 12), cfg.sleep_q, rec=12)
    stamp(5)
    for k in range(16):
        a(f"v_add_f32 v{32+k}, v{32+k}, v{48+k}")
        a(f"v_add_f32 v{64+k}, v{64+k}, v{80+k}")
    for k in range(16):
        a(f"v_add_f32 v{32+k}, v{32+k}, v{64+k}")
    for i in range(4):
        a(f"v_cvt_pk_bf16_f32 v{48+2*i}, v{32+4*i}, v{33+4*i}")
        a(f"v_cvt_pk_bf16_f32 v{49+2*i}, v{34+4*i}, v{35+4*i}")
        a(f"ds_write_b64 v7, {vr(48+2*i,2)} offset:{QB+544*i}")
    set_flag(QF)
    a("s_branch L_S_tail")

    a.label("L_S123")
    consts()
    a("s_mov_b32 s9, 8")
    a(f"s_mul_i32 s5, s3, {cfg.crot}")
    a("s_add_u32 s5, s5, s6")
    a("s_sub_u32 s4, s5, 56")
    a("s_cmp_ge_u32 s5, 56")
    a("s_cselect_b32 s5, s4, s5")
    a("v_mul_u32_u24 v10, 7168, v10")
    a("v_lshl_add_u32 v10, v9, 4, v10")
    a(f"s_mul_i32 s10, s7, {256*7168}")
    a("s_lshl_b32 s11, s5, 7")
    a("s_add_u32 s10, s10, s11")
    a("v_mov_b32 v11, -1")
    a("v_lshlrev_b32 v12, 2, v0")
    a(f"ds_write_b32 v12, v11 offset:{MLB}")
    a(f"ds_write_b32 v12, v11 offset:{MLB+128}")
    a("s_lshl_b32 s4, s3, 2")
    a("v_mov_b32 v13, s4")
    a("s_waitcnt lgkmcnt(0)")
    load_tag()
    srd(48, 38, WS_SIZE)
    a("s_cmp_eq_u32 s3, 2")
    a("s_cselect_b64 s[40:41], s[30:31], s[28:29]")
    a("s_mov_b32 s42, 0x700000")
    a("s_mov_b32 s43, 0x20000")
    a("s_waitcnt lgkmcnt(0)")
    a("s_barrier")
    make_tag()
    a("s_cmp_eq_u32 s3, 3")
    a("s_cbranch_scc1 L_S3")
    a("s_cmp_lt_u32 s6, 56")
    a("s_cbranch_scc1 L_S12")
    set_flag(GF - 4, 13)
    a("s_branch L_S_tail")
    a.label("L_S12")
    wloads(7168, cfg.ns, cfg.gate)
    stamp(1)
    a("s_lshl_b32 s10, s5, 12")
    a("s_lshl_b32 s12, s7, 10")
    a("s_add_u32 s10, s10, s12")
    a("s_lshl_b32 s12, s3, 9")
    a("s_add_u32 s10, s10, s12")
    a(f"s_add_u32 s10, s10, {GP_OFF-512}")
    wait_flags([(XF, 1, 14)], 16, cfg.sleep_lds)
    a("s_branch L_S_gemv")

    a.label("L_S1_h")
    a("v_lshlrev_b32 v12, 3, v0")
    a("s_lshl_b32 s10, s6, 12")
    a(f"s_add_u32 s10, s10, {GP_OFF}")
    wait_flags([(QF, 1, 14)], 16, cfg.sleep_lds)

    def ldg():
        for kq in range(4):
            for m in range(2):
                a(f"buffer_load_dwordx2 {vr(16+4*kq+2*m,2)}, v12, s[48:51], s10 offen offset:{kq*1024+m*512} sc1{MNT}")
    if not (cfg.abl & 2):
        poll(ldg, lambda: check_tag(range(16, 32), 11, 13), cfg.sleep, rec=12)
    stamp(5)
    for k in range(4):
        a(f"v_add_f32 v{16+k}, v{16+k}, v{20+k}")
        a(f"v_add_f32 v{24+k}, v{24+k}, v{28+k}")
    for k in range(4):
        a(f"v_add_f32 v{16+k}, v{16+k}, v{24+k}")
    a("v_cvt_pk_bf16_f32 v20, v16, v17")
    a("v_cvt_pk_bf16_f32 v21, v18, v19")
    a("v_lshlrev_b32 v16, 16, v20")
    a("v_and_b32 v17, s66, v20")
    a("v_lshlrev_b32 v18, 16, v21")
    a("v_and_b32 v19, s66, v21")
    a(f"s_mov_b32 s10, {f32bits(0.044715):#x}")
    a(f"s_mov_b32 s11, {f32bits(-2.0 * math.sqrt(2.0 / math.pi) * math.log2(math.e)):#x}")
    for k in range(2):
        a(f"v_mul_f32 v{20+k}, v{16+k}, v{16+k}")
    for k in range(2):
        a(f"v_mul_f32 v{20+k}, v{20+k}, v{16+k}")
    for k in range(2):
        a(f"v_fma_f32 v{20+k}, v{20+k}, s10, v{16+k}")
    for k in range(2):
        a(f"v_mul_f32 v{20+k}, s11, v{20+k}")
    for k in range(2):
        a(f"v_exp_f32 v{20+k}, v{20+k}")
    a("s_nop 0")
    for k in range(2):
        a(f"v_add_f32 v{20+k}, 1.0, v{20+k}")
    for k in range(2):
        a(f"v_rcp_f32 v{20+k}, v{20+k}")
    a("s_nop 0")
    for k in range(2):
        a(f"v_mul_f32 v{20+k}, v{20+k}, v{16+k}")
    a("v_cvt_pk_bf16_f32 v22, v20, v21")
    a("v_lshlrev_b32 v20, 16, v22")
    a("v_and_b32 v21, s66, v22")
    a("v_mul_f32 v20, v20, v18")
    a("v_mul_f32 v21, v21, v19")
    a("v_cvt_pk_bf16_f32 v22, v20, v21")
    a("v_lshlrev_b32 v12, 2, v0")
    a(f"ds_write_b32 v12, v22 offset:{HB}")
    set_flag(HF)
    a("s_branch L_S_tail")

    a.label("L_S3")
    a("v_and_b32 v6, 7, v0")
    a("v_lshlrev_b32 v6, 3, v6")
    a("v_and_b32 v7, 31, v0")
    a("v_lshlrev_b32 v7, 3, v7")
    a("s_lshl_b32 s13, s2, 6")
    a(f"s_add_u32 s13, s13, {ML_OFF}")

    def ldm():
        for w in range(4):
            a(f"ds_read_b64 {vr(16+2*w,2)}, v6 offset:{MLB+64*w}")
    poll(ldm, lambda: check_sentinel(range(16, 24), 11), cfg.sleep_lds, cnt="lgkmcnt")
    stamp(5)
    a(f"ds_read_b32 v30, v7 offset:{MLB}")

    def combine4(mo):
        a(f"v_max3_f32 v{mo}, v16, v18, v20")
        a(f"v_max_f32 v{mo}, v{mo}, v22")

    def wsum4(mo, lo):
        for w in range(4):
            a(f"v_sub_f32 v{16+2*w}, v{16+2*w}, v{mo}")
        for w in range(4):
            a(f"v_mul_f32 v{16+2*w}, s67, v{16+2*w}")
        for w in range(4):
            a(f"v_exp_f32 v{16+2*w}, v{16+2*w}")
        a("s_nop 0")
        a(f"v_mul_f32 v{lo}, v16, v17")
        for w in range(1, 4):
            a(f"v_fmac_f32 v{lo}, v{16+2*w}, v{17+2*w}")
    combine4(24)
    wsum4(24, 25)
    put_tag(24)
    put_tag(25)
    a("s_mov_b64 exec, 0xff")
    if not (cfg.abl & 8):
        a(f"buffer_store_dwordx2 v[24:25], v6, s[48:51], s13 offen sc1{SNT}")
    a("s_mov_b64 exec, -1")
    a("s_lshr_b32 s10, s2, 5")
    a("s_lshl_b32 s10, s10, 11")
    a(f"s_add_u32 s10, s10, {ML_OFF}")
    a("v_lshlrev_b32 v7, 3, v0")

    def ld2():
        for i in range(4):
            a(f"buffer_load_dwordx2 {vr(16+2*i,2)}, v7, s[48:51], s10 offen offset:{512*i} sc1{MNT}")
    if not (cfg.abl & 4):
        poll(ld2, lambda: check_tag(range(16, 24), 11, 12), cfg.sleep, rec=12)
    stamp(6)
    for w in range(4):
        a(f"v_and_b32 v{16+2*w}, s66, v{16+2*w}")
    combine4(26)
    xlane("v_max_f32", 26, 11, [8, 16, 32])
    wsum4(26, 27)
    xlane("v_add_f32", 27, 11, [8, 16, 32])
    a("s_waitcnt lgkmcnt(0)")
    a("v_sub_f32 v30, v30, v26")
    a("v_mul_f32 v30, s67, v30")
    a("v_exp_f32 v30, v30")
    a("v_rcp_f32 v27, v27")
    a("v_bfe_u32 v7, v0, 3, 2")
    a("v_lshlrev_b32 v7, 2, v7")
    a("v_lshl_add_u32 v7, v6, 1, v7")
    a("v_mul_f32 v30, v30, v27")
    a(f"ds_write_b32 v7, v30 offset:{FB}")
    set_flag(FF)

    a.label("L_S_tail")
    a("v_lshrrev_b32 v12, 5, v0")
    a("s_lshl_b32 s9, s3, 1")
    a("v_add_u32 v12, s9, v12")
    a("v_lshlrev_b32 v13, 4, v12")
    a("v_mul_u32_u24 v12, 528, v12")
    a("v_and_b32 v11, 31, v0")
    a("v_lshl_add_u32 v12, v11, 4, v12")
    a("v_and_b32 v11, 7, v0")
    a("v_lshlrev_b32 v6, 3, v11")
    a("v_lshl_add_u32 v6, v5, 1, v6")
    a("s_lshl_b32 s9, s3, 6")
    a("v_add_u32 v6, s9, v6")
    a("v_lshlrev_b32 v11, 4, v11")
    a("v_lshrrev_b32 v10, 3, v0")
    a("v_lshl_add_u32 v11, v10, 12, v11")
    a("v_mul_u32_u24 v10, 5, v10")
    a("v_add_u32 v10, s2, v10")
    a("v_and_b32 v10, 31, v10")
    a("v_lshl_add_u32 v11, v10, 7, v11")
    a("v_lshlrev_b32 v7, 4, v0")
    a("s_lshr_b32 s9, s2, 5")
    a("s_lshl_b32 s9, s9, 17")
    a("s_lshl_b32 s4, s3, 15")
    a("s_add_u32 s9, s9, s4")
    a(f"s_add_u32 s9, s9, {OP_OFF}")
    a("s_lshr_b32 s10, s3, 1")
    a("s_lshl_b32 s10, s10, 2")
    a("s_lshr_b32 s11, s2, 6")
    a("s_add_u32 s10, s10, s11")
    a("s_lshl_b32 s10, s10, 17")
    a("s_bfe_u32 s11, s2, 0x40002")
    a("s_lshl_b32 s11, s11, 13")
    a("s_add_u32 s10, s10, s11")
    a("s_and_b32 s11, s3, 1")
    a("s_lshl_b32 s11, s11, 12")
    a("s_add_u32 s10, s10, s11")
    a(f"s_add_u32 s10, s10, {OP_OFF}")
    srd(56, 16, 4096)
    srd(60, 34, 4096)
    a("v_lshlrev_b32 v10, 2, v5")
    a("s_lshl_b32 s12, s2, 4")
    a("buffer_load_dword v36, v10, s[56:59], s12 offen")
    a("v_lshlrev_b32 v9, 7, v0")
    a("s_lshr_b32 s13, s2, 2")
    a("s_lshl_b32 s13, s13, 13")
    a("s_and_b32 s11, s2, 3")
    a("s_lshl_b32 s11, s11, 5")
    a("s_add_u32 s13, s13, s11")
    a(f"s_add_u32 s13, s13, {XP_OFF}")
    wait_flags([(FF, 1, 14)], 16, cfg.sleep_lds)
    a(f"ds_read_b128 v[16:19], v13 offset:{FB}")
    wait_flags([(OF, 4, 14)], 60, cfg.sleep_of)
    stamp(7)
    for w_ in range(4):
        a(f"ds_read_b128 {vr(20+4*w_,4)}, v12 offset:{ORED+4224*w_}")
    for w_ in range(4):
        a(f"s_waitcnt lgkmcnt({3-w_})") if not cfg.stamps else (a("s_waitcnt lgkmcnt(0)") if w_ == 0 else None)
        for k in range(4):
            if w_ == 0:
                a(f"v_mul_f32 v{20+k}, v16, v{20+k}")
            else:
                a(f"v_fmac_f32 v{20+k}, v{16+w_}, v{20+4*w_+k}")
    for k in range(4):
        put_tag(20 + k)
    a(f"buffer_store_dwordx4 v[20:23], v11, s[48:51], s9 offen sc1{TNT}")
    stamp(8)
    if cfg.wf:
        wait_flags([(WF, 4, 14)], 60, cfg.sleep_of)

    def ld3():
        for i in range(4):
            a(f"buffer_load_dwordx4 {vr(40+4*i,4)}, v7, s[48:51], s10 offen offset:{1024*i} sc1{ONT}")
    poll(ld3, lambda: check_tag(range(40, 56), 12, 13), cfg.sleep_tail, rec=13)
    stamp(9)
    for k in range(4):
        a(f"v_add_f32 v{40+k}, v{40+k}, v{44+k}")
        a(f"v_add_f32 v{48+k}, v{48+k}, v{52+k}")
    for k in range(4):
        a(f"v_add_f32 v{40+k}, v{40+k}, v{48+k}")
    a("s_nop 0")
    a("v_permlane32_swap_b32 v40, v42")
    a("v_permlane32_swap_b32 v41, v43")
    a("v_add_f32 v40, v40, v42")
    a("v_add_f32 v41, v41, v43")
    a("s_nop 1")
    a("v_permlane16_swap_b32 v40, v41")
    a("v_add_f32 v40, v40, v41")
    a("s_nop 1")
    a("v_add_f32_dpp v40, v40, v40 row_ror:8 row_mask:0xf bank_mask:0xf")
    a("v_cvt_pk_bf16_f32 v40, v40, v40")
    a(f"ds_write_b16 v6, v40 offset:{OB}")
    a("s_waitcnt lgkmcnt(0)")
    a("s_barrier")
    a("s_cmp_lg_u32 s3, 0")
    a("s_cbranch_scc1 L_S_END")

    def ld4():
        a(f"buffer_load_dwordx4 v[40:43], v9, s[48:51], s13 offen sc1{XNT}")
        a(f"buffer_load_dwordx4 v[44:47], v9, s[48:51], s13 offen offset:16 sc1{XNT}")
    poll(ld4, lambda: check_tag(range(40, 48), 12, 13), cfg.sleep_tail)
    stamp(10)
    for k in range(4):
        a(f"v_permlane32_swap_b32 v{40+k}, v{44+k}")
    for k in range(4):
        a(f"v_add_f32 v{40+k}, v{40+k}, v{44+k}")
    a("s_nop 0")
    a("v_permlane16_swap_b32 v40, v42")
    a("v_permlane16_swap_b32 v41, v43")
    a("v_add_f32 v40, v40, v42")
    a("v_add_f32 v41, v41, v43")
    for s in (8, 4, 2, 1):
        a("s_nop 0")
        a(f"v_add_f32_dpp v40, v40, v40 row_ror:{s} row_mask:0xf bank_mask:0xf")
        a(f"v_add_f32_dpp v41, v41, v41 row_ror:{s} row_mask:0xf bank_mask:0xf")
    a("v_lshlrev_b32 v42, 16, v36")
    a("v_and_b32 v43, s66, v36")
    a("v_add_f32 v40, v40, v42")
    a("v_add_f32 v41, v41, v43")
    a("v_cvt_pk_bf16_f32 v40, v40, v41")
    a("s_mov_b32 exec_lo, 0x00010001")
    a("s_mov_b32 exec_hi, 0x00010001")
    a("buffer_store_dword v40, v10, s[60:63], s12 offen")
    stamp(11)
    a("s_cmp_lg_u32 s2, 0")
    a("s_cbranch_scc1 L_S_END")
    a("s_mov_b64 exec, 1")
    a(f"s_mov_b32 s9, {EP_OFF:#x}")
    a("buffer_store_dword v15, v14, s[48:51], s9 offen")
    a.label("L_S_END")
    dump_stamps()
    a("s_endpgm")

    a.label("L_ATT")
    RING = 16
    SC = RING + 16 * R
    QR = SC + 32
    ST = QR + 8
    AC = QR
    PTA = AC + 32
    assert PTA + 16 <= 256 and ST + 26 <= 256 and R == 10
    a("s_sub_u32 s6, s3, 4")
    a("v_bfe_u32 v6, v4, 1, 1")
    a("v_lshrrev_b32 v7, 2, v4")
    a("v_lshl_add_u32 v6, v6, 2, v7")
    a("v_lshlrev_b32 v6, 8, v6")
    a("v_lshl_add_u32 v6, v5, 5, v6")
    a("v_and_b32 v7, 1, v4")
    a("v_lshl_add_u32 v6, v7, 4, v6")
    a("v_lshlrev_b32 v7, 4, v0")
    a("s_lshl_b32 s7, s2, 18")
    a("s_lshl_b32 s8, s6, 12")
    a("s_add_u32 s7, s7, s8")
    a("s_mov_b32 s8, s7")
    a("s_lshl_b32 s9, s6, 2")
    a("v_mov_b32 v13, s9")
    a("s_waitcnt lgkmcnt(0)")
    load_tag()
    srd(40, 18, 0x4000000)
    srd(44, 20, 0x4000000)
    srd(48, 38, WS_SIZE)
    srd(52, 24, 0x800000)
    srd(56, 32, 0x700000)
    consts()
    a("v_mul_u32_u24 v11, 272, v9")
    a("v_lshl_add_u32 v11, v5, 5, v11")
    a("v_lshl_add_u32 v11, v8, 4, v11")
    a("v_mov_b32 v10, 0xff800000")
    a("s_barrier")
    if cfg.gate:
        wait_flags([(GF, 2, 14)], 16, 1)
    else:
        a("s_waitcnt lgkmcnt(0)")
    make_tag()
    N = cfg.n
    N0 = cfg.n0 or N
    NL = 144
    nl = [0]

    def slot_of(item):
        return RING + 16 * (item % R)

    def issue1():
        k = nl[0]
        if k >= NL:
            return
        item, q = divmod(k, 4)
        slot = slot_of(item)
        if item < 16:
            a(f"buffer_load_dwordx4 {vr(slot+4*q,4)}, v6, s[40:43], s7 offen offset:{128*(q&1)+2048*(q>>1)}{NT}")
            if q == 3 and item < 15:
                a("s_add_u32 s7, s7, 16384")
        elif item < 32:
            a(f"buffer_load_dwordx4 {vr(slot+4*q,4)}, v7, s[44:47], s8 offen offset:{1024*q}{NT}")
            if q == 3 and item < 31:
                a("s_add_u32 s8, s8, 16384")
        elif item < 34:
            e = k - 128
            a(f"buffer_load_dwordx4 {vr(slot+4*q,4)}, v1, s[56:59], s10 offen offset:{2048*(e&1)}{NT}")
            if (e & 1) and e < 7:
                a("s_add_u32 s10, s10, 4096")
        else:
            m = k - 136
            a(f"buffer_load_dwordx4 {vr(slot+4*q,4)}, v3, s[52:55], s11 offen offset:{2048*(m&1)}{NT}")
            if (m & 1) and m < 7:
                a("s_add_u32 s11, s11, 16384")
        nl[0] += 1
        if cfg.pf and k == cfg.pf - 1:
            set_flag(PF)
        if cfg.wf and k == cfg.wf - 1:
            set_flag(WF, 13)

    def wait_load(k):
        a(f"s_waitcnt vmcnt({nl[0] - k - 1})")

    def advance(item):
        for q in range(4):
            k = 4 * item + q
            if nl[0] < NL and nl[0] - (k + 1) < N:
                wait_load(k)
                while nl[0] < NL and nl[0] - (k + 1) < N:
                    issue1()
            elif q == 3:
                wait_load(k)

    for k in range(4 * R):
        if k >= N0:
            a(f"s_waitcnt vmcnt({N0-1})")
        issue1()
    stamp(1)
    wait_flags([(QF, 1, 14)], QR, 1)
    stamp(2)
    for c in range(2):
        a(f"ds_read_b128 {vr(QR+4*c,4)}, v11 offset:{QB+128*c}")
    a("s_waitcnt lgkmcnt(0)")

    def post(i):
        t = ST + 8 * (i & 1)
        w = ST + 16
        for q in range(4):
            a(f"v_add_f32_dpp v{w+6+q}, v{t+2*q+1}, v{t+2*q} row_ror:8 row_mask:0xf bank_mask:0xf")
        s = w + 6
        a(f"v_max3_f32 v10, v10, v{s}, v{s+1}")
        a(f"v_cvt_pk_bf16_f32 v{w+4}, v{s}, v{s+1}")
        a(f"v_cvt_pk_bf16_f32 v{w+5}, v{s+2}, v{s+3}")
        a(f"v_max3_f32 v10, v10, v{s+2}, v{s+3}")
        a(f"v_lshlrev_b32 v{w}, 16, v{w+4}")
        a(f"v_and_b32 v{w+1}, s66, v{w+4}")
        a(f"v_lshlrev_b32 v{w+2}, 16, v{w+5}")
        a(f"v_and_b32 v{w+3}, s66, v{w+5}")
        for k in range(4):
            a(f"v_mul_f32 v{w+k}, s68, v{w+k}")
        a(f"v_cvt_pk_bf16_f32 v{SC+2*i}, v{w}, v{w+1}")
        a(f"v_cvt_pk_bf16_f32 v{SC+2*i+1}, v{w+2}, v{w+3}")

    for i in range(16):
        advance(i)
        slot = slot_of(i)
        t = ST + 8 * (i & 1)
        for st_ in range(2):
            for ln in range(2):
                cc = "0" if ln == 0 else vr(t + 4 * st_, 4)
                a(f"v_mfma_f32_16x16x32_bf16 {vr(t+4*st_,4)}, {vr(slot+4*(2*st_+ln),4)}, {vr(QR+4*ln,4)}, {cc}")
        if nl[0] - 4 * (i + 1) >= N and nl[0] < 4 * (i + 1 + R):
            cnt = cfg.catch0 if i == 0 else cfg.catch
            for _ in range(cnt):
                if nl[0] < 4 * (i + 1 + R):
                    a(f"s_waitcnt vmcnt({N-1})")
                    issue1()
        if i >= 1:
            a("s_nop 3")
            post(i - 1)
    a("s_nop 7")
    post(15)
    stamp(3)
    xlane("v_max_f32", 10, 11, [16, 32])
    w = ST
    MM, LL, L2 = ST + 8, ST + 9, ST + 10
    assert MM % 2 == 0
    round_bf16(MM, 10)
    a(f"v_mul_f32 v{MM}, s68, v{MM}")
    round_bf16(MM, MM)
    a(f"v_mul_f32 v11, s67, v{MM}")
    a(f"v_mov_b32 v{LL}, 0")
    a(f"v_mov_b32 v{L2}, 0")
    for k in range(0, 32, 2):
        if k % cfg.smstep == 0:
            issue1()
        for q in range(2):
            a(f"v_lshlrev_b32 v{w+2*q}, 16, v{SC+k+q}")
            a(f"v_and_b32 v{w+2*q+1}, s66, v{SC+k+q}")
        for q in range(4):
            a(f"v_fma_f32 v{w+q}, v{w+q}, s67, -v11")
        for q in range(4):
            a(f"v_exp_f32 v{w+q}, v{w+q}")
        a(f"v_add_f32 v{LL}, v{LL}, v{w}")
        a(f"v_add_f32 v{L2}, v{L2}, v{w+1}")
        a(f"v_cvt_pk_bf16_f32 v{SC+k}, v{w}, v{w+1}")
        a(f"v_add_f32 v{LL}, v{LL}, v{w+2}")
        a(f"v_add_f32 v{L2}, v{L2}, v{w+3}")
        a(f"v_cvt_pk_bf16_f32 v{SC+k+1}, v{w+2}, v{w+3}")
    a(f"v_add_f32 v{LL}, v{LL}, v{L2}")
    xlane("v_add_f32", LL, L2, [16, 32])
    a(f"v_min_u32 v{LL}, -2, v{LL}")
    a("s_lshl_b32 s9, s6, 6")
    a("v_lshlrev_b32 v12, 3, v0")
    a("v_add_u32 v12, s9, v12")
    a("s_mov_b64 exec, 0xff")
    a(f"ds_write_b64 v12, {vr(MM,2)} offset:{MLB}")
    a("s_mov_b64 exec, -1")
    stamp(4)
    issue1()
    a("s_lshr_b32 s4, s2, 2")
    a("s_and_b32 s5, s2, 3")
    a("s_mul_i32 s9, s6, 4224")
    a("v_mul_u32_u24 v10, 528, v4")
    a("v_lshl_add_u32 v10, v5, 7, v10")
    a("v_add_u32 v10, s9, v10")
    a("v_lshrrev_b32 v3, 1, v5")
    a("v_lshlrev_b32 v3, 5, v3")
    a("v_and_b32 v1, 1, v5")
    a("v_lshl_add_u32 v3, v1, 2, v3")
    a("v_lshl_add_u32 v3, v8, 1, v3")
    a("v_lshlrev_b32 v3, 11, v3")
    a("v_lshl_add_u32 v3, v9, 4, v3")
    a("v_lshlrev_b32 v1, 3, v8")
    a("v_lshl_add_u32 v1, v5, 4, v1")
    a("v_lshlrev_b32 v1, 11, v1")
    a("v_lshl_add_u32 v1, v9, 4, v1")
    a("s_lshl_b32 s10, s4, 17")
    a("s_lshl_b32 s11, s5, 9")
    a("s_add_u32 s10, s10, s11")
    a("s_lshl_b32 s11, s6, 7")
    a("s_add_u32 s10, s10, s11")
    a("s_mov_b32 s11, s10")
    a("v_bfe_u32 v12, v4, 2, 1")
    a("v_lshlrev_b32 v12, 7, v12")
    a("v_lshl_add_u32 v12, v5, 5, v12")
    a("v_and_b32 v11, 1, v4")
    a("v_lshl_add_u32 v12, v11, 4, v12")
    a("v_lshlrev_b32 v11, 18, v5")
    a("v_lshrrev_b32 v6, 2, v9")
    a("v_lshl_add_u32 v11, v6, 13, v11")
    a("v_and_b32 v6, 3, v9")
    a("v_lshl_add_u32 v11, v6, 5, v11")
    a("v_lshl_add_u32 v11, v8, 4, v11")
    a("s_lshl_b32 s9, s5, 16")
    a("s_lshl_b32 s12, s6, 14")
    a("s_add_u32 s9, s9, s12")
    a("s_lshl_b32 s12, s4, 7")
    a("s_add_u32 s9, s9, s12")
    a(f"s_add_u32 s9, s9, {XP_OFF}")
    for it in range(16, 32):
        advance(it)
        if it & 1:
            u = (it - 16) // 2
            s0 = slot_of(16 + 2 * u)
            s1 = slot_of(17 + 2 * u)
            src = lambda e, s0=s0, s1=s1: (s0 if e < 4 else s1) + 4 * (e & 3)

            def M(i, u=u):
                for h in range(2):
                    j = 2 * i + h
                    c = "0" if u == 0 else vr(AC + 4 * j, 4)
                    a(f"v_mfma_f32_16x16x32_bf16 {vr(AC+4*j,4)}, {vr(PTA+8*(i&1)+4*h,4)}, {vr(SC+4*u,4)}, {c}")
            perms(PTA, src, 0)
            perms(PTA + 8, src, 1)
            M(0)
            perms(PTA, src, 2)
            M(1)
            perms(PTA + 8, src, 3)
            M(2)
            M(3)
    stamp(5)
    a("s_mov_b32 exec_lo, 0x00ff00ff")
    a("s_mov_b32 exec_hi, 0x00ff00ff")
    for j in range(8):
        if j == 4:
            a("s_nop 0")
        a(f"ds_write_b128 v10, {vr(AC+4*j,4)} offset:{ORED+16*j}")
    a("s_mov_b64 exec, -1")
    set_flag(OF, 13)
    stamp(6)
    TP = slot_of(6)
    XACC = SC
    advance(32)
    advance(33)
    srcd = lambda e: slot_of(32 + (e >> 2)) + 4 * (e & 3)
    for i in range(4):
        perms(TP + 32 + 8 * i, srcd, i)
    a("s_cmp_ge_u32 s4, 56")
    a("s_cbranch_scc1 L_noffn")
    wait_flags([(HF, 1, 14)], PTA, 1)
    a(f"ds_read_b128 {vr(PTA,4)}, v12 offset:{HB}")
    a("s_waitcnt lgkmcnt(0)")
    for j in range(8):
        a(f"v_mfma_f32_16x16x32_bf16 {vr(XACC+4*j,4)}, {vr(PTA,4)}, {vr(TP+32+4*j,4)}, 0")
    a("s_branch L_wo")
    a.label("L_noffn")
    for k in range(8):
        a(f"v_mov_b32 v{XACC+4*k}, 0")
        a(f"v_mov_b32 v{XACC+4*k+1}, 0")
    a.label("L_wo")
    advance(34)
    advance(35)
    assert nl[0] == NL
    stamp(7)
    srco = lambda e: (lambda m: slot_of(34 + (m >> 2)) + 4 * (m & 3))(2 * (e & 3) + (e >> 2))
    for i in range(4):
        perms(TP + 8 * i, srco, i)
    stamp(8)
    a("s_barrier")
    stamp(9)
    a(f"ds_read_b128 {vr(PTA+4,4)}, v12 offset:{OB}")
    a("s_waitcnt lgkmcnt(0)")
    for j in range(8):
        a(f"v_mfma_f32_16x16x32_bf16 {vr(XACC+4*j,4)}, {vr(PTA+4,4)}, {vr(TP+4*j,4)}, {vr(XACC+4*j,4)}")
    a("s_nop 1")
    fold(PTA + 8, XACC)
    a("s_mov_b32 exec_hi, 0")
    a(f"buffer_store_dwordx4 {vr(PTA+8,4)}, v11, s[48:51], s9 offen sc1{TNT}")
    stamp(10)
    dump_stamps()
    a.label("L_END")
    a("s_endpgm")

    probs = check_hazards(a.lines)
    for p in probs:
        print(p, file=sys.stderr)
    if probs:
        raise SystemExit("hazards found")

    pad = ""
    if cfg.codepf:
        pad = f".fill ({(512 << cfg.codepf) + 256} - (. - {NAME}_kernel)) / 4, 4, 0xBF800000\n"
    out = HEADER
    out += "; Generated by work/gen5.py (hand-written generator). One persistent launch, 256 workgroups x 8 waves.\n"
    out += f"; @launch grid=(256,1,1) block=(512,1,1) lds={LDS_SIZE}\n"
    out += f""".amdgcn_target "amdgcn-amd-amdhsa--gfx950"
.text
.globl {NAME}_kernel
.p2align 8
.type {NAME}_kernel,@function
{NAME}_kernel:
"""
    out += a.text()
    out += pad
    out += f""".section .rodata,"a"
.p2align 6
.amdhsa_kernel {NAME}_kernel
  .amdhsa_next_free_vgpr 256
  .amdhsa_next_free_sgpr 102
  .amdhsa_accum_offset 256
  .amdhsa_group_segment_fixed_size 0
  .amdhsa_kernarg_size 96
  .amdhsa_user_sgpr_count 2
  .amdhsa_user_sgpr_kernarg_segment_ptr 1
  .amdhsa_system_sgpr_workgroup_id_x 1
  .amdhsa_float_denorm_mode_32 3
.end_amdhsa_kernel
"""
    return out


def parse_args(argv=None):
    p = argparse.ArgumentParser()
    p.add_argument("-o", default="cdna_kernels/" + NAME + ".s")
    p.add_argument("--ring", type=int, default=10)
    p.add_argument("--stamps", type=int, default=0)
    p.add_argument("--codepf", type=int, default=6)
    p.add_argument("--sleep", type=int, default=8)
    p.add_argument("--sleep_q", type=int, default=0)
    p.add_argument("--sleep_lds", type=int, default=2)
    p.add_argument("--sleep_of", type=int, default=1)
    p.add_argument("--sleep_tail", type=int, default=0)
    p.add_argument("--spin", type=int, default=400000)
    p.add_argument("--n", type=int, default=6)
    p.add_argument("--n0", type=int, default=0)
    p.add_argument("--ns", type=int, default=12)
    p.add_argument("--gate", type=int, default=26)
    p.add_argument("--crot", type=int, default=1)
    p.add_argument("--pf", type=int, default=12)
    p.add_argument("--wf", type=int, default=144)
    p.add_argument("--catch0", type=int, default=4)
    p.add_argument("--catch", type=int, default=1)
    p.add_argument("--smstep", type=int, default=6)
    p.add_argument("--abl", type=int, default=0)
    p.add_argument("--hnt", type=int, default=0)
    return p.parse_args(argv)


if __name__ == "__main__":
    cfg = parse_args()
    open(cfg.o, "w").write(gen(cfg))
    print("wrote", cfg.o)
```

```python
import sys
import argparse
import struct
import math
from asmlib import Asm, vr, sr, check_hazards

NAME = "parallel_sum__gqa_block_cached__geglu_ffn__decode"

QP_OFF = 0x000000
GP_OFF = 0x020000
ML_OFF = 0x060000
EP_OFF = 0x070000
OP_OFF = 0x080000
XP_OFF = 0x180000
ST_OFF = 0x200000
WS_SIZE = 0x400000
XN = 0x0000
QB = 0x0400
MLB = 0x0C80
FL = 0x0D80
OF = FL + 0
FF = FL + 16
GF = FL + 24
QF = FL + 32
XF = FL + 36
PF = FL + 40
HF = FL + 44
LF = FL + 20
WF = FL + 48
FB = 0x0E00
OB = 0x0E80
HB = 0x0F80
ORED = 0x1080
LDS_SIZE = ORED + 4 * 4224

LOG2E = 0x3FB8AA3B
SCALE = 0x3DB504F3
EPS = 0x3727C5AC

HEADER = open("cdna_kernels/" + NAME + ".s.ref").read().split("; Override launch")[0]


def f32bits(x):
    return struct.unpack("<I", struct.pack("<f", x))[0]


def gen(cfg):
    a = Asm()
    R = cfg.ring
    NT = " nt"
    MNT = " nt" if cfg.hnt & 1 else ""
    ONT = " nt" if cfg.hnt & 2 else ""
    XNT = " nt" if cfg.hnt & 4 else ""
    SNT = " nt" if cfg.hnt & 8 else ""
    TNT = " nt" if cfg.hnt & 16 else ""
    uid = [0]

    def stamp(k):
        if cfg.stamps:
            a(f"s_memrealtime s[{70+2*k}:{71+2*k}]")

    def srd(d, p, size):
        a(f"s_mov_b32 s{d}, s{p}")
        a(f"s_mov_b32 s{d+1}, s{p+1}")
        a(f"s_mov_b32 s{d+2}, {size:#x}")
        a(f"s_mov_b32 s{d+3}, 0x20000")

    def dump_stamps():
        if not cfg.stamps:
            return
        a("s_waitcnt lgkmcnt(0)")
        for _ in range(3):
            a("s_sleep 127")
        a("s_mov_b64 exec, 1")
        a("s_lshl_b32 s4, s2, 10")
        a("s_lshl_b32 s5, s3, 7")
        a("s_add_u32 s4, s4, s5")
        a(f"s_add_u32 s4, s4, {ST_OFF}")
        a("v_mov_b32 v3, 0")
        for k in range(14):
            a(f"v_mov_b32 v1, s{70+2*k}")
            a(f"buffer_store_dword v1, v3, s[48:51], s4 offen offset:{4*k}")

    def poll(loads, check, sleep, cnt="vmcnt", rec=None):
        uid[0] += 1
        n = uid[0]
        a(f"s_mov_b32 s15, {cfg.spin}")
        a.label(f"L_poll{n}")
        loads()
        a(f"s_waitcnt {cnt}(0)")
        check()
        a(f"s_cbranch_scc1 L_pdone{n}")
        a("s_sub_u32 s15, s15, 1")
        a(f"s_cbranch_scc1 L_pdone{n}")
        if sleep:
            a(f"s_sleep {sleep}")
        a(f"s_branch L_poll{n}")
        a.label(f"L_pdone{n}")
        if rec is not None and cfg.stamps:
            a(f"s_sub_u32 s{70+2*rec}, {cfg.spin+1}, s15")

    def wait_flags(reads, t, sleep):
        regs = []

        def ld():
            r = t
            regs.clear()
            for off, n, av in reads:
                op = {1: "ds_read_b32", 2: "ds_read_b64", 4: "ds_read_b128"}[n]
                a(f"{op} {vr(r,n)}, v{av} offset:{off}")
                regs.extend(range(r, r + n))
                r += (n + 1) & ~1

        def ck():
            rs = list(regs)
            while len(rs) >= 3:
                a(f"v_or3_b32 v{rs[0]}, v{rs[0]}, v{rs[1]}, v{rs[2]}")
                rs = [rs[0]] + rs[3:]
            if len(rs) == 2:
                a(f"v_or_b32 v{rs[0]}, v{rs[0]}, v{rs[1]}")
            a(f"v_cmp_eq_u32 vcc, 0, v{rs[0]}")
            a("s_cmp_eq_u64 vcc, -1")
        poll(ld, ck, sleep, cnt="lgkmcnt")

    def set_flag(off, av=14):
        a(f"ds_write_b32 v{av}, v14 offset:{off}")

    def check_tag(regs, t0, t1):
        regs = list(regs)
        a(f"v_xor_b32 v{t0}, s14, v{regs[0]}")
        a(f"v_xor_b32 v{t1}, s14, v{regs[1]}")
        for k, r in enumerate(regs[2:]):
            t = t0 if k % 2 == 0 else t1
            a(f"v_bitop3_b32 v{t}, v{r}, s14, v{t} bitop3:0xbe")
        a(f"v_or_b32 v{t0}, v{t0}, v{t1}")
        a(f"v_and_b32 v{t0}, s69, v{t0}")
        a(f"v_cmp_eq_u32 vcc, 0, v{t0}")
        a("s_cmp_eq_u64 vcc, -1")

    def check_sentinel(regs, tmp):
        regs = list(regs)
        a(f"v_max3_u32 v{tmp}, v{regs[0]}, v{regs[1]}, v{regs[2]}")
        regs = regs[3:]
        while len(regs) >= 2:
            a(f"v_max3_u32 v{tmp}, v{tmp}, v{regs[0]}, v{regs[1]}")
            regs = regs[2:]
        if regs:
            a(f"v_max_u32 v{tmp}, v{tmp}, v{regs[0]}")
        a(f"v_cmp_ne_u32 vcc, -1, v{tmp}")
        a("s_cmp_eq_u64 vcc, -1")

    def put_tag(r):
        a(f"v_bfi_b32 v{r}, s69, v15, v{r}")

    def load_tag():
        a(f"s_load_dword s14, s[38:39], {EP_OFF:#x}")

    def make_tag():
        a("s_add_u32 s14, s14, 1")
        a("s_and_b32 s14, s14, 0xff")
        a("v_mov_b32 v15, s14")

    def xlane(op, x, t, steps):
        for s in steps:
            if s in (1, 2, 4, 8):
                a("s_nop 1")
                a(f"{op}_dpp v{x}, v{x}, v{x} row_ror:{s} row_mask:0xf bank_mask:0xf")
            else:
                a(f"v_mov_b32 v{t}, v{x}")
                a("s_nop 1")
                a(f"v_permlane{s}_swap_b32 v{x}, v{t}")
                a(f"{op} v{x}, v{x}, v{t}")

    def round_bf16(d, s):
        a(f"v_cvt_pk_bf16_f32 v{d}, v{s}, v{s}")
        a(f"v_lshlrev_b32 v{d}, 16, v{d}")

    def perms(dst, src_e, i):
        for p in range(4):
            a(f"v_perm_b32 v{dst+p}, v{src_e(2*p+1)+i}, v{src_e(2*p)+i}, s64")
        for p in range(4):
            a(f"v_perm_b32 v{dst+4+p}, v{src_e(2*p+1)+i}, v{src_e(2*p)+i}, s65")

    def fold(dst, acc):
        for k in range(4):
            a(f"v_add_f32_dpp v{dst+k}, v{acc+4*k+1}, v{acc+4*k} row_ror:8 row_mask:0xf bank_mask:0x3")
        for k in range(4):
            if k >= 2:
                a("s_nop 0")
            a(f"v_add_f32_dpp v{dst+k}, v{acc+4*(k+4)}, v{acc+4*(k+4)+1} row_ror:8 row_mask:0xf bank_mask:0xc")
        for k in range(4):
            put_tag(dst + k)

    def consts():
        a("s_mov_b32 s64, 0x05040100")
        a("s_mov_b32 s65, 0x07060302")
        a("s_mov_b32 s66, 0xffff0000")
        a(f"s_mov_b32 s67, {LOG2E:#x}")
        a(f"s_mov_b32 s68, {SCALE:#x}")
        a("s_movk_i32 s69, 0xff")

    a("s_cmp_ge_u32 s2, 256")
    a("s_cbranch_scc1 L_END")
    a("s_load_dwordx16 s[16:31], s[0:1], 0")
    a("s_load_dwordx8 s[32:39], s[0:1], 64")
    stamp(0)
    if cfg.padto:
        a("s_memrealtime s[94:95]")
    if cfg.codepf:
        a("s_getpc_b64 s[4:5]")
        a(f"v_lshlrev_b32 v1, {cfg.codepf}, v0")
        a("global_load_dword v2, v1, s[4:5]")
    a("v_lshrrev_b32 v3, 6, v0")
    if cfg.xm:
        a("s_and_b32 s98, s2, 7")
        a("s_lshl_b32 s98, s98, 2")
        a("s_bfe_u32 s100, s2, 0x20003")
        a("s_or_b32 s98, s98, s100")
        a("s_and_b32 s100, s2, 0xe0")
        a("s_or_b32 s98, s98, s100")
    else:
        a("s_mov_b32 s98, s2")
    if cfg.gm:
        a("s_and_b32 s99, s2, 7")
        a("s_lshl_b32 s99, s99, 5")
        a("s_lshr_b32 s100, s2, 3")
        a("s_or_b32 s99, s99, s100")
    else:
        a("s_mov_b32 s99, s2")
    a("v_and_b32 v0, 63, v0")
    a("v_readfirstlane_b32 s3, v3")
    a("v_and_b32 v4, 15, v0")
    a("v_lshrrev_b32 v5, 4, v0")
    a("v_mov_b32 v14, 0")
    a("v_lshrrev_b32 v8, 3, v4")
    a("v_and_b32 v9, 7, v4")
    a("s_cmp_ge_u32 s3, 4")
    a("s_cbranch_scc1 L_ATT")
    a("s_lshr_b32 s6, s2, 2")
    a("s_and_b32 s7, s2, 3")
    a("v_lshlrev_b32 v10, 3, v8")
    a("v_lshl_add_u32 v10, v5, 4, v10")
    a("s_cmp_lg_u32 s3, 0")
    a("s_cbranch_scc1 L_S123")

    XA = 16
    XO = 32
    XU = 36
    WR = 72
    ACC = 200
    PT = 232

    def wloads(stride, throttle, gate):
        for T in range(4):
            for e in range(8):
                k = 8 * T + e
                if throttle and k >= throttle:
                    a(f"s_waitcnt vmcnt({throttle-1})")
                a(f"buffer_load_dwordx4 {vr(WR+32*T+4*e,4)}, v10, s[40:43], s10 offen{NT}")
                if k < 31:
                    a(f"s_add_u32 s10, s10, {stride * (57 if e == 7 else 1)}")
                if gate and k == gate - 1:
                    set_flag(GF - 4, 13)

    if cfg.qmap:
        a("s_mul_i32 s4, s6, 37")
        a("s_lshr_b32 s4, s4, 8")
        a("s_mul_i32 s5, s4, 7")
        a("s_sub_u32 s5, s6, s5")
        a("s_cmp_ge_u32 s5, 3")
        a("s_addc_u32 s5, s5, 0")
        a("s_lshl_b32 s4, s4, 3")
        a("s_add_u32 s5, s5, s4")
        a("s_lshl_b32 s4, s6, 3")
        a(f"s_sub_u32 s4, s4, {56*8-3}")
        a("s_cmp_ge_u32 s6, 56")
        a("s_cselect_b32 s6, s4, s5")
    a("s_mov_b32 s9, 14")
    a("v_lshlrev_b32 v6, 6, v0")
    a("v_lshrrev_b32 v7, 5, v0")
    a("v_lshlrev_b32 v7, 11, v7")
    a("v_and_b32 v11, 31, v0")
    a("v_lshl_add_u32 v7, v11, 4, v7")
    a("s_lshl_b32 s12, s7, 9")
    a("v_lshlrev_b32 v10, 13, v10")
    a("v_lshl_add_u32 v10, v9, 4, v10")
    a("s_lshl_b32 s10, s7, 21")
    a("s_lshl_b32 s11, s6, 7")
    a("s_add_u32 s10, s10, s11")
    a("s_waitcnt lgkmcnt(0)")
    srd(56, 16, 4096)
    srd(40, 22, 0x800000)
    load_tag()
    for i in range(4):
        a(f"buffer_load_dwordx4 {vr(XA+4*i,4)}, v6, s[56:59], 0 offen offset:{16*i}")
    a(f"buffer_load_dwordx4 {vr(XO,4)}, v7, s[56:59], s12 offen")
    wloads(8192, 0, 0)
    stamp(1)
    a("s_barrier")
    srd(48, 38, WS_SIZE)
    consts()
    a("s_lshl_b32 s10, s7, 15")
    a("s_lshl_b32 s11, s6, 8")
    a("s_add_u32 s10, s10, s11")
    if QP_OFF:
        a(f"s_add_u32 s10, s10, {QP_OFF}")
    a("s_waitcnt vmcnt(32)")
    stamp(2)
    for i in range(16):
        a(f"v_lshlrev_b32 v{XU+2*i}, 16, v{XA+i}")
        a(f"v_and_b32 v{XU+2*i+1}, s66, v{XA+i}")
    for k in range(4):
        a(f"v_add_f32 v{XA+k}, v{XU+k}, v{XU+4+k}")
    for i in range(8, 32):
        a(f"v_add_f32 v{XA+(i&3)}, v{XA+(i&3)}, v{XU+i}")
    a(f"v_add_f32 v11, v{XA}, v{XA+1}")
    a(f"v_add_f32 v13, v{XA+2}, v{XA+3}")
    a("v_add_f32 v11, v11, v13")
    xlane("v_add_f32", 11, 12, [8, 4, 2, 1, 16])
    a("v_mul_f32 v11, 0x3a800000, v11")
    for i in range(32):
        a(f"v_sub_f32 v{XU+i}, v{XU+i}, v11")
    for k in range(4):
        a(f"v_mul_f32 v{XA+k}, v{XU+k}, v{XU+k}")
    for i in range(4, 32):
        a(f"v_fmac_f32 v{XA+(i&3)}, v{XU+i}, v{XU+i}")
    a(f"v_add_f32 v12, v{XA}, v{XA+1}")
    a(f"v_add_f32 v13, v{XA+2}, v{XA+3}")
    a("v_add_f32 v12, v12, v13")
    xlane("v_add_f32", 12, 13, [8, 4, 2, 1, 16])
    a("v_mul_f32 v12, 0x3a800000, v12")
    round_bf16(11, 11)
    round_bf16(12, 12)
    a(f"v_add_f32 v12, {EPS:#x}, v12")
    round_bf16(12, 12)
    a("v_sqrt_f32 v12, v12")
    a("s_nop 0")
    round_bf16(12, 12)
    a("v_rcp_f32 v13, v12")
    for i in range(4):
        a(f"v_lshlrev_b32 v{XU+2*i}, 16, v{XO+i}")
        a(f"v_and_b32 v{XU+2*i+1}, s66, v{XO+i}")
    for i in range(8):
        a(f"v_sub_f32 v{XU+i}, v{XU+i}, v11")
    for i in range(4):
        a(f"v_cvt_pk_bf16_f32 v{XO+i}, v{XU+2*i}, v{XU+2*i+1}")
    for i in range(4):
        a(f"v_lshlrev_b32 v{XU+2*i}, 16, v{XO+i}")
        a(f"v_and_b32 v{XU+2*i+1}, s66, v{XO+i}")
    for i in range(8):
        a(f"v_mul_f32 v{XU+8+i}, v{XU+i}, v13")
    for i in range(8):
        a(f"v_fma_f32 v{XU+i}, -v{XU+8+i}, v12, v{XU+i}")
    for i in range(8):
        a(f"v_fmac_f32 v{XU+8+i}, v{XU+i}, v13")
    for i in range(4):
        a(f"v_cvt_pk_bf16_f32 v{XO+i}, v{XU+8+2*i}, v{XU+8+2*i+1}")
    a("v_lshlrev_b32 v11, 4, v0")
    a(f"ds_write_b128 v11, {vr(XO,4)} offset:{XN}")
    set_flag(XF)
    a("s_waitcnt lgkmcnt(0)")
    make_tag()

    a.label("L_S_gemv")
    a("v_bfe_u32 v11, v4, 2, 1")
    a("v_lshlrev_b32 v11, 9, v11")
    a("v_lshl_add_u32 v11, v5, 5, v11")
    a("v_and_b32 v12, 1, v4")
    a("v_lshl_add_u32 v11, v12, 4, v11")
    for T in range(4):
        a(f"ds_read_b128 {vr(XU+4*T,4)}, v11 offset:{XN+128*T}")
    stamp(3)
    a("v_lshlrev_b32 v12, s9, v5")
    a("v_lshl_add_u32 v12, v9, 5, v12")
    a("v_lshl_add_u32 v12, v8, 4, v12")
    a("s_waitcnt lgkmcnt(0)")
    for T in range(4):
        a(f"s_waitcnt vmcnt({24-8*T})")
        src = lambda e, T=T: WR + 32 * T + 4 * e

        def M(i, T=T):
            for h in range(2):
                j = 2 * i + h
                c = "0" if T == 0 else vr(ACC + 4 * j, 4)
                a(f"v_mfma_f32_16x16x32_bf16 {vr(ACC+4*j,4)}, {vr(XU+4*T,4)}, {vr(PT+8*(i&1)+4*h,4)}, {c}")
        perms(PT, src, 0)
        perms(PT + 8, src, 1)
        M(0)
        perms(PT, src, 2)
        M(1)
        perms(PT + 8, src, 3)
        M(2)
        M(3)
    stamp(4)
    a("s_nop 3")
    fold(PT, ACC)
    a("s_mov_b32 exec_hi, 0")
    if not (cfg.abl & 8):
        a(f"buffer_store_dwordx4 {vr(PT,4)}, v12, s[48:51], s10 offen sc1{SNT}")
    a("s_mov_b64 exec, -1")
    a("s_cmp_eq_u32 s3, 1")
    a("s_cbranch_scc1 L_S1_h")
    a("s_cmp_eq_u32 s3, 2")
    a("s_cbranch_scc1 L_S_tail")
    if cfg.padto and cfg.padglobal:
        srd(52, 36, 256)
        a("s_mov_b64 exec, 1")
        a("v_mov_b32 v20, s94")
        a("buffer_atomic_umax v20, v14, s[52:55], 0 offen offset:4")
        a("v_not_b32 v21, v20")
        a("buffer_atomic_umax v21, v14, s[52:55], 0 offen")
        a("s_mov_b64 exec, -1")
    a("v_lshlrev_b32 v6, 4, v0")
    a("s_lshr_b32 s10, s99, 5")
    a("s_lshl_b32 s10, s10, 12")
    if QP_OFF:
        a(f"s_add_u32 s10, s10, {QP_OFF}")
    a("s_add_u32 s11, s10, 32768")
    a("s_add_u32 s12, s10, 65536")
    a("s_add_u32 s13, s10, 98304")
    a("v_lshrrev_b32 v7, 5, v0")
    a("v_mul_u32_u24 v7, 272, v7")
    a("v_and_b32 v11, 31, v0")
    a("v_lshl_add_u32 v7, v11, 3, v7")
    if cfg.pf:
        wait_flags([(PF, 1, 14)], 16, cfg.sleep_lds)
    stamp(6)

    def ldq():
        for kq in range(4):
            for i in range(4):
                if (cfg.abl & 16) and i: continue
                a(f"buffer_load_dwordx4 {vr(32+16*kq+4*i,4)}, v6, s[48:51], s{10+kq} offen offset:{1024*i} sc1{MNT}")
    if not (cfg.abl & 1):
        poll(ldq, lambda: check_tag([r for r in range(32, 96) if not (cfg.abl & 16) or (r - 32) % 16 < 4], 11, 12), cfg.sleep_q, rec=12)
    stamp(5)
    for k in range(16):
        a(f"v_add_f32 v{32+k}, v{32+k}, v{48+k}")
        a(f"v_add_f32 v{64+k}, v{64+k}, v{80+k}")
    for k in range(16):
        a(f"v_add_f32 v{32+k}, v{32+k}, v{64+k}")
    for i in range(4):
        a(f"v_cvt_pk_bf16_f32 v{48+2*i}, v{32+4*i}, v{33+4*i}")
        a(f"v_cvt_pk_bf16_f32 v{49+2*i}, v{34+4*i}, v{35+4*i}")
        a(f"ds_write_b64 v7, {vr(48+2*i,2)} offset:{QB+544*i}")
    set_flag(QF)
    a("s_branch L_S_tail")

    a.label("L_S123")
    consts()
    a("s_mov_b32 s9, 8")
    a(f"s_mul_i32 s5, s3, {cfg.crot}")
    a("s_add_u32 s5, s5, s6")
    a("s_sub_u32 s4, s5, 56")
    a("s_cmp_ge_u32 s5, 56")
    a("s_cselect_b32 s5, s4, s5")
    a("v_mul_u32_u24 v10, 7168, v10")
    a("v_lshl_add_u32 v10, v9, 4, v10")
    a(f"s_mul_i32 s10, s7, {256*7168}")
    a("s_lshl_b32 s11, s5, 7")
    a("s_add_u32 s10, s10, s11")
    a("v_mov_b32 v11, -1")
    a("v_lshlrev_b32 v12, 2, v0")
    a(f"ds_write_b32 v12, v11 offset:{MLB}")
    a(f"ds_write_b32 v12, v11 offset:{MLB+128}")
    a("s_lshl_b32 s4, s3, 2")
    a("v_mov_b32 v13, s4")
    a("s_waitcnt lgkmcnt(0)")
    load_tag()
    srd(48, 38, WS_SIZE)
    a("s_cmp_eq_u32 s3, 2")
    a("s_cselect_b64 s[40:41], s[30:31], s[28:29]")
    a("s_mov_b32 s42, 0x700000")
    a("s_mov_b32 s43, 0x20000")
    a("s_waitcnt lgkmcnt(0)")
    a("s_barrier")
    make_tag()
    a("s_cmp_eq_u32 s3, 3")
    a("s_cbranch_scc1 L_S3")
    a("s_cmp_lt_u32 s6, 56")
    a("s_cbranch_scc1 L_S12")
    set_flag(GF - 4, 13)
    a("s_branch L_S_tail")
    a.label("L_S12")
    wloads(7168, cfg.ns, cfg.gate)
    stamp(1)
    a("s_lshl_b32 s10, s5, 12")
    a("s_lshl_b32 s12, s7, 10")
    a("s_add_u32 s10, s10, s12")
    a("s_lshl_b32 s12, s3, 9")
    a("s_add_u32 s10, s10, s12")
    a(f"s_add_u32 s10, s10, {GP_OFF-512}")
    wait_flags([(XF, 1, 14)], 16, cfg.sleep_lds)
    a("s_branch L_S_gemv")

    a.label("L_S1_h")
    a("v_lshlrev_b32 v12, 3, v0")
    a("s_lshr_b32 s10, s98, 2")
    a("s_lshl_b32 s10, s10, 12")
    a(f"s_add_u32 s10, s10, {GP_OFF}")
    wait_flags([({0: QF, 1: FF, 2: LF}[cfg.gpw], 1, 14)], 16, cfg.sleep_lds)

    def ldg():
        for kq in range(4):
            for m in range(2):
                a(f"buffer_load_dwordx2 {vr(16+4*kq+2*m,2)}, v12, s[48:51], s10 offen offset:{kq*1024+m*512} sc1{MNT}")
    if not (cfg.abl & 2):
        poll(ldg, lambda: check_tag(range(16, 32), 11, 13), cfg.sleep, rec=12)
    stamp(5)
    for k in range(4):
        a(f"v_add_f32 v{16+k}, v{16+k}, v{20+k}")
        a(f"v_add_f32 v{24+k}, v{24+k}, v{28+k}")
    for k in range(4):
        a(f"v_add_f32 v{16+k}, v{16+k}, v{24+k}")
    a("v_cvt_pk_bf16_f32 v20, v16, v17")
    a("v_cvt_pk_bf16_f32 v21, v18, v19")
    a("v_lshlrev_b32 v16, 16, v20")
    a("v_and_b32 v17, s66, v20")
    a("v_lshlrev_b32 v18, 16, v21")
    a("v_and_b32 v19, s66, v21")
    a(f"s_mov_b32 s10, {f32bits(0.044715):#x}")
    a(f"s_mov_b32 s11, {f32bits(-2.0 * math.sqrt(2.0 / math.pi) * math.log2(math.e)):#x}")
    for k in range(2):
        a(f"v_mul_f32 v{20+k}, v{16+k}, v{16+k}")
    for k in range(2):
        a(f"v_mul_f32 v{20+k}, v{20+k}, v{16+k}")
    for k in range(2):
        a(f"v_fma_f32 v{20+k}, v{20+k}, s10, v{16+k}")
    for k in range(2):
        a(f"v_mul_f32 v{20+k}, s11, v{20+k}")
    for k in range(2):
        a(f"v_exp_f32 v{20+k}, v{20+k}")
    a("s_nop 0")
    for k in range(2):
        a(f"v_add_f32 v{20+k}, 1.0, v{20+k}")
    for k in range(2):
        a(f"v_rcp_f32 v{20+k}, v{20+k}")
    a("s_nop 0")
    for k in range(2):
        a(f"v_mul_f32 v{20+k}, v{20+k}, v{16+k}")
    a("v_cvt_pk_bf16_f32 v22, v20, v21")
    a("v_lshlrev_b32 v20, 16, v22")
    a("v_and_b32 v21, s66, v22")
    a("v_mul_f32 v20, v20, v18")
    a("v_mul_f32 v21, v21, v19")
    a("v_cvt_pk_bf16_f32 v22, v20, v21")
    a("v_lshlrev_b32 v12, 2, v0")
    a(f"ds_write_b32 v12, v22 offset:{HB}")
    set_flag(HF)
    a("s_branch L_S_tail")

    a.label("L_S3")
    a("v_and_b32 v6, 7, v0")
    a("v_lshlrev_b32 v6, 3, v6")
    a("v_and_b32 v7, 31, v0")
    a("v_lshlrev_b32 v7, 3, v7")
    a("s_lshl_b32 s13, s99, 6")
    a(f"s_add_u32 s13, s13, {ML_OFF}")

    def ldm():
        for w in range(4):
            a(f"ds_read_b64 {vr(16+2*w,2)}, v6 offset:{MLB+64*w}")
    poll(ldm, lambda: check_sentinel(range(16, 24), 11), cfg.sleep_lds, cnt="lgkmcnt")
    stamp(5)
    a(f"ds_read_b32 v30, v7 offset:{MLB}")

    def combine4(mo):
        a(f"v_max3_f32 v{mo}, v16, v18, v20")
        a(f"v_max_f32 v{mo}, v{mo}, v22")

    def wsum4(mo, lo):
        for w in range(4):
            a(f"v_sub_f32 v{16+2*w}, v{16+2*w}, v{mo}")
        for w in range(4):
            a(f"v_mul_f32 v{16+2*w}, s67, v{16+2*w}")
        for w in range(4):
            a(f"v_exp_f32 v{16+2*w}, v{16+2*w}")
        a("s_nop 0")
        a(f"v_mul_f32 v{lo}, v16, v17")
        for w in range(1, 4):
            a(f"v_fmac_f32 v{lo}, v{16+2*w}, v{17+2*w}")
    combine4(24)
    wsum4(24, 25)
    put_tag(24)
    put_tag(25)
    a("s_mov_b64 exec, 0xff")
    if not (cfg.abl & 8):
        a(f"buffer_store_dwordx2 v[24:25], v6, s[48:51], s13 offen sc1{SNT}")
    a("s_mov_b64 exec, -1")
    a("s_lshr_b32 s10, s99, 5")
    a("s_lshl_b32 s10, s10, 11")
    a(f"s_add_u32 s10, s10, {ML_OFF}")
    a("v_lshlrev_b32 v7, 3, v0")

    if cfg.lf:
        wait_flags([(LF, 1, 14)], 16, cfg.sleep_lds)

    def ld2():
        for i in range(4):
            a(f"buffer_load_dwordx2 {vr(16+2*i,2)}, v7, s[48:51], s10 offen offset:{512*i} sc1{MNT}")
    if not (cfg.abl & 4):
        poll(ld2, lambda: check_tag(range(16, 24), 11, 12), cfg.sleep, rec=12)
    stamp(6)
    for w in range(4):
        a(f"v_and_b32 v{16+2*w}, s66, v{16+2*w}")
    combine4(26)
    xlane("v_max_f32", 26, 11, [8, 16, 32])
    wsum4(26, 27)
    xlane("v_add_f32", 27, 11, [8, 16, 32])
    a("s_waitcnt lgkmcnt(0)")
    a("v_sub_f32 v30, v30, v26")
    a("v_mul_f32 v30, s67, v30")
    a("v_exp_f32 v30, v30")
    a("v_rcp_f32 v27, v27")
    a("v_bfe_u32 v7, v0, 3, 2")
    a("v_lshlrev_b32 v7, 2, v7")
    a("v_lshl_add_u32 v7, v6, 1, v7")
    a("v_mul_f32 v30, v30, v27")
    a(f"ds_write_b32 v7, v30 offset:{FB}")
    set_flag(FF)

    a.label("L_S_tail")
    a("v_lshrrev_b32 v12, 5, v0")
    a("s_lshl_b32 s9, s3, 1")
    a("v_add_u32 v12, s9, v12")
    a("v_lshlrev_b32 v13, 4, v12")
    a("v_mul_u32_u24 v12, 528, v12")
    a("v_and_b32 v11, 31, v0")
    a("v_lshl_add_u32 v12, v11, 4, v12")
    a("v_and_b32 v11, 7, v0")
    a("v_lshlrev_b32 v6, 3, v11")
    a("v_lshl_add_u32 v6, v5, 1, v6")
    a("s_lshl_b32 s9, s3, 6")
    a("v_add_u32 v6, s9, v6")
    a("v_lshlrev_b32 v11, 4, v11")
    a("v_lshrrev_b32 v10, 3, v0")
    a("v_lshl_add_u32 v11, v10, 12, v11")
    a("v_mul_u32_u24 v10, 5, v10")
    a("v_add_u32 v10, s99, v10")
    a("v_and_b32 v10, 31, v10")
    a("v_lshl_add_u32 v11, v10, 7, v11")
    a("v_lshlrev_b32 v7, 4, v0")
    a("s_lshr_b32 s9, s99, 5")
    a("s_lshl_b32 s9, s9, 17")
    a("s_lshl_b32 s4, s3, 15")
    a("s_add_u32 s9, s9, s4")
    a(f"s_add_u32 s9, s9, {OP_OFF}")
    a("s_lshr_b32 s10, s3, 1")
    a("s_lshl_b32 s10, s10, 2")
    a("s_lshr_b32 s11, s98, 6")
    a("s_add_u32 s10, s10, s11")
    a("s_lshl_b32 s10, s10, 17")
    a("s_bfe_u32 s11, s98, 0x40002")
    a("s_lshl_b32 s11, s11, 13")
    a("s_add_u32 s10, s10, s11")
    a("s_and_b32 s11, s3, 1")
    a("s_lshl_b32 s11, s11, 12")
    a("s_add_u32 s10, s10, s11")
    a(f"s_add_u32 s10, s10, {OP_OFF}")
    srd(56, 16, 4096)
    srd(60, 34, 4096)
    a("v_lshlrev_b32 v10, 2, v5")
    a("s_lshl_b32 s12, s98, 4")
    a("buffer_load_dword v36, v10, s[56:59], s12 offen")
    a("v_lshlrev_b32 v9, 7, v0")
    a("s_lshr_b32 s13, s98, 2")
    a("s_lshl_b32 s13, s13, 13")
    a("s_and_b32 s11, s98, 3")
    a("s_lshl_b32 s11, s11, 5")
    a("s_add_u32 s13, s13, s11")
    a(f"s_add_u32 s13, s13, {XP_OFF}")
    wait_flags([(FF, 1, 14)], 16, cfg.sleep_lds)
    a(f"ds_read_b128 v[16:19], v13 offset:{FB}")
    wait_flags([(OF, 4, 14)], 60, cfg.sleep_of)
    stamp(7)
    for w_ in range(4):
        a(f"ds_read_b128 {vr(20+4*w_,4)}, v12 offset:{ORED+4224*w_}")
    for w_ in range(4):
        a(f"s_waitcnt lgkmcnt({3-w_})") if not cfg.stamps else (a("s_waitcnt lgkmcnt(0)") if w_ == 0 else None)
        for k in range(4):
            if w_ == 0:
                a(f"v_mul_f32 v{20+k}, v16, v{20+k}")
            else:
                a(f"v_fmac_f32 v{20+k}, v{16+w_}, v{20+4*w_+k}")
    for k in range(4):
        put_tag(20 + k)
    a(f"buffer_store_dwordx4 v[20:23], v11, s[48:51], s9 offen sc1{TNT}")
    stamp(8)
    if cfg.wf:
        wait_flags([(WF, 4, 14)], 60, cfg.sleep_of)

    def ld3():
        for i in range(4):
            a(f"buffer_load_dwordx4 {vr(40+4*i,4)}, v7, s[48:51], s10 offen offset:{1024*i} sc1{ONT}")
    poll(ld3, lambda: check_tag(range(40, 56), 12, 13), cfg.sleep_tail, rec=13)
    stamp(9)
    for k in range(4):
        a(f"v_add_f32 v{40+k}, v{40+k}, v{44+k}")
        a(f"v_add_f32 v{48+k}, v{48+k}, v{52+k}")
    for k in range(4):
        a(f"v_add_f32 v{40+k}, v{40+k}, v{48+k}")
    a("s_nop 0")
    a("v_permlane32_swap_b32 v40, v42")
    a("v_permlane32_swap_b32 v41, v43")
    a("v_add_f32 v40, v40, v42")
    a("v_add_f32 v41, v41, v43")
    a("s_nop 1")
    a("v_permlane16_swap_b32 v40, v41")
    a("v_add_f32 v40, v40, v41")
    a("s_nop 1")
    a("v_add_f32_dpp v40, v40, v40 row_ror:8 row_mask:0xf bank_mask:0xf")
    a("v_cvt_pk_bf16_f32 v40, v40, v40")
    a(f"ds_write_b16 v6, v40 offset:{OB}")
    a("s_waitcnt lgkmcnt(0)")
    a("s_barrier")
    a("s_cmp_lg_u32 s3, 0")
    a("s_cbranch_scc1 L_S_END")

    def ld4():
        a(f"buffer_load_dwordx4 v[40:43], v9, s[48:51], s13 offen sc1{XNT}")
        a(f"buffer_load_dwordx4 v[44:47], v9, s[48:51], s13 offen offset:16 sc1{XNT}")
    poll(ld4, lambda: check_tag(range(40, 48), 12, 13), cfg.sleep_tail)
    stamp(10)
    for k in range(4):
        a(f"v_permlane32_swap_b32 v{40+k}, v{44+k}")
    for k in range(4):
        a(f"v_add_f32 v{40+k}, v{40+k}, v{44+k}")
    a("s_nop 0")
    a("v_permlane16_swap_b32 v40, v42")
    a("v_permlane16_swap_b32 v41, v43")
    a("v_add_f32 v40, v40, v42")
    a("v_add_f32 v41, v41, v43")
    for s in (8, 4, 2, 1):
        a("s_nop 0")
        a(f"v_add_f32_dpp v40, v40, v40 row_ror:{s} row_mask:0xf bank_mask:0xf")
        a(f"v_add_f32_dpp v41, v41, v41 row_ror:{s} row_mask:0xf bank_mask:0xf")
    a("v_lshlrev_b32 v42, 16, v36")
    a("v_and_b32 v43, s66, v36")
    a("v_add_f32 v40, v40, v42")
    a("v_add_f32 v41, v41, v43")
    a("v_cvt_pk_bf16_f32 v40, v40, v41")
    a("s_mov_b32 exec_lo, 0x00010001")
    a("s_mov_b32 exec_hi, 0x00010001")
    a("buffer_store_dword v40, v10, s[60:63], s12 offen")
    stamp(11)
    if cfg.padto:
        a("s_mov_b64 exec, -1")
        if cfg.padglobal:
            srd(52, 36, 256)
            a(f"buffer_load_dword v20, v14, s[52:55], 0 offen offset:{4*(cfg.padglobal-1)} sc1")
            a("s_waitcnt vmcnt(0)")
            a("v_readfirstlane_b32 s94, v20")
            if cfg.padglobal == 1:
                a("s_not_b32 s94, s94")
        a.label("L_pad")
        a("s_memrealtime s[96:97]")
        a("s_waitcnt lgkmcnt(0)")
        a("s_sub_u32 s96, s96, s94")
        a(f"s_cmp_lt_u32 s96, {cfg.padto}")
        a("s_cbranch_scc1 L_pad")
    a("s_cmp_lg_u32 s2, 0")
    a("s_cbranch_scc1 L_S_END")
    a("s_mov_b64 exec, 1")
    a(f"s_mov_b32 s9, {EP_OFF:#x}")
    a("buffer_store_dword v15, v14, s[48:51], s9 offen")
    a.label("L_S_END")
    dump_stamps()
    a("s_endpgm")

    a.label("L_ATT")
    RING = 16
    SC = RING + 16 * R
    QR = SC + 32
    ST = QR + 8
    AC = QR
    PTA = AC + 32
    assert PTA + 16 <= 256 and ST + 26 <= 256 and R == 10
    a("s_sub_u32 s6, s3, 4")
    a("v_bfe_u32 v6, v4, 1, 1")
    a("v_lshrrev_b32 v7, 2, v4")
    a("v_lshl_add_u32 v6, v6, 2, v7")
    a("v_lshlrev_b32 v6, 8, v6")
    a("v_lshl_add_u32 v6, v5, 5, v6")
    a("v_and_b32 v7, 1, v4")
    a("v_lshl_add_u32 v6, v7, 4, v6")
    a("v_lshlrev_b32 v7, 4, v0")
    a("s_lshl_b32 s7, s99, 18")
    a("s_lshl_b32 s8, s6, 12")
    a("s_add_u32 s7, s7, s8")
    a("s_mov_b32 s8, s7")
    a("s_lshl_b32 s9, s6, 2")
    a("v_mov_b32 v13, s9")
    a("s_waitcnt lgkmcnt(0)")
    load_tag()
    srd(40, 18, 0x4000000)
    srd(44, 20, 0x4000000)
    srd(48, 38, WS_SIZE)
    srd(52, 24, 0x800000)
    srd(56, 32, 0x700000)
    consts()
    a("v_mul_u32_u24 v11, 272, v9")
    a("v_lshl_add_u32 v11, v5, 5, v11")
    a("v_lshl_add_u32 v11, v8, 4, v11")
    a("v_mov_b32 v10, 0xff800000")
    a("s_barrier")
    if cfg.gate:
        wait_flags([(GF, 2, 14)], 16, 1)
    else:
        a("s_waitcnt lgkmcnt(0)")
    make_tag()
    N = cfg.n
    N0 = cfg.n0 or N
    NL = 144
    nl = [0]

    def slot_of(item):
        return RING + 16 * (item % R)

    def issue1():
        k = nl[0]
        if k >= NL:
            return
        item, q = divmod(k, 4)
        slot = slot_of(item)
        if item < 16:
            a(f"buffer_load_dwordx4 {vr(slot+4*q,4)}, v6, s[40:43], s7 offen offset:{128*(q&1)+2048*(q>>1)}{NT}")
            if q == 3 and item < 15:
                a("s_add_u32 s7, s7, 16384")
        elif item < 32:
            a(f"buffer_load_dwordx4 {vr(slot+4*q,4)}, v7, s[44:47], s8 offen offset:{1024*q}{NT}")
            if q == 3 and item < 31:
                a("s_add_u32 s8, s8, 16384")
        elif item < 34:
            e = k - 128
            a(f"buffer_load_dwordx4 {vr(slot+4*q,4)}, v1, s[56:59], s10 offen offset:{2048*(e&1)}{NT}")
            if (e & 1) and e < 7:
                a("s_add_u32 s10, s10, 4096")
        else:
            m = k - 136
            a(f"buffer_load_dwordx4 {vr(slot+4*q,4)}, v3, s[52:55], s11 offen offset:{2048*(m&1)}{NT}")
            if (m & 1) and m < 7:
                a("s_add_u32 s11, s11, 16384")
        nl[0] += 1
        if cfg.pf and k == cfg.pf - 1:
            set_flag(PF)
        if cfg.lf and k == cfg.lf - 1:
            set_flag(LF)
        if cfg.wf and k == cfg.wf - 1:
            set_flag(WF, 13)

    def wait_load(k):
        a(f"s_waitcnt vmcnt({nl[0] - k - 1})")

    def advance(item):
        for q in range(4):
            k = 4 * item + q
            N = cfg.n
            if cfg.k2 and k >= cfg.k2:
                N = min(cfg.n2, cfg.n + (k - cfg.k2) // cfg.kr + 1)
            if nl[0] < NL and nl[0] - (k + 1) < N:
                wait_load(k)
                while nl[0] < NL and nl[0] - (k + 1) < N:
                    issue1()
            elif q == 3:
                wait_load(k)

    for k in range(4 * R):
        if k >= N0:
            a(f"s_waitcnt vmcnt({N0-1})")
        issue1()
    stamp(1)
    wait_flags([(QF, 1, 14)], QR, 1)
    stamp(2)
    for c in range(2):
        a(f"ds_read_b128 {vr(QR+4*c,4)}, v11 offset:{QB+128*c}")
    a("s_waitcnt lgkmcnt(0)")

    def post(i):
        t = ST + 8 * (i & 1)
        w = ST + 16
        for q in range(4):
            a(f"v_add_f32_dpp v{w+6+q}, v{t+2*q+1}, v{t+2*q} row_ror:8 row_mask:0xf bank_mask:0xf")
        s = w + 6
        a(f"v_max3_f32 v10, v10, v{s}, v{s+1}")
        a(f"v_cvt_pk_bf16_f32 v{w+4}, v{s}, v{s+1}")
        a(f"v_cvt_pk_bf16_f32 v{w+5}, v{s+2}, v{s+3}")
        a(f"v_max3_f32 v10, v10, v{s+2}, v{s+3}")
        a(f"v_lshlrev_b32 v{w}, 16, v{w+4}")
        a(f"v_and_b32 v{w+1}, s66, v{w+4}")
        a(f"v_lshlrev_b32 v{w+2}, 16, v{w+5}")
        a(f"v_and_b32 v{w+3}, s66, v{w+5}")
        for k in range(4):
            a(f"v_mul_f32 v{w+k}, s68, v{w+k}")
        a(f"v_cvt_pk_bf16_f32 v{SC+2*i}, v{w}, v{w+1}")
        a(f"v_cvt_pk_bf16_f32 v{SC+2*i+1}, v{w+2}, v{w+3}")

    for i in range(16):
        advance(i)
        slot = slot_of(i)
        t = ST + 8 * (i & 1)
        for st_ in range(2):
            for ln in range(2):
                cc = "0" if ln == 0 else vr(t + 4 * st_, 4)
                a(f"v_mfma_f32_16x16x32_bf16 {vr(t+4*st_,4)}, {vr(slot+4*(2*st_+ln),4)}, {vr(QR+4*ln,4)}, {cc}")
        if nl[0] - 4 * (i + 1) >= N and nl[0] < 4 * (i + 1 + R):
            cnt = cfg.catch0 if i == 0 else cfg.catch
            for _ in range(cnt):
                if nl[0] < 4 * (i + 1 + R):
                    a(f"s_waitcnt vmcnt({N-1})")
                    issue1()
        if i >= 1:
            a("s_nop 3")
            post(i - 1)
    a("s_nop 7")
    post(15)
    stamp(3)
    xlane("v_max_f32", 10, 11, [16, 32])
    w = ST
    MM, LL, L2 = ST + 8, ST + 9, ST + 10
    assert MM % 2 == 0
    round_bf16(MM, 10)
    a(f"v_mul_f32 v{MM}, s68, v{MM}")
    round_bf16(MM, MM)
    a(f"v_mul_f32 v11, s67, v{MM}")
    a(f"v_mov_b32 v{LL}, 0")
    a(f"v_mov_b32 v{L2}, 0")
    for k in range(0, 32, 2):
        if k % cfg.smstep == 0:
            issue1()
        for q in range(2):
            a(f"v_lshlrev_b32 v{w+2*q}, 16, v{SC+k+q}")
            a(f"v_and_b32 v{w+2*q+1}, s66, v{SC+k+q}")
        for q in range(4):
            a(f"v_fma_f32 v{w+q}, v{w+q}, s67, -v11")
        for q in range(4):
            a(f"v_exp_f32 v{w+q}, v{w+q}")
        a(f"v_add_f32 v{LL}, v{LL}, v{w}")
        a(f"v_add_f32 v{L2}, v{L2}, v{w+1}")
        a(f"v_cvt_pk_bf16_f32 v{SC+k}, v{w}, v{w+1}")
        a(f"v_add_f32 v{LL}, v{LL}, v{w+2}")
        a(f"v_add_f32 v{L2}, v{L2}, v{w+3}")
        a(f"v_cvt_pk_bf16_f32 v{SC+k+1}, v{w+2}, v{w+3}")
    a(f"v_add_f32 v{LL}, v{LL}, v{L2}")
    xlane("v_add_f32", LL, L2, [16, 32])
    a(f"v_min_u32 v{LL}, -2, v{LL}")
    a("s_lshl_b32 s9, s6, 6")
    a("v_lshlrev_b32 v12, 3, v0")
    a("v_add_u32 v12, s9, v12")
    a("s_mov_b64 exec, 0xff")
    a(f"ds_write_b64 v12, {vr(MM,2)} offset:{MLB}")
    a("s_mov_b64 exec, -1")
    stamp(4)
    issue1()
    a("s_lshr_b32 s4, s98, 2")
    a("s_and_b32 s5, s98, 3")
    a("s_mul_i32 s9, s6, 4224")
    a("v_mul_u32_u24 v10, 528, v4")
    a("v_lshl_add_u32 v10, v5, 7, v10")
    a("v_add_u32 v10, s9, v10")
    a("v_lshrrev_b32 v3, 1, v5")
    a("v_lshlrev_b32 v3, 5, v3")
    a("v_and_b32 v1, 1, v5")
    a("v_lshl_add_u32 v3, v1, 2, v3")
    a("v_lshl_add_u32 v3, v8, 1, v3")
    a("v_lshlrev_b32 v3, 11, v3")
    a("v_lshl_add_u32 v3, v9, 4, v3")
    a("v_lshlrev_b32 v1, 3, v8")
    a("v_lshl_add_u32 v1, v5, 4, v1")
    a("v_lshlrev_b32 v1, 11, v1")
    a("v_lshl_add_u32 v1, v9, 4, v1")
    a("s_lshl_b32 s10, s4, 17")
    a("s_lshl_b32 s11, s5, 9")
    a("s_add_u32 s10, s10, s11")
    a("s_lshl_b32 s11, s6, 7")
    a("s_add_u32 s10, s10, s11")
    a("s_mov_b32 s11, s10")
    a("v_bfe_u32 v12, v4, 2, 1")
    a("v_lshlrev_b32 v12, 7, v12")
    a("v_lshl_add_u32 v12, v5, 5, v12")
    a("v_and_b32 v11, 1, v4")
    a("v_lshl_add_u32 v12, v11, 4, v12")
    a("v_lshlrev_b32 v11, 18, v5")
    a("v_lshrrev_b32 v6, 2, v9")
    a("v_lshl_add_u32 v11, v6, 13, v11")
    a("v_and_b32 v6, 3, v9")
    a("v_lshl_add_u32 v11, v6, 5, v11")
    a("v_lshl_add_u32 v11, v8, 4, v11")
    a("s_lshl_b32 s9, s5, 16")
    a("s_lshl_b32 s12, s6, 14")
    a("s_add_u32 s9, s9, s12")
    a("s_lshl_b32 s12, s4, 7")
    a("s_add_u32 s9, s9, s12")
    a(f"s_add_u32 s9, s9, {XP_OFF}")
    for it in range(16, 32):
        advance(it)
        if it & 1:
            u = (it - 16) // 2
            s0 = slot_of(16 + 2 * u)
            s1 = slot_of(17 + 2 * u)
            src = lambda e, s0=s0, s1=s1: (s0 if e < 4 else s1) + 4 * (e & 3)

            def M(i, u=u):
                for h in range(2):
                    j = 2 * i + h
                    c = "0" if u == 0 else vr(AC + 4 * j, 4)
                    a(f"v_mfma_f32_16x16x32_bf16 {vr(AC+4*j,4)}, {vr(PTA+8*(i&1)+4*h,4)}, {vr(SC+4*u,4)}, {c}")
            perms(PTA, src, 0)
            perms(PTA + 8, src, 1)
            M(0)
            perms(PTA, src, 2)
            M(1)
            perms(PTA + 8, src, 3)
            M(2)
            M(3)
    stamp(5)
    a("s_mov_b32 exec_lo, 0x00ff00ff")
    a("s_mov_b32 exec_hi, 0x00ff00ff")
    for j in range(8):
        if j == 4:
            a("s_nop 0")
        a(f"ds_write_b128 v10, {vr(AC+4*j,4)} offset:{ORED+16*j}")
    a("s_mov_b64 exec, -1")
    set_flag(OF, 13)
    stamp(6)
    TP = slot_of(6)
    XACC = SC
    advance(32)
    advance(33)
    srcd = lambda e: slot_of(32 + (e >> 2)) + 4 * (e & 3)
    for i in range(4):
        perms(TP + 32 + 8 * i, srcd, i)
    a("s_cmp_ge_u32 s4, 56")
    a("s_cbranch_scc1 L_noffn")
    wait_flags([(HF, 1, 14)], PTA, 1)
    a(f"ds_read_b128 {vr(PTA,4)}, v12 offset:{HB}")
    a("s_waitcnt lgkmcnt(0)")
    for j in range(8):
        a(f"v_mfma_f32_16x16x32_bf16 {vr(XACC+4*j,4)}, {vr(PTA,4)}, {vr(TP+32+4*j,4)}, 0")
    a("s_branch L_wo")
    a.label("L_noffn")
    for k in range(8):
        a(f"v_mov_b32 v{XACC+4*k}, 0")
        a(f"v_mov_b32 v{XACC+4*k+1}, 0")
    a.label("L_wo")
    advance(34)
    advance(35)
    assert nl[0] == NL
    stamp(7)
    srco = lambda e: (lambda m: slot_of(34 + (m >> 2)) + 4 * (m & 3))(2 * (e & 3) + (e >> 2))
    for i in range(4):
        perms(TP + 8 * i, srco, i)
    stamp(8)
    a("s_barrier")
    stamp(9)
    a(f"ds_read_b128 {vr(PTA+4,4)}, v12 offset:{OB}")
    a("s_waitcnt lgkmcnt(0)")
    for j in range(8):
        a(f"v_mfma_f32_16x16x32_bf16 {vr(XACC+4*j,4)}, {vr(PTA+4,4)}, {vr(TP+4*j,4)}, {vr(XACC+4*j,4)}")
    a("s_nop 1")
    fold(PTA + 8, XACC)
    a("s_mov_b32 exec_hi, 0")
    a(f"buffer_store_dwordx4 {vr(PTA+8,4)}, v11, s[48:51], s9 offen sc1{TNT}")
    stamp(10)
    dump_stamps()
    a.label("L_END")
    a("s_endpgm")

    probs = check_hazards(a.lines)
    for p in probs:
        print(p, file=sys.stderr)
    if probs:
        raise SystemExit("hazards found")

    pad = ""
    if cfg.codepf:
        pad = f".fill ({(512 << cfg.codepf) + 256} - (. - {NAME}_kernel)) / 4, 4, 0xBF800000\n"
    out = HEADER
    out += "; Generated by work/gen5.py (hand-written generator). One persistent launch, 256 workgroups x 8 waves.\n"
    out += f"; @launch grid=(256,1,1) block=(512,1,1) lds={LDS_SIZE}\n"
    out += f""".amdgcn_target "amdgcn-amd-amdhsa--gfx950"
.text
.globl {NAME}_kernel
.p2align 8
.type {NAME}_kernel,@function
{NAME}_kernel:
"""
    out += a.text()
    out += pad
    out += f""".section .rodata,"a"
.p2align 6
.amdhsa_kernel {NAME}_kernel
  .amdhsa_next_free_vgpr 256
  .amdhsa_next_free_sgpr 102
  .amdhsa_accum_offset 256
  .amdhsa_group_segment_fixed_size 0
  .amdhsa_kernarg_size 96
  .amdhsa_user_sgpr_count 2
  .amdhsa_user_sgpr_kernarg_segment_ptr 1
  .amdhsa_system_sgpr_workgroup_id_x 1
  .amdhsa_float_denorm_mode_32 3
.end_amdhsa_kernel
"""
    return out


def parse_args(argv=None):
    p = argparse.ArgumentParser()
    p.add_argument("-o", default="cdna_kernels/" + NAME + ".s")
    p.add_argument("--ring", type=int, default=10)
    p.add_argument("--stamps", type=int, default=0)
    p.add_argument("--codepf", type=int, default=6)
    p.add_argument("--sleep", type=int, default=8)
    p.add_argument("--sleep_q", type=int, default=0)
    p.add_argument("--sleep_lds", type=int, default=2)
    p.add_argument("--sleep_of", type=int, default=1)
    p.add_argument("--sleep_tail", type=int, default=0)
    p.add_argument("--spin", type=int, default=400000)
    p.add_argument("--n", type=int, default=6)
    p.add_argument("--n0", type=int, default=0)
    p.add_argument("--ns", type=int, default=12)
    p.add_argument("--gate", type=int, default=26)
    p.add_argument("--crot", type=int, default=1)
    p.add_argument("--pf", type=int, default=12)
    p.add_argument("--wf", type=int, default=144)
    p.add_argument("--catch0", type=int, default=4)
    p.add_argument("--catch", type=int, default=1)
    p.add_argument("--smstep", type=int, default=6)
    p.add_argument("--abl", type=int, default=0)
    p.add_argument("--padto", type=int, default=0)
    p.add_argument("--padglobal", type=int, default=0)
    p.add_argument("--lf", type=int, default=108)
    p.add_argument("--k2", type=int, default=0)
    p.add_argument("--n2", type=int, default=10)
    p.add_argument("--kr", type=int, default=2)
    p.add_argument("--qmap", type=int, default=1)
    p.add_argument("--xm", type=int, default=1)
    p.add_argument("--gm", type=int, default=0)
    p.add_argument("--gpw", type=int, default=2)
    p.add_argument("--hnt", type=int, default=0)
    return p.parse_args(argv)


if __name__ == "__main__":
    cfg = parse_args()
    open(cfg.o, "w").write(gen(cfg))
    print("wrote", cfg.o)
```

```python
import sys
import argparse
import struct
import math
from asmlib import Asm, vr, sr, check_hazards

NAME = "parallel_sum__gqa_block_cached__geglu_ffn__decode"

QP_OFF = 0x000000
GP_OFF = 0x020000
ML_OFF = 0x060000
XT_OFF = 0x068000
EP_OFF = 0x070000
O2_OFF = 0x078000
OP_OFF = 0x080000
XP_OFF = 0x180000
ST_OFF = 0x200000
WS_SIZE = 0x400000
XN = 0x0000
QB = 0x0400
MLB = 0x0C80
FL = 0x0D80
OF = FL + 0
FF = FL + 16
GF = FL + 24
QF = FL + 32
XF = FL + 36
PF = FL + 40
HF = FL + 44
LF = FL + 20
WF = FL + 48
BF = FL + 72
GO = FL + 80
SF = FL + 96
FM = FL + 68
LV = FL + 64
CPF = FL + 128
FB = 0x0E80
OB = 0x0F00
HB = 0x1000
ORED = 0x1100
LDS_SIZE = ORED + 4 * 4224

LOG2E = 0x3FB8AA3B
SCALE = 0x3DB504F3
EPS = 0x3727C5AC

HEADER = open("cdna_kernels/" + NAME + ".s.ref").read().split("; Override launch")[0]


def f32bits(x):
    return struct.unpack("<I", struct.pack("<f", x))[0]


def gen(cfg):
    a = Asm()
    R = cfg.ring
    NT = " nt"
    MLS = "" if cfg.mlplain else " sc1"
    MNT = " nt" if cfg.hnt & 1 else ""
    ONT = " nt" if cfg.hnt & 2 else ""
    XNT = " nt" if cfg.hnt & 4 else ""
    SNT = " nt" if cfg.hnt & 8 else ""
    TNT = " nt" if cfg.hnt & 16 else ""
    uid = [0]
    cps = [tuple(int(x) for x in t.split(":")) for t in cfg.cp.split(",")] if cfg.cp else []

    def stamp(k):
        if cfg.stamps:
            a(f"s_memrealtime s[{70+2*k}:{71+2*k}]")

    def srd(d, p, size):
        a(f"s_mov_b32 s{d}, s{p}")
        a(f"s_mov_b32 s{d+1}, s{p+1}")
        a(f"s_mov_b32 s{d+2}, {size:#x}")
        a(f"s_mov_b32 s{d+3}, 0x20000")

    def dump_stamps():
        if not cfg.stamps:
            return
        a("s_waitcnt lgkmcnt(0)")
        for _ in range(3):
            a("s_sleep 127")
        a("s_mov_b64 exec, 1")
        a("s_lshl_b32 s4, s2, 10")
        a("s_lshl_b32 s5, s3, 7")
        a("s_add_u32 s4, s4, s5")
        a(f"s_add_u32 s4, s4, {ST_OFF}")
        a("v_mov_b32 v3, 0")
        for k in range(14):
            a(f"v_mov_b32 v1, s{70+2*k}")
            a(f"buffer_store_dword v1, v3, s[48:51], s4 offen offset:{4*k}")

    def poll(loads, check, sleep, cnt="vmcnt", rec=None):
        uid[0] += 1
        n = uid[0]
        a(f"s_mov_b32 s15, {cfg.spin}")
        a.label(f"L_poll{n}")
        loads()
        a(f"s_waitcnt {cnt}(0)")
        check()
        a(f"s_cbranch_scc1 L_pdone{n}")
        a("s_sub_u32 s15, s15, 1")
        a(f"s_cbranch_scc1 L_pdone{n}")
        if sleep:
            a(f"s_sleep {sleep}")
        a(f"s_branch L_poll{n}")
        a.label(f"L_pdone{n}")
        if rec is not None and cfg.stamps:
            a(f"s_sub_u32 s{70+2*rec}, {cfg.spin+1}, s15")

    def wait_flags(reads, t, sleep):
        regs = []

        def ld():
            r = t
            regs.clear()
            for off, n, av in reads:
                op = {1: "ds_read_b32", 2: "ds_read_b64", 4: "ds_read_b128"}[n]
                a(f"{op} {vr(r,n)}, v{av} offset:{off}")
                regs.extend(range(r, r + n))
                r += (n + 1) & ~1

        def ck():
            rs = list(regs)
            while len(rs) >= 3:
                a(f"v_or3_b32 v{rs[0]}, v{rs[0]}, v{rs[1]}, v{rs[2]}")
                rs = [rs[0]] + rs[3:]
            if len(rs) == 2:
                a(f"v_or_b32 v{rs[0]}, v{rs[0]}, v{rs[1]}")
            a(f"v_cmp_eq_u32 vcc, 0, v{rs[0]}")
            a("s_cmp_eq_u64 vcc, -1")
        poll(ld, ck, sleep, cnt="lgkmcnt")

    def set_flag(off, av=14):
        a(f"ds_write_b32 v{av}, v14 offset:{off}")

    def get_mode(t):
        def ld():
            a(f"ds_read_b32 v{t}, v14 offset:{FM}")

        def ck():
            a(f"v_readfirstlane_b32 s101, v{t}")
            a("s_cmp_lg_u32 s101, -1")
        poll(ld, ck, cfg.sleep_lds, cnt="lgkmcnt")

    def store_mode(ins):
        uid[0] += 1
        n = uid[0]
        a("s_cmp_eq_u32 s101, 1")
        a(f"s_cbranch_scc1 L_stf{n}")
        a(ins + " sc1")
        a(f"s_branch L_std{n}")
        a.label(f"L_stf{n}")
        a(ins)
        a.label(f"L_std{n}")

    def check_tag(regs, t0, t1):
        regs = list(regs)
        a(f"v_xor_b32 v{t0}, s14, v{regs[0]}")
        a(f"v_xor_b32 v{t1}, s14, v{regs[1]}")
        for k, r in enumerate(regs[2:]):
            t = t0 if k % 2 == 0 else t1
            a(f"v_bitop3_b32 v{t}, v{r}, s14, v{t} bitop3:0xbe")
        a(f"v_or_b32 v{t0}, v{t0}, v{t1}")
        a(f"v_and_b32 v{t0}, s69, v{t0}")
        a(f"v_cmp_eq_u32 vcc, 0, v{t0}")
        a("s_cmp_eq_u64 vcc, -1")

    def check_sentinel(regs, tmp):
        regs = list(regs)
        a(f"v_max3_u32 v{tmp}, v{regs[0]}, v{regs[1]}, v{regs[2]}")
        regs = regs[3:]
        while len(regs) >= 2:
            a(f"v_max3_u32 v{tmp}, v{tmp}, v{regs[0]}, v{regs[1]}")
            regs = regs[2:]
        if regs:
            a(f"v_max_u32 v{tmp}, v{tmp}, v{regs[0]}")
        a(f"v_cmp_ne_u32 vcc, -1, v{tmp}")
        a("s_cmp_eq_u64 vcc, -1")

    def put_tag(r):
        a(f"v_bfi_b32 v{r}, s69, v15, v{r}")

    def load_tag():
        a(f"s_load_dword s14, s[38:39], {EP_OFF:#x}")

    def make_tag():
        a("s_add_u32 s14, s14, 1")
        a("s_and_b32 s14, s14, 0xff")
        a("v_mov_b32 v15, s14")

    def xlane(op, x, t, steps):
        for s in steps:
            if s in (1, 2, 4, 8):
                a("s_nop 1")
                a(f"{op}_dpp v{x}, v{x}, v{x} row_ror:{s} row_mask:0xf bank_mask:0xf")
            else:
                a(f"v_mov_b32 v{t}, v{x}")
                a("s_nop 1")
                a(f"v_permlane{s}_swap_b32 v{x}, v{t}")
                a(f"{op} v{x}, v{x}, v{t}")

    def round_bf16(d, s):
        a(f"v_cvt_pk_bf16_f32 v{d}, v{s}, v{s}")
        a(f"v_lshlrev_b32 v{d}, 16, v{d}")

    def perms(dst, src_e, i):
        for p in range(4):
            a(f"v_perm_b32 v{dst+p}, v{src_e(2*p+1)+i}, v{src_e(2*p)+i}, s64")
        for p in range(4):
            a(f"v_perm_b32 v{dst+4+p}, v{src_e(2*p+1)+i}, v{src_e(2*p)+i}, s65")

    def fold(dst, acc):
        for k in range(4):
            a(f"v_add_f32_dpp v{dst+k}, v{acc+4*k+1}, v{acc+4*k} row_ror:8 row_mask:0xf bank_mask:0x3")
        for k in range(4):
            if k >= 2:
                a("s_nop 0")
            a(f"v_add_f32_dpp v{dst+k}, v{acc+4*(k+4)}, v{acc+4*(k+4)+1} row_ror:8 row_mask:0xf bank_mask:0xc")
        for k in range(4):
            put_tag(dst + k)

    def consts():
        a("s_mov_b32 s64, 0x05040100")
        a("s_mov_b32 s65, 0x07060302")
        a("s_mov_b32 s66, 0xffff0000")
        a(f"s_mov_b32 s67, {LOG2E:#x}")
        a(f"s_mov_b32 s68, {SCALE:#x}")
        a("s_movk_i32 s69, 0xff")

    a("s_cmp_ge_u32 s2, 256")
    a("s_cbranch_scc1 L_END")
    a("s_load_dwordx16 s[16:31], s[0:1], 0")
    a("s_load_dwordx8 s[32:39], s[0:1], 64")
    stamp(0)
    if cfg.padto:
        a("s_memrealtime s[94:95]")
    if cfg.codepf and cfg.codepf < 7:
        a("s_getpc_b64 s[4:5]")
        a(f"v_lshlrev_b32 v1, {cfg.codepf}, v0")
        a("global_load_dword v2, v1, s[4:5]")
    a("v_lshrrev_b32 v3, 6, v0")
    if cfg.xm:
        a("s_and_b32 s98, s2, 7")
        a("s_lshl_b32 s98, s98, 2")
        a("s_bfe_u32 s100, s2, 0x20003")
        a("s_or_b32 s98, s98, s100")
        a("s_and_b32 s100, s2, 0xe0")
        a("s_or_b32 s98, s98, s100")
    else:
        a("s_mov_b32 s98, s2")
    if cfg.gm:
        a("s_and_b32 s99, s2, 7")
        a("s_lshl_b32 s99, s99, 5")
        a("s_lshr_b32 s100, s2, 3")
        a("s_or_b32 s99, s99, s100")
    else:
        a("s_mov_b32 s99, s2")
    a("v_and_b32 v0, 63, v0")
    a("v_readfirstlane_b32 s3, v3")
    a("v_and_b32 v4, 15, v0")
    a("v_lshrrev_b32 v5, 4, v0")
    a("v_mov_b32 v14, 0")
    a("v_lshrrev_b32 v8, 3, v4")
    a("v_and_b32 v9, 7, v4")
    a("s_cmp_ge_u32 s3, 4")
    a("s_cbranch_scc1 L_ATT")
    a("s_lshr_b32 s6, s98, 2")
    a("s_and_b32 s7, s98, 3")
    a("v_lshlrev_b32 v10, 3, v8")
    a("v_lshl_add_u32 v10, v5, 4, v10")
    a("s_cmp_lg_u32 s3, 0")
    a("s_cbranch_scc1 L_S123")

    XA = 16
    XO = 32
    XU = 36
    WR = 72
    ACC = 200
    PT = 232

    def wloads(stride, throttle, gate):
        for T in range(4):
            for e in range(8):
                k = 8 * T + e
                if throttle and k >= throttle:
                    a(f"s_waitcnt vmcnt({throttle-1})")
                a(f"buffer_load_dwordx4 {vr(WR+32*T+4*e,4)}, v10, s[40:43], s10 offen{NT}")
                if k < 31:
                    a(f"s_add_u32 s10, s10, {stride * (57 if e == 7 else 1)}")
                if gate and k == gate - 1:
                    set_flag(GF - 4, 13)

    if cfg.qmap:
        a("s_mul_i32 s4, s6, 37")
        a("s_lshr_b32 s4, s4, 8")
        a("s_mul_i32 s5, s4, 7")
        a("s_sub_u32 s5, s6, s5")
        a("s_cmp_ge_u32 s5, 3")
        a("s_addc_u32 s5, s5, 0")
        a("s_lshl_b32 s4, s4, 3")
        a("s_add_u32 s5, s5, s4")
        a("s_lshl_b32 s4, s6, 3")
        a(f"s_sub_u32 s4, s4, {56*8-3}")
        a("s_cmp_ge_u32 s6, 56")
        a("s_cselect_b32 s6, s4, s5")
    a("s_mov_b32 s9, 14")
    a("s_mov_b32 s101, 0")
    a("v_lshlrev_b32 v6, 6, v0")
    a("v_lshrrev_b32 v7, 5, v0")
    a("v_lshlrev_b32 v7, 11, v7")
    a("v_and_b32 v11, 31, v0")
    a("v_lshl_add_u32 v7, v11, 4, v7")
    a("s_lshl_b32 s12, s7, 9")
    a("v_lshlrev_b32 v10, 13, v10")
    a("v_lshl_add_u32 v10, v9, 4, v10")
    a("s_lshl_b32 s10, s7, 21")
    a("s_lshl_b32 s11, s6, 7")
    a("s_add_u32 s10, s10, s11")
    a("s_waitcnt lgkmcnt(0)")
    srd(56, 16, 4096)
    srd(40, 22, 0x800000)
    load_tag()
    for i in range(4):
        a(f"buffer_load_dwordx4 {vr(XA+4*i,4)}, v6, s[56:59], 0 offen offset:{16*i}")
    a(f"buffer_load_dwordx4 {vr(XO,4)}, v7, s[56:59], s12 offen")
    wloads(8192, 0, 0)
    stamp(1)
    a("s_barrier")
    srd(48, 38, WS_SIZE)
    consts()
    a("s_lshl_b32 s10, s7, 15")
    a("s_lshl_b32 s11, s6, 8")
    a("s_add_u32 s10, s10, s11")
    if QP_OFF:
        a(f"s_add_u32 s10, s10, {QP_OFF}")
    a("s_waitcnt vmcnt(32)")
    stamp(2)
    for i in range(16):
        a(f"v_lshlrev_b32 v{XU+2*i}, 16, v{XA+i}")
        a(f"v_and_b32 v{XU+2*i+1}, s66, v{XA+i}")
    for k in range(4):
        a(f"v_add_f32 v{XA+k}, v{XU+k}, v{XU+4+k}")
    for i in range(8, 32):
        a(f"v_add_f32 v{XA+(i&3)}, v{XA+(i&3)}, v{XU+i}")
    a(f"v_add_f32 v11, v{XA}, v{XA+1}")
    a(f"v_add_f32 v13, v{XA+2}, v{XA+3}")
    a("v_add_f32 v11, v11, v13")
    xlane("v_add_f32", 11, 12, [8, 4, 2, 1, 16])
    a("v_mul_f32 v11, 0x3a800000, v11")
    for i in range(32):
        a(f"v_sub_f32 v{XU+i}, v{XU+i}, v11")
    for k in range(4):
        a(f"v_mul_f32 v{XA+k}, v{XU+k}, v{XU+k}")
    for i in range(4, 32):
        a(f"v_fmac_f32 v{XA+(i&3)}, v{XU+i}, v{XU+i}")
    a(f"v_add_f32 v12, v{XA}, v{XA+1}")
    a(f"v_add_f32 v13, v{XA+2}, v{XA+3}")
    a("v_add_f32 v12, v12, v13")
    xlane("v_add_f32", 12, 13, [8, 4, 2, 1, 16])
    a("v_mul_f32 v12, 0x3a800000, v12")
    round_bf16(11, 11)
    round_bf16(12, 12)
    a(f"v_add_f32 v12, {EPS:#x}, v12")
    round_bf16(12, 12)
    a("v_sqrt_f32 v12, v12")
    a("s_nop 0")
    round_bf16(12, 12)
    a("v_rcp_f32 v13, v12")
    for i in range(4):
        a(f"v_lshlrev_b32 v{XU+2*i}, 16, v{XO+i}")
        a(f"v_and_b32 v{XU+2*i+1}, s66, v{XO+i}")
    for i in range(8):
        a(f"v_sub_f32 v{XU+i}, v{XU+i}, v11")
    for i in range(4):
        a(f"v_cvt_pk_bf16_f32 v{XO+i}, v{XU+2*i}, v{XU+2*i+1}")
    for i in range(4):
        a(f"v_lshlrev_b32 v{XU+2*i}, 16, v{XO+i}")
        a(f"v_and_b32 v{XU+2*i+1}, s66, v{XO+i}")
    for i in range(8):
        a(f"v_mul_f32 v{XU+8+i}, v{XU+i}, v13")
    for i in range(8):
        a(f"v_fma_f32 v{XU+i}, -v{XU+8+i}, v12, v{XU+i}")
    for i in range(8):
        a(f"v_fmac_f32 v{XU+8+i}, v{XU+i}, v13")
    for i in range(4):
        a(f"v_cvt_pk_bf16_f32 v{XO+i}, v{XU+8+2*i}, v{XU+8+2*i+1}")
    a("v_lshlrev_b32 v11, 4, v0")
    a(f"ds_write_b128 v11, {vr(XO,4)} offset:{XN}")
    set_flag(XF)
    a("s_waitcnt lgkmcnt(0)")
    make_tag()

    a.label("L_S_gemv")
    a("v_bfe_u32 v11, v4, 2, 1")
    a("v_lshlrev_b32 v11, 9, v11")
    a("v_lshl_add_u32 v11, v5, 5, v11")
    a("v_and_b32 v12, 1, v4")
    a("v_lshl_add_u32 v11, v12, 4, v11")
    for T in range(4):
        a(f"ds_read_b128 {vr(XU+4*T,4)}, v11 offset:{XN+128*T}")
    stamp(3)
    a("v_lshlrev_b32 v12, s9, v5")
    a("v_lshl_add_u32 v12, v9, 5, v12")
    a("v_lshl_add_u32 v12, v8, 4, v12")
    a("s_waitcnt lgkmcnt(0)")
    for T in range(4):
        a(f"s_waitcnt vmcnt({24-8*T})")
        src = lambda e, T=T: WR + 32 * T + 4 * e

        def M(i, T=T):
            for h in range(2):
                j = 2 * i + h
                c = "0" if T == 0 else vr(ACC + 4 * j, 4)
                a(f"v_mfma_f32_16x16x32_bf16 {vr(ACC+4*j,4)}, {vr(XU+4*T,4)}, {vr(PT+8*(i&1)+4*h,4)}, {c}")
        perms(PT, src, 0)
        perms(PT + 8, src, 1)
        M(0)
        perms(PT, src, 2)
        M(1)
        perms(PT + 8, src, 3)
        M(2)
        M(3)
    stamp(4)
    a("s_nop 3")
    fold(PT, ACC)
    a("s_mov_b32 exec_hi, 0")
    if not (cfg.abl & 8):
        store_mode(f"buffer_store_dwordx4 {vr(PT,4)}, v12, s[48:51], s10 offen")
    a("s_mov_b64 exec, -1")
    a("s_cmp_eq_u32 s3, 1")
    a("s_cbranch_scc1 L_S1_h")
    a("s_cmp_eq_u32 s3, 2")
    a("s_cbranch_scc1 L_S_END")
    if cfg.padto and cfg.padglobal:
        srd(52, 36, 256)
        a("s_mov_b64 exec, 1")
        a("v_mov_b32 v20, s94")
        a("buffer_atomic_umax v20, v14, s[52:55], 0 offen offset:4")
        a("v_not_b32 v21, v20")
        a("buffer_atomic_umax v21, v14, s[52:55], 0 offen")
        a("s_mov_b64 exec, -1")
    a("v_lshlrev_b32 v6, 4, v0")
    a("s_lshr_b32 s10, s99, 5")
    a("s_lshl_b32 s10, s10, 12")
    if QP_OFF:
        a(f"s_add_u32 s10, s10, {QP_OFF}")
    a("s_add_u32 s11, s10, 32768")
    a("s_add_u32 s12, s10, 65536")
    a("s_add_u32 s13, s10, 98304")
    a("v_lshrrev_b32 v7, 5, v0")
    a("v_mul_u32_u24 v7, 272, v7")
    a("v_and_b32 v11, 31, v0")
    a("v_lshl_add_u32 v7, v11, 3, v7")
    if cfg.pf:
        wait_flags([(PF, 1, 14)], 16, cfg.sleep_lds)
    stamp(6)

    def ldq():
        for kq in range(4):
            for i in range(4):
                if (cfg.abl & 16) and i: continue
                a(f"buffer_load_dwordx4 {vr(32+16*kq+4*i,4)}, v6, s[48:51], s{10+kq} offen offset:{1024*i} sc1{MNT}")
    if not (cfg.abl & 1):
        poll(ldq, lambda: check_tag([r for r in range(32, 96) if not (cfg.abl & 16) or (r - 32) % 16 < 4], 11, 12), cfg.sleep_q, rec=12)
    stamp(5)
    for k in range(16):
        a(f"v_add_f32 v{32+k}, v{32+k}, v{48+k}")
        a(f"v_add_f32 v{64+k}, v{64+k}, v{80+k}")
    for k in range(16):
        a(f"v_add_f32 v{32+k}, v{32+k}, v{64+k}")
    for i in range(4):
        a(f"v_cvt_pk_bf16_f32 v{48+2*i}, v{32+4*i}, v{33+4*i}")
        a(f"v_cvt_pk_bf16_f32 v{49+2*i}, v{34+4*i}, v{35+4*i}")
        a(f"ds_write_b64 v7, {vr(48+2*i,2)} offset:{QB+544*i}")
    set_flag(QF)
    a("s_branch L_S_tail")

    a.label("L_S123")
    if cfg.codepf == 7:
        a("s_getpc_b64 s[4:5]")
        a.label("L_pcref")
        a(f"s_sub_u32 s4, s4, L_pcref - {NAME}_kernel + 8192")
        a("s_subb_u32 s5, s5, 0")
        a("v_lshlrev_b32 v1, 7, v0")
        a("v_lshl_add_u32 v1, v3, 13, v1")
        a("global_load_dword v2, v1, s[4:5]")
    consts()
    a("s_mov_b32 s9, 8")
    a(f"s_mul_i32 s5, s3, {cfg.crot}")
    a("s_lshr_b32 s4, s2, 5")
    a("s_add_u32 s5, s5, s4")
    a("s_sub_u32 s4, s5, 7")
    a("s_cmp_ge_u32 s5, 7")
    a("s_cselect_b32 s5, s4, s5")
    a("s_and_b32 s4, s2, 7")
    a("s_mul_i32 s4, s4, 7")
    a("s_add_u32 s5, s5, s4")
    a("v_mul_u32_u24 v10, 7168, v10")
    a("v_lshl_add_u32 v10, v9, 4, v10")
    a(f"s_mul_i32 s10, s7, {256*7168}")
    a("s_lshl_b32 s11, s5, 7")
    a("s_add_u32 s10, s10, s11")
    a("v_mov_b32 v11, -1")
    a("v_lshlrev_b32 v12, 2, v0")
    a(f"ds_write_b32 v12, v11 offset:{MLB}")
    a(f"ds_write_b32 v12, v11 offset:{FL}")
    a("s_lshl_b32 s4, s3, 2")
    a("v_mov_b32 v13, s4")
    a("s_waitcnt lgkmcnt(0)")
    load_tag()
    srd(48, 38, WS_SIZE)
    a("s_cmp_eq_u32 s3, 2")
    a("s_cselect_b64 s[40:41], s[30:31], s[28:29]")
    a("s_mov_b32 s42, 0x700000")
    a("s_mov_b32 s43, 0x20000")
    a("s_waitcnt lgkmcnt(0)")
    a("s_barrier")
    make_tag()
    a("s_cmp_eq_u32 s3, 3")
    a("s_cbranch_scc1 L_S3")
    a("s_cmp_lt_u32 s6, 56")
    a("s_cbranch_scc1 L_S12")
    set_flag(GF - 4, 13)
    a("s_branch L_S_END")
    a.label("L_S12")
    a("v_lshlrev_b32 v12, 1, v13")
    wait_flags([(GO - 8, 2, 12)], 16, cfg.sleep_lds)
    stamp(2)
    wloads(7168, cfg.ns, cfg.gate)
    stamp(1)
    a("s_lshl_b32 s10, s5, 12")
    a("s_lshl_b32 s12, s7, 10")
    a("s_add_u32 s10, s10, s12")
    a("s_lshl_b32 s12, s3, 9")
    a("s_add_u32 s10, s10, s12")
    a(f"s_add_u32 s10, s10, {GP_OFF-512}")
    wait_flags([(XF, 1, 14)], 16, cfg.sleep_lds)
    get_mode(16)
    a("s_branch L_S_gemv")

    a.label("L_S1_h")
    a("v_lshlrev_b32 v12, 3, v0")
    a("s_and_b32 s10, s2, 7")
    a("s_mul_i32 s10, s10, 7")
    a("s_lshr_b32 s4, s2, 5")
    a("s_add_u32 s10, s10, s4")
    a("s_lshl_b32 s10, s10, 12")
    a(f"s_add_u32 s10, s10, {GP_OFF}")

    def ldg():
        for kq in range(4):
            for m in range(2):
                a(f"buffer_load_dwordx2 {vr(16+4*kq+2*m,2)}, v12, s[48:51], s10 offen offset:{kq*1024+m*512} sc1{MNT}")
    if not (cfg.abl & 2):
        poll(ldg, lambda: check_tag(range(16, 32), 11, 13), cfg.sleep_tail, rec=12)
    stamp(5)
    for k in range(4):
        a(f"v_add_f32 v{16+k}, v{16+k}, v{20+k}")
        a(f"v_add_f32 v{24+k}, v{24+k}, v{28+k}")
    for k in range(4):
        a(f"v_add_f32 v{16+k}, v{16+k}, v{24+k}")
    a("v_cvt_pk_bf16_f32 v20, v16, v17")
    a("v_cvt_pk_bf16_f32 v21, v18, v19")
    a("v_lshlrev_b32 v16, 16, v20")
    a("v_and_b32 v17, s66, v20")
    a("v_lshlrev_b32 v18, 16, v21")
    a("v_and_b32 v19, s66, v21")
    a(f"s_mov_b32 s10, {f32bits(0.044715):#x}")
    a(f"s_mov_b32 s11, {f32bits(-2.0 * math.sqrt(2.0 / math.pi) * math.log2(math.e)):#x}")
    for k in range(2):
        a(f"v_mul_f32 v{20+k}, v{16+k}, v{16+k}")
    for k in range(2):
        a(f"v_mul_f32 v{20+k}, v{20+k}, v{16+k}")
    for k in range(2):
        a(f"v_fma_f32 v{20+k}, v{20+k}, s10, v{16+k}")
    for k in range(2):
        a(f"v_mul_f32 v{20+k}, s11, v{20+k}")
    for k in range(2):
        a(f"v_exp_f32 v{20+k}, v{20+k}")
    a("s_nop 0")
    for k in range(2):
        a(f"v_add_f32 v{20+k}, 1.0, v{20+k}")
    for k in range(2):
        a(f"v_rcp_f32 v{20+k}, v{20+k}")
    a("s_nop 0")
    for k in range(2):
        a(f"v_mul_f32 v{20+k}, v{20+k}, v{16+k}")
    a("v_cvt_pk_bf16_f32 v22, v20, v21")
    a("v_lshlrev_b32 v20, 16, v22")
    a("v_and_b32 v21, s66, v22")
    a("v_mul_f32 v20, v20, v18")
    a("v_mul_f32 v21, v21, v19")
    a("v_cvt_pk_bf16_f32 v22, v20, v21")
    a("v_lshlrev_b32 v12, 2, v0")
    a(f"ds_write_b32 v12, v22 offset:{HB}")
    set_flag(HF)
    a("s_branch L_S_END")

    a.label("L_S3")
    a("s_getreg_b32 s4, hwreg(HW_REG_XCC_ID)")
    a("s_and_b32 s4, s4, 15")
    a("s_lshl_b32 s4, s4, 8")
    a("s_or_b32 s4, s4, s14")
    a("v_mov_b32 v16, s4")
    a("s_lshl_b32 s10, s99, 6")
    a(f"s_add_u32 s10, s10, {XT_OFF}")
    a("s_mov_b64 exec, 1")
    if not (cfg.abl & 64):
        a("buffer_store_dword v16, v14, s[48:51], s10 offen sc1")
    a("s_mov_b64 exec, -1")
    a("v_and_b32 v7, 31, v0")
    a("v_lshlrev_b32 v7, 6, v7")
    a("s_lshr_b32 s10, s99, 5")
    a("s_lshl_b32 s10, s10, 11")
    a(f"s_add_u32 s10, s10, {XT_OFF}")
    wait_flags([(PF, 1, 14)], 16, cfg.sleep_lds)

    def ldx():
        a("buffer_load_dword v16, v7, s[48:51], s10 offen sc1")

    def ckx():
        a("v_xor_b32 v17, s14, v16")
        a("v_and_b32 v17, s69, v17")
        a("v_cmp_eq_u32 vcc, 0, v17")
        a("s_cmp_eq_u64 vcc, -1")
    if not (cfg.abl & 64):
        poll(ldx, ckx, cfg.sleep)
    a("v_cmp_eq_u32 vcc, s4, v16")
    a("s_cmp_eq_u64 vcc, -1")
    a("s_cselect_b32 s101, 1, 0")
    if cfg.abl & 64:
        a("s_mov_b32 s101, 1")
    if cfg.nofast:
        a("s_mov_b32 s101, 0")
    a("v_mov_b32 v16, s101")
    a(f"ds_write_b32 v14, v16 offset:{FM}")
    stamp(4)
    a("v_and_b32 v6, 7, v0")
    a("v_lshlrev_b32 v6, 3, v6")
    a("v_and_b32 v7, 31, v0")
    a("v_lshlrev_b32 v7, 3, v7")
    a("s_lshl_b32 s13, s99, 6")
    a(f"s_add_u32 s13, s13, {ML_OFF}")

    def ldm():
        for w in range(4):
            a(f"ds_read_b64 {vr(16+2*w,2)}, v6 offset:{MLB+64*w}")
    poll(ldm, lambda: check_sentinel(range(16, 24), 11), cfg.sleep_lds, cnt="lgkmcnt")
    stamp(5)
    a(f"ds_read_b32 v30, v7 offset:{MLB}")

    def combine4(mo):
        a(f"v_max3_f32 v{mo}, v16, v18, v20")
        a(f"v_max_f32 v{mo}, v{mo}, v22")

    def wsum4(mo, lo):
        for w in range(4):
            a(f"v_sub_f32 v{16+2*w}, v{16+2*w}, v{mo}")
        for w in range(4):
            a(f"v_mul_f32 v{16+2*w}, s67, v{16+2*w}")
        for w in range(4):
            a(f"v_exp_f32 v{16+2*w}, v{16+2*w}")
        a("s_nop 0")
        a(f"v_mul_f32 v{lo}, v16, v17")
        for w in range(1, 4):
            a(f"v_fmac_f32 v{lo}, v{16+2*w}, v{17+2*w}")
    combine4(24)
    wsum4(24, 25)
    put_tag(24)
    put_tag(25)
    a("s_mov_b64 exec, 0xff")
    if not (cfg.abl & 8):
        store_mode("buffer_store_dwordx2 v[24:25], v6, s[48:51], s13 offen")
    a("s_mov_b64 exec, -1")
    a("s_lshr_b32 s10, s99, 5")
    a("s_lshl_b32 s10, s10, 11")
    a(f"s_add_u32 s10, s10, {ML_OFF}")
    a("v_lshlrev_b32 v7, 3, v0")

    if cfg.lf:
        wait_flags([(LF, 1, 14)], 16, cfg.sleep_lds)

    def ld2():
        for i in range(4):
            a(f"buffer_load_dwordx2 {vr(16+2*i,2)}, v7, s[48:51], s10 offen offset:{512*i} sc1{MNT}")
    if not (cfg.abl & 4):
        poll(ld2, lambda: check_tag(range(16, 24), 11, 12), cfg.sleep, rec=12)
    stamp(6)
    for w in range(4):
        a(f"v_and_b32 v{16+2*w}, s66, v{16+2*w}")
    combine4(26)
    xlane("v_max_f32", 26, 11, [8, 16, 32])
    wsum4(26, 27)
    xlane("v_add_f32", 27, 11, [8, 16, 32])
    a("s_waitcnt lgkmcnt(0)")
    a("v_sub_f32 v30, v30, v26")
    a("v_mul_f32 v30, s67, v30")
    a("v_exp_f32 v30, v30")
    a("v_rcp_f32 v27, v27")
    a("v_bfe_u32 v7, v0, 3, 2")
    a("v_lshlrev_b32 v7, 2, v7")
    a("v_lshl_add_u32 v7, v6, 1, v7")
    a("v_mul_f32 v30, v30, v27")
    a(f"ds_write_b32 v7, v30 offset:{FB}")
    set_flag(FF)

    a("v_and_b32 v11, 7, v0")
    a("v_lshlrev_b32 v6, 4, v11")
    a("v_lshl_add_u32 v6, v5, 2, v6")
    a("v_lshlrev_b32 v7, 4, v0")
    a("s_lshl_b32 s10, s99, 12")
    a(f"s_add_u32 s10, s10, {OP_OFF}")
    a("s_lshl_b32 s8, s99, 7")
    a(f"s_add_u32 s8, s8, {O2_OFF}")
    wait_flags([({0: OF, 1: WF}[cfg.wf1], 4, 14)], 60, cfg.sleep_lds)
    stamp(7)

    def ld3():
        for i in range(4):
            a(f"buffer_load_dwordx4 {vr(40+4*i,4)}, v7, s[48:51], s10 offen offset:{1024*i} sc1")
    poll(ld3, lambda: check_tag(range(40, 56), 12, 13), cfg.sleep_l1, rec=13)
    stamp(8)
    for k in range(4):
        a(f"v_add_f32 v{40+k}, v{40+k}, v{44+k}")
        a(f"v_add_f32 v{48+k}, v{48+k}, v{52+k}")
    for k in range(4):
        a(f"v_add_f32 v{40+k}, v{40+k}, v{48+k}")
    a("s_nop 0")
    a("v_permlane32_swap_b32 v40, v42")
    a("v_permlane32_swap_b32 v41, v43")
    a("v_add_f32 v40, v40, v42")
    a("v_add_f32 v41, v41, v43")
    a("s_nop 1")
    a("v_permlane16_swap_b32 v40, v41")
    a("v_add_f32 v40, v40, v41")
    a("s_nop 1")
    a("v_add_f32_dpp v40, v40, v40 row_ror:8 row_mask:0xf bank_mask:0xf")
    a("v_cvt_pk_bf16_f32 v40, v40, v40")
    put_tag(40)
    a("s_mov_b32 exec_lo, 0x00ff00ff")
    a("s_mov_b32 exec_hi, 0x00ff00ff")
    a("buffer_store_dword v40, v6, s[48:51], s8 offen sc1")
    a("s_branch L_S_END")

    a.label("L_S_tail")
    a("s_lshr_b32 s7, s98, 2")
    a("s_lshl_b32 s7, s7, 8")
    a(f"s_add_u32 s7, s7, {O2_OFF}")
    srd(60, 34, 4096)
    a("v_lshlrev_b32 v10, 2, v5")
    a("s_lshl_b32 s12, s98, 4")
    a("buffer_load_dword v36, v10, s[56:59], s12 offen")
    a("v_lshlrev_b32 v9, 7, v0")
    a("s_lshr_b32 s13, s98, 2")
    a("s_lshl_b32 s13, s13, 13")
    a("s_and_b32 s11, s98, 3")
    a("s_lshl_b32 s11, s11, 5")
    a("s_add_u32 s13, s13, s11")
    a(f"s_add_u32 s13, s13, {XP_OFF}")
    a("v_lshrrev_b32 v12, 5, v0")
    a("v_lshlrev_b32 v12, 14, v12")
    a("v_and_b32 v13, 31, v0")
    a("v_lshl_add_u32 v12, v13, 3, v12")
    a("v_lshlrev_b32 v13, 2, v0")
    wait_flags([(WF, 4, 14)], 60, cfg.sleep_lds)
    stamp(7)

    def ld5():
        a("buffer_load_dwordx2 v[40:41], v12, s[48:51], s7 offen sc1")
    poll(ld5, lambda: check_tag([40, 41], 42, 43), cfg.sleep_tail, rec=13)
    a("v_perm_b32 v40, v41, v40, s65")
    a(f"ds_write_b32 v13, v40 offset:{OB}")
    set_flag(BF)
    stamp(9)
    wait_flags([(SF, 4, 14)], 60, cfg.sleep_of)

    def ld4():
        a(f"buffer_load_dwordx4 v[40:43], v9, s[48:51], s13 offen sc1{XNT}")
        a(f"buffer_load_dwordx4 v[44:47], v9, s[48:51], s13 offen offset:16 sc1{XNT}")
    poll(ld4, lambda: check_tag(range(40, 48), 12, 13), cfg.sleep_tail)
    stamp(10)
    for k in range(4):
        a(f"v_permlane32_swap_b32 v{40+k}, v{44+k}")
    for k in range(4):
        a(f"v_add_f32 v{40+k}, v{40+k}, v{44+k}")
    a("s_nop 0")
    a("v_permlane16_swap_b32 v40, v42")
    a("v_permlane16_swap_b32 v41, v43")
    a("v_add_f32 v40, v40, v42")
    a("v_add_f32 v41, v41, v43")
    for s in (8, 4, 2, 1):
        a("s_nop 0")
        a(f"v_add_f32_dpp v40, v40, v40 row_ror:{s} row_mask:0xf bank_mask:0xf")
        a(f"v_add_f32_dpp v41, v41, v41 row_ror:{s} row_mask:0xf bank_mask:0xf")
    a("v_lshlrev_b32 v42, 16, v36")
    a("v_and_b32 v43, s66, v36")
    a("v_add_f32 v40, v40, v42")
    a("v_add_f32 v41, v41, v43")
    a("v_cvt_pk_bf16_f32 v40, v40, v41")
    a("s_mov_b32 exec_lo, 0x00010001")
    a("s_mov_b32 exec_hi, 0x00010001")
    a("buffer_store_dword v40, v10, s[60:63], s12 offen")
    stamp(11)
    if cfg.padto:
        a("s_mov_b64 exec, -1")
        if cfg.padglobal:
            srd(52, 36, 256)
            a(f"buffer_load_dword v20, v14, s[52:55], 0 offen offset:{4*(cfg.padglobal-1)} sc1")
            a("s_waitcnt vmcnt(0)")
            a("v_readfirstlane_b32 s94, v20")
            if cfg.padglobal == 1:
                a("s_not_b32 s94, s94")
        a.label("L_pad")
        a("s_memrealtime s[96:97]")
        a("s_waitcnt lgkmcnt(0)")
        a("s_sub_u32 s96, s96, s94")
        a(f"s_cmp_lt_u32 s96, {cfg.padto}")
        a("s_cbranch_scc1 L_pad")
    a("s_cmp_lg_u32 s2, 0")
    a("s_cbranch_scc1 L_S_END")
    a("s_mov_b64 exec, 1")
    a(f"s_mov_b32 s9, {EP_OFF:#x}")
    a("buffer_store_dword v15, v14, s[48:51], s9 offen")
    a.label("L_S_END")
    dump_stamps()
    a("s_endpgm")

    a.label("L_ATT")
    RING = 16
    SC = RING + 16 * R
    QR = SC + 32
    ST = QR + 8
    AC = QR
    PTA = AC + 32
    assert PTA + 16 <= 256 and ST + 26 <= 256 and R == 10
    a("s_sub_u32 s6, s3, 4")
    a("v_bfe_u32 v6, v4, 1, 1")
    a("v_lshrrev_b32 v7, 2, v4")
    a("v_lshl_add_u32 v6, v6, 2, v7")
    a("v_lshlrev_b32 v6, 8, v6")
    a("v_lshl_add_u32 v6, v5, 5, v6")
    a("v_and_b32 v7, 1, v4")
    a("v_lshl_add_u32 v6, v7, 4, v6")
    a("v_lshlrev_b32 v7, 4, v0")
    a("s_lshl_b32 s7, s99, 18")
    a("s_lshl_b32 s8, s6, 12")
    a("s_add_u32 s7, s7, s8")
    a("s_mov_b32 s8, s7")
    a("s_lshl_b32 s9, s6, 2")
    a("v_mov_b32 v13, s9")
    a("s_waitcnt lgkmcnt(0)")
    load_tag()
    srd(40, 18, 0x4000000)
    srd(44, 20, 0x4000000)
    srd(48, 38, WS_SIZE)
    srd(52, 24, 0x800000)
    srd(56, 32, 0x700000)
    consts()
    a("v_mul_u32_u24 v11, 272, v9")
    a("v_lshl_add_u32 v11, v5, 5, v11")
    a("v_lshl_add_u32 v11, v8, 4, v11")
    a("v_mov_b32 v10, 0xff800000")
    a("s_barrier")
    a("s_waitcnt lgkmcnt(0)")
    make_tag()
    N = cfg.n
    N0 = cfg.n0 or N
    NL = 144
    lim = [128]
    nl = [0]

    def slot_of(item):
        return RING + 16 * (item % R)

    def issue1():
        k = nl[0]
        if k >= lim[0]:
            return
        item, q = divmod(k, 4)
        slot = slot_of(item)
        if item < 16:
            a(f"buffer_load_dwordx4 {vr(slot+4*q,4)}, v6, s[40:43], s7 offen offset:{128*(q&1)+2048*(q>>1)}{NT}")
            if q == 3 and item < 15:
                a("s_add_u32 s7, s7, 16384")
        elif item < 32:
            a(f"buffer_load_dwordx4 {vr(slot+4*q,4)}, v7, s[44:47], s8 offen offset:{1024*q}{NT}")
            if q == 3 and item < 31:
                a("s_add_u32 s8, s8, 16384")
        elif item < 34:
            m = k - 128
            a(f"buffer_load_dwordx4 {vr(slot+4*q,4)}, v3, s[52:55], s11 offen offset:{2048*(m&1)}{NT}")
            if (m & 1) and m < 7:
                a("s_add_u32 s11, s11, 16384")
        else:
            e = k - 136
            a(f"buffer_load_dwordx4 {vr(slot+4*q,4)}, v1, s[56:59], s10 offen offset:{2048*(e&1)}{NT}")
            if (e & 1) and e < 7:
                a("s_add_u32 s10, s10, 4096")
        nl[0] += 1
        if cfg.pf and k == cfg.pf - 1:
            set_flag(PF)
        for c, (kc, thi, tlo) in enumerate(cps):
            if k == kc - 1:
                set_flag(CPF + 16 * c, 13)
        if k == cfg.go - 1:
            set_flag(GO, 13)
        if cfg.lf and k == cfg.lf - 1:
            set_flag(LF)
        if cfg.wf and k == cfg.wf - 1:
            set_flag(WF, 13)

    def wait_load(k):
        a(f"s_waitcnt vmcnt({nl[0] - k - 1})")

    NH = cfg.nh if cps else N
    lvl_pending = [False]

    def thr():
        if not cps:
            return
        uid[0] += 1
        lab = f"L_go{uid[0]}"
        a(f"s_cbranch_vccnz {lab}")
        a(f"s_waitcnt vmcnt({N-1})")
        if cfg.nl:
            a("s_cmp_eq_u64 s[12:13], 0") if False else None
            a("s_bitcmp1_b32 s101, 0")
            a(f"s_cbranch_scc0 {lab}")
            a(f"s_waitcnt vmcnt({cfg.nl-1})")
        a.label(lab)

    def lvl_update():
        if not cps:
            return
        if lvl_pending[0]:
            a("s_waitcnt lgkmcnt(0)")
            a("v_cmp_eq_u32 vcc, 1, v2")
            if cfg.nl:
                a("v_cmp_eq_u32 s[100:101], 2, v2")
        a(f"ds_read_b32 v2, v14 offset:{LV}")
        lvl_pending[0] = True

    def advance(item):
        for q in range(4):
            k = 4 * item + q
            if nl[0] < lim[0] and nl[0] - (k + 1) < NH:
                wait_load(k)
                while nl[0] < lim[0] and nl[0] - (k + 1) < NH:
                    issue1()
            elif q == 3:
                wait_load(k)

    for k in range(4 * R):
        if k >= N0:
            a(f"s_waitcnt vmcnt({N0-1})")
        issue1()
    stamp(1)
    wait_flags([(QF, 1, 14)], QR, 1)
    stamp(2)
    for c in range(2):
        a(f"ds_read_b128 {vr(QR+4*c,4)}, v11 offset:{QB+128*c}")
    a("s_mov_b64 vcc, 0")
    a("s_mov_b64 s[100:101], 0")
    a("s_waitcnt lgkmcnt(0)")

    def post(i):
        t = ST + 8 * (i & 1)
        w = ST + 16
        for q in range(4):
            a(f"v_add_f32_dpp v{w+6+q}, v{t+2*q+1}, v{t+2*q} row_ror:8 row_mask:0xf bank_mask:0xf")
        s = w + 6
        a(f"v_max3_f32 v10, v10, v{s}, v{s+1}")
        a(f"v_cvt_pk_bf16_f32 v{w+4}, v{s}, v{s+1}")
        a(f"v_cvt_pk_bf16_f32 v{w+5}, v{s+2}, v{s+3}")
        a(f"v_max3_f32 v10, v10, v{s+2}, v{s+3}")
        a(f"v_lshlrev_b32 v{w}, 16, v{w+4}")
        a(f"v_and_b32 v{w+1}, s66, v{w+4}")
        a(f"v_lshlrev_b32 v{w+2}, 16, v{w+5}")
        a(f"v_and_b32 v{w+3}, s66, v{w+5}")
        for k in range(4):
            a(f"v_mul_f32 v{w+k}, s68, v{w+k}")
        a(f"v_cvt_pk_bf16_f32 v{SC+2*i}, v{w}, v{w+1}")
        a(f"v_cvt_pk_bf16_f32 v{SC+2*i+1}, v{w+2}, v{w+3}")

    for i in range(16):
        advance(i)
        slot = slot_of(i)
        t = ST + 8 * (i & 1)
        for st_ in range(2):
            for ln in range(2):
                cc = "0" if ln == 0 else vr(t + 4 * st_, 4)
                a(f"v_mfma_f32_16x16x32_bf16 {vr(t+4*st_,4)}, {vr(slot+4*(2*st_+ln),4)}, {vr(QR+4*ln,4)}, {cc}")
        if nl[0] - 4 * (i + 1) >= NH and nl[0] < 4 * (i + 1 + R):
            cnt = cfg.catch0 if i == 0 else cfg.catch
            for _ in range(cnt):
                if nl[0] < 4 * (i + 1 + R):
                    a(f"s_waitcnt vmcnt({N-1})")
                    issue1()
        if i >= 1:
            a("s_nop 3")
            post(i - 1)
    a("s_nop 7")
    post(15)
    stamp(3)
    xlane("v_max_f32", 10, 11, [16, 32])
    w = ST
    MM, LL, L2 = ST + 8, ST + 9, ST + 10
    assert MM % 2 == 0
    round_bf16(MM, 10)
    a(f"v_mul_f32 v{MM}, s68, v{MM}")
    round_bf16(MM, MM)
    a(f"v_mul_f32 v11, s67, v{MM}")
    a(f"v_mov_b32 v{LL}, 0")
    a(f"v_mov_b32 v{L2}, 0")
    for k in range(0, 32, 2):
        if k % cfg.smstep == 0:
            issue1()
        for q in range(2):
            a(f"v_lshlrev_b32 v{w+2*q}, 16, v{SC+k+q}")
            a(f"v_and_b32 v{w+2*q+1}, s66, v{SC+k+q}")
        for q in range(4):
            a(f"v_fma_f32 v{w+q}, v{w+q}, s67, -v11")
        for q in range(4):
            a(f"v_exp_f32 v{w+q}, v{w+q}")
        a(f"v_add_f32 v{LL}, v{LL}, v{w}")
        a(f"v_add_f32 v{L2}, v{L2}, v{w+1}")
        a(f"v_cvt_pk_bf16_f32 v{SC+k}, v{w}, v{w+1}")
        a(f"v_add_f32 v{LL}, v{LL}, v{w+2}")
        a(f"v_add_f32 v{L2}, v{L2}, v{w+3}")
        a(f"v_cvt_pk_bf16_f32 v{SC+k+1}, v{w+2}, v{w+3}")
    a(f"v_add_f32 v{LL}, v{LL}, v{L2}")
    xlane("v_add_f32", LL, L2, [16, 32])
    a(f"v_min_u32 v{LL}, -2, v{LL}")
    a("s_lshl_b32 s9, s6, 6")
    a("v_lshlrev_b32 v12, 3, v0")
    a("v_add_u32 v12, s9, v12")
    a("s_mov_b64 exec, 0xff")
    a(f"ds_write_b64 v12, {vr(MM,2)} offset:{MLB}")
    a("s_mov_b64 exec, -1")
    stamp(4)
    issue1()
    a("s_lshr_b32 s4, s98, 2")
    a("s_and_b32 s5, s98, 3")
    a("s_mul_i32 s9, s6, 4224")
    a("v_mul_u32_u24 v10, 528, v4")
    a("v_lshl_add_u32 v10, v5, 7, v10")
    a("v_add_u32 v10, s9, v10")
    a("v_lshrrev_b32 v3, 1, v5")
    a("v_lshlrev_b32 v3, 5, v3")
    a("v_and_b32 v1, 1, v5")
    a("v_lshl_add_u32 v3, v1, 2, v3")
    a("v_lshl_add_u32 v3, v8, 1, v3")
    a("v_lshlrev_b32 v3, 11, v3")
    a("v_lshl_add_u32 v3, v9, 4, v3")
    a("v_lshlrev_b32 v1, 3, v8")
    a("v_lshl_add_u32 v1, v5, 4, v1")
    a("v_lshlrev_b32 v1, 11, v1")
    a("v_lshl_add_u32 v1, v9, 4, v1")
    a("s_lshl_b32 s11, s5, 9")
    a("s_lshl_b32 s12, s6, 7")
    a("s_add_u32 s12, s12, s11")
    a("s_lshl_b32 s11, s4, 17")
    a("s_add_u32 s11, s11, s12")
    a("s_and_b32 s10, s2, 7")
    a("s_mul_i32 s10, s10, 7")
    a("s_lshr_b32 s13, s2, 5")
    a("s_add_u32 s10, s10, s13")
    a("s_cmp_ge_u32 s4, 56")
    a("s_cselect_b32 s10, 56, s10")
    a("s_lshl_b32 s10, s10, 17")
    a("s_add_u32 s10, s10, s12")
    a("v_bfe_u32 v12, v4, 2, 1")
    a("v_lshlrev_b32 v12, 7, v12")
    a("v_lshl_add_u32 v12, v5, 5, v12")
    a("v_and_b32 v11, 1, v4")
    a("v_lshl_add_u32 v12, v11, 4, v12")
    a("v_lshlrev_b32 v11, 18, v5")
    a("v_lshrrev_b32 v6, 2, v9")
    a("v_lshl_add_u32 v11, v6, 13, v11")
    a("v_and_b32 v6, 3, v9")
    a("v_lshl_add_u32 v11, v6, 5, v11")
    a("v_lshl_add_u32 v11, v8, 4, v11")
    a("s_lshl_b32 s9, s5, 16")
    a("s_lshl_b32 s12, s6, 14")
    a("s_add_u32 s9, s9, s12")
    a("s_lshl_b32 s12, s4, 7")
    a("s_add_u32 s9, s9, s12")
    a(f"s_add_u32 s9, s9, {XP_OFF}")
    a("v_lshrrev_b32 v4, 5, v0")
    a("s_lshl_b32 s12, s6, 1")
    a("v_add_u32 v4, s12, v4")
    a("v_lshlrev_b32 v5, 4, v4")
    a("v_mul_u32_u24 v4, 528, v4")
    a("v_and_b32 v6, 31, v0")
    a("v_lshl_add_u32 v4, v6, 4, v4")
    a("v_lshlrev_b32 v8, 4, v9")
    a("v_lshrrev_b32 v6, 3, v0")
    a("v_lshl_add_u32 v8, v6, 12, v8")
    a("v_mul_u32_u24 v6, 5, v6")
    a("v_add_u32 v6, s99, v6")
    a("v_and_b32 v6, 31, v6")
    a("v_lshl_add_u32 v8, v6, 7, v8")
    a("s_lshr_b32 s5, s99, 5")
    a("s_lshl_b32 s5, s5, 17")
    a("s_lshl_b32 s12, s6, 15")
    a("s_add_u32 s5, s5, s12")
    a(f"s_add_u32 s5, s5, {OP_OFF}")
    get_mode(6)
    for it in range(16, 32):
        advance(it)
        if it & 1:
            u = (it - 16) // 2
            s0 = slot_of(16 + 2 * u)
            s1 = slot_of(17 + 2 * u)
            src = lambda e, s0=s0, s1=s1: (s0 if e < 4 else s1) + 4 * (e & 3)

            def M(i, u=u):
                for h in range(2):
                    j = 2 * i + h
                    c = "0" if u == 0 else vr(AC + 4 * j, 4)
                    a(f"v_mfma_f32_16x16x32_bf16 {vr(AC+4*j,4)}, {vr(PTA+8*(i&1)+4*h,4)}, {vr(SC+4*u,4)}, {c}")
            perms(PTA, src, 0)
            perms(PTA + 8, src, 1)
            M(0)
            perms(PTA, src, 2)
            M(1)
            perms(PTA + 8, src, 3)
            M(2)
            M(3)
    stamp(5)
    a("s_mov_b32 exec_lo, 0x00ff00ff")
    a("s_mov_b32 exec_hi, 0x00ff00ff")
    for j in range(8):
        if j == 4:
            a("s_nop 0")
        a(f"ds_write_b128 v10, {vr(AC+4*j,4)} offset:{ORED+16*j}")
    a("s_mov_b64 exec, -1")
    set_flag(OF, 13)
    T0 = slot_of(0)
    wait_flags([(OF, 4, 14), (FF, 1, 14)], T0, 0)
    a(f"ds_read_b128 {vr(T0,4)}, v5 offset:{FB}")
    for w_ in range(4):
        a(f"ds_read_b128 {vr(T0+4+4*w_,4)}, v4 offset:{ORED+4224*w_}")
    a("s_waitcnt lgkmcnt(0)")
    for w_ in range(4):
        for k in range(4):
            if w_ == 0:
                a(f"v_mul_f32 v{T0+4+k}, v{T0}, v{T0+4+k}")
            else:
                a(f"v_fmac_f32 v{T0+4+k}, v{T0+w_}, v{T0+4+4*w_+k}")
    for k in range(4):
        put_tag(T0 + 4 + k)
    store_mode(f"buffer_store_dwordx4 {vr(T0+4,4)}, v8, s[48:51], s5 offen")
    stamp(6)
    TP = slot_of(6)
    XACC = SC
    wait_flags([(GF, 2, 14)], PTA, 1)
    lim[0] = NL
    for _ in range(NH):
        issue1()
    advance(32)
    advance(33)
    srco = lambda e: (lambda m: slot_of(32 + (m >> 2)) + 4 * (m & 3))(2 * (e & 3) + (e >> 2))
    for i in range(4):
        perms(TP + 8 * i, srco, i)
    advance(34)
    assert nl[0] == NL
    if cfg.diagx:
        advance(35)
        stamp(7)
    wait_flags([(BF, 1, 14)], PTA + 4, 0)
    stamp(8)
    a(f"ds_read_b128 {vr(PTA+4,4)}, v12 offset:{OB}")
    a("s_waitcnt lgkmcnt(0)")
    for j in range(8):
        a(f"v_mfma_f32_16x16x32_bf16 {vr(XACC+4*j,4)}, {vr(PTA+4,4)}, {vr(TP+4*j,4)}, 0")
    a("s_cmp_ge_u32 s4, 56")
    a("s_cbranch_scc1 L_noffn")
    wait_flags([(HF, 1, 14)], PTA, 0)
    stamp(9)
    a(f"ds_read_b128 {vr(PTA,4)}, v12 offset:{HB}")
    advance(35)
    if not cfg.diagx:
        stamp(7)
    srcd = lambda e: slot_of(34 + (e >> 2)) + 4 * (e & 3)
    perms(TP + 32, srcd, 0)
    a("s_waitcnt lgkmcnt(0)")
    for i in range(4):
        if i < 3:
            perms(TP + 32 + 8 * (i + 1), srcd, i + 1)
        else:
            a("s_nop 0")
        for j in (2 * i, 2 * i + 1):
            a(f"v_mfma_f32_16x16x32_bf16 {vr(XACC+4*j,4)}, {vr(PTA,4)}, {vr(TP+32+4*j,4)}, {vr(XACC+4*j,4)}")
    a("s_nop 1")
    a.label("L_noffn")
    a("s_nop 3")
    a("s_nop 1")
    fold(PTA + 8, XACC)
    a("s_mov_b32 exec_hi, 0")
    a(f"buffer_store_dwordx4 {vr(PTA+8,4)}, v11, s[48:51], s9 offen sc1{TNT}")
    set_flag(SF, 13)
    stamp(10)
    dump_stamps()
    a.label("L_END")
    a("s_endpgm")

    probs = check_hazards(a.lines)
    for p in probs:
        print(p, file=sys.stderr)
    if probs:
        raise SystemExit("hazards found")

    pad = ""
    if cfg.codepf:
        psz = (512 << cfg.codepf) + 256 if cfg.codepf < 7 else 24576
        pad = f".fill ({psz} - (. - {NAME}_kernel)) / 4, 4, 0xBF800000\n"
    out = HEADER
    out += "; Generated by work/gen8.py (hand-written generator). One persistent launch, 256 workgroups x 8 waves.\n"
    out += f"; @launch grid=(256,1,1) block=(512,1,1) lds={LDS_SIZE}\n"
    out += f""".amdgcn_target "amdgcn-amd-amdhsa--gfx950"
.text
.globl {NAME}_kernel
.p2align 8
.type {NAME}_kernel,@function
{NAME}_kernel:
"""
    out += a.text()
    out += pad
    out += f""".section .rodata,"a"
.p2align 6
.amdhsa_kernel {NAME}_kernel
  .amdhsa_next_free_vgpr 256
  .amdhsa_next_free_sgpr 102
  .amdhsa_accum_offset 256
  .amdhsa_group_segment_fixed_size 0
  .amdhsa_kernarg_size 96
  .amdhsa_user_sgpr_count 2
  .amdhsa_user_sgpr_kernarg_segment_ptr 1
  .amdhsa_system_sgpr_workgroup_id_x 1
  .amdhsa_float_denorm_mode_32 3
.end_amdhsa_kernel
"""
    return out


def parse_args(argv=None):
    p = argparse.ArgumentParser()
    p.add_argument("-o", default="cdna_kernels/" + NAME + ".s")
    p.add_argument("--ring", type=int, default=10)
    p.add_argument("--stamps", type=int, default=0)
    p.add_argument("--codepf", type=int, default=6)
    p.add_argument("--sleep", type=int, default=8)
    p.add_argument("--sleep_q", type=int, default=0)
    p.add_argument("--sleep_lds", type=int, default=2)
    p.add_argument("--sleep_of", type=int, default=1)
    p.add_argument("--sleep_tail", type=int, default=0)
    p.add_argument("--spin", type=int, default=400000)
    p.add_argument("--n", type=int, default=6)
    p.add_argument("--n0", type=int, default=0)
    p.add_argument("--ns", type=int, default=10)
    p.add_argument("--gate", type=int, default=26)
    p.add_argument("--crot", type=int, default=1)
    p.add_argument("--pf", type=int, default=16)
    p.add_argument("--wf", type=int, default=136)
    p.add_argument("--catch0", type=int, default=4)
    p.add_argument("--catch", type=int, default=1)
    p.add_argument("--smstep", type=int, default=6)
    p.add_argument("--abl", type=int, default=0)
    p.add_argument("--cp", default="")
    p.add_argument("--diagx", type=int, default=0)
    p.add_argument("--go", type=int, default=128)
    p.add_argument("--sleep_l1", type=int, default=0)
    p.add_argument("--nofast", type=int, default=0)
    p.add_argument("--xtw", type=int, default=1)
    p.add_argument("--wf1", type=int, default=0)
    p.add_argument("--mlplain", type=int, default=0)
    p.add_argument("--satom", type=int, default=0)
    p.add_argument("--nh", type=int, default=8)
    p.add_argument("--nl", type=int, default=5)
    p.add_argument("--padto", type=int, default=0)
    p.add_argument("--padglobal", type=int, default=0)
    p.add_argument("--lf", type=int, default=108)
    p.add_argument("--k2", type=int, default=0)
    p.add_argument("--n2", type=int, default=10)
    p.add_argument("--kr", type=int, default=2)
    p.add_argument("--qmap", type=int, default=1)
    p.add_argument("--xm", type=int, default=1)
    p.add_argument("--gm", type=int, default=1)
    p.add_argument("--gpw", type=int, default=2)
    p.add_argument("--hnt", type=int, default=0)
    return p.parse_args(argv)


if __name__ == "__main__":
    cfg = parse_args()
    open(cfg.o, "w").write(gen(cfg))
    print("wrote", cfg.o)
```

```python
import sys
import argparse
import struct
import math
from asmlib import Asm, vr, sr, check_hazards

NAME = "parallel_sum__gqa_block_cached__geglu_ffn__decode"

QP_OFF = 0x000000
GP_OFF = 0x020000
ML_OFF = 0x060000
XT_OFF = 0x068000
EP_OFF = 0x070000
O2_OFF = 0x078000
OP_OFF = 0x080000
XP_OFF = 0x180000
ST_OFF = 0x200000
WS_SIZE = 0x400000
XN = 0x0000
QB = 0x0400
MLB = 0x0C80
FL = 0x0D80
OF = FL + 0
FF = FL + 16
GF = FL + 24
QF = FL + 32
XF = FL + 36
PF = FL + 40
HF = FL + 44
LF = FL + 20
WF = FL + 48
BF = FL + 72
GO = FL + 80
SF = FL + 96
FM = FL + 68
LV = FL + 64
CPF = FL + 128
FB = 0x0E80
OB = 0x0F00
HB = 0x1000
ORED = 0x1100
LDS_SIZE = ORED + 4 * 4224

LOG2E = 0x3FB8AA3B
SCALE = 0x3DB504F3
EPS = 0x3727C5AC

HEADER = open("cdna_kernels/" + NAME + ".s.ref").read().split("; Override launch")[0]


def f32bits(x):
    return struct.unpack("<I", struct.pack("<f", x))[0]


def gen(cfg):
    a = Asm()
    R = cfg.ring
    NT = " nt" if not cfg.nont & 4 else ""
    KNT = " nt" if not cfg.nont & 1 else ""
    VNT = " nt" if not cfg.nont & 2 else ""
    MLS = "" if cfg.mlplain else " sc1"
    MNT = " nt" if cfg.hnt & 1 else ""
    ONT = " nt" if cfg.hnt & 2 else ""
    XNT = " nt" if cfg.hnt & 4 else ""
    SNT = " nt" if cfg.hnt & 8 else ""
    TNT = " nt" if cfg.hnt & 16 else ""
    uid = [0]
    cps = [tuple(int(x) for x in t.split(":")) for t in cfg.cp.split(",")] if cfg.cp else []

    def stamp(k):
        if cfg.stamps:
            a(f"s_memrealtime s[{70+2*k}:{71+2*k}]")

    def srd(d, p, size):
        a(f"s_mov_b32 s{d}, s{p}")
        a(f"s_mov_b32 s{d+1}, s{p+1}")
        a(f"s_mov_b32 s{d+2}, {size:#x}")
        a(f"s_mov_b32 s{d+3}, 0x20000")

    def dump_stamps():
        if not cfg.stamps:
            return
        a("s_waitcnt lgkmcnt(0)")
        for _ in range(3):
            a("s_sleep 127")
        a("s_mov_b64 exec, 1")
        a("s_lshl_b32 s4, s2, 10")
        a("s_lshl_b32 s5, s3, 7")
        a("s_add_u32 s4, s4, s5")
        a(f"s_add_u32 s4, s4, {ST_OFF}")
        a("v_mov_b32 v3, 0")
        for k in range(14):
            a(f"v_mov_b32 v1, s{70+2*k}")
            a(f"buffer_store_dword v1, v3, s[48:51], s4 offen offset:{4*k}")

    def poll(loads, check, sleep, cnt="vmcnt", rec=None):
        uid[0] += 1
        n = uid[0]
        a(f"s_mov_b32 s15, {cfg.spin}")
        a.label(f"L_poll{n}")
        loads()
        a(f"s_waitcnt {cnt}(0)")
        check()
        a(f"s_cbranch_scc1 L_pdone{n}")
        a("s_sub_u32 s15, s15, 1")
        a(f"s_cbranch_scc1 L_pdone{n}")
        if sleep:
            a(f"s_sleep {sleep}")
        a(f"s_branch L_poll{n}")
        a.label(f"L_pdone{n}")
        if rec is not None and cfg.stamps:
            a(f"s_sub_u32 s{70+2*rec}, {cfg.spin+1}, s15")

    def wait_flags(reads, t, sleep):
        regs = []

        def ld():
            r = t
            regs.clear()
            for off, n, av in reads:
                op = {1: "ds_read_b32", 2: "ds_read_b64", 4: "ds_read_b128"}[n]
                a(f"{op} {vr(r,n)}, v{av} offset:{off}")
                regs.extend(range(r, r + n))
                r += (n + 1) & ~1

        def ck():
            rs = list(regs)
            while len(rs) >= 3:
                a(f"v_or3_b32 v{rs[0]}, v{rs[0]}, v{rs[1]}, v{rs[2]}")
                rs = [rs[0]] + rs[3:]
            if len(rs) == 2:
                a(f"v_or_b32 v{rs[0]}, v{rs[0]}, v{rs[1]}")
            a(f"v_cmp_eq_u32 vcc, 0, v{rs[0]}")
            a("s_cmp_eq_u64 vcc, -1")
        poll(ld, ck, sleep, cnt="lgkmcnt")

    def set_flag(off, av=14):
        a(f"ds_write_b32 v{av}, v14 offset:{off}")

    def get_mode(t):
        def ld():
            a(f"ds_read_b32 v{t}, v14 offset:{FM}")

        def ck():
            a(f"v_readfirstlane_b32 s101, v{t}")
            a("s_cmp_lg_u32 s101, -1")
        poll(ld, ck, cfg.sleep_lds, cnt="lgkmcnt")

    def store_mode(ins):
        uid[0] += 1
        n = uid[0]
        a("s_cmp_eq_u32 s101, 1")
        a(f"s_cbranch_scc1 L_stf{n}")
        a(ins + " sc1")
        a(f"s_branch L_std{n}")
        a.label(f"L_stf{n}")
        a(ins)
        a.label(f"L_std{n}")

    def check_tag(regs, t0, t1):
        regs = list(regs)
        a(f"v_xor_b32 v{t0}, s14, v{regs[0]}")
        a(f"v_xor_b32 v{t1}, s14, v{regs[1]}")
        for k, r in enumerate(regs[2:]):
            t = t0 if k % 2 == 0 else t1
            a(f"v_bitop3_b32 v{t}, v{r}, s14, v{t} bitop3:0xbe")
        a(f"v_or_b32 v{t0}, v{t0}, v{t1}")
        a(f"v_and_b32 v{t0}, s69, v{t0}")
        a(f"v_cmp_eq_u32 vcc, 0, v{t0}")
        a("s_cmp_eq_u64 vcc, -1")

    def check_sentinel(regs, tmp):
        regs = list(regs)
        a(f"v_max3_u32 v{tmp}, v{regs[0]}, v{regs[1]}, v{regs[2]}")
        regs = regs[3:]
        while len(regs) >= 2:
            a(f"v_max3_u32 v{tmp}, v{tmp}, v{regs[0]}, v{regs[1]}")
            regs = regs[2:]
        if regs:
            a(f"v_max_u32 v{tmp}, v{tmp}, v{regs[0]}")
        a(f"v_cmp_ne_u32 vcc, -1, v{tmp}")
        a("s_cmp_eq_u64 vcc, -1")

    def put_tag(r):
        a(f"v_bfi_b32 v{r}, s69, v15, v{r}")

    def load_tag():
        a(f"s_load_dword s14, s[38:39], {EP_OFF:#x}")

    def make_tag():
        a("s_add_u32 s14, s14, 1")
        a("s_and_b32 s14, s14, 0xff")
        a("v_mov_b32 v15, s14")

    def xlane(op, x, t, steps):
        for s in steps:
            if s in (1, 2, 4, 8):
                a("s_nop 1")
                a(f"{op}_dpp v{x}, v{x}, v{x} row_ror:{s} row_mask:0xf bank_mask:0xf")
            else:
                a(f"v_mov_b32 v{t}, v{x}")
                a("s_nop 1")
                a(f"v_permlane{s}_swap_b32 v{x}, v{t}")
                a(f"{op} v{x}, v{x}, v{t}")

    def round_bf16(d, s):
        a(f"v_cvt_pk_bf16_f32 v{d}, v{s}, v{s}")
        a(f"v_lshlrev_b32 v{d}, 16, v{d}")

    def perms(dst, src_e, i):
        for p in range(4):
            a(f"v_perm_b32 v{dst+p}, v{src_e(2*p+1)+i}, v{src_e(2*p)+i}, s64")
        for p in range(4):
            a(f"v_perm_b32 v{dst+4+p}, v{src_e(2*p+1)+i}, v{src_e(2*p)+i}, s65")

    def fold(dst, acc):
        for k in range(4):
            a(f"v_add_f32_dpp v{dst+k}, v{acc+4*k+1}, v{acc+4*k} row_ror:8 row_mask:0xf bank_mask:0x3")
        for k in range(4):
            if k >= 2:
                a("s_nop 0")
            a(f"v_add_f32_dpp v{dst+k}, v{acc+4*(k+4)}, v{acc+4*(k+4)+1} row_ror:8 row_mask:0xf bank_mask:0xc")
        for k in range(4):
            put_tag(dst + k)

    def consts():
        a("s_mov_b32 s64, 0x05040100")
        a("s_mov_b32 s65, 0x07060302")
        a("s_mov_b32 s66, 0xffff0000")
        a(f"s_mov_b32 s67, {LOG2E:#x}")
        a(f"s_mov_b32 s68, {SCALE:#x}")
        a("s_movk_i32 s69, 0xff")

    a("s_cmp_ge_u32 s2, 256")
    a("s_cbranch_scc1 L_END")
    a("s_load_dwordx16 s[16:31], s[0:1], 0")
    a("s_load_dwordx8 s[32:39], s[0:1], 64")
    stamp(0)
    if cfg.padto:
        a("s_memrealtime s[94:95]")
    if cfg.codepf and cfg.codepf < 7:
        a("s_getpc_b64 s[4:5]")
        a(f"v_lshlrev_b32 v1, {cfg.codepf}, v0")
        a("global_load_dword v2, v1, s[4:5]")
    a("v_lshrrev_b32 v3, 6, v0")
    if cfg.xm:
        a("s_and_b32 s98, s2, 7")
        a("s_lshl_b32 s98, s98, 2")
        a("s_bfe_u32 s100, s2, 0x20003")
        a("s_or_b32 s98, s98, s100")
        a("s_and_b32 s100, s2, 0xe0")
        a("s_or_b32 s98, s98, s100")
    else:
        a("s_mov_b32 s98, s2")
    if cfg.gm:
        a("s_and_b32 s99, s2, 7")
        a("s_lshl_b32 s99, s99, 5")
        a("s_lshr_b32 s100, s2, 3")
        a("s_or_b32 s99, s99, s100")
    else:
        a("s_mov_b32 s99, s2")
    a("v_and_b32 v0, 63, v0")
    a("v_readfirstlane_b32 s3, v3")
    a("v_and_b32 v4, 15, v0")
    a("v_lshrrev_b32 v5, 4, v0")
    a("v_mov_b32 v14, 0")
    a("v_lshrrev_b32 v8, 3, v4")
    a("v_and_b32 v9, 7, v4")
    a("s_cmp_ge_u32 s3, 4")
    a("s_cbranch_scc1 L_ATT")
    a("s_lshr_b32 s6, s98, 2")
    a("s_and_b32 s7, s98, 3")
    a("v_lshlrev_b32 v10, 3, v8")
    a("v_lshl_add_u32 v10, v5, 4, v10")
    a("s_cmp_lg_u32 s3, 0")
    a("s_cbranch_scc1 L_S123")

    XA = 16
    XO = 32
    XU = 36
    WR = 72
    ACC = 200
    PT = 232

    def wloads(stride, throttle, gate):
        for T in range(4):
            for e in range(8):
                k = 8 * T + e
                if throttle and k >= throttle:
                    a(f"s_waitcnt vmcnt({throttle-1})")
                a(f"buffer_load_dwordx4 {vr(WR+32*T+4*e,4)}, v10, s[40:43], s10 offen{NT}")
                if k < 31:
                    a(f"s_add_u32 s10, s10, {stride * (57 if e == 7 else 1)}")
                if gate and k == gate - 1:
                    set_flag(GF - 4, 13)

    if cfg.qmap:
        a("s_mul_i32 s4, s6, 37")
        a("s_lshr_b32 s4, s4, 8")
        a("s_mul_i32 s5, s4, 7")
        a("s_sub_u32 s5, s6, s5")
        a("s_cmp_ge_u32 s5, 3")
        a("s_addc_u32 s5, s5, 0")
        a("s_lshl_b32 s4, s4, 3")
        a("s_add_u32 s5, s5, s4")
        a("s_lshl_b32 s4, s6, 3")
        a(f"s_sub_u32 s4, s4, {56*8-3}")
        a("s_cmp_ge_u32 s6, 56")
        a("s_cselect_b32 s6, s4, s5")
    a("s_mov_b32 s9, 14")
    a("s_mov_b32 s101, 0")
    a("v_lshlrev_b32 v6, 6, v0")
    a("v_lshrrev_b32 v7, 5, v0")
    a("v_lshlrev_b32 v7, 11, v7")
    a("v_and_b32 v11, 31, v0")
    a("v_lshl_add_u32 v7, v11, 4, v7")
    a("s_lshl_b32 s12, s7, 9")
    a("v_lshlrev_b32 v10, 13, v10")
    a("v_lshl_add_u32 v10, v9, 4, v10")
    a("s_lshl_b32 s10, s7, 21")
    a("s_lshl_b32 s11, s6, 7")
    a("s_add_u32 s10, s10, s11")
    a("s_waitcnt lgkmcnt(0)")
    srd(56, 16, 4096)
    srd(40, 22, 0x800000)
    load_tag()
    for i in range(4):
        a(f"buffer_load_dwordx4 {vr(XA+4*i,4)}, v6, s[56:59], 0 offen offset:{16*i}")
    a(f"buffer_load_dwordx4 {vr(XO,4)}, v7, s[56:59], s12 offen")
    wloads(8192, 0, 0)
    stamp(1)
    a("s_barrier")
    srd(48, 38, WS_SIZE)
    consts()
    a("s_lshl_b32 s10, s7, 15")
    a("s_lshl_b32 s11, s6, 8")
    a("s_add_u32 s10, s10, s11")
    if QP_OFF:
        a(f"s_add_u32 s10, s10, {QP_OFF}")
    a("s_waitcnt vmcnt(32)")
    stamp(2)
    for i in range(16):
        a(f"v_lshlrev_b32 v{XU+2*i}, 16, v{XA+i}")
        a(f"v_and_b32 v{XU+2*i+1}, s66, v{XA+i}")
    for k in range(4):
        a(f"v_add_f32 v{XA+k}, v{XU+k}, v{XU+4+k}")
    for i in range(8, 32):
        a(f"v_add_f32 v{XA+(i&3)}, v{XA+(i&3)}, v{XU+i}")
    a(f"v_add_f32 v11, v{XA}, v{XA+1}")
    a(f"v_add_f32 v13, v{XA+2}, v{XA+3}")
    a("v_add_f32 v11, v11, v13")
    xlane("v_add_f32", 11, 12, [8, 4, 2, 1, 16])
    a("v_mul_f32 v11, 0x3a800000, v11")
    for i in range(32):
        a(f"v_sub_f32 v{XU+i}, v{XU+i}, v11")
    for k in range(4):
        a(f"v_mul_f32 v{XA+k}, v{XU+k}, v{XU+k}")
    for i in range(4, 32):
        a(f"v_fmac_f32 v{XA+(i&3)}, v{XU+i}, v{XU+i}")
    a(f"v_add_f32 v12, v{XA}, v{XA+1}")
    a(f"v_add_f32 v13, v{XA+2}, v{XA+3}")
    a("v_add_f32 v12, v12, v13")
    xlane("v_add_f32", 12, 13, [8, 4, 2, 1, 16])
    a("v_mul_f32 v12, 0x3a800000, v12")
    round_bf16(11, 11)
    round_bf16(12, 12)
    a(f"v_add_f32 v12, {EPS:#x}, v12")
    round_bf16(12, 12)
    a("v_sqrt_f32 v12, v12")
    a("s_nop 0")
    round_bf16(12, 12)
    a("v_rcp_f32 v13, v12")
    for i in range(4):
        a(f"v_lshlrev_b32 v{XU+2*i}, 16, v{XO+i}")
        a(f"v_and_b32 v{XU+2*i+1}, s66, v{XO+i}")
    for i in range(8):
        a(f"v_sub_f32 v{XU+i}, v{XU+i}, v11")
    for i in range(4):
        a(f"v_cvt_pk_bf16_f32 v{XO+i}, v{XU+2*i}, v{XU+2*i+1}")
    for i in range(4):
        a(f"v_lshlrev_b32 v{XU+2*i}, 16, v{XO+i}")
        a(f"v_and_b32 v{XU+2*i+1}, s66, v{XO+i}")
    for i in range(8):
        a(f"v_mul_f32 v{XU+8+i}, v{XU+i}, v13")
    for i in range(8):
        a(f"v_fma_f32 v{XU+i}, -v{XU+8+i}, v12, v{XU+i}")
    for i in range(8):
        a(f"v_fmac_f32 v{XU+8+i}, v{XU+i}, v13")
    for i in range(4):
        a(f"v_cvt_pk_bf16_f32 v{XO+i}, v{XU+8+2*i}, v{XU+8+2*i+1}")
    a("v_lshlrev_b32 v11, 4, v0")
    a(f"ds_write_b128 v11, {vr(XO,4)} offset:{XN}")
    set_flag(XF)
    a("s_waitcnt lgkmcnt(0)")
    make_tag()

    a.label("L_S_gemv")
    a("v_bfe_u32 v11, v4, 2, 1")
    a("v_lshlrev_b32 v11, 9, v11")
    a("v_lshl_add_u32 v11, v5, 5, v11")
    a("v_and_b32 v12, 1, v4")
    a("v_lshl_add_u32 v11, v12, 4, v11")
    for T in range(4):
        a(f"ds_read_b128 {vr(XU+4*T,4)}, v11 offset:{XN+128*T}")
    stamp(3)
    a("v_lshlrev_b32 v12, s9, v5")
    a("v_lshl_add_u32 v12, v9, 5, v12")
    a("v_lshl_add_u32 v12, v8, 4, v12")
    a("s_waitcnt lgkmcnt(0)")
    for T in range(4):
        a(f"s_waitcnt vmcnt({24-8*T})")
        src = lambda e, T=T: WR + 32 * T + 4 * e

        def M(i, T=T):
            for h in range(2):
                j = 2 * i + h
                c = "0" if T == 0 else vr(ACC + 4 * j, 4)
                a(f"v_mfma_f32_16x16x32_bf16 {vr(ACC+4*j,4)}, {vr(XU+4*T,4)}, {vr(PT+8*(i&1)+4*h,4)}, {c}")
        perms(PT, src, 0)
        perms(PT + 8, src, 1)
        M(0)
        perms(PT, src, 2)
        M(1)
        perms(PT + 8, src, 3)
        M(2)
        M(3)
    stamp(4)
    a("s_nop 3")
    fold(PT, ACC)
    a("s_mov_b32 exec_hi, 0")
    if not (cfg.abl & 8):
        store_mode(f"buffer_store_dwordx4 {vr(PT,4)}, v12, s[48:51], s10 offen")
    a("s_mov_b64 exec, -1")
    a("s_cmp_eq_u32 s3, 1")
    a("s_cbranch_scc1 L_S1_h")
    a("s_cmp_eq_u32 s3, 2")
    a("s_cbranch_scc1 L_S_END")
    if cfg.padto and cfg.padglobal:
        srd(52, 36, 256)
        a("s_mov_b64 exec, 1")
        a("v_mov_b32 v20, s94")
        a("buffer_atomic_umax v20, v14, s[52:55], 0 offen offset:4")
        a("v_not_b32 v21, v20")
        a("buffer_atomic_umax v21, v14, s[52:55], 0 offen")
        a("s_mov_b64 exec, -1")
    a("v_lshlrev_b32 v6, 4, v0")
    a("s_lshr_b32 s10, s99, 5")
    a("s_lshl_b32 s10, s10, 12")
    if QP_OFF:
        a(f"s_add_u32 s10, s10, {QP_OFF}")
    a("s_add_u32 s11, s10, 32768")
    a("s_add_u32 s12, s10, 65536")
    a("s_add_u32 s13, s10, 98304")
    a("v_lshrrev_b32 v7, 5, v0")
    a("v_mul_u32_u24 v7, 272, v7")
    a("v_and_b32 v11, 31, v0")
    a("v_lshl_add_u32 v7, v11, 3, v7")
    if cfg.pf:
        wait_flags([(PF, 1, 14)], 16, cfg.sleep_lds)
    stamp(6)

    def ldq():
        for kq in range(4):
            for i in range(4):
                if (cfg.abl & 16) and i: continue
                a(f"buffer_load_dwordx4 {vr(32+16*kq+4*i,4)}, v6, s[48:51], s{10+kq} offen offset:{1024*i} sc1{MNT}")
    if not (cfg.abl & 1):
        poll(ldq, lambda: check_tag([r for r in range(32, 96) if not (cfg.abl & 16) or (r - 32) % 16 < 4], 11, 12), cfg.sleep_q, rec=12)
    stamp(5)
    for k in range(16):
        a(f"v_add_f32 v{32+k}, v{32+k}, v{48+k}")
        a(f"v_add_f32 v{64+k}, v{64+k}, v{80+k}")
    for k in range(16):
        a(f"v_add_f32 v{32+k}, v{32+k}, v{64+k}")
    for i in range(4):
        a(f"v_cvt_pk_bf16_f32 v{48+2*i}, v{32+4*i}, v{33+4*i}")
        a(f"v_cvt_pk_bf16_f32 v{49+2*i}, v{34+4*i}, v{35+4*i}")
        a(f"ds_write_b64 v7, {vr(48+2*i,2)} offset:{QB+544*i}")
    set_flag(QF)
    a("s_branch L_S_tail")

    a.label("L_S123")
    if cfg.codepf == 7:
        a("s_getpc_b64 s[4:5]")
        a.label("L_pcref")
        a(f"s_sub_u32 s4, s4, L_pcref - {NAME}_kernel + 8192")
        a("s_subb_u32 s5, s5, 0")
        a("v_lshlrev_b32 v1, 7, v0")
        a("v_lshl_add_u32 v1, v3, 13, v1")
        a("global_load_dword v2, v1, s[4:5]")
    consts()
    a("s_mov_b32 s9, 8")
    a(f"s_mul_i32 s5, s3, {cfg.crot}")
    a("s_lshr_b32 s4, s2, 5")
    a("s_add_u32 s5, s5, s4")
    a("s_sub_u32 s4, s5, 7")
    a("s_cmp_ge_u32 s5, 7")
    a("s_cselect_b32 s5, s4, s5")
    a("s_and_b32 s4, s2, 7")
    a("s_mul_i32 s4, s4, 7")
    a("s_add_u32 s5, s5, s4")
    a("v_mul_u32_u24 v10, 7168, v10")
    a("v_lshl_add_u32 v10, v9, 4, v10")
    a(f"s_mul_i32 s10, s7, {256*7168}")
    a("s_lshl_b32 s11, s5, 7")
    a("s_add_u32 s10, s10, s11")
    a("v_mov_b32 v11, -1")
    a("v_lshlrev_b32 v12, 2, v0")
    a(f"ds_write_b32 v12, v11 offset:{MLB}")
    a(f"ds_write_b32 v12, v11 offset:{FL}")
    a("s_lshl_b32 s4, s3, 2")
    a("v_mov_b32 v13, s4")
    a("s_waitcnt lgkmcnt(0)")
    load_tag()
    srd(48, 38, WS_SIZE)
    a("s_cmp_eq_u32 s3, 2")
    a("s_cselect_b64 s[40:41], s[30:31], s[28:29]")
    a("s_mov_b32 s42, 0x700000")
    a("s_mov_b32 s43, 0x20000")
    a("s_waitcnt lgkmcnt(0)")
    a("s_barrier")
    make_tag()
    a("s_cmp_eq_u32 s3, 3")
    a("s_cbranch_scc1 L_S3")
    a("s_cmp_lt_u32 s6, 56")
    a("s_cbranch_scc1 L_S12")
    set_flag(GF - 4, 13)
    a("s_branch L_S_END")
    a.label("L_S12")
    a("v_lshlrev_b32 v12, 1, v13")
    wait_flags([(GO - 8, 2, 12)], 16, cfg.sleep_lds)
    stamp(2)
    wloads(7168, cfg.ns, cfg.gate)
    stamp(1)
    a("s_lshl_b32 s10, s5, 12")
    a("s_lshl_b32 s12, s7, 10")
    a("s_add_u32 s10, s10, s12")
    a("s_lshl_b32 s12, s3, 9")
    a("s_add_u32 s10, s10, s12")
    a(f"s_add_u32 s10, s10, {GP_OFF-512}")
    wait_flags([(XF, 1, 14)], 16, cfg.sleep_lds)
    get_mode(16)
    a("s_branch L_S_gemv")

    a.label("L_S1_h")
    a("v_lshlrev_b32 v12, 3, v0")
    a("s_and_b32 s10, s2, 7")
    a("s_mul_i32 s10, s10, 7")
    a("s_lshr_b32 s4, s2, 5")
    a("s_add_u32 s10, s10, s4")
    a("s_lshl_b32 s10, s10, 12")
    a(f"s_add_u32 s10, s10, {GP_OFF}")

    def ldg():
        for kq in range(4):
            for m in range(2):
                a(f"buffer_load_dwordx2 {vr(16+4*kq+2*m,2)}, v12, s[48:51], s10 offen offset:{kq*1024+m*512} sc1{MNT}")
    if not (cfg.abl & 2):
        poll(ldg, lambda: check_tag(range(16, 32), 11, 13), cfg.sleep_tail, rec=12)
    stamp(5)
    for k in range(4):
        a(f"v_add_f32 v{16+k}, v{16+k}, v{20+k}")
        a(f"v_add_f32 v{24+k}, v{24+k}, v{28+k}")
    for k in range(4):
        a(f"v_add_f32 v{16+k}, v{16+k}, v{24+k}")
    a("v_cvt_pk_bf16_f32 v20, v16, v17")
    a("v_cvt_pk_bf16_f32 v21, v18, v19")
    a("v_lshlrev_b32 v16, 16, v20")
    a("v_and_b32 v17, s66, v20")
    a("v_lshlrev_b32 v18, 16, v21")
    a("v_and_b32 v19, s66, v21")
    a(f"s_mov_b32 s10, {f32bits(0.044715):#x}")
    a(f"s_mov_b32 s11, {f32bits(-2.0 * math.sqrt(2.0 / math.pi) * math.log2(math.e)):#x}")
    for k in range(2):
        a(f"v_mul_f32 v{20+k}, v{16+k}, v{16+k}")
    for k in range(2):
        a(f"v_mul_f32 v{20+k}, v{20+k}, v{16+k}")
    for k in range(2):
        a(f"v_fma_f32 v{20+k}, v{20+k}, s10, v{16+k}")
    for k in range(2):
        a(f"v_mul_f32 v{20+k}, s11, v{20+k}")
    for k in range(2):
        a(f"v_exp_f32 v{20+k}, v{20+k}")
    a("s_nop 0")
    for k in range(2):
        a(f"v_add_f32 v{20+k}, 1.0, v{20+k}")
    for k in range(2):
        a(f"v_rcp_f32 v{20+k}, v{20+k}")
    a("s_nop 0")
    for k in range(2):
        a(f"v_mul_f32 v{20+k}, v{20+k}, v{16+k}")
    a("v_cvt_pk_bf16_f32 v22, v20, v21")
    a("v_lshlrev_b32 v20, 16, v22")
    a("v_and_b32 v21, s66, v22")
    a("v_mul_f32 v20, v20, v18")
    a("v_mul_f32 v21, v21, v19")
    a("v_cvt_pk_bf16_f32 v22, v20, v21")
    a("v_lshlrev_b32 v12, 2, v0")
    a(f"ds_write_b32 v12, v22 offset:{HB}")
    set_flag(HF)
    a("s_branch L_S_END")

    a.label("L_S3")
    a("s_getreg_b32 s4, hwreg(HW_REG_XCC_ID)")
    a("s_and_b32 s4, s4, 15")
    a("s_lshl_b32 s4, s4, 8")
    a("s_or_b32 s4, s4, s14")
    a("v_mov_b32 v16, s4")
    a("s_lshl_b32 s10, s99, 6")
    a(f"s_add_u32 s10, s10, {XT_OFF}")
    a("s_mov_b64 exec, 1")
    if not (cfg.abl & 64):
        a("buffer_store_dword v16, v14, s[48:51], s10 offen sc1")
    a("s_mov_b64 exec, -1")
    a("v_and_b32 v7, 31, v0")
    a("v_lshlrev_b32 v7, 6, v7")
    a("s_lshr_b32 s10, s99, 5")
    a("s_lshl_b32 s10, s10, 11")
    a(f"s_add_u32 s10, s10, {XT_OFF}")
    wait_flags([(PF, 1, 14)], 16, cfg.sleep_lds)

    def ldx():
        a("buffer_load_dword v16, v7, s[48:51], s10 offen sc1")

    def ckx():
        a("v_xor_b32 v17, s14, v16")
        a("v_and_b32 v17, s69, v17")
        a("v_cmp_eq_u32 vcc, 0, v17")
        a("s_cmp_eq_u64 vcc, -1")
    if not (cfg.abl & 64):
        poll(ldx, ckx, cfg.sleep)
    a("v_cmp_eq_u32 vcc, s4, v16")
    a("s_cmp_eq_u64 vcc, -1")
    a("s_cselect_b32 s101, 1, 0")
    if cfg.abl & 64:
        a("s_mov_b32 s101, 1")
    if cfg.nofast:
        a("s_mov_b32 s101, 0")
    a("v_mov_b32 v16, s101")
    a(f"ds_write_b32 v14, v16 offset:{FM}")
    stamp(4)
    a("v_and_b32 v6, 7, v0")
    a("v_lshlrev_b32 v6, 3, v6")
    a("v_and_b32 v7, 31, v0")
    a("v_lshlrev_b32 v7, 3, v7")
    a("s_lshl_b32 s13, s99, 6")
    a(f"s_add_u32 s13, s13, {ML_OFF}")

    def ldm():
        for w in range(4):
            a(f"ds_read_b64 {vr(16+2*w,2)}, v6 offset:{MLB+64*w}")
    poll(ldm, lambda: check_sentinel(range(16, 24), 11), cfg.sleep_lds, cnt="lgkmcnt")
    stamp(5)
    a(f"ds_read_b32 v30, v7 offset:{MLB}")

    def combine4(mo):
        a(f"v_max3_f32 v{mo}, v16, v18, v20")
        a(f"v_max_f32 v{mo}, v{mo}, v22")

    def wsum4(mo, lo):
        for w in range(4):
            a(f"v_sub_f32 v{16+2*w}, v{16+2*w}, v{mo}")
        for w in range(4):
            a(f"v_mul_f32 v{16+2*w}, s67, v{16+2*w}")
        for w in range(4):
            a(f"v_exp_f32 v{16+2*w}, v{16+2*w}")
        a("s_nop 0")
        a(f"v_mul_f32 v{lo}, v16, v17")
        for w in range(1, 4):
            a(f"v_fmac_f32 v{lo}, v{16+2*w}, v{17+2*w}")
    combine4(24)
    wsum4(24, 25)
    put_tag(24)
    put_tag(25)
    a("s_mov_b64 exec, 0xff")
    if not (cfg.abl & 8):
        store_mode("buffer_store_dwordx2 v[24:25], v6, s[48:51], s13 offen")
    a("s_mov_b64 exec, -1")
    a("s_lshr_b32 s10, s99, 5")
    a("s_lshl_b32 s10, s10, 11")
    a(f"s_add_u32 s10, s10, {ML_OFF}")
    a("v_lshlrev_b32 v7, 3, v0")

    if cfg.lf:
        wait_flags([(LF, 1, 14)], 16, cfg.sleep_lds)

    def ld2():
        for i in range(4):
            a(f"buffer_load_dwordx2 {vr(16+2*i,2)}, v7, s[48:51], s10 offen offset:{512*i} sc1{MNT}")
    if not (cfg.abl & 4):
        poll(ld2, lambda: check_tag(range(16, 24), 11, 12), cfg.sleep, rec=12)
    stamp(6)
    for w in range(4):
        a(f"v_and_b32 v{16+2*w}, s66, v{16+2*w}")
    combine4(26)
    xlane("v_max_f32", 26, 11, [8, 16, 32])
    wsum4(26, 27)
    xlane("v_add_f32", 27, 11, [8, 16, 32])
    a("s_waitcnt lgkmcnt(0)")
    a("v_sub_f32 v30, v30, v26")
    a("v_mul_f32 v30, s67, v30")
    a("v_exp_f32 v30, v30")
    a("v_rcp_f32 v27, v27")
    a("v_bfe_u32 v7, v0, 3, 2")
    a("v_lshlrev_b32 v7, 2, v7")
    a("v_lshl_add_u32 v7, v6, 1, v7")
    a("v_mul_f32 v30, v30, v27")
    a(f"ds_write_b32 v7, v30 offset:{FB}")
    set_flag(FF)

    a("v_and_b32 v11, 7, v0")
    a("v_lshlrev_b32 v6, 4, v11")
    a("v_lshl_add_u32 v6, v5, 2, v6")
    a("v_lshlrev_b32 v7, 4, v0")
    a("s_lshl_b32 s10, s99, 12")
    a(f"s_add_u32 s10, s10, {OP_OFF}")
    a("s_lshl_b32 s8, s99, 7")
    a(f"s_add_u32 s8, s8, {O2_OFF}")
    wait_flags([({0: OF, 1: WF}[cfg.wf1], 4, 14)], 60, cfg.sleep_lds)
    stamp(7)

    def ld3():
        for i in range(4):
            a(f"buffer_load_dwordx4 {vr(40+4*i,4)}, v7, s[48:51], s10 offen offset:{1024*i} sc1")
    poll(ld3, lambda: check_tag(range(40, 56), 12, 13), cfg.sleep_l1, rec=13)
    stamp(8)
    for k in range(4):
        a(f"v_add_f32 v{40+k}, v{40+k}, v{44+k}")
        a(f"v_add_f32 v{48+k}, v{48+k}, v{52+k}")
    for k in range(4):
        a(f"v_add_f32 v{40+k}, v{40+k}, v{48+k}")
    a("s_nop 0")
    a("v_permlane32_swap_b32 v40, v42")
    a("v_permlane32_swap_b32 v41, v43")
    a("v_add_f32 v40, v40, v42")
    a("v_add_f32 v41, v41, v43")
    a("s_nop 1")
    a("v_permlane16_swap_b32 v40, v41")
    a("v_add_f32 v40, v40, v41")
    a("s_nop 1")
    a("v_add_f32_dpp v40, v40, v40 row_ror:8 row_mask:0xf bank_mask:0xf")
    a("v_cvt_pk_bf16_f32 v40, v40, v40")
    put_tag(40)
    a("s_mov_b32 exec_lo, 0x00ff00ff")
    a("s_mov_b32 exec_hi, 0x00ff00ff")
    a("buffer_store_dword v40, v6, s[48:51], s8 offen sc1")
    a("s_branch L_S_END")

    a.label("L_S_tail")
    a("s_lshr_b32 s7, s98, 2")
    a("s_lshl_b32 s7, s7, 8")
    a(f"s_add_u32 s7, s7, {O2_OFF}")
    srd(60, 34, 4096)
    a("v_lshlrev_b32 v10, 2, v5")
    a("s_lshl_b32 s12, s98, 4")
    a("buffer_load_dword v36, v10, s[56:59], s12 offen")
    a("v_lshlrev_b32 v9, 7, v0")
    a("s_lshr_b32 s13, s98, 2")
    a("s_lshl_b32 s13, s13, 13")
    a("s_and_b32 s11, s98, 3")
    a("s_lshl_b32 s11, s11, 5")
    a("s_add_u32 s13, s13, s11")
    a(f"s_add_u32 s13, s13, {XP_OFF}")
    a("v_lshrrev_b32 v12, 5, v0")
    a("v_lshlrev_b32 v12, 14, v12")
    a("v_and_b32 v13, 31, v0")
    a("v_lshl_add_u32 v12, v13, 3, v12")
    a("v_lshlrev_b32 v13, 2, v0")
    wait_flags([(WF, 4, 14)], 60, cfg.sleep_lds)
    stamp(7)

    def ld5():
        a("buffer_load_dwordx2 v[40:41], v12, s[48:51], s7 offen sc1")
    poll(ld5, lambda: check_tag([40, 41], 42, 43), cfg.sleep_tail, rec=13)
    a("v_perm_b32 v40, v41, v40, s65")
    a(f"ds_write_b32 v13, v40 offset:{OB}")
    set_flag(BF)
    stamp(9)
    wait_flags([(SF, 4, 14)], 60, cfg.sleep_of)

    def ld4():
        a(f"buffer_load_dwordx4 v[40:43], v9, s[48:51], s13 offen sc1{XNT}")
        a(f"buffer_load_dwordx4 v[44:47], v9, s[48:51], s13 offen offset:16 sc1{XNT}")
    poll(ld4, lambda: check_tag(range(40, 48), 12, 13), cfg.sleep_tail)
    stamp(10)
    for k in range(4):
        a(f"v_permlane32_swap_b32 v{40+k}, v{44+k}")
    for k in range(4):
        a(f"v_add_f32 v{40+k}, v{40+k}, v{44+k}")
    a("s_nop 0")
    a("v_permlane16_swap_b32 v40, v42")
    a("v_permlane16_swap_b32 v41, v43")
    a("v_add_f32 v40, v40, v42")
    a("v_add_f32 v41, v41, v43")
    for s in (8, 4, 2, 1):
        a("s_nop 0")
        a(f"v_add_f32_dpp v40, v40, v40 row_ror:{s} row_mask:0xf bank_mask:0xf")
        a(f"v_add_f32_dpp v41, v41, v41 row_ror:{s} row_mask:0xf bank_mask:0xf")
    a("v_lshlrev_b32 v42, 16, v36")
    a("v_and_b32 v43, s66, v36")
    a("v_add_f32 v40, v40, v42")
    a("v_add_f32 v41, v41, v43")
    a("v_cvt_pk_bf16_f32 v40, v40, v41")
    a("s_mov_b32 exec_lo, 0x00010001")
    a("s_mov_b32 exec_hi, 0x00010001")
    a("buffer_store_dword v40, v10, s[60:63], s12 offen")
    stamp(11)
    if cfg.padto:
        a("s_mov_b64 exec, -1")
        if cfg.padglobal:
            srd(52, 36, 256)
            a(f"buffer_load_dword v20, v14, s[52:55], 0 offen offset:{4*(cfg.padglobal-1)} sc1")
            a("s_waitcnt vmcnt(0)")
            a("v_readfirstlane_b32 s94, v20")
            if cfg.padglobal == 1:
                a("s_not_b32 s94, s94")
        a.label("L_pad")
        a("s_memrealtime s[96:97]")
        a("s_waitcnt lgkmcnt(0)")
        a("s_sub_u32 s96, s96, s94")
        a(f"s_cmp_lt_u32 s96, {cfg.padto}")
        a("s_cbranch_scc1 L_pad")
    a("s_cmp_lg_u32 s2, 0")
    a("s_cbranch_scc1 L_S_END")
    a("s_mov_b64 exec, 1")
    a(f"s_mov_b32 s9, {EP_OFF:#x}")
    a("buffer_store_dword v15, v14, s[48:51], s9 offen")
    a.label("L_S_END")
    dump_stamps()
    a("s_endpgm")

    a.label("L_ATT")
    RING = 16
    SC = RING + 16 * R
    QR = SC + 32
    ST = QR + 8
    AC = QR
    PTA = AC + 32
    assert PTA + 16 <= 256 and ST + 26 <= 256 and R == 10
    a("s_sub_u32 s6, s3, 4")
    a("v_bfe_u32 v6, v4, 1, 1")
    a("v_lshrrev_b32 v7, 2, v4")
    a("v_lshl_add_u32 v6, v6, 2, v7")
    a("v_lshlrev_b32 v6, 8, v6")
    a("v_lshl_add_u32 v6, v5, 5, v6")
    a("v_and_b32 v7, 1, v4")
    a("v_lshl_add_u32 v6, v7, 4, v6")
    a("v_lshlrev_b32 v7, 4, v0")
    a("s_lshl_b32 s7, s99, 18")
    a("s_lshl_b32 s8, s6, 12")
    a("s_add_u32 s7, s7, s8")
    a("s_mov_b32 s8, s7")
    a("s_lshl_b32 s9, s6, 2")
    a("v_mov_b32 v13, s9")
    a("s_waitcnt lgkmcnt(0)")
    load_tag()
    srd(40, 18, 0x4000000)
    srd(44, 20, 0x4000000)
    srd(48, 38, WS_SIZE)
    srd(52, 24, 0x800000)
    srd(56, 32, 0x700000)
    consts()
    a("v_mul_u32_u24 v11, 272, v9")
    a("v_lshl_add_u32 v11, v5, 5, v11")
    a("v_lshl_add_u32 v11, v8, 4, v11")
    a("v_mov_b32 v10, 0xff800000")
    a("s_barrier")
    a("s_waitcnt lgkmcnt(0)")
    make_tag()
    N = cfg.n
    N0 = cfg.n0 or N
    NL = 144
    lim = [128]
    nl = [0]

    def slot_of(item):
        return RING + 16 * (item % R)

    def issue1():
        k = nl[0]
        if k >= lim[0]:
            return
        item, q = divmod(k, 4)
        slot = slot_of(item)
        if item < 16:
            a(f"buffer_load_dwordx4 {vr(slot+4*q,4)}, v6, s[40:43], s7 offen offset:{128*(q&1)+2048*(q>>1)}{KNT}")
            if q == 3 and item < 15:
                a("s_add_u32 s7, s7, 16384")
        elif item < 32:
            a(f"buffer_load_dwordx4 {vr(slot+4*q,4)}, v7, s[44:47], s8 offen offset:{1024*q}{VNT}")
            if q == 3 and item < 31:
                a("s_add_u32 s8, s8, 16384")
        elif item < 34:
            m = k - 128
            a(f"buffer_load_dwordx4 {vr(slot+4*q,4)}, v3, s[52:55], s11 offen offset:{2048*(m&1)}{NT}")
            if (m & 1) and m < 7:
                a("s_add_u32 s11, s11, 16384")
        else:
            e = k - 136
            a(f"buffer_load_dwordx4 {vr(slot+4*q,4)}, v1, s[56:59], s10 offen offset:{2048*(e&1)}{NT}")
            if (e & 1) and e < 7:
                a("s_add_u32 s10, s10, 4096")
        nl[0] += 1
        if cfg.pf and k == cfg.pf - 1:
            set_flag(PF)
        for c, (kc, thi, tlo) in enumerate(cps):
            if k == kc - 1:
                set_flag(CPF + 16 * c, 13)
        if k == cfg.go - 1:
            set_flag(GO, 13)
        if cfg.lf and k == cfg.lf - 1:
            set_flag(LF)
        if cfg.wf and k == cfg.wf - 1:
            set_flag(WF, 13)

    def wait_load(k):
        a(f"s_waitcnt vmcnt({nl[0] - k - 1})")

    NH = cfg.nh if cps else N
    lvl_pending = [False]

    def thr():
        if not cps:
            return
        uid[0] += 1
        lab = f"L_go{uid[0]}"
        a(f"s_cbranch_vccnz {lab}")
        a(f"s_waitcnt vmcnt({N-1})")
        if cfg.nl:
            a("s_cmp_eq_u64 s[12:13], 0") if False else None
            a("s_bitcmp1_b32 s101, 0")
            a(f"s_cbranch_scc0 {lab}")
            a(f"s_waitcnt vmcnt({cfg.nl-1})")
        a.label(lab)

    def lvl_update():
        if not cps:
            return
        if lvl_pending[0]:
            a("s_waitcnt lgkmcnt(0)")
            a("v_cmp_eq_u32 vcc, 1, v2")
            if cfg.nl:
                a("v_cmp_eq_u32 s[100:101], 2, v2")
        a(f"ds_read_b32 v2, v14 offset:{LV}")
        lvl_pending[0] = True

    def advance(item):
        for q in range(4):
            k = 4 * item + q
            if nl[0] < lim[0] and nl[0] - (k + 1) < NH:
                wait_load(k)
                while nl[0] < lim[0] and nl[0] - (k + 1) < NH:
                    issue1()
            elif q == 3:
                wait_load(k)

    for k in range(4 * R):
        if k >= N0:
            a(f"s_waitcnt vmcnt({N0-1})")
        issue1()
    stamp(1)
    wait_flags([(QF, 1, 14)], QR, 1)
    stamp(2)
    for c in range(2):
        a(f"ds_read_b128 {vr(QR+4*c,4)}, v11 offset:{QB+128*c}")
    a("s_mov_b64 vcc, 0")
    a("s_mov_b64 s[100:101], 0")
    a("s_waitcnt lgkmcnt(0)")

    def post(i):
        t = ST + 8 * (i & 1)
        w = ST + 16
        for q in range(4):
            a(f"v_add_f32_dpp v{w+6+q}, v{t+2*q+1}, v{t+2*q} row_ror:8 row_mask:0xf bank_mask:0xf")
        s = w + 6
        a(f"v_max3_f32 v10, v10, v{s}, v{s+1}")
        a(f"v_cvt_pk_bf16_f32 v{w+4}, v{s}, v{s+1}")
        a(f"v_cvt_pk_bf16_f32 v{w+5}, v{s+2}, v{s+3}")
        a(f"v_max3_f32 v10, v10, v{s+2}, v{s+3}")
        a(f"v_lshlrev_b32 v{w}, 16, v{w+4}")
        a(f"v_and_b32 v{w+1}, s66, v{w+4}")
        a(f"v_lshlrev_b32 v{w+2}, 16, v{w+5}")
        a(f"v_and_b32 v{w+3}, s66, v{w+5}")
        for k in range(4):
            a(f"v_mul_f32 v{w+k}, s68, v{w+k}")
        a(f"v_cvt_pk_bf16_f32 v{SC+2*i}, v{w}, v{w+1}")
        a(f"v_cvt_pk_bf16_f32 v{SC+2*i+1}, v{w+2}, v{w+3}")

    for i in range(16):
        advance(i)
        slot = slot_of(i)
        t = ST + 8 * (i & 1)
        for st_ in range(2):
            for ln in range(2):
                cc = "0" if ln == 0 else vr(t + 4 * st_, 4)
                a(f"v_mfma_f32_16x16x32_bf16 {vr(t+4*st_,4)}, {vr(slot+4*(2*st_+ln),4)}, {vr(QR+4*ln,4)}, {cc}")
        if nl[0] - 4 * (i + 1) >= NH and nl[0] < 4 * (i + 1 + R):
            cnt = cfg.catch0 if i == 0 else cfg.catch
            for _ in range(cnt):
                if nl[0] < 4 * (i + 1 + R):
                    a(f"s_waitcnt vmcnt({N-1})")
                    issue1()
        if i >= 1:
            a("s_nop 3")
            post(i - 1)
    a("s_nop 7")
    post(15)
    stamp(3)
    xlane("v_max_f32", 10, 11, [16, 32])
    w = ST
    MM, LL, L2 = ST + 8, ST + 9, ST + 10
    assert MM % 2 == 0
    round_bf16(MM, 10)
    a(f"v_mul_f32 v{MM}, s68, v{MM}")
    round_bf16(MM, MM)
    a(f"v_mul_f32 v11, s67, v{MM}")
    a(f"v_mov_b32 v{LL}, 0")
    a(f"v_mov_b32 v{L2}, 0")
    for k in range(0, 32, 2):
        if k % cfg.smstep == 0:
            issue1()
        for q in range(2):
            a(f"v_lshlrev_b32 v{w+2*q}, 16, v{SC+k+q}")
            a(f"v_and_b32 v{w+2*q+1}, s66, v{SC+k+q}")
        for q in range(4):
            a(f"v_fma_f32 v{w+q}, v{w+q}, s67, -v11")
        for q in range(4):
            a(f"v_exp_f32 v{w+q}, v{w+q}")
        a(f"v_add_f32 v{LL}, v{LL}, v{w}")
        a(f"v_add_f32 v{L2}, v{L2}, v{w+1}")
        a(f"v_cvt_pk_bf16_f32 v{SC+k}, v{w}, v{w+1}")
        a(f"v_add_f32 v{LL}, v{LL}, v{w+2}")
        a(f"v_add_f32 v{L2}, v{L2}, v{w+3}")
        a(f"v_cvt_pk_bf16_f32 v{SC+k+1}, v{w+2}, v{w+3}")
    a(f"v_add_f32 v{LL}, v{LL}, v{L2}")
    xlane("v_add_f32", LL, L2, [16, 32])
    a(f"v_min_u32 v{LL}, -2, v{LL}")
    a("s_lshl_b32 s9, s6, 6")
    a("v_lshlrev_b32 v12, 3, v0")
    a("v_add_u32 v12, s9, v12")
    a("s_mov_b64 exec, 0xff")
    a(f"ds_write_b64 v12, {vr(MM,2)} offset:{MLB}")
    a("s_mov_b64 exec, -1")
    stamp(4)
    issue1()
    a("s_lshr_b32 s4, s98, 2")
    a("s_and_b32 s5, s98, 3")
    a("s_mul_i32 s9, s6, 4224")
    a("v_mul_u32_u24 v10, 528, v4")
    a("v_lshl_add_u32 v10, v5, 7, v10")
    a("v_add_u32 v10, s9, v10")
    a("v_lshrrev_b32 v3, 1, v5")
    a("v_lshlrev_b32 v3, 5, v3")
    a("v_and_b32 v1, 1, v5")
    a("v_lshl_add_u32 v3, v1, 2, v3")
    a("v_lshl_add_u32 v3, v8, 1, v3")
    a("v_lshlrev_b32 v3, 11, v3")
    a("v_lshl_add_u32 v3, v9, 4, v3")
    a("v_lshlrev_b32 v1, 3, v8")
    a("v_lshl_add_u32 v1, v5, 4, v1")
    a("v_lshlrev_b32 v1, 11, v1")
    a("v_lshl_add_u32 v1, v9, 4, v1")
    a("s_lshl_b32 s11, s5, 9")
    a("s_lshl_b32 s12, s6, 7")
    a("s_add_u32 s12, s12, s11")
    a("s_lshl_b32 s11, s4, 17")
    a("s_add_u32 s11, s11, s12")
    a("s_and_b32 s10, s2, 7")
    a("s_mul_i32 s10, s10, 7")
    a("s_lshr_b32 s13, s2, 5")
    a("s_add_u32 s10, s10, s13")
    a("s_cmp_ge_u32 s4, 56")
    a("s_cselect_b32 s10, 56, s10")
    a("s_lshl_b32 s10, s10, 17")
    a("s_add_u32 s10, s10, s12")
    a("v_bfe_u32 v12, v4, 2, 1")
    a("v_lshlrev_b32 v12, 7, v12")
    a("v_lshl_add_u32 v12, v5, 5, v12")
    a("v_and_b32 v11, 1, v4")
    a("v_lshl_add_u32 v12, v11, 4, v12")
    a("v_lshlrev_b32 v11, 18, v5")
    a("v_lshrrev_b32 v6, 2, v9")
    a("v_lshl_add_u32 v11, v6, 13, v11")
    a("v_and_b32 v6, 3, v9")
    a("v_lshl_add_u32 v11, v6, 5, v11")
    a("v_lshl_add_u32 v11, v8, 4, v11")
    a("s_lshl_b32 s9, s5, 16")
    a("s_lshl_b32 s12, s6, 14")
    a("s_add_u32 s9, s9, s12")
    a("s_lshl_b32 s12, s4, 7")
    a("s_add_u32 s9, s9, s12")
    a(f"s_add_u32 s9, s9, {XP_OFF}")
    a("v_lshrrev_b32 v4, 5, v0")
    a("s_lshl_b32 s12, s6, 1")
    a("v_add_u32 v4, s12, v4")
    a("v_lshlrev_b32 v5, 4, v4")
    a("v_mul_u32_u24 v4, 528, v4")
    a("v_and_b32 v6, 31, v0")
    a("v_lshl_add_u32 v4, v6, 4, v4")
    a("v_lshlrev_b32 v8, 4, v9")
    a("v_lshrrev_b32 v6, 3, v0")
    a("v_lshl_add_u32 v8, v6, 12, v8")
    a("v_mul_u32_u24 v6, 5, v6")
    a("v_add_u32 v6, s99, v6")
    a("v_and_b32 v6, 31, v6")
    a("v_lshl_add_u32 v8, v6, 7, v8")
    a("s_lshr_b32 s5, s99, 5")
    a("s_lshl_b32 s5, s5, 17")
    a("s_lshl_b32 s12, s6, 15")
    a("s_add_u32 s5, s5, s12")
    a(f"s_add_u32 s5, s5, {OP_OFF}")
    get_mode(6)
    for it in range(16, 32):
        advance(it)
        if it & 1:
            u = (it - 16) // 2
            s0 = slot_of(16 + 2 * u)
            s1 = slot_of(17 + 2 * u)
            src = lambda e, s0=s0, s1=s1: (s0 if e < 4 else s1) + 4 * (e & 3)

            def M(i, u=u):
                for h in range(2):
                    j = 2 * i + h
                    c = "0" if u == 0 else vr(AC + 4 * j, 4)
                    a(f"v_mfma_f32_16x16x32_bf16 {vr(AC+4*j,4)}, {vr(PTA+8*(i&1)+4*h,4)}, {vr(SC+4*u,4)}, {c}")
            perms(PTA, src, 0)
            perms(PTA + 8, src, 1)
            M(0)
            perms(PTA, src, 2)
            M(1)
            perms(PTA + 8, src, 3)
            M(2)
            M(3)
    stamp(5)
    a("s_mov_b32 exec_lo, 0x00ff00ff")
    a("s_mov_b32 exec_hi, 0x00ff00ff")
    for j in range(8):
        if j == 4:
            a("s_nop 0")
        a(f"ds_write_b128 v10, {vr(AC+4*j,4)} offset:{ORED+16*j}")
    a("s_mov_b64 exec, -1")
    set_flag(OF, 13)
    T0 = slot_of(0)
    wait_flags([(OF, 4, 14), (FF, 1, 14)], T0, 0)
    a(f"ds_read_b128 {vr(T0,4)}, v5 offset:{FB}")
    for w_ in range(4):
        a(f"ds_read_b128 {vr(T0+4+4*w_,4)}, v4 offset:{ORED+4224*w_}")
    a("s_waitcnt lgkmcnt(0)")
    for w_ in range(4):
        for k in range(4):
            if w_ == 0:
                a(f"v_mul_f32 v{T0+4+k}, v{T0}, v{T0+4+k}")
            else:
                a(f"v_fmac_f32 v{T0+4+k}, v{T0+w_}, v{T0+4+4*w_+k}")
    for k in range(4):
        put_tag(T0 + 4 + k)
    store_mode(f"buffer_store_dwordx4 {vr(T0+4,4)}, v8, s[48:51], s5 offen")
    stamp(6)
    TP = slot_of(6)
    XACC = SC
    wait_flags([(GF, 2, 14)], PTA, 1)
    lim[0] = NL
    for _ in range(NH):
        issue1()
    advance(32)
    advance(33)
    srco = lambda e: (lambda m: slot_of(32 + (m >> 2)) + 4 * (m & 3))(2 * (e & 3) + (e >> 2))
    for i in range(4):
        perms(TP + 8 * i, srco, i)
    advance(34)
    assert nl[0] == NL
    if cfg.diagx:
        advance(35)
        stamp(7)
    wait_flags([(BF, 1, 14)], PTA + 4, 0)
    stamp(8)
    a(f"ds_read_b128 {vr(PTA+4,4)}, v12 offset:{OB}")
    a("s_waitcnt lgkmcnt(0)")
    for j in range(8):
        a(f"v_mfma_f32_16x16x32_bf16 {vr(XACC+4*j,4)}, {vr(PTA+4,4)}, {vr(TP+4*j,4)}, 0")
    a("s_cmp_ge_u32 s4, 56")
    a("s_cbranch_scc1 L_noffn")
    wait_flags([(HF, 1, 14)], PTA, 0)
    stamp(9)
    a(f"ds_read_b128 {vr(PTA,4)}, v12 offset:{HB}")
    advance(35)
    if not cfg.diagx:
        stamp(7)
    srcd = lambda e: slot_of(34 + (e >> 2)) + 4 * (e & 3)
    perms(TP + 32, srcd, 0)
    a("s_waitcnt lgkmcnt(0)")
    for i in range(4):
        if i < 3:
            perms(TP + 32 + 8 * (i + 1), srcd, i + 1)
        else:
            a("s_nop 0")
        for j in (2 * i, 2 * i + 1):
            a(f"v_mfma_f32_16x16x32_bf16 {vr(XACC+4*j,4)}, {vr(PTA,4)}, {vr(TP+32+4*j,4)}, {vr(XACC+4*j,4)}")
    a("s_nop 1")
    a.label("L_noffn")
    a("s_nop 3")
    a("s_nop 1")
    fold(PTA + 8, XACC)
    a("s_mov_b32 exec_hi, 0")
    a(f"buffer_store_dwordx4 {vr(PTA+8,4)}, v11, s[48:51], s9 offen sc1{TNT}")
    set_flag(SF, 13)
    stamp(10)
    dump_stamps()
    a.label("L_END")
    a("s_endpgm")

    probs = check_hazards(a.lines)
    for p in probs:
        print(p, file=sys.stderr)
    if probs:
        raise SystemExit("hazards found")

    pad = ""
    if cfg.codepf:
        psz = (512 << cfg.codepf) + 256 if cfg.codepf < 7 else 24576
        pad = f".fill ({psz} - (. - {NAME}_kernel)) / 4, 4, 0xBF800000\n"
    out = HEADER
    out += "; Generated by work/gen8.py (hand-written generator). One persistent launch, 256 workgroups x 8 waves.\n"
    out += f"; @launch grid=(256,1,1) block=(512,1,1) lds={LDS_SIZE}\n"
    out += f""".amdgcn_target "amdgcn-amd-amdhsa--gfx950"
.text
.globl {NAME}_kernel
.p2align 8
.type {NAME}_kernel,@function
{NAME}_kernel:
"""
    out += a.text()
    out += pad
    out += f""".section .rodata,"a"
.p2align 6
.amdhsa_kernel {NAME}_kernel
  .amdhsa_next_free_vgpr 256
  .amdhsa_next_free_sgpr 102
  .amdhsa_accum_offset 256
  .amdhsa_group_segment_fixed_size 0
  .amdhsa_kernarg_size 96
  .amdhsa_user_sgpr_count 2
  .amdhsa_user_sgpr_kernarg_segment_ptr 1
  .amdhsa_system_sgpr_workgroup_id_x 1
  .amdhsa_float_denorm_mode_32 3
.end_amdhsa_kernel
"""
    return out


def parse_args(argv=None):
    p = argparse.ArgumentParser()
    p.add_argument("-o", default="cdna_kernels/" + NAME + ".s")
    p.add_argument("--ring", type=int, default=10)
    p.add_argument("--stamps", type=int, default=0)
    p.add_argument("--codepf", type=int, default=7)
    p.add_argument("--sleep", type=int, default=8)
    p.add_argument("--sleep_q", type=int, default=0)
    p.add_argument("--sleep_lds", type=int, default=2)
    p.add_argument("--sleep_of", type=int, default=1)
    p.add_argument("--sleep_tail", type=int, default=0)
    p.add_argument("--spin", type=int, default=400000)
    p.add_argument("--n", type=int, default=6)
    p.add_argument("--n0", type=int, default=0)
    p.add_argument("--ns", type=int, default=10)
    p.add_argument("--gate", type=int, default=26)
    p.add_argument("--crot", type=int, default=1)
    p.add_argument("--pf", type=int, default=16)
    p.add_argument("--wf", type=int, default=136)
    p.add_argument("--catch0", type=int, default=4)
    p.add_argument("--catch", type=int, default=1)
    p.add_argument("--smstep", type=int, default=6)
    p.add_argument("--abl", type=int, default=0)
    p.add_argument("--cp", default="")
    p.add_argument("--nont", type=int, default=0)
    p.add_argument("--diagx", type=int, default=0)
    p.add_argument("--go", type=int, default=128)
    p.add_argument("--sleep_l1", type=int, default=0)
    p.add_argument("--nofast", type=int, default=0)
    p.add_argument("--xtw", type=int, default=1)
    p.add_argument("--wf1", type=int, default=0)
    p.add_argument("--mlplain", type=int, default=0)
    p.add_argument("--satom", type=int, default=0)
    p.add_argument("--nh", type=int, default=8)
    p.add_argument("--nl", type=int, default=5)
    p.add_argument("--padto", type=int, default=0)
    p.add_argument("--padglobal", type=int, default=0)
    p.add_argument("--lf", type=int, default=108)
    p.add_argument("--k2", type=int, default=0)
    p.add_argument("--n2", type=int, default=10)
    p.add_argument("--kr", type=int, default=2)
    p.add_argument("--qmap", type=int, default=1)
    p.add_argument("--xm", type=int, default=1)
    p.add_argument("--gm", type=int, default=1)
    p.add_argument("--gpw", type=int, default=2)
    p.add_argument("--hnt", type=int, default=0)
    return p.parse_args(argv)


if __name__ == "__main__":
    cfg = parse_args()
    open(cfg.o, "w").write(gen(cfg))
    print("wrote", cfg.o)
```

```python
import sys
import argparse
import struct
import math
from asmlib import Asm, vr, sr, check_hazards

NAME = "parallel_sum__gqa_block_cached__geglu_ffn__decode"

QP_OFF = 0x000000
GP_OFF = 0x020000
ML_OFF = 0x060000
XT_OFF = 0x068000
EP_OFF = 0x070000
O2_OFF = 0x078000
OP_OFF = 0x080000
XP_OFF = 0x180000
ST_OFF = 0x200000
WS_SIZE = 0x400000
XN = 0x0000
QB = 0x0400
MLB = 0x0C80
FL = 0x0D80
OF = FL + 0
FF = FL + 16
GF = FL + 24
QF = FL + 32
XF = FL + 36
PF = FL + 40
HF = FL + 44
LF = FL + 20
WF = FL + 48
BF = FL + 72
GO = FL + 80
SF = FL + 96
FM = FL + 68
LV = FL + 64
CPF = FL + 128
FB = 0x0E80
OB = 0x0F00
HB = 0x1000
ORED = 0x1100
LDS_SIZE = ORED + 4 * 4224

LOG2E = 0x3FB8AA3B
SCALE = 0x3DB504F3
EPS = 0x3727C5AC

HEADER = open("cdna_kernels/" + NAME + ".s.ref").read().split("; Override launch")[0]


def f32bits(x):
    return struct.unpack("<I", struct.pack("<f", x))[0]


def gen(cfg):
    a = Asm()
    R = cfg.ring
    NT = " nt" if not cfg.nont & 4 else ""
    KNT = " nt" if not cfg.nont & 1 else ""
    VNT = " nt" if not cfg.nont & 2 else ""
    MLS = "" if cfg.mlplain else " sc1"
    MNT = " nt" if cfg.hnt & 1 else ""
    ONT = " nt" if cfg.hnt & 2 else ""
    XNT = " nt" if cfg.hnt & 4 else ""
    SNT = " nt" if cfg.hnt & 8 else ""
    TNT = " nt" if cfg.hnt & 16 else ""
    uid = [0]
    cps = [tuple(int(x) for x in t.split(":")) for t in cfg.cp.split(",")] if cfg.cp else []

    def stamp(k):
        if cfg.padto and cfg.padfrom == k:
            a("s_memrealtime s[94:95]")
        if cfg.stamps:
            a(f"s_memrealtime s[{70+2*k}:{71+2*k}]")

    def srd(d, p, size):
        a(f"s_mov_b32 s{d}, s{p}")
        a(f"s_mov_b32 s{d+1}, s{p+1}")
        a(f"s_mov_b32 s{d+2}, {size:#x}")
        a(f"s_mov_b32 s{d+3}, 0x20000")

    def dump_stamps():
        if not cfg.stamps:
            return
        a("s_waitcnt lgkmcnt(0)")
        for _ in range(3):
            a("s_sleep 127")
        a("s_mov_b64 exec, 1")
        a("s_lshl_b32 s4, s2, 10")
        a("s_lshl_b32 s5, s3, 7")
        a("s_add_u32 s4, s4, s5")
        a(f"s_add_u32 s4, s4, {ST_OFF}")
        a("v_mov_b32 v3, 0")
        for k in range(14):
            a(f"v_mov_b32 v1, s{70+2*k}")
            a(f"buffer_store_dword v1, v3, s[48:51], s4 offen offset:{4*k}")

    def poll(loads, check, sleep, cnt="vmcnt", rec=None):
        uid[0] += 1
        n = uid[0]
        a(f"s_mov_b32 s15, {cfg.spin if cnt == 'vmcnt' else 8 * cfg.spin}")
        a.label(f"L_poll{n}")
        loads()
        a(f"s_waitcnt {cnt}(0)")
        check()
        a(f"s_cbranch_scc1 L_pdone{n}")
        a("s_sub_u32 s15, s15, 1")
        a(f"s_cbranch_scc1 L_pdone{n}")
        if sleep:
            a(f"s_sleep {sleep}")
        a(f"s_branch L_poll{n}")
        a.label(f"L_pdone{n}")
        if rec is not None and cfg.stamps:
            a(f"s_sub_u32 s{70+2*rec}, {cfg.spin+1}, s15")

    def wait_flags(reads, t, sleep):
        regs = []

        def ld():
            r = t
            regs.clear()
            for off, n, av in reads:
                op = {1: "ds_read_b32", 2: "ds_read_b64", 4: "ds_read_b128"}[n]
                a(f"{op} {vr(r,n)}, v{av} offset:{off}")
                regs.extend(range(r, r + n))
                r += (n + 1) & ~1

        def ck():
            rs = list(regs)
            while len(rs) >= 3:
                a(f"v_or3_b32 v{rs[0]}, v{rs[0]}, v{rs[1]}, v{rs[2]}")
                rs = [rs[0]] + rs[3:]
            if len(rs) == 2:
                a(f"v_or_b32 v{rs[0]}, v{rs[0]}, v{rs[1]}")
            a(f"v_cmp_eq_u32 vcc, 0, v{rs[0]}")
            a("s_cmp_eq_u64 vcc, -1")
        poll(ld, ck, sleep, cnt="lgkmcnt")

    def set_flag(off, av=14):
        a(f"ds_write_b32 v{av}, v14 offset:{off}")

    def get_mode(t):
        def ld():
            a(f"ds_read_b32 v{t}, v14 offset:{FM}")

        def ck():
            a(f"v_readfirstlane_b32 s101, v{t}")
            a("s_cmp_lg_u32 s101, -1")
        poll(ld, ck, cfg.sleep_lds, cnt="lgkmcnt")

    def store_mode(ins):
        uid[0] += 1
        n = uid[0]
        a("s_cmp_eq_u32 s101, 1")
        a(f"s_cbranch_scc1 L_stf{n}")
        a(ins + " sc1")
        a(f"s_branch L_std{n}")
        a.label(f"L_stf{n}")
        a(ins)
        a.label(f"L_std{n}")

    def check_tag(regs, t0, t1):
        regs = list(regs)
        a(f"v_xor_b32 v{t0}, s14, v{regs[0]}")
        a(f"v_xor_b32 v{t1}, s14, v{regs[1]}")
        for k, r in enumerate(regs[2:]):
            t = t0 if k % 2 == 0 else t1
            a(f"v_bitop3_b32 v{t}, v{r}, s14, v{t} bitop3:0xbe")
        a(f"v_or_b32 v{t0}, v{t0}, v{t1}")
        a(f"v_and_b32 v{t0}, s69, v{t0}")
        a(f"v_cmp_eq_u32 vcc, 0, v{t0}")
        a("s_cmp_eq_u64 vcc, -1")

    def check_sentinel(regs, tmp):
        regs = list(regs)
        a(f"v_max3_u32 v{tmp}, v{regs[0]}, v{regs[1]}, v{regs[2]}")
        regs = regs[3:]
        while len(regs) >= 2:
            a(f"v_max3_u32 v{tmp}, v{tmp}, v{regs[0]}, v{regs[1]}")
            regs = regs[2:]
        if regs:
            a(f"v_max_u32 v{tmp}, v{tmp}, v{regs[0]}")
        a(f"v_cmp_ne_u32 vcc, -1, v{tmp}")
        a("s_cmp_eq_u64 vcc, -1")

    def put_tag(r):
        a(f"v_bfi_b32 v{r}, s69, v15, v{r}")

    def load_tag():
        a(f"s_load_dword s14, s[38:39], {EP_OFF:#x}")

    def make_tag():
        a("s_add_u32 s14, s14, 1")
        a(f"s_and_b32 s14, s14, {cfg.tagmask}")
        a("v_mov_b32 v15, s14")

    def xlane(op, x, t, steps):
        for s in steps:
            if s in (1, 2, 4, 8):
                a("s_nop 1")
                a(f"{op}_dpp v{x}, v{x}, v{x} row_ror:{s} row_mask:0xf bank_mask:0xf")
            else:
                a(f"v_mov_b32 v{t}, v{x}")
                a("s_nop 1")
                a(f"v_permlane{s}_swap_b32 v{x}, v{t}")
                a(f"{op} v{x}, v{x}, v{t}")

    def round_bf16(d, s):
        a(f"v_cvt_pk_bf16_f32 v{d}, v{s}, v{s}")
        a(f"v_lshlrev_b32 v{d}, 16, v{d}")

    def perms(dst, src_e, i):
        for p in range(4):
            a(f"v_perm_b32 v{dst+p}, v{src_e(2*p+1)+i}, v{src_e(2*p)+i}, s64")
        for p in range(4):
            a(f"v_perm_b32 v{dst+4+p}, v{src_e(2*p+1)+i}, v{src_e(2*p)+i}, s65")

    def fold(dst, acc):
        for k in range(4):
            a(f"v_add_f32_dpp v{dst+k}, v{acc+4*k+1}, v{acc+4*k} row_ror:8 row_mask:0xf bank_mask:0x3")
        for k in range(4):
            if k >= 2:
                a("s_nop 0")
            a(f"v_add_f32_dpp v{dst+k}, v{acc+4*(k+4)}, v{acc+4*(k+4)+1} row_ror:8 row_mask:0xf bank_mask:0xc")
        for k in range(4):
            put_tag(dst + k)

    def consts():
        a("s_mov_b32 s64, 0x05040100")
        a("s_mov_b32 s65, 0x07060302")
        a("s_mov_b32 s66, 0xffff0000")
        a(f"s_mov_b32 s67, {LOG2E:#x}")
        a(f"s_mov_b32 s68, {SCALE:#x}")
        a(f"s_movk_i32 s69, {cfg.tagmask}")

    a("s_cmp_ge_u32 s2, 256")
    a("s_cbranch_scc1 L_END")
    a("s_load_dwordx16 s[16:31], s[0:1], 0")
    a("s_load_dwordx8 s[32:39], s[0:1], 64")
    stamp(0)
    if cfg.codepf and cfg.codepf < 7:
        a("s_getpc_b64 s[4:5]")
        a(f"v_lshlrev_b32 v1, {cfg.codepf}, v0")
        a("global_load_dword v2, v1, s[4:5]")
    a("v_lshrrev_b32 v3, 6, v0")
    if cfg.xm:
        a("s_and_b32 s98, s2, 7")
        a("s_lshl_b32 s98, s98, 2")
        a("s_bfe_u32 s100, s2, 0x20003")
        a("s_or_b32 s98, s98, s100")
        a("s_and_b32 s100, s2, 0xe0")
        a("s_or_b32 s98, s98, s100")
    else:
        a("s_mov_b32 s98, s2")
    if cfg.gm:
        a("s_and_b32 s99, s2, 7")
        a("s_lshl_b32 s99, s99, 5")
        a("s_lshr_b32 s100, s2, 3")
        a("s_or_b32 s99, s99, s100")
    else:
        a("s_mov_b32 s99, s2")
    a("v_and_b32 v0, 63, v0")
    a("v_readfirstlane_b32 s3, v3")
    a("v_and_b32 v4, 15, v0")
    a("v_lshrrev_b32 v5, 4, v0")
    a("v_mov_b32 v14, 0")
    a("v_lshrrev_b32 v8, 3, v4")
    a("v_and_b32 v9, 7, v4")
    a("s_cmp_ge_u32 s3, 4")
    a("s_cbranch_scc1 L_ATT")
    a("s_lshr_b32 s6, s98, 2")
    a("s_and_b32 s7, s98, 3")
    a("v_lshlrev_b32 v10, 3, v8")
    a("v_lshl_add_u32 v10, v5, 4, v10")
    a("s_cmp_lg_u32 s3, 0")
    a("s_cbranch_scc1 L_S123")

    XA = 16
    XO = 32
    XU = 36
    WR = 72
    ACC = 200
    PT = 232

    def wloads(stride, throttle, gate):
        for T in range(4):
            for e in range(8):
                k = 8 * T + e
                if throttle and k >= throttle:
                    if cfg.rank and cfg.nsh:
                        uid[0] += 1
                        a(f"s_waitcnt vmcnt({cfg.nsh-1})")
                        a(f"s_cbranch_vccnz L_sg{uid[0]}")
                        a(f"s_waitcnt vmcnt({throttle-1})")
                        a.label(f"L_sg{uid[0]}")
                    else:
                        a(f"s_waitcnt vmcnt({throttle-1})")
                a(f"buffer_load_dwordx4 {vr(WR+32*T+4*e,4)}, v10, s[40:43], s10 offen{NT}")
                if k < 31:
                    a(f"s_add_u32 s10, s10, {stride * (57 if e == 7 else 1)}")
                if gate and k == gate - 1:
                    set_flag(GF - 4, 13)

    if cfg.qmap:
        a("s_mul_i32 s4, s6, 37")
        a("s_lshr_b32 s4, s4, 8")
        a("s_mul_i32 s5, s4, 7")
        a("s_sub_u32 s5, s6, s5")
        a("s_cmp_ge_u32 s5, 3")
        a("s_addc_u32 s5, s5, 0")
        a("s_lshl_b32 s4, s4, 3")
        a("s_add_u32 s5, s5, s4")
        a("s_lshl_b32 s4, s6, 3")
        a(f"s_sub_u32 s4, s4, {56*8-3}")
        a("s_cmp_ge_u32 s6, 56")
        a("s_cselect_b32 s6, s4, s5")
    a("s_mov_b32 s9, 14")
    a("s_mov_b32 s101, 0")
    a("v_lshlrev_b32 v6, 6, v0")
    a("v_lshrrev_b32 v7, 5, v0")
    a("v_lshlrev_b32 v7, 11, v7")
    a("v_and_b32 v11, 31, v0")
    a("v_lshl_add_u32 v7, v11, 4, v7")
    a("s_lshl_b32 s12, s7, 9")
    a("v_lshlrev_b32 v10, 13, v10")
    a("v_lshl_add_u32 v10, v9, 4, v10")
    a("s_lshl_b32 s10, s7, 21")
    a("s_lshl_b32 s11, s6, 7")
    a("s_add_u32 s10, s10, s11")
    a("s_waitcnt lgkmcnt(0)")
    srd(56, 16, 4096)
    srd(40, 22, 0x800000)
    load_tag()
    for i in range(4):
        a(f"buffer_load_dwordx4 {vr(XA+4*i,4)}, v6, s[56:59], 0 offen offset:{16*i}")
    a(f"buffer_load_dwordx4 {vr(XO,4)}, v7, s[56:59], s12 offen")
    wloads(8192, 0, 0)
    stamp(1)
    a("s_barrier")
    srd(48, 38, WS_SIZE)
    consts()
    a("s_lshl_b32 s10, s7, 15")
    a("s_lshl_b32 s11, s6, 8")
    a("s_add_u32 s10, s10, s11")
    if QP_OFF:
        a(f"s_add_u32 s10, s10, {QP_OFF}")
    a("s_waitcnt vmcnt(32)")
    stamp(2)
    for i in range(16):
        a(f"v_lshlrev_b32 v{XU+2*i}, 16, v{XA+i}")
        a(f"v_and_b32 v{XU+2*i+1}, s66, v{XA+i}")
    for k in range(4):
        a(f"v_add_f32 v{XA+k}, v{XU+k}, v{XU+4+k}")
    for i in range(8, 32):
        a(f"v_add_f32 v{XA+(i&3)}, v{XA+(i&3)}, v{XU+i}")
    a(f"v_add_f32 v11, v{XA}, v{XA+1}")
    a(f"v_add_f32 v13, v{XA+2}, v{XA+3}")
    a("v_add_f32 v11, v11, v13")
    xlane("v_add_f32", 11, 12, [8, 4, 2, 1, 16])
    a("v_mul_f32 v11, 0x3a800000, v11")
    for i in range(32):
        a(f"v_sub_f32 v{XU+i}, v{XU+i}, v11")
    for k in range(4):
        a(f"v_mul_f32 v{XA+k}, v{XU+k}, v{XU+k}")
    for i in range(4, 32):
        a(f"v_fmac_f32 v{XA+(i&3)}, v{XU+i}, v{XU+i}")
    a(f"v_add_f32 v12, v{XA}, v{XA+1}")
    a(f"v_add_f32 v13, v{XA+2}, v{XA+3}")
    a("v_add_f32 v12, v12, v13")
    xlane("v_add_f32", 12, 13, [8, 4, 2, 1, 16])
    a("v_mul_f32 v12, 0x3a800000, v12")
    round_bf16(11, 11)
    round_bf16(12, 12)
    a(f"v_add_f32 v12, {EPS:#x}, v12")
    round_bf16(12, 12)
    a("v_sqrt_f32 v12, v12")
    a("s_nop 0")
    round_bf16(12, 12)
    a("v_rcp_f32 v13, v12")
    for i in range(4):
        a(f"v_lshlrev_b32 v{XU+2*i}, 16, v{XO+i}")
        a(f"v_and_b32 v{XU+2*i+1}, s66, v{XO+i}")
    for i in range(8):
        a(f"v_sub_f32 v{XU+i}, v{XU+i}, v11")
    for i in range(4):
        a(f"v_cvt_pk_bf16_f32 v{XO+i}, v{XU+2*i}, v{XU+2*i+1}")
    for i in range(4):
        a(f"v_lshlrev_b32 v{XU+2*i}, 16, v{XO+i}")
        a(f"v_and_b32 v{XU+2*i+1}, s66, v{XO+i}")
    for i in range(8):
        a(f"v_mul_f32 v{XU+8+i}, v{XU+i}, v13")
    for i in range(8):
        a(f"v_fma_f32 v{XU+i}, -v{XU+8+i}, v12, v{XU+i}")
    for i in range(8):
        a(f"v_fmac_f32 v{XU+8+i}, v{XU+i}, v13")
    for i in range(4):
        a(f"v_cvt_pk_bf16_f32 v{XO+i}, v{XU+8+2*i}, v{XU+8+2*i+1}")
    a("v_lshlrev_b32 v11, 4, v0")
    a(f"ds_write_b128 v11, {vr(XO,4)} offset:{XN}")
    set_flag(XF)
    a("s_waitcnt lgkmcnt(0)")
    make_tag()

    a.label("L_S_gemv")
    a("v_bfe_u32 v11, v4, 2, 1")
    a("v_lshlrev_b32 v11, 9, v11")
    a("v_lshl_add_u32 v11, v5, 5, v11")
    a("v_and_b32 v12, 1, v4")
    a("v_lshl_add_u32 v11, v12, 4, v11")
    for T in range(4):
        a(f"ds_read_b128 {vr(XU+4*T,4)}, v11 offset:{XN+128*T}")
    stamp(3)
    a("v_lshlrev_b32 v12, s9, v5")
    a("v_lshl_add_u32 v12, v9, 5, v12")
    a("v_lshl_add_u32 v12, v8, 4, v12")
    a("s_waitcnt lgkmcnt(0)")
    for T in range(4):
        a(f"s_waitcnt vmcnt({24-8*T})")
        src = lambda e, T=T: WR + 32 * T + 4 * e

        def M(i, T=T):
            for h in range(2):
                j = 2 * i + h
                c = "0" if T == 0 else vr(ACC + 4 * j, 4)
                a(f"v_mfma_f32_16x16x32_bf16 {vr(ACC+4*j,4)}, {vr(XU+4*T,4)}, {vr(PT+8*(i&1)+4*h,4)}, {c}")
        perms(PT, src, 0)
        perms(PT + 8, src, 1)
        M(0)
        perms(PT, src, 2)
        M(1)
        perms(PT + 8, src, 3)
        M(2)
        M(3)
    stamp(4)
    a("s_nop 3")
    fold(PT, ACC)
    a("s_mov_b32 exec_hi, 0")
    if not (cfg.abl & 8):
        store_mode(f"buffer_store_dwordx4 {vr(PT,4)}, v12, s[48:51], s10 offen")
    a("s_mov_b64 exec, -1")
    a("s_cmp_eq_u32 s3, 1")
    a("s_cbranch_scc1 L_S1_h")
    a("s_cmp_eq_u32 s3, 2")
    a("s_cbranch_scc1 L_S_END")
    if cfg.padto and cfg.padglobal:
        srd(52, 36, 256)
        a("s_mov_b64 exec, 1")
        a("v_mov_b32 v20, s94")
        a("buffer_atomic_umax v20, v14, s[52:55], 0 offen offset:4")
        a("v_not_b32 v21, v20")
        a("buffer_atomic_umax v21, v14, s[52:55], 0 offen")
        a("s_mov_b64 exec, -1")
    a("v_lshlrev_b32 v6, 4, v0")
    a("s_lshr_b32 s10, s99, 5")
    a("s_lshl_b32 s10, s10, 12")
    if QP_OFF:
        a(f"s_add_u32 s10, s10, {QP_OFF}")
    a("s_add_u32 s11, s10, 32768")
    a("s_add_u32 s12, s10, 65536")
    a("s_add_u32 s13, s10, 98304")
    a("v_lshrrev_b32 v7, 5, v0")
    a("v_mul_u32_u24 v7, 272, v7")
    a("v_and_b32 v11, 31, v0")
    a("v_lshl_add_u32 v7, v11, 3, v7")
    if cfg.pf:
        wait_flags([(PF, 1, 14)], 16, cfg.sleep_lds)
    stamp(6)

    def ldq():
        for kq in range(4):
            for i in range(4):
                if (cfg.abl & 16) and i: continue
                a(f"buffer_load_dwordx4 {vr(32+16*kq+4*i,4)}, v6, s[48:51], s{10+kq} offen offset:{1024*i} sc1{MNT}")
    if not (cfg.abl & 1):
        poll(ldq, lambda: check_tag([r for r in range(32, 96) if not (cfg.abl & 16) or (r - 32) % 16 < 4], 11, 12), cfg.sleep_q, rec=12)
    stamp(5)
    for k in range(16):
        a(f"v_add_f32 v{32+k}, v{32+k}, v{48+k}")
        a(f"v_add_f32 v{64+k}, v{64+k}, v{80+k}")
    for k in range(16):
        a(f"v_add_f32 v{32+k}, v{32+k}, v{64+k}")
    for i in range(4):
        a(f"v_cvt_pk_bf16_f32 v{48+2*i}, v{32+4*i}, v{33+4*i}")
        a(f"v_cvt_pk_bf16_f32 v{49+2*i}, v{34+4*i}, v{35+4*i}")
        a(f"ds_write_b64 v7, {vr(48+2*i,2)} offset:{QB+544*i}")
    set_flag(QF)
    a("s_branch L_S_tail")

    a.label("L_S123")
    if cfg.codepf == 7:
        a("s_getpc_b64 s[4:5]")
        a.label("L_pcref")
        a(f"s_sub_u32 s4, s4, L_pcref - {NAME}_kernel + 8192")
        a("s_subb_u32 s5, s5, 0")
        a("v_lshlrev_b32 v1, 7, v0")
        a("v_lshl_add_u32 v1, v3, 13, v1")
        a("global_load_dword v2, v1, s[4:5]")
    consts()
    a("s_mov_b32 s9, 8")
    a(f"s_mul_i32 s5, s3, {cfg.crot}")
    a("s_lshr_b32 s4, s2, 5")
    a("s_add_u32 s5, s5, s4")
    a("s_sub_u32 s4, s5, 7")
    a("s_cmp_ge_u32 s5, 7")
    a("s_cselect_b32 s5, s4, s5")
    a("s_and_b32 s4, s2, 7")
    a("s_mul_i32 s4, s4, 7")
    a("s_add_u32 s5, s5, s4")
    a("v_mul_u32_u24 v10, 7168, v10")
    a("v_lshl_add_u32 v10, v9, 4, v10")
    a(f"s_mul_i32 s10, s7, {256*7168}")
    a("s_lshl_b32 s11, s5, 7")
    a("s_add_u32 s10, s10, s11")
    a("v_mov_b32 v11, -1")
    a("v_lshlrev_b32 v12, 2, v0")
    a(f"ds_write_b32 v12, v11 offset:{MLB}")
    a(f"ds_write_b32 v12, v11 offset:{FL}")
    a("s_lshl_b32 s4, s3, 2")
    a("v_mov_b32 v13, s4")
    a("s_waitcnt lgkmcnt(0)")
    load_tag()
    if cfg.b0e:
        a("s_barrier")
    srd(48, 38, WS_SIZE)
    a("s_cmp_eq_u32 s3, 2")
    a("s_cselect_b64 s[40:41], s[30:31], s[28:29]")
    a("s_mov_b32 s42, 0x700000")
    a("s_mov_b32 s43, 0x20000")
    a("s_waitcnt lgkmcnt(0)")
    if not cfg.b0e:
        a("s_barrier")
    make_tag()
    a("s_cmp_eq_u32 s3, 3")
    a("s_cbranch_scc1 L_S3")
    a("s_cmp_lt_u32 s6, 56")
    a("s_cbranch_scc1 L_S12")
    set_flag(GF - 4, 13)
    a("s_branch L_S_END")
    a.label("L_S12")
    a("v_lshlrev_b32 v12, 1, v13")
    wait_flags([(GO - 8, 2, 12)], 16, cfg.sleep_lds)
    stamp(2)
    if cfg.rank and cfg.nsh:
        a(f"ds_read_b32 v16, v14 offset:{LV}")
        a("s_waitcnt lgkmcnt(0)")
        a("v_and_b32 v16, 1, v16")
        a("v_cmp_ne_u32 vcc, 0, v16")
    wloads(7168, cfg.ns, cfg.gate)
    stamp(1)
    a("s_lshl_b32 s10, s5, 12")
    a("s_lshl_b32 s12, s7, 10")
    a("s_add_u32 s10, s10, s12")
    a("s_lshl_b32 s12, s3, 9")
    a("s_add_u32 s10, s10, s12")
    a(f"s_add_u32 s10, s10, {GP_OFF-512}")
    wait_flags([(XF, 1, 14)], 16, cfg.sleep_lds)
    get_mode(16)
    a("s_branch L_S_gemv")

    a.label("L_S1_h")
    a("v_lshlrev_b32 v12, 3, v0")
    a("s_and_b32 s10, s2, 7")
    a("s_mul_i32 s10, s10, 7")
    a("s_lshr_b32 s4, s2, 5")
    a("s_add_u32 s10, s10, s4")
    a("s_lshl_b32 s10, s10, 12")
    a(f"s_add_u32 s10, s10, {GP_OFF}")

    def ldg():
        for kq in range(4):
            for m in range(2):
                a(f"buffer_load_dwordx2 {vr(16+4*kq+2*m,2)}, v12, s[48:51], s10 offen offset:{kq*1024+m*512} sc1{MNT}")
    if not (cfg.abl & 2):
        poll(ldg, lambda: check_tag(range(16, 32), 11, 13), cfg.sleep_tail, rec=12)
    stamp(5)
    for k in range(4):
        a(f"v_add_f32 v{16+k}, v{16+k}, v{20+k}")
        a(f"v_add_f32 v{24+k}, v{24+k}, v{28+k}")
    for k in range(4):
        a(f"v_add_f32 v{16+k}, v{16+k}, v{24+k}")
    a("v_cvt_pk_bf16_f32 v20, v16, v17")
    a("v_cvt_pk_bf16_f32 v21, v18, v19")
    a("v_lshlrev_b32 v16, 16, v20")
    a("v_and_b32 v17, s66, v20")
    a("v_lshlrev_b32 v18, 16, v21")
    a("v_and_b32 v19, s66, v21")
    a(f"s_mov_b32 s10, {f32bits(0.044715):#x}")
    a(f"s_mov_b32 s11, {f32bits(-2.0 * math.sqrt(2.0 / math.pi) * math.log2(math.e)):#x}")
    for k in range(2):
        a(f"v_mul_f32 v{20+k}, v{16+k}, v{16+k}")
    for k in range(2):
        a(f"v_mul_f32 v{20+k}, v{20+k}, v{16+k}")
    for k in range(2):
        a(f"v_fma_f32 v{20+k}, v{20+k}, s10, v{16+k}")
    for k in range(2):
        a(f"v_mul_f32 v{20+k}, s11, v{20+k}")
    for k in range(2):
        a(f"v_exp_f32 v{20+k}, v{20+k}")
    a("s_nop 0")
    for k in range(2):
        a(f"v_add_f32 v{20+k}, 1.0, v{20+k}")
    for k in range(2):
        a(f"v_rcp_f32 v{20+k}, v{20+k}")
    a("s_nop 0")
    for k in range(2):
        a(f"v_mul_f32 v{20+k}, v{20+k}, v{16+k}")
    a("v_cvt_pk_bf16_f32 v22, v20, v21")
    a("v_lshlrev_b32 v20, 16, v22")
    a("v_and_b32 v21, s66, v22")
    a("v_mul_f32 v20, v20, v18")
    a("v_mul_f32 v21, v21, v19")
    a("v_cvt_pk_bf16_f32 v22, v20, v21")
    a("v_lshlrev_b32 v12, 2, v0")
    a(f"ds_write_b32 v12, v22 offset:{HB}")
    set_flag(HF)
    a("s_branch L_S_END")

    a.label("L_S3")
    if cfg.rank:
        set_flag(LV)
    a("s_getreg_b32 s4, hwreg(HW_REG_XCC_ID)")
    a("s_and_b32 s4, s4, 15")
    a("s_lshl_b32 s4, s4, 8")
    a("s_or_b32 s4, s4, s14")
    a("v_mov_b32 v16, s4")
    a("s_lshl_b32 s10, s99, 6")
    a(f"s_add_u32 s10, s10, {XT_OFF}")
    a("s_mov_b64 exec, 1")
    if not (cfg.abl & 64):
        a("buffer_store_dword v16, v14, s[48:51], s10 offen sc1")
    a("s_mov_b64 exec, -1")
    a("v_and_b32 v7, 31, v0")
    a("v_lshlrev_b32 v7, 6, v7")
    a("s_lshr_b32 s10, s99, 5")
    a("s_lshl_b32 s10, s10, 11")
    a(f"s_add_u32 s10, s10, {XT_OFF}")
    wait_flags([(PF, 1, 14)], 16, cfg.sleep_lds)

    def ldx():
        a("buffer_load_dword v16, v7, s[48:51], s10 offen sc1")

    def ckx():
        a("v_xor_b32 v17, s14, v16")
        a("v_and_b32 v17, s69, v17")
        a("v_cmp_eq_u32 vcc, 0, v17")
        a("s_cmp_eq_u64 vcc, -1")
    if not (cfg.abl & 64):
        poll(ldx, ckx, cfg.sleep)
    a("v_cmp_eq_u32 vcc, s4, v16")
    a("s_cmp_eq_u64 vcc, -1")
    a("s_cselect_b32 s101, 1, 0")
    if cfg.abl & 64:
        a("s_mov_b32 s101, 1")
    if cfg.nofast:
        a("s_mov_b32 s101, 0")
    a("v_mov_b32 v16, s101")
    a(f"ds_write_b32 v14, v16 offset:{FM}")
    stamp(4)
    a("v_and_b32 v6, 7, v0")
    a("v_lshlrev_b32 v6, 3, v6")
    a("v_and_b32 v7, 31, v0")
    a("v_lshlrev_b32 v7, 3, v7")
    a("s_lshl_b32 s13, s99, 6")
    a(f"s_add_u32 s13, s13, {ML_OFF}")

    def ldm():
        for w in range(4):
            a(f"ds_read_b64 {vr(16+2*w,2)}, v6 offset:{MLB+64*w}")
    poll(ldm, lambda: check_sentinel(range(16, 24), 11), cfg.sleep_lds, cnt="lgkmcnt")
    stamp(5)
    a(f"ds_read_b32 v30, v7 offset:{MLB}")

    def combine4(mo):
        a(f"v_max3_f32 v{mo}, v16, v18, v20")
        a(f"v_max_f32 v{mo}, v{mo}, v22")

    def wsum4(mo, lo):
        for w in range(4):
            a(f"v_sub_f32 v{16+2*w}, v{16+2*w}, v{mo}")
        for w in range(4):
            a(f"v_mul_f32 v{16+2*w}, s67, v{16+2*w}")
        for w in range(4):
            a(f"v_exp_f32 v{16+2*w}, v{16+2*w}")
        a("s_nop 0")
        a(f"v_mul_f32 v{lo}, v16, v17")
        for w in range(1, 4):
            a(f"v_fmac_f32 v{lo}, v{16+2*w}, v{17+2*w}")
    combine4(24)
    wsum4(24, 25)
    put_tag(24)
    put_tag(25)
    a("s_mov_b64 exec, 0xff")
    if not (cfg.abl & 8):
        store_mode("buffer_store_dwordx2 v[24:25], v6, s[48:51], s13 offen")
    a("s_mov_b64 exec, -1")
    a("s_lshr_b32 s10, s99, 5")
    a("s_lshl_b32 s10, s10, 11")
    a(f"s_add_u32 s10, s10, {ML_OFF}")
    a("v_lshlrev_b32 v7, 3, v0")

    if cfg.rank:
        thr_ = [int(x) for x in cfg.rank.split(":")]
        for i in range(4):
            a(f"buffer_load_dword v{16+i}, v7, s[48:51], s10 offen offset:{512*i} sc1")
        a("s_waitcnt vmcnt(0)")
        a("s_mov_b32 s4, 0")
        for i in range(4):
            a(f"v_xor_b32 v{16+i}, s14, v{16+i}")
            a(f"v_and_b32 v{16+i}, s69, v{16+i}")
            a(f"v_cmp_eq_u32 vcc, 0, v{16+i}")
            a("s_bcnt1_i32_b64 s5, vcc")
            a("s_add_u32 s4, s4, s5")
        a("s_mov_b32 s5, 0")
        a(f"s_cmp_ge_u32 s4, {8*thr_[1]}")
        a("s_cselect_b32 s5, 1, s5")
        a(f"s_cmp_ge_u32 s4, {8*thr_[2]}")
        a("s_cselect_b32 s5, 3, s5")
        a(f"s_cmp_lt_u32 s4, {8*thr_[0]}")
        a("s_cselect_b32 s5, 4, s5")
        a("v_mov_b32 v16, s5")
        a(f"ds_write_b32 v14, v16 offset:{LV}")
        if cfg.stamps:
            a(f"s_lshr_b32 s{70+2*11}, s4, 3")
    if cfg.lf:
        wait_flags([(LF, 1, 14)], 16, cfg.sleep_lds)

    def ld2():
        for i in range(4):
            a(f"buffer_load_dwordx2 {vr(16+2*i,2)}, v7, s[48:51], s10 offen offset:{512*i} sc1{MNT}")
    if not (cfg.abl & 4):
        poll(ld2, lambda: check_tag(range(16, 24), 11, 12), cfg.sleep, rec=12)
    stamp(6)
    for w in range(4):
        a(f"v_and_b32 v{16+2*w}, s66, v{16+2*w}")
    combine4(26)
    xlane("v_max_f32", 26, 11, [8, 16, 32])
    wsum4(26, 27)
    xlane("v_add_f32", 27, 11, [8, 16, 32])
    a("s_waitcnt lgkmcnt(0)")
    a("v_sub_f32 v30, v30, v26")
    a("v_mul_f32 v30, s67, v30")
    a("v_exp_f32 v30, v30")
    a("v_rcp_f32 v27, v27")
    a("v_bfe_u32 v7, v0, 3, 2")
    a("v_lshlrev_b32 v7, 2, v7")
    a("v_lshl_add_u32 v7, v6, 1, v7")
    a("v_mul_f32 v30, v30, v27")
    a(f"ds_write_b32 v7, v30 offset:{FB}")
    set_flag(FF)

    a("v_and_b32 v11, 7, v0")
    a("v_lshlrev_b32 v6, 4, v11")
    a("v_lshl_add_u32 v6, v5, 2, v6")
    a("v_lshlrev_b32 v7, 4, v0")
    a("s_lshl_b32 s10, s99, 12")
    a(f"s_add_u32 s10, s10, {OP_OFF}")
    a("s_lshl_b32 s8, s99, 7")
    a(f"s_add_u32 s8, s8, {O2_OFF}")
    wait_flags([({0: OF, 1: WF}[cfg.wf1], 4, 14)], 60, cfg.sleep_lds)
    stamp(7)

    def ld3():
        for i in range(4):
            a(f"buffer_load_dwordx4 {vr(40+4*i,4)}, v7, s[48:51], s10 offen offset:{1024*i} sc1")
    poll(ld3, lambda: check_tag(range(40, 56), 12, 13), cfg.sleep_l1, rec=13)
    stamp(8)
    for k in range(4):
        a(f"v_add_f32 v{40+k}, v{40+k}, v{44+k}")
        a(f"v_add_f32 v{48+k}, v{48+k}, v{52+k}")
    for k in range(4):
        a(f"v_add_f32 v{40+k}, v{40+k}, v{48+k}")
    a("s_nop 0")
    a("v_permlane32_swap_b32 v40, v42")
    a("v_permlane32_swap_b32 v41, v43")
    a("v_add_f32 v40, v40, v42")
    a("v_add_f32 v41, v41, v43")
    a("s_nop 1")
    a("v_permlane16_swap_b32 v40, v41")
    a("v_add_f32 v40, v40, v41")
    a("s_nop 1")
    a("v_add_f32_dpp v40, v40, v40 row_ror:8 row_mask:0xf bank_mask:0xf")
    a("v_cvt_pk_bf16_f32 v40, v40, v40")
    put_tag(40)
    a("s_mov_b32 exec_lo, 0x00ff00ff")
    a("s_mov_b32 exec_hi, 0x00ff00ff")
    a("buffer_store_dword v40, v6, s[48:51], s8 offen sc1")
    if cfg.wb == 1:
        a("s_cmp_ge_u32 s2, 8")
        a("s_cbranch_scc1 L_S_END")
        a("buffer_wbl2 sc1")
    if cfg.wb == 2:
        a("s_cmp_ge_u32 s2, 8")
        a("s_cbranch_scc1 L_S_END")
        a("s_mov_b64 exec, -1")
        wait_flags([(SF, 4, 14)], 60, cfg.sleep_lds)
        a("buffer_wbl2 sc1")
    a("s_branch L_S_END")

    a.label("L_S_tail")
    a("s_lshr_b32 s7, s98, 2")
    a("s_lshl_b32 s7, s7, 8")
    a(f"s_add_u32 s7, s7, {O2_OFF}")
    srd(60, 34, 4096)
    a("v_lshlrev_b32 v10, 2, v5")
    a("s_lshl_b32 s12, s98, 4")
    a("buffer_load_dword v36, v10, s[56:59], s12 offen")
    a("v_lshlrev_b32 v9, 7, v0")
    a("s_lshr_b32 s13, s98, 2")
    a("s_lshl_b32 s13, s13, 13")
    a("s_and_b32 s11, s98, 3")
    a("s_lshl_b32 s11, s11, 5")
    a("s_add_u32 s13, s13, s11")
    a(f"s_add_u32 s13, s13, {XP_OFF}")
    a("v_lshrrev_b32 v12, 5, v0")
    a("v_lshlrev_b32 v12, 14, v12")
    a("v_and_b32 v13, 31, v0")
    a("v_lshl_add_u32 v12, v13, 3, v12")
    a("v_lshlrev_b32 v13, 2, v0")
    wait_flags([(WF, 4, 14)], 60, cfg.sleep_lds)
    stamp(7)

    def ld5():
        a("buffer_load_dwordx2 v[40:41], v12, s[48:51], s7 offen sc1")
    poll(ld5, lambda: check_tag([40, 41], 42, 43), cfg.sleep_tail, rec=13)
    a("v_perm_b32 v40, v41, v40, s65")
    a(f"ds_write_b32 v13, v40 offset:{OB}")
    set_flag(BF)
    stamp(9)
    wait_flags([(SF, 4, 14)], 60, cfg.sleep_of)

    def ld4(r=40):
        a(f"buffer_load_dwordx4 {vr(r,4)}, v9, s[48:51], s13 offen sc1")
        a(f"buffer_load_dwordx4 {vr(r+4,4)}, v9, s[48:51], s13 offen offset:16 sc1")
    if cfg.ypipe <= 1:
        poll(ld4, lambda: check_tag(range(40, 48), 12, 13), cfg.sleep_tail)
    else:
        P = cfg.ypipe
        a(f"s_mov_b32 s15, {cfg.spin}")
        for p in range(P - 1):
            ld4(48 + 8 * p)
            a(f"s_sleep {cfg.ygap}")
        a.label("L_yloop")
        for p in range(P):
            ld4(48 + 8 * ((p + P - 1) % P))
            a(f"s_waitcnt vmcnt({2*(P-1)})")
            check_tag(range(48 + 8 * p, 56 + 8 * p), 12, 13)
            a(f"s_cbranch_scc1 L_ygot{p}")
        a("s_sub_u32 s15, s15, 1")
        a("s_cbranch_scc0 L_yloop")
        for p in range(P):
            a.label(f"L_ygot{p}")
            for k in range(8):
                a(f"v_mov_b32 v{40+k}, v{48+8*p+k}")
            if p < P - 1:
                a("s_branch L_ysum")
        a.label("L_ysum")
        a("s_nop 1")
    stamp(10)
    for k in range(4):
        a(f"v_permlane32_swap_b32 v{40+k}, v{44+k}")
    for k in range(4):
        a(f"v_add_f32 v{40+k}, v{40+k}, v{44+k}")
    a("s_nop 0")
    a("v_permlane16_swap_b32 v40, v42")
    a("v_permlane16_swap_b32 v41, v43")
    a("v_add_f32 v40, v40, v42")
    a("v_add_f32 v41, v41, v43")
    for s in (8, 4, 2, 1):
        a("s_nop 0")
        a(f"v_add_f32_dpp v40, v40, v40 row_ror:{s} row_mask:0xf bank_mask:0xf")
        a(f"v_add_f32_dpp v41, v41, v41 row_ror:{s} row_mask:0xf bank_mask:0xf")
    a("v_lshlrev_b32 v42, 16, v36")
    a("v_and_b32 v43, s66, v36")
    a("v_add_f32 v40, v40, v42")
    a("v_add_f32 v41, v41, v43")
    a("v_cvt_pk_bf16_f32 v40, v40, v41")
    a("s_mov_b32 exec_lo, 0x00010001")
    a("s_mov_b32 exec_hi, 0x00010001")
    a("buffer_store_dword v40, v10, s[60:63], s12 offen" + (" sc1" if cfg.outsc else ""))
    stamp(11)
    if cfg.padto:
        a("s_mov_b64 exec, -1")
        if cfg.padglobal:
            srd(52, 36, 256)
            a(f"buffer_load_dword v20, v14, s[52:55], 0 offen offset:{4*(cfg.padglobal-1)} sc1")
            a("s_waitcnt vmcnt(0)")
            a("v_readfirstlane_b32 s94, v20")
            if cfg.padglobal == 1:
                a("s_not_b32 s94, s94")
        a.label("L_pad")
        a("s_memrealtime s[96:97]")
        a("s_waitcnt lgkmcnt(0)")
        a("s_sub_u32 s96, s96, s94")
        a(f"s_cmp_lt_u32 s96, {cfg.padto}")
        a("s_cbranch_scc1 L_pad")
    a("s_cmp_lg_u32 s2, 0")
    a("s_cbranch_scc1 L_S_END")
    a("s_mov_b64 exec, 1")
    a(f"s_mov_b32 s9, {EP_OFF:#x}")
    a("buffer_store_dword v15, v14, s[48:51], s9 offen" + (" sc1" if cfg.outsc else ""))
    a.label("L_S_END")
    dump_stamps()
    a("s_endpgm")

    a.label("L_ATT")
    RING = 16
    SC = RING + 16 * R
    QR = SC + 32
    ST = QR + 8
    AC = QR
    PTA = AC + 32
    assert PTA + 16 <= 256 and ST + 26 <= 256 and R == 10
    a("s_sub_u32 s6, s3, 4")
    a("v_bfe_u32 v6, v4, 1, 1")
    a("v_lshrrev_b32 v7, 2, v4")
    a("v_lshl_add_u32 v6, v6, 2, v7")
    a("v_lshlrev_b32 v6, 8, v6")
    a("v_lshl_add_u32 v6, v5, 5, v6")
    a("v_and_b32 v7, 1, v4")
    a("v_lshl_add_u32 v6, v7, 4, v6")
    a("v_lshlrev_b32 v7, 4, v0")
    a("s_lshl_b32 s7, s99, 18")
    a("s_lshl_b32 s8, s6, 12")
    a("s_add_u32 s7, s7, s8")
    a("s_mov_b32 s8, s7")
    a("s_lshl_b32 s9, s6, 2")
    a("v_mov_b32 v13, s9")
    a("s_waitcnt lgkmcnt(0)")
    load_tag()
    srd(40, 18, 0x4000000)
    srd(44, 20, 0x4000000)
    srd(48, 38, WS_SIZE)
    srd(52, 24, 0x800000)
    srd(56, 32, 0x700000)
    consts()
    a("v_mul_u32_u24 v11, 272, v9")
    a("v_lshl_add_u32 v11, v5, 5, v11")
    a("v_lshl_add_u32 v11, v8, 4, v11")
    a("v_mov_b32 v10, 0xff800000")
    a("s_barrier")
    if not cfg.b0e:
        a("s_waitcnt lgkmcnt(0)")
        make_tag()
    N = cfg.n
    N0 = cfg.n0 or N
    NL = 144
    lim = [128]
    nl = [0]

    def slot_of(item):
        return RING + 16 * (item % R)

    def issue1():
        k = nl[0]
        if k >= lim[0]:
            return
        item, q = divmod(k, 4)
        slot = slot_of(item)
        if item < 16:
            a(f"buffer_load_dwordx4 {vr(slot+4*q,4)}, v6, s[40:43], s7 offen offset:{128*(q&1)+2048*(q>>1)}{KNT}")
            if q == 3 and item < 15:
                a("s_add_u32 s7, s7, 16384")
        elif item < 32:
            a(f"buffer_load_dwordx4 {vr(slot+4*q,4)}, v7, s[44:47], s8 offen offset:{1024*q}{VNT}")
            if q == 3 and item < 31:
                a("s_add_u32 s8, s8, 16384")
        elif item < 34:
            m = k - 128
            a(f"buffer_load_dwordx4 {vr(slot+4*q,4)}, v3, s[52:55], s11 offen offset:{2048*(m&1)}{NT}")
            if (m & 1) and m < 7:
                a("s_add_u32 s11, s11, 16384")
        else:
            e = k - 136
            a(f"buffer_load_dwordx4 {vr(slot+4*q,4)}, v1, s[56:59], s10 offen offset:{2048*(e&1)}{NT}")
            if (e & 1) and e < 7:
                a("s_add_u32 s10, s10, 4096")
        nl[0] += 1
        if cfg.pf and k == cfg.pf - 1:
            set_flag(PF)
        for c, (kc, thi, tlo) in enumerate(cps):
            if k == kc - 1:
                set_flag(CPF + 16 * c, 13)
        if k == cfg.go - 1:
            set_flag(GO, 13)
        if cfg.lf and k == cfg.lf - 1:
            set_flag(LF)
        if cfg.wf and k == cfg.wf - 1:
            set_flag(WF, 13)

    def wait_load(k):
        a(f"s_waitcnt vmcnt({nl[0] - k - 1})")

    NH = N
    lvl_pending = [False]
    lvl_on = [False]

    def thr():
        if not lvl_on[0]:
            return
        uid[0] += 1
        lab = f"L_go{uid[0]}"
        if cfg.nh > N + 1:
            a("s_bitcmp1_b32 s100, 1")
            a(f"s_cbranch_scc1 {lab}")
            a(f"s_waitcnt vmcnt({N})")
        a("s_bitcmp1_b32 s100, 0")
        a(f"s_cbranch_scc1 {lab}")
        a(f"s_waitcnt vmcnt({N-1})")
        a("s_bitcmp1_b32 s100, 2")
        a(f"s_cbranch_scc0 {lab}")
        a(f"s_waitcnt vmcnt({cfg.nl-1})")
        a.label(lab)

    def lvl_update():
        if lvl_pending[0]:
            a("s_waitcnt lgkmcnt(0)")
            a("v_readfirstlane_b32 s100, v2")
        a(f"ds_read_b32 v2, v14 offset:{LV}")
        lvl_pending[0] = True

    def advance(item):
        if lvl_on[0] and item < 24:
            lvl_update()
        for q in range(4):
            k = 4 * item + q
            if nl[0] < lim[0] and nl[0] - (k + 1) < NH:
                wait_load(k)
                while nl[0] < lim[0] and nl[0] - (k + 1) < NH:
                    thr()
                    issue1()
            elif q == 3:
                wait_load(k)

    for k in range(4 * R):
        if k >= N0:
            a(f"s_waitcnt vmcnt({N0-1})")
        issue1()
    stamp(1)
    wait_flags([(QF, 1, 14)], QR, 1)
    if cfg.b0e:
        make_tag()
    stamp(2)
    for c in range(2):
        a(f"ds_read_b128 {vr(QR+4*c,4)}, v11 offset:{QB+128*c}")
    a("s_mov_b64 vcc, 0")
    a("s_waitcnt lgkmcnt(0)")

    def post(i):
        t = ST + 8 * (i & 1)
        w = ST + 16
        for q in range(4):
            a(f"v_add_f32_dpp v{w+6+q}, v{t+2*q+1}, v{t+2*q} row_ror:8 row_mask:0xf bank_mask:0xf")
        s = w + 6
        a(f"v_max3_f32 v10, v10, v{s}, v{s+1}")
        a(f"v_cvt_pk_bf16_f32 v{w+4}, v{s}, v{s+1}")
        a(f"v_cvt_pk_bf16_f32 v{w+5}, v{s+2}, v{s+3}")
        a(f"v_max3_f32 v10, v10, v{s+2}, v{s+3}")
        a(f"v_lshlrev_b32 v{w}, 16, v{w+4}")
        a(f"v_and_b32 v{w+1}, s66, v{w+4}")
        a(f"v_lshlrev_b32 v{w+2}, 16, v{w+5}")
        a(f"v_and_b32 v{w+3}, s66, v{w+5}")
        for k in range(4):
            a(f"v_mul_f32 v{w+k}, s68, v{w+k}")
        a(f"v_cvt_pk_bf16_f32 v{SC+2*i}, v{w}, v{w+1}")
        a(f"v_cvt_pk_bf16_f32 v{SC+2*i+1}, v{w+2}, v{w+3}")

    for i in range(16):
        advance(i)
        slot = slot_of(i)
        t = ST + 8 * (i & 1)
        for st_ in range(2):
            for ln in range(2):
                cc = "0" if ln == 0 else vr(t + 4 * st_, 4)
                a(f"v_mfma_f32_16x16x32_bf16 {vr(t+4*st_,4)}, {vr(slot+4*(2*st_+ln),4)}, {vr(QR+4*ln,4)}, {cc}")
        if nl[0] - 4 * (i + 1) >= NH and nl[0] < 4 * (i + 1 + R):
            cnt = cfg.catch0 if i == 0 else cfg.catch
            for _ in range(cnt):
                if nl[0] < 4 * (i + 1 + R):
                    a(f"s_waitcnt vmcnt({N-1})")
                    issue1()
        if i >= 1:
            a("s_nop 3")
            post(i - 1)
    a("s_nop 7")
    post(15)
    stamp(3)
    xlane("v_max_f32", 10, 11, [16, 32])
    w = ST
    MM, LL, L2 = ST + 8, ST + 9, ST + 10
    assert MM % 2 == 0
    round_bf16(MM, 10)
    a(f"v_mul_f32 v{MM}, s68, v{MM}")
    round_bf16(MM, MM)
    a(f"v_mul_f32 v11, s67, v{MM}")
    a(f"v_mov_b32 v{LL}, 0")
    a(f"v_mov_b32 v{L2}, 0")
    for k in range(0, 32, 2):
        if k % cfg.smstep == 0:
            issue1()
        for q in range(2):
            a(f"v_lshlrev_b32 v{w+2*q}, 16, v{SC+k+q}")
            a(f"v_and_b32 v{w+2*q+1}, s66, v{SC+k+q}")
        for q in range(4):
            a(f"v_fma_f32 v{w+q}, v{w+q}, s67, -v11")
        for q in range(4):
            a(f"v_exp_f32 v{w+q}, v{w+q}")
        a(f"v_add_f32 v{LL}, v{LL}, v{w}")
        a(f"v_add_f32 v{L2}, v{L2}, v{w+1}")
        a(f"v_cvt_pk_bf16_f32 v{SC+k}, v{w}, v{w+1}")
        a(f"v_add_f32 v{LL}, v{LL}, v{w+2}")
        a(f"v_add_f32 v{L2}, v{L2}, v{w+3}")
        a(f"v_cvt_pk_bf16_f32 v{SC+k+1}, v{w+2}, v{w+3}")
    a(f"v_add_f32 v{LL}, v{LL}, v{L2}")
    xlane("v_add_f32", LL, L2, [16, 32])
    a(f"v_min_u32 v{LL}, -2, v{LL}")
    a("s_lshl_b32 s9, s6, 6")
    a("v_lshlrev_b32 v12, 3, v0")
    a("v_add_u32 v12, s9, v12")
    a("s_mov_b64 exec, 0xff")
    a(f"ds_write_b64 v12, {vr(MM,2)} offset:{MLB}")
    a("s_mov_b64 exec, -1")
    stamp(4)
    issue1()
    a("s_lshr_b32 s4, s98, 2")
    a("s_and_b32 s5, s98, 3")
    a("s_mul_i32 s9, s6, 4224")
    a("v_mul_u32_u24 v10, 528, v4")
    a("v_lshl_add_u32 v10, v5, 7, v10")
    a("v_add_u32 v10, s9, v10")
    a("v_lshrrev_b32 v3, 1, v5")
    a("v_lshlrev_b32 v3, 5, v3")
    a("v_and_b32 v1, 1, v5")
    a("v_lshl_add_u32 v3, v1, 2, v3")
    a("v_lshl_add_u32 v3, v8, 1, v3")
    a("v_lshlrev_b32 v3, 11, v3")
    a("v_lshl_add_u32 v3, v9, 4, v3")
    a("v_lshlrev_b32 v1, 3, v8")
    a("v_lshl_add_u32 v1, v5, 4, v1")
    a("v_lshlrev_b32 v1, 11, v1")
    a("v_lshl_add_u32 v1, v9, 4, v1")
    a("s_lshl_b32 s11, s5, 9")
    a("s_lshl_b32 s12, s6, 7")
    a("s_add_u32 s12, s12, s11")
    a("s_lshl_b32 s11, s4, 17")
    a("s_add_u32 s11, s11, s12")
    a("s_and_b32 s10, s2, 7")
    a("s_mul_i32 s10, s10, 7")
    a("s_lshr_b32 s13, s2, 5")
    a("s_add_u32 s10, s10, s13")
    a("s_cmp_ge_u32 s4, 56")
    a("s_cselect_b32 s10, 56, s10")
    a("s_lshl_b32 s10, s10, 17")
    a("s_add_u32 s10, s10, s12")
    a("v_bfe_u32 v12, v4, 2, 1")
    a("v_lshlrev_b32 v12, 7, v12")
    a("v_lshl_add_u32 v12, v5, 5, v12")
    a("v_and_b32 v11, 1, v4")
    a("v_lshl_add_u32 v12, v11, 4, v12")
    a("v_lshlrev_b32 v11, 18, v5")
    a("v_lshrrev_b32 v6, 2, v9")
    a("v_lshl_add_u32 v11, v6, 13, v11")
    a("v_and_b32 v6, 3, v9")
    a("v_lshl_add_u32 v11, v6, 5, v11")
    a("v_lshl_add_u32 v11, v8, 4, v11")
    a("s_lshl_b32 s9, s5, 16")
    a("s_lshl_b32 s12, s6, 14")
    a("s_add_u32 s9, s9, s12")
    a("s_lshl_b32 s12, s4, 7")
    a("s_add_u32 s9, s9, s12")
    a(f"s_add_u32 s9, s9, {XP_OFF}")
    a("v_lshrrev_b32 v4, 5, v0")
    a("s_lshl_b32 s12, s6, 1")
    a("v_add_u32 v4, s12, v4")
    a("v_lshlrev_b32 v5, 4, v4")
    a("v_mul_u32_u24 v4, 528, v4")
    a("v_and_b32 v6, 31, v0")
    a("v_lshl_add_u32 v4, v6, 4, v4")
    a("v_lshlrev_b32 v8, 4, v9")
    a("v_lshrrev_b32 v6, 3, v0")
    a("v_lshl_add_u32 v8, v6, 12, v8")
    a("v_mul_u32_u24 v6, 5, v6")
    a("v_add_u32 v6, s99, v6")
    a("v_and_b32 v6, 31, v6")
    a("v_lshl_add_u32 v8, v6, 7, v8")
    a("s_lshr_b32 s5, s99, 5")
    a("s_lshl_b32 s5, s5, 17")
    a("s_lshl_b32 s12, s6, 15")
    a("s_add_u32 s5, s5, s12")
    a(f"s_add_u32 s5, s5, {OP_OFF}")
    get_mode(6)
    if cfg.rank:
        NH = cfg.nh
        lvl_on[0] = True
        a("s_mov_b32 s100, 0")
    for it in range(16, 32):
        advance(it)
        if it & 1:
            u = (it - 16) // 2
            s0 = slot_of(16 + 2 * u)
            s1 = slot_of(17 + 2 * u)
            src = lambda e, s0=s0, s1=s1: (s0 if e < 4 else s1) + 4 * (e & 3)

            def M(i, u=u):
                for h in range(2):
                    j = 2 * i + h
                    c = "0" if u == 0 else vr(AC + 4 * j, 4)
                    a(f"v_mfma_f32_16x16x32_bf16 {vr(AC+4*j,4)}, {vr(PTA+8*(i&1)+4*h,4)}, {vr(SC+4*u,4)}, {c}")
            perms(PTA, src, 0)
            perms(PTA + 8, src, 1)
            M(0)
            perms(PTA, src, 2)
            M(1)
            perms(PTA + 8, src, 3)
            M(2)
            M(3)
    stamp(5)
    a("s_mov_b32 exec_lo, 0x00ff00ff")
    a("s_mov_b32 exec_hi, 0x00ff00ff")
    for j in range(8):
        if j == 4:
            a("s_nop 0")
        a(f"ds_write_b128 v10, {vr(AC+4*j,4)} offset:{ORED+16*j}")
    a("s_mov_b64 exec, -1")
    set_flag(OF, 13)
    T0 = slot_of(0)
    wait_flags([(OF, 4, 14), (FF, 1, 14)], T0, 0)
    a(f"ds_read_b128 {vr(T0,4)}, v5 offset:{FB}")
    for w_ in range(4):
        a(f"ds_read_b128 {vr(T0+4+4*w_,4)}, v4 offset:{ORED+4224*w_}")
    a("s_waitcnt lgkmcnt(0)")
    for w_ in range(4):
        for k in range(4):
            if w_ == 0:
                a(f"v_mul_f32 v{T0+4+k}, v{T0}, v{T0+4+k}")
            else:
                a(f"v_fmac_f32 v{T0+4+k}, v{T0+w_}, v{T0+4+4*w_+k}")
    for k in range(4):
        put_tag(T0 + 4 + k)
    store_mode(f"buffer_store_dwordx4 {vr(T0+4,4)}, v8, s[48:51], s5 offen")
    stamp(6)
    TP = slot_of(6)
    XACC = SC
    wait_flags([(GF, 2, 14)], PTA, 1)
    lim[0] = NL
    NH = cfg.nw2 or NH
    for _ in range(NH):
        if _ >= cfg.nl:
            thr()
        issue1()
    advance(32)
    advance(33)
    srco = lambda e: (lambda m: slot_of(32 + (m >> 2)) + 4 * (m & 3))(2 * (e & 3) + (e >> 2))
    for i in range(4):
        perms(TP + 8 * i, srco, i)
    advance(34)
    assert nl[0] == NL
    if cfg.diagx:
        advance(35)
        stamp(7)
    wait_flags([(BF, 1, 14)], PTA + 4, 0)
    stamp(8)
    a(f"ds_read_b128 {vr(PTA+4,4)}, v12 offset:{OB}")
    a("s_waitcnt lgkmcnt(0)")
    for j in range(8):
        a(f"v_mfma_f32_16x16x32_bf16 {vr(XACC+4*j,4)}, {vr(PTA+4,4)}, {vr(TP+4*j,4)}, 0")
    a("s_cmp_ge_u32 s4, 56")
    a("s_cbranch_scc1 L_noffn")
    wait_flags([(HF, 1, 14)], PTA, 0)
    stamp(9)
    a(f"ds_read_b128 {vr(PTA,4)}, v12 offset:{HB}")
    advance(35)
    if not cfg.diagx:
        stamp(7)
    srcd = lambda e: slot_of(34 + (e >> 2)) + 4 * (e & 3)
    perms(TP + 32, srcd, 0)
    a("s_waitcnt lgkmcnt(0)")
    for i in range(4):
        if i < 3:
            perms(TP + 32 + 8 * (i + 1), srcd, i + 1)
        else:
            a("s_nop 0")
        for j in (2 * i, 2 * i + 1):
            a(f"v_mfma_f32_16x16x32_bf16 {vr(XACC+4*j,4)}, {vr(PTA,4)}, {vr(TP+32+4*j,4)}, {vr(XACC+4*j,4)}")
    a("s_nop 1")
    a.label("L_noffn")
    a("s_nop 3")
    a("s_nop 1")
    fold(PTA + 8, XACC)
    a("s_mov_b32 exec_hi, 0")
    a(f"buffer_store_dwordx4 {vr(PTA+8,4)}, v11, s[48:51], s9 offen sc1{TNT}")
    set_flag(SF, 13)
    stamp(10)
    dump_stamps()
    a.label("L_END")
    a("s_endpgm")

    probs = check_hazards(a.lines)
    for p in probs:
        print(p, file=sys.stderr)
    if probs:
        raise SystemExit("hazards found")

    pad = ""
    if cfg.codepf:
        psz = (512 << cfg.codepf) + 256 if cfg.codepf < 7 else 24576
        pad = f".fill ({psz} - (. - {NAME}_kernel)) / 4, 4, 0xBF800000\n"
    out = HEADER
    out += "; Generated by work/gen9.py (hand-written generator). One persistent launch, 256 workgroups x 8 waves.\n"
    out += f"; @launch grid=(256,1,1) block=(512,1,1) lds={LDS_SIZE}\n"
    out += f""".amdgcn_target "amdgcn-amd-amdhsa--gfx950"
.text
.globl {NAME}_kernel
.p2align 8
.type {NAME}_kernel,@function
{NAME}_kernel:
"""
    out += a.text()
    out += pad
    out += f""".section .rodata,"a"
.p2align 6
.amdhsa_kernel {NAME}_kernel
  .amdhsa_next_free_vgpr 256
  .amdhsa_next_free_sgpr 102
  .amdhsa_accum_offset 256
  .amdhsa_group_segment_fixed_size 0
  .amdhsa_kernarg_size 96
  .amdhsa_user_sgpr_count 2
  .amdhsa_user_sgpr_kernarg_segment_ptr 1
  .amdhsa_system_sgpr_workgroup_id_x 1
  .amdhsa_float_denorm_mode_32 3
.end_amdhsa_kernel
"""
    return out


def parse_args(argv=None):
    p = argparse.ArgumentParser()
    p.add_argument("-o", default="cdna_kernels/" + NAME + ".s")
    p.add_argument("--ring", type=int, default=10)
    p.add_argument("--stamps", type=int, default=0)
    p.add_argument("--codepf", type=int, default=7)
    p.add_argument("--sleep", type=int, default=8)
    p.add_argument("--sleep_q", type=int, default=0)
    p.add_argument("--sleep_lds", type=int, default=2)
    p.add_argument("--sleep_of", type=int, default=1)
    p.add_argument("--sleep_tail", type=int, default=0)
    p.add_argument("--spin", type=int, default=2000000)
    p.add_argument("--tagmask", type=int, default=15)
    p.add_argument("--n", type=int, default=6)
    p.add_argument("--n0", type=int, default=0)
    p.add_argument("--ns", type=int, default=12)
    p.add_argument("--gate", type=int, default=32)
    p.add_argument("--crot", type=int, default=1)
    p.add_argument("--pf", type=int, default=24)
    p.add_argument("--wf", type=int, default=136)
    p.add_argument("--catch0", type=int, default=4)
    p.add_argument("--catch", type=int, default=1)
    p.add_argument("--smstep", type=int, default=6)
    p.add_argument("--abl", type=int, default=0)
    p.add_argument("--cp", default="")
    p.add_argument("--padfrom", type=int, default=0)
    p.add_argument("--rank", default="0:22:28")
    p.add_argument("--nsh", type=int, default=0)
    p.add_argument("--nw2", type=int, default=0)
    p.add_argument("--b0e", type=int, default=0)
    p.add_argument("--ypipe", type=int, default=3)
    p.add_argument("--ygap", type=int, default=5)
    p.add_argument("--wb", type=int, default=0)
    p.add_argument("--outsc", type=int, default=0)
    p.add_argument("--nont", type=int, default=0)
    p.add_argument("--diagx", type=int, default=0)
    p.add_argument("--go", type=int, default=128)
    p.add_argument("--sleep_l1", type=int, default=0)
    p.add_argument("--nofast", type=int, default=0)
    p.add_argument("--xtw", type=int, default=1)
    p.add_argument("--wf1", type=int, default=0)
    p.add_argument("--mlplain", type=int, default=0)
    p.add_argument("--satom", type=int, default=0)
    p.add_argument("--nh", type=int, default=8)
    p.add_argument("--nl", type=int, default=5)
    p.add_argument("--padto", type=int, default=0)
    p.add_argument("--padglobal", type=int, default=0)
    p.add_argument("--lf", type=int, default=108)
    p.add_argument("--k2", type=int, default=0)
    p.add_argument("--n2", type=int, default=10)
    p.add_argument("--kr", type=int, default=2)
    p.add_argument("--qmap", type=int, default=1)
    p.add_argument("--xm", type=int, default=1)
    p.add_argument("--gm", type=int, default=1)
    p.add_argument("--gpw", type=int, default=2)
    p.add_argument("--hnt", type=int, default=0)
    return p.parse_args(argv)


if __name__ == "__main__":
    cfg = parse_args()
    open(cfg.o, "w").write(gen(cfg))
    print("wrote", cfg.o)
```

```python
import sys
import argparse
import struct
import math
from asmlib import Asm, vr, sr, check_hazards

NAME = "parallel_sum__gqa_block_cached__geglu_ffn__decode"

QP_OFF = 0x000000
GP_OFF = 0x020000
ML_OFF = 0x060000
XT_OFF = 0x068000
EP_OFF = 0x070000
O2_OFF = 0x078000
OP_OFF = 0x080000
XP_OFF = 0x180000
ST_OFF = 0x200000
WS_SIZE = 0x400000
XN = 0x0000
QB = 0x0400
MLB = 0x0C80
FL = 0x0D80
OF = FL + 0
FF = FL + 16
GF = FL + 24
QF = FL + 32
XF = FL + 36
PF = FL + 40
HF = FL + 44
LF = FL + 20
WF = FL + 48
BF = FL + 72
GO = FL + 80
SF = FL + 96
FM = FL + 68
LV = FL + 64
CPF = FL + 128
FB = 0x0E80
OB = 0x0F00
HB = 0x1000
ORED = 0x1100
LDS_SIZE = ORED + 4 * 4224

LOG2E = 0x3FB8AA3B
SCALE = 0x3DB504F3
EPS = 0x3727C5AC

HEADER = open("cdna_kernels/" + NAME + ".s.ref").read().split("; Override launch")[0]


def f32bits(x):
    return struct.unpack("<I", struct.pack("<f", x))[0]


def gen(cfg):
    a = Asm()
    R = cfg.ring
    NT = " nt" if not cfg.nont & 4 else ""
    KNT = " nt" if not cfg.nont & 1 else ""
    VNT = " nt" if not cfg.nont & 2 else ""
    MLS = "" if cfg.mlplain else " sc1"
    MNT = " nt" if cfg.hnt & 1 else ""
    ONT = " nt" if cfg.hnt & 2 else ""
    XNT = " nt" if cfg.hnt & 4 else ""
    SNT = " nt" if cfg.hnt & 8 else ""
    TNT = " nt" if cfg.hnt & 16 else ""
    uid = [0]
    cps = [tuple(int(x) for x in t.split(":")) for t in cfg.cp.split(",")] if cfg.cp else []

    def stamp(k):
        if cfg.padto and cfg.padfrom == k:
            a("s_memrealtime s[94:95]")
        if cfg.stamps:
            a(f"s_memrealtime s[{70+2*k}:{71+2*k}]")

    def srd(d, p, size):
        a(f"s_mov_b32 s{d}, s{p}")
        a(f"s_mov_b32 s{d+1}, s{p+1}")
        a(f"s_mov_b32 s{d+2}, {size:#x}")
        a(f"s_mov_b32 s{d+3}, 0x20000")

    def dump_stamps():
        if not cfg.stamps:
            return
        a("s_waitcnt lgkmcnt(0)")
        for _ in range(3):
            a("s_sleep 127")
        a("s_mov_b64 exec, 1")
        a("s_lshl_b32 s4, s2, 10")
        a("s_lshl_b32 s5, s3, 7")
        a("s_add_u32 s4, s4, s5")
        a(f"s_add_u32 s4, s4, {ST_OFF}")
        a("v_mov_b32 v3, 0")
        for k in range(14):
            a(f"v_mov_b32 v1, s{70+2*k}")
            a(f"buffer_store_dword v1, v3, s[48:51], s4 offen offset:{4*k}")

    def poll(loads, check, sleep, cnt="vmcnt", rec=None):
        uid[0] += 1
        n = uid[0]
        a(f"s_mov_b32 s15, {cfg.spin if cnt == 'vmcnt' else 8 * cfg.spin}")
        a.label(f"L_poll{n}")
        loads()
        a(f"s_waitcnt {cnt}(0)")
        check()
        a(f"s_cbranch_scc1 L_pdone{n}")
        a("s_sub_u32 s15, s15, 1")
        a(f"s_cbranch_scc1 L_pdone{n}")
        if sleep:
            a(f"s_sleep {sleep}")
        a(f"s_branch L_poll{n}")
        a.label(f"L_pdone{n}")
        if rec is not None and cfg.stamps:
            a(f"s_sub_u32 s{70+2*rec}, {cfg.spin+1}, s15")

    def wait_flags(reads, t, sleep):
        regs = []

        def ld():
            r = t
            regs.clear()
            for off, n, av in reads:
                op = {1: "ds_read_b32", 2: "ds_read_b64", 4: "ds_read_b128"}[n]
                a(f"{op} {vr(r,n)}, v{av} offset:{off}")
                regs.extend(range(r, r + n))
                r += (n + 1) & ~1

        def ck():
            rs = list(regs)
            while len(rs) >= 3:
                a(f"v_or3_b32 v{rs[0]}, v{rs[0]}, v{rs[1]}, v{rs[2]}")
                rs = [rs[0]] + rs[3:]
            if len(rs) == 2:
                a(f"v_or_b32 v{rs[0]}, v{rs[0]}, v{rs[1]}")
            a(f"v_cmp_eq_u32 vcc, 0, v{rs[0]}")
            a("s_cmp_eq_u64 vcc, -1")
        poll(ld, ck, sleep, cnt="lgkmcnt")

    def set_flag(off, av=14):
        a(f"ds_write_b32 v{av}, v14 offset:{off}")

    def get_mode(t):
        def ld():
            a(f"ds_read_b32 v{t}, v14 offset:{FM}")

        def ck():
            a(f"v_readfirstlane_b32 s101, v{t}")
            a("s_cmp_lg_u32 s101, -1")
        poll(ld, ck, cfg.sleep_lds, cnt="lgkmcnt")

    def store_mode(ins):
        uid[0] += 1
        n = uid[0]
        a("s_cmp_eq_u32 s101, 1")
        a(f"s_cbranch_scc1 L_stf{n}")
        a(ins + " sc1")
        a(f"s_branch L_std{n}")
        a.label(f"L_stf{n}")
        a(ins)
        a.label(f"L_std{n}")

    def check_tag(regs, t0, t1):
        regs = list(regs)
        a(f"v_xor_b32 v{t0}, s14, v{regs[0]}")
        a(f"v_xor_b32 v{t1}, s14, v{regs[1]}")
        for k, r in enumerate(regs[2:]):
            t = t0 if k % 2 == 0 else t1
            a(f"v_bitop3_b32 v{t}, v{r}, s14, v{t} bitop3:0xbe")
        a(f"v_or_b32 v{t0}, v{t0}, v{t1}")
        a(f"v_and_b32 v{t0}, s69, v{t0}")
        a(f"v_cmp_eq_u32 vcc, 0, v{t0}")
        a("s_cmp_eq_u64 vcc, -1")

    def check_sentinel(regs, tmp):
        regs = list(regs)
        a(f"v_max3_u32 v{tmp}, v{regs[0]}, v{regs[1]}, v{regs[2]}")
        regs = regs[3:]
        while len(regs) >= 2:
            a(f"v_max3_u32 v{tmp}, v{tmp}, v{regs[0]}, v{regs[1]}")
            regs = regs[2:]
        if regs:
            a(f"v_max_u32 v{tmp}, v{tmp}, v{regs[0]}")
        a(f"v_cmp_ne_u32 vcc, -1, v{tmp}")
        a("s_cmp_eq_u64 vcc, -1")

    def put_tag(r):
        a(f"v_bfi_b32 v{r}, s69, v15, v{r}")

    def load_tag():
        a(f"s_load_dword s14, s[38:39], {EP_OFF:#x}")

    def make_tag():
        a("s_add_u32 s14, s14, 1")
        a(f"s_and_b32 s14, s14, {cfg.tagmask}")
        a("v_mov_b32 v15, s14")

    def xlane(op, x, t, steps):
        for s in steps:
            if s in (1, 2, 4, 8):
                a("s_nop 1")
                a(f"{op}_dpp v{x}, v{x}, v{x} row_ror:{s} row_mask:0xf bank_mask:0xf")
            else:
                a(f"v_mov_b32 v{t}, v{x}")
                a("s_nop 1")
                a(f"v_permlane{s}_swap_b32 v{x}, v{t}")
                a(f"{op} v{x}, v{x}, v{t}")

    def round_bf16(d, s):
        a(f"v_cvt_pk_bf16_f32 v{d}, v{s}, v{s}")
        a(f"v_lshlrev_b32 v{d}, 16, v{d}")

    def perms(dst, src_e, i):
        for p in range(4):
            a(f"v_perm_b32 v{dst+p}, v{src_e(2*p+1)+i}, v{src_e(2*p)+i}, s64")
        for p in range(4):
            a(f"v_perm_b32 v{dst+4+p}, v{src_e(2*p+1)+i}, v{src_e(2*p)+i}, s65")

    def fold(dst, acc):
        for k in range(4):
            a(f"v_add_f32_dpp v{dst+k}, v{acc+4*k+1}, v{acc+4*k} row_ror:8 row_mask:0xf bank_mask:0x3")
        for k in range(4):
            if k >= 2:
                a("s_nop 0")
            a(f"v_add_f32_dpp v{dst+k}, v{acc+4*(k+4)}, v{acc+4*(k+4)+1} row_ror:8 row_mask:0xf bank_mask:0xc")
        for k in range(4):
            put_tag(dst + k)

    def consts():
        a("s_mov_b32 s64, 0x05040100")
        a("s_mov_b32 s65, 0x07060302")
        a("s_mov_b32 s66, 0xffff0000")
        a(f"s_mov_b32 s67, {LOG2E:#x}")
        a(f"s_mov_b32 s68, {SCALE:#x}")
        a(f"s_movk_i32 s69, {cfg.tagmask}")

    a("s_cmp_ge_u32 s2, 256")
    a("s_cbranch_scc1 L_END")
    a("s_load_dwordx16 s[16:31], s[0:1], 0")
    a("s_load_dwordx8 s[32:39], s[0:1], 64")
    stamp(0)
    if cfg.codepf and cfg.codepf < 7:
        a("s_getpc_b64 s[4:5]")
        a(f"v_lshlrev_b32 v1, {cfg.codepf}, v0")
        a("global_load_dword v2, v1, s[4:5]")
    a("v_lshrrev_b32 v3, 6, v0")
    if cfg.xm:
        a("s_and_b32 s98, s2, 7")
        a("s_lshl_b32 s98, s98, 2")
        a("s_bfe_u32 s100, s2, 0x20003")
        a("s_or_b32 s98, s98, s100")
        a("s_and_b32 s100, s2, 0xe0")
        a("s_or_b32 s98, s98, s100")
    else:
        a("s_mov_b32 s98, s2")
    if cfg.gm:
        a("s_and_b32 s99, s2, 7")
        a("s_lshl_b32 s99, s99, 5")
        a("s_lshr_b32 s100, s2, 3")
        a("s_or_b32 s99, s99, s100")
    else:
        a("s_mov_b32 s99, s2")
    a("v_and_b32 v0, 63, v0")
    a("v_readfirstlane_b32 s3, v3")
    a("v_and_b32 v4, 15, v0")
    a("v_lshrrev_b32 v5, 4, v0")
    a("v_mov_b32 v14, 0")
    a("v_lshrrev_b32 v8, 3, v4")
    a("v_and_b32 v9, 7, v4")
    a("s_cmp_ge_u32 s3, 4")
    a("s_cbranch_scc1 L_ATT")
    a("s_lshr_b32 s6, s98, 2")
    a("s_and_b32 s7, s98, 3")
    a("v_lshlrev_b32 v10, 3, v8")
    a("v_lshl_add_u32 v10, v5, 4, v10")
    a("s_cmp_lg_u32 s3, 0")
    a("s_cbranch_scc1 L_S123")

    XA = 16
    XO = 32
    XU = 36
    WR = 72
    ACC = 200
    PT = 232

    def wloads(stride, throttle, gate):
        for T in range(4):
            for e in range(8):
                k = 8 * T + e
                if throttle and k >= throttle:
                    if cfg.rank and cfg.nsh:
                        uid[0] += 1
                        a(f"s_waitcnt vmcnt({cfg.nsh-1})")
                        a(f"s_cbranch_vccnz L_sg{uid[0]}")
                        a(f"s_waitcnt vmcnt({throttle-1})")
                        a.label(f"L_sg{uid[0]}")
                    else:
                        a(f"s_waitcnt vmcnt({throttle-1})")
                a(f"buffer_load_dwordx4 {vr(WR+32*T+4*e,4)}, v10, s[40:43], s10 offen{NT}")
                if k < 31:
                    a(f"s_add_u32 s10, s10, {stride * (57 if e == 7 else 1)}")
                if gate and k == gate - 1:
                    set_flag(GF - 4, 13)

    if cfg.qmap:
        a("s_mul_i32 s4, s6, 37")
        a("s_lshr_b32 s4, s4, 8")
        a("s_mul_i32 s5, s4, 7")
        a("s_sub_u32 s5, s6, s5")
        a("s_cmp_ge_u32 s5, 3")
        a("s_addc_u32 s5, s5, 0")
        a("s_lshl_b32 s4, s4, 3")
        a("s_add_u32 s5, s5, s4")
        a("s_lshl_b32 s4, s6, 3")
        a(f"s_sub_u32 s4, s4, {56*8-3}")
        a("s_cmp_ge_u32 s6, 56")
        a("s_cselect_b32 s6, s4, s5")
    a("s_mov_b32 s9, 14")
    a("s_mov_b32 s101, 0")
    a("v_lshlrev_b32 v6, 6, v0")
    a("v_lshrrev_b32 v7, 5, v0")
    a("v_lshlrev_b32 v7, 11, v7")
    a("v_and_b32 v11, 31, v0")
    a("v_lshl_add_u32 v7, v11, 4, v7")
    a("s_lshl_b32 s12, s7, 9")
    a("v_lshlrev_b32 v10, 13, v10")
    a("v_lshl_add_u32 v10, v9, 4, v10")
    a("s_lshl_b32 s10, s7, 21")
    a("s_lshl_b32 s11, s6, 7")
    a("s_add_u32 s10, s10, s11")
    if cfg.padto and cfg.padfrom == 20:
        a("s_memrealtime s[94:95]")
    a("s_waitcnt lgkmcnt(0)")
    if cfg.padto and cfg.padfrom == 21:
        a("s_memrealtime s[94:95]")
    srd(56, 16, 4096)
    srd(40, 22, 0x800000)
    load_tag()
    for i in range(4):
        a(f"buffer_load_dwordx4 {vr(XA+4*i,4)}, v6, s[56:59], 0 offen offset:{16*i}")
    a(f"buffer_load_dwordx4 {vr(XO,4)}, v7, s[56:59], s12 offen")
    wloads(8192, 0, 0)
    stamp(1)
    a("s_barrier")
    if cfg.padto and cfg.padfrom == 22:
        a("s_memrealtime s[94:95]")
    srd(48, 38, WS_SIZE)
    consts()
    a("s_lshl_b32 s10, s7, 15")
    a("s_lshl_b32 s11, s6, 8")
    a("s_add_u32 s10, s10, s11")
    if QP_OFF:
        a(f"s_add_u32 s10, s10, {QP_OFF}")
    a("s_waitcnt vmcnt(32)")
    stamp(2)
    for i in range(16):
        a(f"v_lshlrev_b32 v{XU+2*i}, 16, v{XA+i}")
        a(f"v_and_b32 v{XU+2*i+1}, s66, v{XA+i}")
    for k in range(4):
        a(f"v_add_f32 v{XA+k}, v{XU+k}, v{XU+4+k}")
    for i in range(8, 32):
        a(f"v_add_f32 v{XA+(i&3)}, v{XA+(i&3)}, v{XU+i}")
    a(f"v_add_f32 v11, v{XA}, v{XA+1}")
    a(f"v_add_f32 v13, v{XA+2}, v{XA+3}")
    a("v_add_f32 v11, v11, v13")
    xlane("v_add_f32", 11, 12, [8, 4, 2, 1, 16])
    a("v_mul_f32 v11, 0x3a800000, v11")
    for i in range(32):
        a(f"v_sub_f32 v{XU+i}, v{XU+i}, v11")
    for k in range(4):
        a(f"v_mul_f32 v{XA+k}, v{XU+k}, v{XU+k}")
    for i in range(4, 32):
        a(f"v_fmac_f32 v{XA+(i&3)}, v{XU+i}, v{XU+i}")
    a(f"v_add_f32 v12, v{XA}, v{XA+1}")
    a(f"v_add_f32 v13, v{XA+2}, v{XA+3}")
    a("v_add_f32 v12, v12, v13")
    xlane("v_add_f32", 12, 13, [8, 4, 2, 1, 16])
    a("v_mul_f32 v12, 0x3a800000, v12")
    round_bf16(11, 11)
    round_bf16(12, 12)
    a(f"v_add_f32 v12, {EPS:#x}, v12")
    round_bf16(12, 12)
    a("v_sqrt_f32 v12, v12")
    a("s_nop 0")
    round_bf16(12, 12)
    a("v_rcp_f32 v13, v12")
    for i in range(4):
        a(f"v_lshlrev_b32 v{XU+2*i}, 16, v{XO+i}")
        a(f"v_and_b32 v{XU+2*i+1}, s66, v{XO+i}")
    for i in range(8):
        a(f"v_sub_f32 v{XU+i}, v{XU+i}, v11")
    for i in range(4):
        a(f"v_cvt_pk_bf16_f32 v{XO+i}, v{XU+2*i}, v{XU+2*i+1}")
    for i in range(4):
        a(f"v_lshlrev_b32 v{XU+2*i}, 16, v{XO+i}")
        a(f"v_and_b32 v{XU+2*i+1}, s66, v{XO+i}")
    for i in range(8):
        a(f"v_mul_f32 v{XU+8+i}, v{XU+i}, v13")
    for i in range(8):
        a(f"v_fma_f32 v{XU+i}, -v{XU+8+i}, v12, v{XU+i}")
    for i in range(8):
        a(f"v_fmac_f32 v{XU+8+i}, v{XU+i}, v13")
    for i in range(4):
        a(f"v_cvt_pk_bf16_f32 v{XO+i}, v{XU+8+2*i}, v{XU+8+2*i+1}")
    a("v_lshlrev_b32 v11, 4, v0")
    a(f"ds_write_b128 v11, {vr(XO,4)} offset:{XN}")
    set_flag(XF)
    a("s_waitcnt lgkmcnt(0)")
    make_tag()

    a.label("L_S_gemv")
    a("v_bfe_u32 v11, v4, 2, 1")
    a("v_lshlrev_b32 v11, 9, v11")
    a("v_lshl_add_u32 v11, v5, 5, v11")
    a("v_and_b32 v12, 1, v4")
    a("v_lshl_add_u32 v11, v12, 4, v11")
    for T in range(4):
        a(f"ds_read_b128 {vr(XU+4*T,4)}, v11 offset:{XN+128*T}")
    stamp(3)
    a("v_lshlrev_b32 v12, s9, v5")
    a("v_lshl_add_u32 v12, v9, 5, v12")
    a("v_lshl_add_u32 v12, v8, 4, v12")
    a("s_waitcnt lgkmcnt(0)")
    for T in range(4):
        a(f"s_waitcnt vmcnt({24-8*T})")
        src = lambda e, T=T: WR + 32 * T + 4 * e

        def M(i, T=T):
            for h in range(2):
                j = 2 * i + h
                c = "0" if T == 0 else vr(ACC + 4 * j, 4)
                a(f"v_mfma_f32_16x16x32_bf16 {vr(ACC+4*j,4)}, {vr(XU+4*T,4)}, {vr(PT+8*(i&1)+4*h,4)}, {c}")
        perms(PT, src, 0)
        perms(PT + 8, src, 1)
        M(0)
        perms(PT, src, 2)
        M(1)
        perms(PT + 8, src, 3)
        M(2)
        M(3)
    stamp(4)
    a("s_nop 3")
    fold(PT, ACC)
    a("s_mov_b32 exec_hi, 0")
    if not (cfg.abl & 8):
        store_mode(f"buffer_store_dwordx4 {vr(PT,4)}, v12, s[48:51], s10 offen")
    a("s_mov_b64 exec, -1")
    a("s_cmp_eq_u32 s3, 1")
    a("s_cbranch_scc1 L_S1_h")
    a("s_cmp_eq_u32 s3, 2")
    a("s_cbranch_scc1 L_S_END")
    if cfg.padto and cfg.padglobal:
        srd(52, 36, 256)
        a("s_mov_b64 exec, 1")
        a("v_mov_b32 v20, s94")
        a("buffer_atomic_umax v20, v14, s[52:55], 0 offen offset:4")
        a("v_not_b32 v21, v20")
        a("buffer_atomic_umax v21, v14, s[52:55], 0 offen")
        a("s_mov_b64 exec, -1")
    a("v_lshlrev_b32 v6, 4, v0")
    a("s_lshr_b32 s10, s99, 5")
    a("s_lshl_b32 s10, s10, 12")
    if QP_OFF:
        a(f"s_add_u32 s10, s10, {QP_OFF}")
    a("s_add_u32 s11, s10, 32768")
    a("s_add_u32 s12, s10, 65536")
    a("s_add_u32 s13, s10, 98304")
    a("v_lshrrev_b32 v7, 5, v0")
    a("v_mul_u32_u24 v7, 272, v7")
    a("v_and_b32 v11, 31, v0")
    a("v_lshl_add_u32 v7, v11, 3, v7")
    if cfg.pf:
        wait_flags([(PF, 1, 14)], 16, cfg.sleep_lds)
    stamp(6)

    def ldq():
        for kq in range(4):
            for i in range(4):
                if (cfg.abl & 16) and i: continue
                a(f"buffer_load_dwordx4 {vr(32+16*kq+4*i,4)}, v6, s[48:51], s{10+kq} offen offset:{1024*i} sc1{MNT}")
    if not (cfg.abl & 1):
        poll(ldq, lambda: check_tag([r for r in range(32, 96) if not (cfg.abl & 16) or (r - 32) % 16 < 4], 11, 12), cfg.sleep_q, rec=12)
    stamp(5)
    for k in range(16):
        a(f"v_add_f32 v{32+k}, v{32+k}, v{48+k}")
        a(f"v_add_f32 v{64+k}, v{64+k}, v{80+k}")
    for k in range(16):
        a(f"v_add_f32 v{32+k}, v{32+k}, v{64+k}")
    for i in range(4):
        a(f"v_cvt_pk_bf16_f32 v{48+2*i}, v{32+4*i}, v{33+4*i}")
        a(f"v_cvt_pk_bf16_f32 v{49+2*i}, v{34+4*i}, v{35+4*i}")
        a(f"ds_write_b64 v7, {vr(48+2*i,2)} offset:{QB+544*i}")
    set_flag(QF)
    a("s_branch L_S_tail")

    a.label("L_S123")
    if cfg.codepf == 7:
        a("s_getpc_b64 s[4:5]")
        a.label("L_pcref")
        a(f"s_sub_u32 s4, s4, L_pcref - {NAME}_kernel + 8192")
        a("s_subb_u32 s5, s5, 0")
        a("v_lshlrev_b32 v1, 7, v0")
        a("v_lshl_add_u32 v1, v3, 13, v1")
        a("global_load_dword v2, v1, s[4:5]")
    consts()
    a("s_mov_b32 s9, 8")
    a(f"s_mul_i32 s5, s3, {cfg.crot}")
    a("s_lshr_b32 s4, s2, 5")
    a("s_add_u32 s5, s5, s4")
    a("s_sub_u32 s4, s5, 7")
    a("s_cmp_ge_u32 s5, 7")
    a("s_cselect_b32 s5, s4, s5")
    a("s_and_b32 s4, s2, 7")
    a("s_mul_i32 s4, s4, 7")
    a("s_add_u32 s5, s5, s4")
    a("v_mul_u32_u24 v10, 7168, v10")
    a("v_lshl_add_u32 v10, v9, 4, v10")
    a(f"s_mul_i32 s10, s7, {256*7168}")
    a("s_lshl_b32 s11, s5, 7")
    a("s_add_u32 s10, s10, s11")
    a("v_mov_b32 v11, -1")
    a("v_lshlrev_b32 v12, 2, v0")
    a(f"ds_write_b32 v12, v11 offset:{MLB}")
    a(f"ds_write_b32 v12, v11 offset:{FL}")
    a("s_lshl_b32 s4, s3, 2")
    a("v_mov_b32 v13, s4")
    a("s_waitcnt lgkmcnt(0)")
    load_tag()
    if cfg.b0e:
        a("s_barrier")
    srd(48, 38, WS_SIZE)
    a("s_cmp_eq_u32 s3, 2")
    a("s_cselect_b64 s[40:41], s[30:31], s[28:29]")
    a("s_mov_b32 s42, 0x700000")
    a("s_mov_b32 s43, 0x20000")
    a("s_waitcnt lgkmcnt(0)")
    if not cfg.b0e:
        a("s_barrier")
    make_tag()
    a("s_cmp_eq_u32 s3, 3")
    a("s_cbranch_scc1 L_S3")
    a("s_cmp_lt_u32 s6, 56")
    a("s_cbranch_scc1 L_S12")
    set_flag(GF - 4, 13)
    a("s_branch L_S_END")
    a.label("L_S12")
    a("v_lshlrev_b32 v12, 1, v13")
    wait_flags([(GO - 8, 2, 12)], 16, cfg.sleep_lds)
    stamp(2)
    if cfg.rank and cfg.nsh:
        a(f"ds_read_b32 v16, v14 offset:{LV}")
        a("s_waitcnt lgkmcnt(0)")
        a("v_and_b32 v16, 1, v16")
        a("v_cmp_ne_u32 vcc, 0, v16")
    wloads(7168, cfg.ns, cfg.gate)
    stamp(1)
    a("s_lshl_b32 s10, s5, 12")
    a("s_lshl_b32 s12, s7, 10")
    a("s_add_u32 s10, s10, s12")
    a("s_lshl_b32 s12, s3, 9")
    a("s_add_u32 s10, s10, s12")
    a(f"s_add_u32 s10, s10, {GP_OFF-512}")
    wait_flags([(XF, 1, 14)], 16, cfg.sleep_lds)
    get_mode(16)
    a("s_branch L_S_gemv")

    a.label("L_S1_h")
    a("v_lshlrev_b32 v12, 3, v0")
    a("s_and_b32 s10, s2, 7")
    a("s_mul_i32 s10, s10, 7")
    a("s_lshr_b32 s4, s2, 5")
    a("s_add_u32 s10, s10, s4")
    a("s_lshl_b32 s10, s10, 12")
    a(f"s_add_u32 s10, s10, {GP_OFF}")

    def ldg():
        for kq in range(4):
            for m in range(2):
                a(f"buffer_load_dwordx2 {vr(16+4*kq+2*m,2)}, v12, s[48:51], s10 offen offset:{kq*1024+m*512} sc1{MNT}")
    if not (cfg.abl & 2):
        poll(ldg, lambda: check_tag(range(16, 32), 11, 13), cfg.sleep_tail, rec=12)
    stamp(5)
    for k in range(4):
        a(f"v_add_f32 v{16+k}, v{16+k}, v{20+k}")
        a(f"v_add_f32 v{24+k}, v{24+k}, v{28+k}")
    for k in range(4):
        a(f"v_add_f32 v{16+k}, v{16+k}, v{24+k}")
    a("v_cvt_pk_bf16_f32 v20, v16, v17")
    a("v_cvt_pk_bf16_f32 v21, v18, v19")
    a("v_lshlrev_b32 v16, 16, v20")
    a("v_and_b32 v17, s66, v20")
    a("v_lshlrev_b32 v18, 16, v21")
    a("v_and_b32 v19, s66, v21")
    a(f"s_mov_b32 s10, {f32bits(0.044715):#x}")
    a(f"s_mov_b32 s11, {f32bits(-2.0 * math.sqrt(2.0 / math.pi) * math.log2(math.e)):#x}")
    for k in range(2):
        a(f"v_mul_f32 v{20+k}, v{16+k}, v{16+k}")
    for k in range(2):
        a(f"v_mul_f32 v{20+k}, v{20+k}, v{16+k}")
    for k in range(2):
        a(f"v_fma_f32 v{20+k}, v{20+k}, s10, v{16+k}")
    for k in range(2):
        a(f"v_mul_f32 v{20+k}, s11, v{20+k}")
    for k in range(2):
        a(f"v_exp_f32 v{20+k}, v{20+k}")
    a("s_nop 0")
    for k in range(2):
        a(f"v_add_f32 v{20+k}, 1.0, v{20+k}")
    for k in range(2):
        a(f"v_rcp_f32 v{20+k}, v{20+k}")
    a("s_nop 0")
    for k in range(2):
        a(f"v_mul_f32 v{20+k}, v{20+k}, v{16+k}")
    a("v_cvt_pk_bf16_f32 v22, v20, v21")
    a("v_lshlrev_b32 v20, 16, v22")
    a("v_and_b32 v21, s66, v22")
    a("v_mul_f32 v20, v20, v18")
    a("v_mul_f32 v21, v21, v19")
    a("v_cvt_pk_bf16_f32 v22, v20, v21")
    a("v_lshlrev_b32 v12, 2, v0")
    a(f"ds_write_b32 v12, v22 offset:{HB}")
    set_flag(HF)
    a("s_branch L_S_END")

    a.label("L_S3")
    if cfg.rank:
        set_flag(LV)
    a("s_getreg_b32 s4, hwreg(HW_REG_XCC_ID)")
    a("s_and_b32 s4, s4, 15")
    a("s_lshl_b32 s4, s4, 8")
    a("s_or_b32 s4, s4, s14")
    a("v_mov_b32 v16, s4")
    a("s_lshl_b32 s10, s99, 6")
    a(f"s_add_u32 s10, s10, {XT_OFF}")
    a("s_mov_b64 exec, 1")
    if not (cfg.abl & 64):
        a("buffer_store_dword v16, v14, s[48:51], s10 offen sc1")
    a("s_mov_b64 exec, -1")
    a("v_and_b32 v7, 31, v0")
    a("v_lshlrev_b32 v7, 6, v7")
    a("s_lshr_b32 s10, s99, 5")
    a("s_lshl_b32 s10, s10, 11")
    a(f"s_add_u32 s10, s10, {XT_OFF}")
    wait_flags([(PF, 1, 14)], 16, cfg.sleep_lds)

    def ldx():
        a("buffer_load_dword v16, v7, s[48:51], s10 offen sc1")

    def ckx():
        a("v_xor_b32 v17, s14, v16")
        a("v_and_b32 v17, s69, v17")
        a("v_cmp_eq_u32 vcc, 0, v17")
        a("s_cmp_eq_u64 vcc, -1")
    if not (cfg.abl & 64):
        poll(ldx, ckx, cfg.sleep)
    a("v_cmp_eq_u32 vcc, s4, v16")
    a("s_cmp_eq_u64 vcc, -1")
    a("s_cselect_b32 s101, 1, 0")
    if cfg.abl & 64:
        a("s_mov_b32 s101, 1")
    if cfg.nofast:
        a("s_mov_b32 s101, 0")
    a("v_mov_b32 v16, s101")
    a(f"ds_write_b32 v14, v16 offset:{FM}")
    stamp(4)
    a("v_and_b32 v6, 7, v0")
    a("v_lshlrev_b32 v6, 3, v6")
    a("v_and_b32 v7, 31, v0")
    a("v_lshlrev_b32 v7, 3, v7")
    a("s_lshl_b32 s13, s99, 6")
    a(f"s_add_u32 s13, s13, {ML_OFF}")

    def ldm():
        for w in range(4):
            a(f"ds_read_b64 {vr(16+2*w,2)}, v6 offset:{MLB+64*w}")
    poll(ldm, lambda: check_sentinel(range(16, 24), 11), cfg.sleep_lds, cnt="lgkmcnt")
    stamp(5)
    a(f"ds_read_b32 v30, v7 offset:{MLB}")

    def combine4(mo):
        a(f"v_max3_f32 v{mo}, v16, v18, v20")
        a(f"v_max_f32 v{mo}, v{mo}, v22")

    def wsum4(mo, lo):
        for w in range(4):
            a(f"v_sub_f32 v{16+2*w}, v{16+2*w}, v{mo}")
        for w in range(4):
            a(f"v_mul_f32 v{16+2*w}, s67, v{16+2*w}")
        for w in range(4):
            a(f"v_exp_f32 v{16+2*w}, v{16+2*w}")
        a("s_nop 0")
        a(f"v_mul_f32 v{lo}, v16, v17")
        for w in range(1, 4):
            a(f"v_fmac_f32 v{lo}, v{16+2*w}, v{17+2*w}")
    combine4(24)
    wsum4(24, 25)
    put_tag(24)
    put_tag(25)
    a("s_mov_b64 exec, 0xff")
    if not (cfg.abl & 8):
        store_mode("buffer_store_dwordx2 v[24:25], v6, s[48:51], s13 offen")
    a("s_mov_b64 exec, -1")
    a("s_lshr_b32 s10, s99, 5")
    a("s_lshl_b32 s10, s10, 11")
    a(f"s_add_u32 s10, s10, {ML_OFF}")
    a("v_lshlrev_b32 v7, 3, v0")

    if cfg.rank:
        thr_ = [int(x) for x in cfg.rank.split(":")]
        for i in range(4):
            a(f"buffer_load_dword v{16+i}, v7, s[48:51], s10 offen offset:{512*i} sc1")
        a("s_waitcnt vmcnt(0)")
        a("s_mov_b32 s4, 0")
        for i in range(4):
            a(f"v_xor_b32 v{16+i}, s14, v{16+i}")
            a(f"v_and_b32 v{16+i}, s69, v{16+i}")
            a(f"v_cmp_eq_u32 vcc, 0, v{16+i}")
            a("s_bcnt1_i32_b64 s5, vcc")
            a("s_add_u32 s4, s4, s5")
        a("s_mov_b32 s5, 0")
        a(f"s_cmp_ge_u32 s4, {8*thr_[1]}")
        a("s_cselect_b32 s5, 1, s5")
        a(f"s_cmp_ge_u32 s4, {8*thr_[2]}")
        a("s_cselect_b32 s5, 3, s5")
        a(f"s_cmp_lt_u32 s4, {8*thr_[0]}")
        a("s_cselect_b32 s5, 4, s5")
        a("v_mov_b32 v16, s5")
        a(f"ds_write_b32 v14, v16 offset:{LV}")
        if cfg.stamps:
            a(f"s_lshr_b32 s{70+2*11}, s4, 3")
    if cfg.lf:
        wait_flags([(LF, 1, 14)], 16, cfg.sleep_lds)

    def ld2():
        for i in range(4):
            a(f"buffer_load_dwordx2 {vr(16+2*i,2)}, v7, s[48:51], s10 offen offset:{512*i} sc1{MNT}")
    if not (cfg.abl & 4):
        poll(ld2, lambda: check_tag(range(16, 24), 11, 12), cfg.sleep, rec=12)
    stamp(6)
    for w in range(4):
        a(f"v_and_b32 v{16+2*w}, s66, v{16+2*w}")
    combine4(26)
    xlane("v_max_f32", 26, 11, [8, 16, 32])
    wsum4(26, 27)
    xlane("v_add_f32", 27, 11, [8, 16, 32])
    a("s_waitcnt lgkmcnt(0)")
    a("v_sub_f32 v30, v30, v26")
    a("v_mul_f32 v30, s67, v30")
    a("v_exp_f32 v30, v30")
    a("v_rcp_f32 v27, v27")
    a("v_bfe_u32 v7, v0, 3, 2")
    a("v_lshlrev_b32 v7, 2, v7")
    a("v_lshl_add_u32 v7, v6, 1, v7")
    a("v_mul_f32 v30, v30, v27")
    a(f"ds_write_b32 v7, v30 offset:{FB}")
    set_flag(FF)

    a("v_and_b32 v11, 7, v0")
    a("v_lshlrev_b32 v6, 4, v11")
    a("v_lshl_add_u32 v6, v5, 2, v6")
    a("v_lshlrev_b32 v7, 4, v0")
    a("s_lshl_b32 s10, s99, 12")
    a(f"s_add_u32 s10, s10, {OP_OFF}")
    a("s_lshl_b32 s8, s99, 7")
    a(f"s_add_u32 s8, s8, {O2_OFF}")
    wait_flags([({0: OF, 1: WF}[cfg.wf1], 4, 14)], 60, cfg.sleep_lds)
    stamp(7)

    def ld3():
        for i in range(4):
            a(f"buffer_load_dwordx4 {vr(40+4*i,4)}, v7, s[48:51], s10 offen offset:{1024*i} sc1")
    poll(ld3, lambda: check_tag(range(40, 56), 12, 13), cfg.sleep_l1, rec=13)
    stamp(8)
    for k in range(4):
        a(f"v_add_f32 v{40+k}, v{40+k}, v{44+k}")
        a(f"v_add_f32 v{48+k}, v{48+k}, v{52+k}")
    for k in range(4):
        a(f"v_add_f32 v{40+k}, v{40+k}, v{48+k}")
    a("s_nop 0")
    a("v_permlane32_swap_b32 v40, v42")
    a("v_permlane32_swap_b32 v41, v43")
    a("v_add_f32 v40, v40, v42")
    a("v_add_f32 v41, v41, v43")
    a("s_nop 1")
    a("v_permlane16_swap_b32 v40, v41")
    a("v_add_f32 v40, v40, v41")
    a("s_nop 1")
    a("v_add_f32_dpp v40, v40, v40 row_ror:8 row_mask:0xf bank_mask:0xf")
    a("v_cvt_pk_bf16_f32 v40, v40, v40")
    put_tag(40)
    a("s_mov_b32 exec_lo, 0x00ff00ff")
    a("s_mov_b32 exec_hi, 0x00ff00ff")
    a("buffer_store_dword v40, v6, s[48:51], s8 offen sc1")
    if cfg.wb == 1:
        a("s_cmp_ge_u32 s2, 8")
        a("s_cbranch_scc1 L_S_END")
        a("buffer_wbl2 sc1")
    if cfg.wb == 2:
        a("s_cmp_ge_u32 s2, 8")
        a("s_cbranch_scc1 L_S_END")
        a("s_mov_b64 exec, -1")
        wait_flags([(SF, 4, 14)], 60, cfg.sleep_lds)
        a("buffer_wbl2 sc1")
    a("s_branch L_S_END")

    a.label("L_S_tail")
    a("s_lshr_b32 s7, s98, 2")
    a("s_lshl_b32 s7, s7, 8")
    a(f"s_add_u32 s7, s7, {O2_OFF}")
    srd(60, 34, 4096)
    a("v_lshlrev_b32 v10, 2, v5")
    a("s_lshl_b32 s12, s98, 4")
    a("buffer_load_dword v36, v10, s[56:59], s12 offen")
    a("v_lshlrev_b32 v9, 7, v0")
    a("s_lshr_b32 s13, s98, 2")
    a("s_lshl_b32 s13, s13, 13")
    a("s_and_b32 s11, s98, 3")
    a("s_lshl_b32 s11, s11, 5")
    a("s_add_u32 s13, s13, s11")
    a(f"s_add_u32 s13, s13, {XP_OFF}")
    a("v_lshrrev_b32 v12, 5, v0")
    a("v_lshlrev_b32 v12, 14, v12")
    a("v_and_b32 v13, 31, v0")
    a("v_lshl_add_u32 v12, v13, 3, v12")
    a("v_lshlrev_b32 v13, 2, v0")
    wait_flags([(WF, 4, 14)], 60, cfg.sleep_lds)
    stamp(7)

    def ld5():
        a("buffer_load_dwordx2 v[40:41], v12, s[48:51], s7 offen sc1")
    poll(ld5, lambda: check_tag([40, 41], 42, 43), cfg.sleep_tail, rec=13)
    a("v_perm_b32 v40, v41, v40, s65")
    a(f"ds_write_b32 v13, v40 offset:{OB}")
    set_flag(BF)
    stamp(9)
    wait_flags([(SF, 4, 14)], 60, cfg.sleep_of)

    def ld4(r=40):
        a(f"buffer_load_dwordx4 {vr(r,4)}, v9, s[48:51], s13 offen sc1")
        a(f"buffer_load_dwordx4 {vr(r+4,4)}, v9, s[48:51], s13 offen offset:16 sc1")
    if cfg.ypipe <= 1:
        poll(ld4, lambda: check_tag(range(40, 48), 12, 13), cfg.sleep_tail)
    else:
        P = cfg.ypipe
        a(f"s_mov_b32 s15, {cfg.spin}")
        for p in range(P - 1):
            ld4(48 + 8 * p)
            a(f"s_sleep {cfg.ygap}")
        a.label("L_yloop")
        for p in range(P):
            ld4(48 + 8 * ((p + P - 1) % P))
            a(f"s_waitcnt vmcnt({2*(P-1)})")
            check_tag(range(48 + 8 * p, 56 + 8 * p), 12, 13)
            a(f"s_cbranch_scc1 L_ygot{p}")
        a("s_sub_u32 s15, s15, 1")
        a("s_cbranch_scc0 L_yloop")
        for p in range(P):
            a.label(f"L_ygot{p}")
            for k in range(8):
                a(f"v_mov_b32 v{40+k}, v{48+8*p+k}")
            if p < P - 1:
                a("s_branch L_ysum")
        a.label("L_ysum")
        a("s_nop 1")
    stamp(10)
    for k in range(4):
        a(f"v_permlane32_swap_b32 v{40+k}, v{44+k}")
    for k in range(4):
        a(f"v_add_f32 v{40+k}, v{40+k}, v{44+k}")
    a("s_nop 0")
    a("v_permlane16_swap_b32 v40, v42")
    a("v_permlane16_swap_b32 v41, v43")
    a("v_add_f32 v40, v40, v42")
    a("v_add_f32 v41, v41, v43")
    for s in (8, 4, 2, 1):
        a("s_nop 0")
        a(f"v_add_f32_dpp v40, v40, v40 row_ror:{s} row_mask:0xf bank_mask:0xf")
        a(f"v_add_f32_dpp v41, v41, v41 row_ror:{s} row_mask:0xf bank_mask:0xf")
    a("v_lshlrev_b32 v42, 16, v36")
    a("v_and_b32 v43, s66, v36")
    a("v_add_f32 v40, v40, v42")
    a("v_add_f32 v41, v41, v43")
    a("v_cvt_pk_bf16_f32 v40, v40, v41")
    a("s_mov_b32 exec_lo, 0x00010001")
    a("s_mov_b32 exec_hi, 0x00010001")
    a("buffer_store_dword v40, v10, s[60:63], s12 offen" + (" sc1" if cfg.outsc else ""))
    stamp(11)
    if cfg.padto:
        a("s_mov_b64 exec, -1")
        if cfg.padglobal:
            srd(52, 36, 256)
            a(f"buffer_load_dword v20, v14, s[52:55], 0 offen offset:{4*(cfg.padglobal-1)} sc1")
            a("s_waitcnt vmcnt(0)")
            a("v_readfirstlane_b32 s94, v20")
            if cfg.padglobal == 1:
                a("s_not_b32 s94, s94")
        a.label("L_pad")
        a("s_memrealtime s[96:97]")
        a("s_waitcnt lgkmcnt(0)")
        a("s_sub_u32 s96, s96, s94")
        a(f"s_cmp_lt_u32 s96, {cfg.padto}")
        a("s_cbranch_scc1 L_pad")
    a("s_cmp_lg_u32 s2, 0")
    a("s_cbranch_scc1 L_S_END")
    a("s_mov_b64 exec, 1")
    a(f"s_mov_b32 s9, {EP_OFF:#x}")
    a("buffer_store_dword v15, v14, s[48:51], s9 offen" + (" sc1" if cfg.outsc else ""))
    a.label("L_S_END")
    dump_stamps()
    a("s_endpgm")

    a.label("L_ATT")
    RING = 16
    SC = RING + 16 * R
    QR = SC + 32
    ST = QR + 8
    AC = QR
    PTA = AC + 32
    assert PTA + 16 <= 256 and ST + 26 <= 256 and R == 10
    a("s_sub_u32 s6, s3, 4")
    a("v_bfe_u32 v6, v4, 1, 1")
    a("v_lshrrev_b32 v7, 2, v4")
    a("v_lshl_add_u32 v6, v6, 2, v7")
    a("v_lshlrev_b32 v6, 8, v6")
    a("v_lshl_add_u32 v6, v5, 5, v6")
    a("v_and_b32 v7, 1, v4")
    a("v_lshl_add_u32 v6, v7, 4, v6")
    a("v_lshlrev_b32 v7, 4, v0")
    a("s_lshl_b32 s7, s99, 18")
    a("s_lshl_b32 s8, s6, 12")
    a("s_add_u32 s7, s7, s8")
    a("s_mov_b32 s8, s7")
    a("s_lshl_b32 s9, s6, 2")
    a("v_mov_b32 v13, s9")
    a("s_waitcnt lgkmcnt(0)")
    load_tag()
    srd(40, 18, 0x4000000)
    srd(44, 20, 0x4000000)
    srd(48, 38, WS_SIZE)
    srd(52, 24, 0x800000)
    srd(56, 32, 0x700000)
    consts()
    a("v_mul_u32_u24 v11, 272, v9")
    a("v_lshl_add_u32 v11, v5, 5, v11")
    a("v_lshl_add_u32 v11, v8, 4, v11")
    a("v_mov_b32 v10, 0xff800000")
    a("s_barrier")
    if not cfg.b0e:
        a("s_waitcnt lgkmcnt(0)")
        make_tag()
    N = cfg.n
    N0 = cfg.n0 or N
    NL = 144
    lim = [128]
    nl = [0]

    def slot_of(item):
        return RING + 16 * (item % R)

    def issue1():
        k = nl[0]
        if k >= lim[0]:
            return
        item, q = divmod(k, 4)
        slot = slot_of(item)
        if item < 16:
            a(f"buffer_load_dwordx4 {vr(slot+4*q,4)}, v6, s[40:43], s7 offen offset:{128*(q&1)+2048*(q>>1)}{KNT}")
            if q == 3 and item < 15:
                a("s_add_u32 s7, s7, 16384")
        elif item < 32:
            a(f"buffer_load_dwordx4 {vr(slot+4*q,4)}, v7, s[44:47], s8 offen offset:{1024*q}{VNT}")
            if q == 3 and item < 31:
                a("s_add_u32 s8, s8, 16384")
        elif item < 34:
            m = k - 128
            a(f"buffer_load_dwordx4 {vr(slot+4*q,4)}, v3, s[52:55], s11 offen offset:{2048*(m&1)}{NT}")
            if (m & 1) and m < 7:
                a("s_add_u32 s11, s11, 16384")
        else:
            e = k - 136
            a(f"buffer_load_dwordx4 {vr(slot+4*q,4)}, v1, s[56:59], s10 offen offset:{2048*(e&1)}{NT}")
            if (e & 1) and e < 7:
                a("s_add_u32 s10, s10, 4096")
        nl[0] += 1
        if cfg.pf and k == cfg.pf - 1:
            set_flag(PF)
        for c, (kc, thi, tlo) in enumerate(cps):
            if k == kc - 1:
                set_flag(CPF + 16 * c, 13)
        if k == cfg.go - 1:
            set_flag(GO, 13)
        if cfg.lf and k == cfg.lf - 1:
            set_flag(LF)
        if cfg.wf and k == cfg.wf - 1:
            set_flag(WF, 13)

    def wait_load(k):
        a(f"s_waitcnt vmcnt({nl[0] - k - 1})")

    NH = N
    lvl_pending = [False]
    lvl_on = [False]

    def thr():
        if not lvl_on[0]:
            return
        uid[0] += 1
        lab = f"L_go{uid[0]}"
        if cfg.nh > N + 1:
            a("s_bitcmp1_b32 s100, 1")
            a(f"s_cbranch_scc1 {lab}")
            a(f"s_waitcnt vmcnt({N})")
        a("s_bitcmp1_b32 s100, 0")
        a(f"s_cbranch_scc1 {lab}")
        a(f"s_waitcnt vmcnt({N-1})")
        a("s_bitcmp1_b32 s100, 2")
        a(f"s_cbranch_scc0 {lab}")
        a(f"s_waitcnt vmcnt({cfg.nl-1})")
        a.label(lab)

    def lvl_update():
        if lvl_pending[0]:
            a("s_waitcnt lgkmcnt(0)")
            a("v_readfirstlane_b32 s100, v2")
        a(f"ds_read_b32 v2, v14 offset:{LV}")
        lvl_pending[0] = True

    def advance(item):
        if lvl_on[0] and item < 24:
            lvl_update()
        for q in range(4):
            k = 4 * item + q
            if nl[0] < lim[0] and nl[0] - (k + 1) < NH:
                wait_load(k)
                while nl[0] < lim[0] and nl[0] - (k + 1) < NH:
                    thr()
                    issue1()
            elif q == 3:
                wait_load(k)

    for k in range(4 * R):
        if k >= N0:
            a(f"s_waitcnt vmcnt({N0-1})")
        issue1()
    stamp(1)
    wait_flags([(QF, 1, 14)], QR, 1)
    if cfg.b0e:
        make_tag()
    stamp(2)
    for c in range(2):
        a(f"ds_read_b128 {vr(QR+4*c,4)}, v11 offset:{QB+128*c}")
    a("s_mov_b64 vcc, 0")
    a("s_waitcnt lgkmcnt(0)")

    def post(i):
        t = ST + 8 * (i & 1)
        w = ST + 16
        for q in range(4):
            a(f"v_add_f32_dpp v{w+6+q}, v{t+2*q+1}, v{t+2*q} row_ror:8 row_mask:0xf bank_mask:0xf")
        s = w + 6
        a(f"v_max3_f32 v10, v10, v{s}, v{s+1}")
        a(f"v_cvt_pk_bf16_f32 v{w+4}, v{s}, v{s+1}")
        a(f"v_cvt_pk_bf16_f32 v{w+5}, v{s+2}, v{s+3}")
        a(f"v_max3_f32 v10, v10, v{s+2}, v{s+3}")
        a(f"v_lshlrev_b32 v{w}, 16, v{w+4}")
        a(f"v_and_b32 v{w+1}, s66, v{w+4}")
        a(f"v_lshlrev_b32 v{w+2}, 16, v{w+5}")
        a(f"v_and_b32 v{w+3}, s66, v{w+5}")
        for k in range(4):
            a(f"v_mul_f32 v{w+k}, s68, v{w+k}")
        a(f"v_cvt_pk_bf16_f32 v{SC+2*i}, v{w}, v{w+1}")
        a(f"v_cvt_pk_bf16_f32 v{SC+2*i+1}, v{w+2}, v{w+3}")

    for i in range(16):
        advance(i)
        slot = slot_of(i)
        t = ST + 8 * (i & 1)
        for st_ in range(2):
            for ln in range(2):
                cc = "0" if ln == 0 else vr(t + 4 * st_, 4)
                a(f"v_mfma_f32_16x16x32_bf16 {vr(t+4*st_,4)}, {vr(slot+4*(2*st_+ln),4)}, {vr(QR+4*ln,4)}, {cc}")
        if nl[0] - 4 * (i + 1) >= NH and nl[0] < 4 * (i + 1 + R):
            cnt = cfg.catch0 if i == 0 else cfg.catch
            for _ in range(cnt):
                if nl[0] < 4 * (i + 1 + R):
                    a(f"s_waitcnt vmcnt({N-1})")
                    issue1()
        if i >= 1:
            a("s_nop 3")
            post(i - 1)
    a("s_nop 7")
    post(15)
    stamp(3)
    xlane("v_max_f32", 10, 11, [16, 32])
    w = ST
    MM, LL, L2 = ST + 8, ST + 9, ST + 10
    assert MM % 2 == 0
    round_bf16(MM, 10)
    a(f"v_mul_f32 v{MM}, s68, v{MM}")
    round_bf16(MM, MM)
    a(f"v_mul_f32 v11, s67, v{MM}")
    a(f"v_mov_b32 v{LL}, 0")
    a(f"v_mov_b32 v{L2}, 0")
    for k in range(0, 32, 2):
        if k % cfg.smstep == 0:
            issue1()
        for q in range(2):
            a(f"v_lshlrev_b32 v{w+2*q}, 16, v{SC+k+q}")
            a(f"v_and_b32 v{w+2*q+1}, s66, v{SC+k+q}")
        for q in range(4):
            a(f"v_fma_f32 v{w+q}, v{w+q}, s67, -v11")
        for q in range(4):
            a(f"v_exp_f32 v{w+q}, v{w+q}")
        a(f"v_add_f32 v{LL}, v{LL}, v{w}")
        a(f"v_add_f32 v{L2}, v{L2}, v{w+1}")
        a(f"v_cvt_pk_bf16_f32 v{SC+k}, v{w}, v{w+1}")
        a(f"v_add_f32 v{LL}, v{LL}, v{w+2}")
        a(f"v_add_f32 v{L2}, v{L2}, v{w+3}")
        a(f"v_cvt_pk_bf16_f32 v{SC+k+1}, v{w+2}, v{w+3}")
    a(f"v_add_f32 v{LL}, v{LL}, v{L2}")
    xlane("v_add_f32", LL, L2, [16, 32])
    a(f"v_min_u32 v{LL}, -2, v{LL}")
    a("s_lshl_b32 s9, s6, 6")
    a("v_lshlrev_b32 v12, 3, v0")
    a("v_add_u32 v12, s9, v12")
    a("s_mov_b64 exec, 0xff")
    a(f"ds_write_b64 v12, {vr(MM,2)} offset:{MLB}")
    a("s_mov_b64 exec, -1")
    stamp(4)
    issue1()
    a("s_lshr_b32 s4, s98, 2")
    a("s_and_b32 s5, s98, 3")
    a("s_mul_i32 s9, s6, 4224")
    a("v_mul_u32_u24 v10, 528, v4")
    a("v_lshl_add_u32 v10, v5, 7, v10")
    a("v_add_u32 v10, s9, v10")
    a("v_lshrrev_b32 v3, 1, v5")
    a("v_lshlrev_b32 v3, 5, v3")
    a("v_and_b32 v1, 1, v5")
    a("v_lshl_add_u32 v3, v1, 2, v3")
    a("v_lshl_add_u32 v3, v8, 1, v3")
    a("v_lshlrev_b32 v3, 11, v3")
    a("v_lshl_add_u32 v3, v9, 4, v3")
    a("v_lshlrev_b32 v1, 3, v8")
    a("v_lshl_add_u32 v1, v5, 4, v1")
    a("v_lshlrev_b32 v1, 11, v1")
    a("v_lshl_add_u32 v1, v9, 4, v1")
    a("s_lshl_b32 s11, s5, 9")
    a("s_lshl_b32 s12, s6, 7")
    a("s_add_u32 s12, s12, s11")
    a("s_lshl_b32 s11, s4, 17")
    a("s_add_u32 s11, s11, s12")
    a("s_and_b32 s10, s2, 7")
    a("s_mul_i32 s10, s10, 7")
    a("s_lshr_b32 s13, s2, 5")
    a("s_add_u32 s10, s10, s13")
    a("s_cmp_ge_u32 s4, 56")
    a("s_cselect_b32 s10, 56, s10")
    a("s_lshl_b32 s10, s10, 17")
    a("s_add_u32 s10, s10, s12")
    a("v_bfe_u32 v12, v4, 2, 1")
    a("v_lshlrev_b32 v12, 7, v12")
    a("v_lshl_add_u32 v12, v5, 5, v12")
    a("v_and_b32 v11, 1, v4")
    a("v_lshl_add_u32 v12, v11, 4, v12")
    a("v_lshlrev_b32 v11, 18, v5")
    a("v_lshrrev_b32 v6, 2, v9")
    a("v_lshl_add_u32 v11, v6, 13, v11")
    a("v_and_b32 v6, 3, v9")
    a("v_lshl_add_u32 v11, v6, 5, v11")
    a("v_lshl_add_u32 v11, v8, 4, v11")
    a("s_lshl_b32 s9, s5, 16")
    a("s_lshl_b32 s12, s6, 14")
    a("s_add_u32 s9, s9, s12")
    a("s_lshl_b32 s12, s4, 7")
    a("s_add_u32 s9, s9, s12")
    a(f"s_add_u32 s9, s9, {XP_OFF}")
    a("v_lshrrev_b32 v4, 5, v0")
    a("s_lshl_b32 s12, s6, 1")
    a("v_add_u32 v4, s12, v4")
    a("v_lshlrev_b32 v5, 4, v4")
    a("v_mul_u32_u24 v4, 528, v4")
    a("v_and_b32 v6, 31, v0")
    a("v_lshl_add_u32 v4, v6, 4, v4")
    a("v_lshlrev_b32 v8, 4, v9")
    a("v_lshrrev_b32 v6, 3, v0")
    a("v_lshl_add_u32 v8, v6, 12, v8")
    a("v_mul_u32_u24 v6, 5, v6")
    a("v_add_u32 v6, s99, v6")
    a("v_and_b32 v6, 31, v6")
    a("v_lshl_add_u32 v8, v6, 7, v8")
    a("s_lshr_b32 s5, s99, 5")
    a("s_lshl_b32 s5, s5, 17")
    a("s_lshl_b32 s12, s6, 15")
    a("s_add_u32 s5, s5, s12")
    a(f"s_add_u32 s5, s5, {OP_OFF}")
    get_mode(6)
    if cfg.rank:
        NH = cfg.nh
        lvl_on[0] = True
        a("s_mov_b32 s100, 0")
    for it in range(16, 32):
        advance(it)
        if it & 1:
            u = (it - 16) // 2
            s0 = slot_of(16 + 2 * u)
            s1 = slot_of(17 + 2 * u)
            src = lambda e, s0=s0, s1=s1: (s0 if e < 4 else s1) + 4 * (e & 3)

            def M(i, u=u):
                for h in range(2):
                    j = 2 * i + h
                    c = "0" if u == 0 else vr(AC + 4 * j, 4)
                    a(f"v_mfma_f32_16x16x32_bf16 {vr(AC+4*j,4)}, {vr(PTA+8*(i&1)+4*h,4)}, {vr(SC+4*u,4)}, {c}")
            perms(PTA, src, 0)
            perms(PTA + 8, src, 1)
            M(0)
            perms(PTA, src, 2)
            M(1)
            perms(PTA + 8, src, 3)
            M(2)
            M(3)
    stamp(5)
    a("s_mov_b32 exec_lo, 0x00ff00ff")
    a("s_mov_b32 exec_hi, 0x00ff00ff")
    for j in range(8):
        if j == 4:
            a("s_nop 0")
        a(f"ds_write_b128 v10, {vr(AC+4*j,4)} offset:{ORED+16*j}")
    a("s_mov_b64 exec, -1")
    set_flag(OF, 13)
    T0 = slot_of(0)
    wait_flags([(OF, 4, 14), (FF, 1, 14)], T0, 0)
    a(f"ds_read_b128 {vr(T0,4)}, v5 offset:{FB}")
    for w_ in range(4):
        a(f"ds_read_b128 {vr(T0+4+4*w_,4)}, v4 offset:{ORED+4224*w_}")
    a("s_waitcnt lgkmcnt(0)")
    for w_ in range(4):
        for k in range(4):
            if w_ == 0:
                a(f"v_mul_f32 v{T0+4+k}, v{T0}, v{T0+4+k}")
            else:
                a(f"v_fmac_f32 v{T0+4+k}, v{T0+w_}, v{T0+4+4*w_+k}")
    for k in range(4):
        put_tag(T0 + 4 + k)
    store_mode(f"buffer_store_dwordx4 {vr(T0+4,4)}, v8, s[48:51], s5 offen")
    stamp(6)
    TP = slot_of(6)
    XACC = SC
    wait_flags([(GF, 2, 14)], PTA, 1)
    lim[0] = NL
    NH = cfg.nw2 or NH
    for _ in range(NH):
        if _ >= cfg.nl:
            thr()
        issue1()
    advance(32)
    advance(33)
    srco = lambda e: (lambda m: slot_of(32 + (m >> 2)) + 4 * (m & 3))(2 * (e & 3) + (e >> 2))
    for i in range(4):
        perms(TP + 8 * i, srco, i)
    advance(34)
    assert nl[0] == NL
    if cfg.diagx:
        advance(35)
        stamp(7)
    wait_flags([(BF, 1, 14)], PTA + 4, 0)
    stamp(8)
    a(f"ds_read_b128 {vr(PTA+4,4)}, v12 offset:{OB}")
    a("s_waitcnt lgkmcnt(0)")
    for j in range(8):
        a(f"v_mfma_f32_16x16x32_bf16 {vr(XACC+4*j,4)}, {vr(PTA+4,4)}, {vr(TP+4*j,4)}, 0")
    a("s_cmp_ge_u32 s4, 56")
    a("s_cbranch_scc1 L_noffn")
    wait_flags([(HF, 1, 14)], PTA, 0)
    stamp(9)
    a(f"ds_read_b128 {vr(PTA,4)}, v12 offset:{HB}")
    advance(35)
    if not cfg.diagx:
        stamp(7)
    srcd = lambda e: slot_of(34 + (e >> 2)) + 4 * (e & 3)
    perms(TP + 32, srcd, 0)
    a("s_waitcnt lgkmcnt(0)")
    for i in range(4):
        if i < 3:
            perms(TP + 32 + 8 * (i + 1), srcd, i + 1)
        else:
            a("s_nop 0")
        for j in (2 * i, 2 * i + 1):
            a(f"v_mfma_f32_16x16x32_bf16 {vr(XACC+4*j,4)}, {vr(PTA,4)}, {vr(TP+32+4*j,4)}, {vr(XACC+4*j,4)}")
    a("s_nop 1")
    a.label("L_noffn")
    a("s_nop 3")
    a("s_nop 1")
    fold(PTA + 8, XACC)
    a("s_mov_b32 exec_hi, 0")
    a(f"buffer_store_dwordx4 {vr(PTA+8,4)}, v11, s[48:51], s9 offen sc1{TNT}")
    set_flag(SF, 13)
    stamp(10)
    dump_stamps()
    a.label("L_END")
    a("s_endpgm")

    probs = check_hazards(a.lines)
    for p in probs:
        print(p, file=sys.stderr)
    if probs:
        raise SystemExit("hazards found")

    pad = ""
    if cfg.codepf:
        psz = (512 << cfg.codepf) + 256 if cfg.codepf < 7 else 24576
        pad = f".fill ({psz} - (. - {NAME}_kernel)) / 4, 4, 0xBF800000\n"
    out = HEADER
    out += "; Generated by work/gen9.py (hand-written generator). One persistent launch, 256 workgroups x 8 waves.\n"
    out += f"; @launch grid=(256,1,1) block=(512,1,1) lds={LDS_SIZE}\n"
    out += f""".amdgcn_target "amdgcn-amd-amdhsa--gfx950"
.text
.globl {NAME}_kernel
.p2align 8
.type {NAME}_kernel,@function
{NAME}_kernel:
"""
    out += a.text()
    out += pad
    out += f""".section .rodata,"a"
.p2align 6
.amdhsa_kernel {NAME}_kernel
  .amdhsa_next_free_vgpr 256
  .amdhsa_next_free_sgpr 102
  .amdhsa_accum_offset 256
  .amdhsa_group_segment_fixed_size 0
  .amdhsa_kernarg_size 96
  .amdhsa_user_sgpr_count 2
  .amdhsa_user_sgpr_kernarg_segment_ptr 1
  .amdhsa_system_sgpr_workgroup_id_x 1
  .amdhsa_float_denorm_mode_32 3
.end_amdhsa_kernel
"""
    return out


def parse_args(argv=None):
    p = argparse.ArgumentParser()
    p.add_argument("-o", default="cdna_kernels/" + NAME + ".s")
    p.add_argument("--ring", type=int, default=10)
    p.add_argument("--stamps", type=int, default=0)
    p.add_argument("--codepf", type=int, default=7)
    p.add_argument("--sleep", type=int, default=8)
    p.add_argument("--sleep_q", type=int, default=0)
    p.add_argument("--sleep_lds", type=int, default=2)
    p.add_argument("--sleep_of", type=int, default=1)
    p.add_argument("--sleep_tail", type=int, default=0)
    p.add_argument("--spin", type=int, default=2000000)
    p.add_argument("--tagmask", type=int, default=15)
    p.add_argument("--n", type=int, default=6)
    p.add_argument("--n0", type=int, default=0)
    p.add_argument("--ns", type=int, default=12)
    p.add_argument("--gate", type=int, default=32)
    p.add_argument("--crot", type=int, default=1)
    p.add_argument("--pf", type=int, default=24)
    p.add_argument("--wf", type=int, default=136)
    p.add_argument("--catch0", type=int, default=4)
    p.add_argument("--catch", type=int, default=1)
    p.add_argument("--smstep", type=int, default=6)
    p.add_argument("--abl", type=int, default=0)
    p.add_argument("--cp", default="")
    p.add_argument("--padfrom", type=int, default=0)
    p.add_argument("--rank", default="0:22:28")
    p.add_argument("--nsh", type=int, default=0)
    p.add_argument("--nw2", type=int, default=0)
    p.add_argument("--b0e", type=int, default=0)
    p.add_argument("--ypipe", type=int, default=3)
    p.add_argument("--ygap", type=int, default=5)
    p.add_argument("--wb", type=int, default=0)
    p.add_argument("--outsc", type=int, default=0)
    p.add_argument("--nont", type=int, default=0)
    p.add_argument("--diagx", type=int, default=0)
    p.add_argument("--go", type=int, default=128)
    p.add_argument("--sleep_l1", type=int, default=0)
    p.add_argument("--nofast", type=int, default=0)
    p.add_argument("--xtw", type=int, default=1)
    p.add_argument("--wf1", type=int, default=0)
    p.add_argument("--mlplain", type=int, default=0)
    p.add_argument("--satom", type=int, default=0)
    p.add_argument("--nh", type=int, default=8)
    p.add_argument("--nl", type=int, default=5)
    p.add_argument("--padto", type=int, default=0)
    p.add_argument("--padglobal", type=int, default=0)
    p.add_argument("--lf", type=int, default=108)
    p.add_argument("--k2", type=int, default=0)
    p.add_argument("--n2", type=int, default=10)
    p.add_argument("--kr", type=int, default=2)
    p.add_argument("--qmap", type=int, default=1)
    p.add_argument("--xm", type=int, default=1)
    p.add_argument("--gm", type=int, default=1)
    p.add_argument("--gpw", type=int, default=2)
    p.add_argument("--hnt", type=int, default=0)
    return p.parse_args(argv)


if __name__ == "__main__":
    cfg = parse_args()
    open(cfg.o, "w").write(gen(cfg))
    print("wrote", cfg.o)
```

```python
import sys
import argparse
import struct
import math
from asmlib import Asm, vr, sr, check_hazards

NAME = "parallel_sum__gqa_block_cached__geglu_ffn__decode"

QP_OFF = 0x000000
GP_OFF = 0x020000
ML_OFF = 0x060000
XT_OFF = 0x068000
EP_OFF = 0x070000
O2_OFF = 0x078000
OP_OFF = 0x080000
XP_OFF = 0x180000
ST_OFF = 0x200000
WS_SIZE = 0x400000
XN = 0x0000
QB = 0x0400
MLB = 0x0C80
FL = 0x0D80
OF = FL + 0
FF = FL + 16
GF = FL + 24
QF = FL + 32
XF = FL + 36
PF = FL + 40
HF = FL + 44
LF = FL + 20
WF = FL + 48
BF = FL + 72
GO = FL + 80
SF = FL + 96
FM = FL + 68
LV = FL + 64
CPF = FL + 128
FB = 0x0E80
OB = 0x0F00
HB = 0x1000
ORED = 0x1100
LDS_SIZE = ORED + 4 * 4224

LOG2E = 0x3FB8AA3B
SCALE = 0x3DB504F3
EPS = 0x3727C5AC

HEADER = open("cdna_kernels/" + NAME + ".s.ref").read().split("; Override launch")[0]


def f32bits(x):
    return struct.unpack("<I", struct.pack("<f", x))[0]


def gen(cfg):
    a = Asm()
    R = cfg.ring
    NT = " nt" if not cfg.nont & 4 else ""
    KNT = " nt" if not cfg.nont & 1 else ""
    VNT = " nt" if not cfg.nont & 2 else ""
    MLS = "" if cfg.mlplain else " sc1"
    MNT = " nt" if cfg.hnt & 1 else ""
    ONT = " nt" if cfg.hnt & 2 else ""
    XNT = " nt" if cfg.hnt & 4 else ""
    SNT = " nt" if cfg.hnt & 8 else ""
    TNT = " nt" if cfg.hnt & 16 else ""
    uid = [0]
    cps = [tuple(int(x) for x in t.split(":")) for t in cfg.cp.split(",")] if cfg.cp else []

    def stamp(k):
        if cfg.padto and cfg.padfrom == k:
            a("s_memrealtime s[94:95]")
        if cfg.stamps:
            a(f"s_memrealtime s[{70+2*k}:{71+2*k}]")

    def srd(d, p, size):
        a(f"s_mov_b32 s{d}, s{p}")
        a(f"s_mov_b32 s{d+1}, s{p+1}")
        a(f"s_mov_b32 s{d+2}, {size:#x}")
        a(f"s_mov_b32 s{d+3}, 0x20000")

    def dump_stamps():
        if not cfg.stamps:
            return
        a("s_waitcnt lgkmcnt(0)")
        for _ in range(3):
            a("s_sleep 127")
        a("s_mov_b64 exec, 1")
        a("s_lshl_b32 s4, s2, 10")
        a("s_lshl_b32 s5, s3, 7")
        a("s_add_u32 s4, s4, s5")
        a(f"s_add_u32 s4, s4, {ST_OFF}")
        a("v_mov_b32 v3, 0")
        for k in range(14):
            a(f"v_mov_b32 v1, s{70+2*k}")
            a(f"buffer_store_dword v1, v3, s[48:51], s4 offen offset:{4*k}")

    def poll(loads, check, sleep, cnt="vmcnt", rec=None):
        uid[0] += 1
        n = uid[0]
        a(f"s_mov_b32 s15, {cfg.spin if cnt == 'vmcnt' else 8 * cfg.spin}")
        a.label(f"L_poll{n}")
        loads()
        a(f"s_waitcnt {cnt}(0)")
        check()
        a(f"s_cbranch_scc1 L_pdone{n}")
        a("s_sub_u32 s15, s15, 1")
        a(f"s_cbranch_scc1 L_pdone{n}")
        if sleep:
            a(f"s_sleep {sleep}")
        a(f"s_branch L_poll{n}")
        a.label(f"L_pdone{n}")
        if rec is not None and cfg.stamps:
            a(f"s_sub_u32 s{70+2*rec}, {cfg.spin+1}, s15")

    def wait_flags(reads, t, sleep):
        regs = []

        def ld():
            r = t
            regs.clear()
            for off, n, av in reads:
                op = {1: "ds_read_b32", 2: "ds_read_b64", 4: "ds_read_b128"}[n]
                a(f"{op} {vr(r,n)}, v{av} offset:{off}")
                regs.extend(range(r, r + n))
                r += (n + 1) & ~1

        def ck():
            rs = list(regs)
            while len(rs) >= 3:
                a(f"v_or3_b32 v{rs[0]}, v{rs[0]}, v{rs[1]}, v{rs[2]}")
                rs = [rs[0]] + rs[3:]
            if len(rs) == 2:
                a(f"v_or_b32 v{rs[0]}, v{rs[0]}, v{rs[1]}")
            a(f"v_cmp_eq_u32 vcc, 0, v{rs[0]}")
            a("s_cmp_eq_u64 vcc, -1")
        poll(ld, ck, sleep, cnt="lgkmcnt")

    def set_flag(off, av=14):
        a(f"ds_write_b32 v{av}, v14 offset:{off}")

    def get_mode(t):
        def ld():
            a(f"ds_read_b32 v{t}, v14 offset:{FM}")

        def ck():
            a(f"v_readfirstlane_b32 s101, v{t}")
            a("s_cmp_lg_u32 s101, -1")
        poll(ld, ck, cfg.sleep_lds, cnt="lgkmcnt")

    def store_mode(ins):
        uid[0] += 1
        n = uid[0]
        a("s_cmp_eq_u32 s101, 1")
        a(f"s_cbranch_scc1 L_stf{n}")
        a(ins + " sc1")
        a(f"s_branch L_std{n}")
        a.label(f"L_stf{n}")
        a(ins)
        a.label(f"L_std{n}")

    def check_tag(regs, t0, t1):
        regs = list(regs)
        a(f"v_xor_b32 v{t0}, s14, v{regs[0]}")
        a(f"v_xor_b32 v{t1}, s14, v{regs[1]}")
        for k, r in enumerate(regs[2:]):
            t = t0 if k % 2 == 0 else t1
            a(f"v_bitop3_b32 v{t}, v{r}, s14, v{t} bitop3:0xbe")
        a(f"v_or_b32 v{t0}, v{t0}, v{t1}")
        a(f"v_and_b32 v{t0}, s69, v{t0}")
        a(f"v_cmp_eq_u32 vcc, 0, v{t0}")
        a("s_cmp_eq_u64 vcc, -1")

    def check_sentinel(regs, tmp):
        regs = list(regs)
        a(f"v_max3_u32 v{tmp}, v{regs[0]}, v{regs[1]}, v{regs[2]}")
        regs = regs[3:]
        while len(regs) >= 2:
            a(f"v_max3_u32 v{tmp}, v{tmp}, v{regs[0]}, v{regs[1]}")
            regs = regs[2:]
        if regs:
            a(f"v_max_u32 v{tmp}, v{tmp}, v{regs[0]}")
        a(f"v_cmp_ne_u32 vcc, -1, v{tmp}")
        a("s_cmp_eq_u64 vcc, -1")

    def put_tag(r):
        a(f"v_bfi_b32 v{r}, s69, v15, v{r}")

    def load_tag():
        a(f"s_load_dword s14, s[38:39], {EP_OFF:#x}")

    def make_tag():
        a("s_add_u32 s14, s14, 1")
        a(f"s_and_b32 s14, s14, {cfg.tagmask}")
        a("v_mov_b32 v15, s14")

    def xlane(op, x, t, steps):
        for s in steps:
            if s in (1, 2, 4, 8):
                a("s_nop 1")
                a(f"{op}_dpp v{x}, v{x}, v{x} row_ror:{s} row_mask:0xf bank_mask:0xf")
            else:
                a(f"v_mov_b32 v{t}, v{x}")
                a("s_nop 1")
                a(f"v_permlane{s}_swap_b32 v{x}, v{t}")
                a(f"{op} v{x}, v{x}, v{t}")

    def round_bf16(d, s):
        a(f"v_cvt_pk_bf16_f32 v{d}, v{s}, v{s}")
        a(f"v_lshlrev_b32 v{d}, 16, v{d}")

    def perms(dst, src_e, i):
        for p in range(4):
            a(f"v_perm_b32 v{dst+p}, v{src_e(2*p+1)+i}, v{src_e(2*p)+i}, s64")
        for p in range(4):
            a(f"v_perm_b32 v{dst+4+p}, v{src_e(2*p+1)+i}, v{src_e(2*p)+i}, s65")

    def fold(dst, acc):
        for k in range(4):
            a(f"v_add_f32_dpp v{dst+k}, v{acc+4*k+1}, v{acc+4*k} row_ror:8 row_mask:0xf bank_mask:0x3")
        for k in range(4):
            if k >= 2:
                a("s_nop 0")
            a(f"v_add_f32_dpp v{dst+k}, v{acc+4*(k+4)}, v{acc+4*(k+4)+1} row_ror:8 row_mask:0xf bank_mask:0xc")
        for k in range(4):
            put_tag(dst + k)

    def consts():
        a("s_mov_b32 s64, 0x05040100")
        a("s_mov_b32 s65, 0x07060302")
        a("s_mov_b32 s66, 0xffff0000")
        a(f"s_mov_b32 s67, {LOG2E:#x}")
        a(f"s_mov_b32 s68, {SCALE:#x}")
        a(f"s_movk_i32 s69, {cfg.tagmask}")

    a("s_cmp_ge_u32 s2, 256")
    a("s_cbranch_scc1 L_END")
    a("s_load_dwordx16 s[16:31], s[0:1], 0")
    a("s_load_dwordx8 s[32:39], s[0:1], 64")
    stamp(0)
    if cfg.padto and cfg.padfrom == 23:
        a("s_waitcnt lgkmcnt(0)")
        a("s_memrealtime s[94:95]")
    if cfg.padto and cfg.padfrom >= 100:
        for _ in range((cfg.padfrom - 28) // 4):
            a("s_nop 0")
        a("s_memrealtime s[94:95]")
    if cfg.codepf and cfg.codepf < 7:
        a("s_getpc_b64 s[4:5]")
        a(f"v_lshlrev_b32 v1, {cfg.codepf}, v0")
        a("global_load_dword v2, v1, s[4:5]")
    a("v_lshrrev_b32 v3, 6, v0")
    if cfg.xm:
        a("s_and_b32 s98, s2, 7")
        a("s_lshl_b32 s98, s98, 2")
        a("s_bfe_u32 s100, s2, 0x20003")
        a("s_or_b32 s98, s98, s100")
        a("s_and_b32 s100, s2, 0xe0")
        a("s_or_b32 s98, s98, s100")
    else:
        a("s_mov_b32 s98, s2")
    if cfg.gm:
        a("s_and_b32 s99, s2, 7")
        a("s_lshl_b32 s99, s99, 5")
        a("s_lshr_b32 s100, s2, 3")
        a("s_or_b32 s99, s99, s100")
    else:
        a("s_mov_b32 s99, s2")
    a("v_and_b32 v0, 63, v0")
    a("v_readfirstlane_b32 s3, v3")
    a("v_and_b32 v4, 15, v0")
    a("v_lshrrev_b32 v5, 4, v0")
    a("v_mov_b32 v14, 0")
    a("v_lshrrev_b32 v8, 3, v4")
    a("v_and_b32 v9, 7, v4")
    a("s_cmp_ge_u32 s3, 4")
    a("s_cbranch_scc1 L_ATT")
    a("s_lshr_b32 s6, s98, 2")
    a("s_and_b32 s7, s98, 3")
    a("v_lshlrev_b32 v10, 3, v8")
    a("v_lshl_add_u32 v10, v5, 4, v10")
    a("s_cmp_lg_u32 s3, 0")
    a("s_cbranch_scc1 L_S123")

    XA = 16
    XO = 32
    XU = 36
    WR = 72
    ACC = 200
    PT = 232

    def wloads(stride, throttle, gate):
        for T in range(4):
            for e in range(8):
                k = 8 * T + e
                if throttle and k >= throttle:
                    if cfg.rank and cfg.nsh:
                        uid[0] += 1
                        a(f"s_waitcnt vmcnt({cfg.nsh-1})")
                        a(f"s_cbranch_vccnz L_sg{uid[0]}")
                        a(f"s_waitcnt vmcnt({throttle-1})")
                        a.label(f"L_sg{uid[0]}")
                    else:
                        a(f"s_waitcnt vmcnt({throttle-1})")
                a(f"buffer_load_dwordx4 {vr(WR+32*T+4*e,4)}, v10, s[40:43], s10 offen{NT}")
                if k < 31:
                    a(f"s_add_u32 s10, s10, {stride * (57 if e == 7 else 1)}")
                if gate and k == gate - 1:
                    set_flag(GF - 4, 13)

    if cfg.qmap:
        a("s_mul_i32 s4, s6, 37")
        a("s_lshr_b32 s4, s4, 8")
        a("s_mul_i32 s5, s4, 7")
        a("s_sub_u32 s5, s6, s5")
        a("s_cmp_ge_u32 s5, 3")
        a("s_addc_u32 s5, s5, 0")
        a("s_lshl_b32 s4, s4, 3")
        a("s_add_u32 s5, s5, s4")
        a("s_lshl_b32 s4, s6, 3")
        a(f"s_sub_u32 s4, s4, {56*8-3}")
        a("s_cmp_ge_u32 s6, 56")
        a("s_cselect_b32 s6, s4, s5")
    a("s_mov_b32 s9, 14")
    a("s_mov_b32 s101, 0")
    a("v_lshlrev_b32 v6, 6, v0")
    a("v_lshrrev_b32 v7, 5, v0")
    a("v_lshlrev_b32 v7, 11, v7")
    a("v_and_b32 v11, 31, v0")
    a("v_lshl_add_u32 v7, v11, 4, v7")
    a("s_lshl_b32 s12, s7, 9")
    a("v_lshlrev_b32 v10, 13, v10")
    a("v_lshl_add_u32 v10, v9, 4, v10")
    a("s_lshl_b32 s10, s7, 21")
    a("s_lshl_b32 s11, s6, 7")
    a("s_add_u32 s10, s10, s11")
    if cfg.padto and cfg.padfrom == 20:
        a("s_memrealtime s[94:95]")
    a("s_waitcnt lgkmcnt(0)")
    if cfg.padto and cfg.padfrom == 21:
        a("s_memrealtime s[94:95]")
    srd(56, 16, 4096)
    srd(40, 22, 0x800000)
    load_tag()
    for i in range(4):
        a(f"buffer_load_dwordx4 {vr(XA+4*i,4)}, v6, s[56:59], 0 offen offset:{16*i}")
    a(f"buffer_load_dwordx4 {vr(XO,4)}, v7, s[56:59], s12 offen")
    wloads(8192, 0, 0)
    stamp(1)
    a("s_barrier")
    if cfg.padto and cfg.padfrom == 22:
        a("s_memrealtime s[94:95]")
    srd(48, 38, WS_SIZE)
    consts()
    a("s_lshl_b32 s10, s7, 15")
    a("s_lshl_b32 s11, s6, 8")
    a("s_add_u32 s10, s10, s11")
    if QP_OFF:
        a(f"s_add_u32 s10, s10, {QP_OFF}")
    a("s_waitcnt vmcnt(32)")
    stamp(2)
    for i in range(16):
        a(f"v_lshlrev_b32 v{XU+2*i}, 16, v{XA+i}")
        a(f"v_and_b32 v{XU+2*i+1}, s66, v{XA+i}")
    for k in range(4):
        a(f"v_add_f32 v{XA+k}, v{XU+k}, v{XU+4+k}")
    for i in range(8, 32):
        a(f"v_add_f32 v{XA+(i&3)}, v{XA+(i&3)}, v{XU+i}")
    a(f"v_add_f32 v11, v{XA}, v{XA+1}")
    a(f"v_add_f32 v13, v{XA+2}, v{XA+3}")
    a("v_add_f32 v11, v11, v13")
    xlane("v_add_f32", 11, 12, [8, 4, 2, 1, 16])
    a("v_mul_f32 v11, 0x3a800000, v11")
    for i in range(32):
        a(f"v_sub_f32 v{XU+i}, v{XU+i}, v11")
    for k in range(4):
        a(f"v_mul_f32 v{XA+k}, v{XU+k}, v{XU+k}")
    for i in range(4, 32):
        a(f"v_fmac_f32 v{XA+(i&3)}, v{XU+i}, v{XU+i}")
    a(f"v_add_f32 v12, v{XA}, v{XA+1}")
    a(f"v_add_f32 v13, v{XA+2}, v{XA+3}")
    a("v_add_f32 v12, v12, v13")
    xlane("v_add_f32", 12, 13, [8, 4, 2, 1, 16])
    a("v_mul_f32 v12, 0x3a800000, v12")
    round_bf16(11, 11)
    round_bf16(12, 12)
    a(f"v_add_f32 v12, {EPS:#x}, v12")
    round_bf16(12, 12)
    a("v_sqrt_f32 v12, v12")
    a("s_nop 0")
    round_bf16(12, 12)
    a("v_rcp_f32 v13, v12")
    for i in range(4):
        a(f"v_lshlrev_b32 v{XU+2*i}, 16, v{XO+i}")
        a(f"v_and_b32 v{XU+2*i+1}, s66, v{XO+i}")
    for i in range(8):
        a(f"v_sub_f32 v{XU+i}, v{XU+i}, v11")
    for i in range(4):
        a(f"v_cvt_pk_bf16_f32 v{XO+i}, v{XU+2*i}, v{XU+2*i+1}")
    for i in range(4):
        a(f"v_lshlrev_b32 v{XU+2*i}, 16, v{XO+i}")
        a(f"v_and_b32 v{XU+2*i+1}, s66, v{XO+i}")
    for i in range(8):
        a(f"v_mul_f32 v{XU+8+i}, v{XU+i}, v13")
    for i in range(8):
        a(f"v_fma_f32 v{XU+i}, -v{XU+8+i}, v12, v{XU+i}")
    for i in range(8):
        a(f"v_fmac_f32 v{XU+8+i}, v{XU+i}, v13")
    for i in range(4):
        a(f"v_cvt_pk_bf16_f32 v{XO+i}, v{XU+8+2*i}, v{XU+8+2*i+1}")
    a("v_lshlrev_b32 v11, 4, v0")
    a(f"ds_write_b128 v11, {vr(XO,4)} offset:{XN}")
    set_flag(XF)
    a("s_waitcnt lgkmcnt(0)")
    make_tag()

    a.label("L_S_gemv")
    a("v_bfe_u32 v11, v4, 2, 1")
    a("v_lshlrev_b32 v11, 9, v11")
    a("v_lshl_add_u32 v11, v5, 5, v11")
    a("v_and_b32 v12, 1, v4")
    a("v_lshl_add_u32 v11, v12, 4, v11")
    for T in range(4):
        a(f"ds_read_b128 {vr(XU+4*T,4)}, v11 offset:{XN+128*T}")
    stamp(3)
    a("v_lshlrev_b32 v12, s9, v5")
    a("v_lshl_add_u32 v12, v9, 5, v12")
    a("v_lshl_add_u32 v12, v8, 4, v12")
    a("s_waitcnt lgkmcnt(0)")
    for T in range(4):
        a(f"s_waitcnt vmcnt({24-8*T})")
        src = lambda e, T=T: WR + 32 * T + 4 * e

        def M(i, T=T):
            for h in range(2):
                j = 2 * i + h
                c = "0" if T == 0 else vr(ACC + 4 * j, 4)
                a(f"v_mfma_f32_16x16x32_bf16 {vr(ACC+4*j,4)}, {vr(XU+4*T,4)}, {vr(PT+8*(i&1)+4*h,4)}, {c}")
        perms(PT, src, 0)
        perms(PT + 8, src, 1)
        M(0)
        perms(PT, src, 2)
        M(1)
        perms(PT + 8, src, 3)
        M(2)
        M(3)
    stamp(4)
    a("s_nop 3")
    fold(PT, ACC)
    a("s_mov_b32 exec_hi, 0")
    if not (cfg.abl & 8):
        store_mode(f"buffer_store_dwordx4 {vr(PT,4)}, v12, s[48:51], s10 offen")
    a("s_mov_b64 exec, -1")
    a("s_cmp_eq_u32 s3, 1")
    a("s_cbranch_scc1 L_S1_h")
    a("s_cmp_eq_u32 s3, 2")
    a("s_cbranch_scc1 L_S_END")
    if cfg.padto and cfg.padglobal:
        srd(52, 36, 256)
        a("s_mov_b64 exec, 1")
        a("v_mov_b32 v20, s94")
        a("buffer_atomic_umax v20, v14, s[52:55], 0 offen offset:4")
        a("v_not_b32 v21, v20")
        a("buffer_atomic_umax v21, v14, s[52:55], 0 offen")
        a("s_mov_b64 exec, -1")
    a("v_lshlrev_b32 v6, 4, v0")
    a("s_lshr_b32 s10, s99, 5")
    a("s_lshl_b32 s10, s10, 12")
    if QP_OFF:
        a(f"s_add_u32 s10, s10, {QP_OFF}")
    a("s_add_u32 s11, s10, 32768")
    a("s_add_u32 s12, s10, 65536")
    a("s_add_u32 s13, s10, 98304")
    a("v_lshrrev_b32 v7, 5, v0")
    a("v_mul_u32_u24 v7, 272, v7")
    a("v_and_b32 v11, 31, v0")
    a("v_lshl_add_u32 v7, v11, 3, v7")
    if cfg.pf:
        wait_flags([(PF, 1, 14)], 16, cfg.sleep_lds)
    stamp(6)

    def ldq():
        for kq in range(4):
            for i in range(4):
                if (cfg.abl & 16) and i: continue
                a(f"buffer_load_dwordx4 {vr(32+16*kq+4*i,4)}, v6, s[48:51], s{10+kq} offen offset:{1024*i} sc1{MNT}")
    if not (cfg.abl & 1):
        poll(ldq, lambda: check_tag([r for r in range(32, 96) if not (cfg.abl & 16) or (r - 32) % 16 < 4], 11, 12), cfg.sleep_q, rec=12)
    stamp(5)
    for k in range(16):
        a(f"v_add_f32 v{32+k}, v{32+k}, v{48+k}")
        a(f"v_add_f32 v{64+k}, v{64+k}, v{80+k}")
    for k in range(16):
        a(f"v_add_f32 v{32+k}, v{32+k}, v{64+k}")
    for i in range(4):
        a(f"v_cvt_pk_bf16_f32 v{48+2*i}, v{32+4*i}, v{33+4*i}")
        a(f"v_cvt_pk_bf16_f32 v{49+2*i}, v{34+4*i}, v{35+4*i}")
        a(f"ds_write_b64 v7, {vr(48+2*i,2)} offset:{QB+544*i}")
    set_flag(QF)
    a("s_branch L_S_tail")

    a.label("L_S123")
    if cfg.codepf == 7:
        a("s_getpc_b64 s[4:5]")
        a.label("L_pcref")
        a(f"s_sub_u32 s4, s4, L_pcref - {NAME}_kernel + 8192")
        a("s_subb_u32 s5, s5, 0")
        a("v_lshlrev_b32 v1, 7, v0")
        a("v_lshl_add_u32 v1, v3, 13, v1")
        a("global_load_dword v2, v1, s[4:5]")
    consts()
    a("s_mov_b32 s9, 8")
    a(f"s_mul_i32 s5, s3, {cfg.crot}")
    a("s_lshr_b32 s4, s2, 5")
    a("s_add_u32 s5, s5, s4")
    a("s_sub_u32 s4, s5, 7")
    a("s_cmp_ge_u32 s5, 7")
    a("s_cselect_b32 s5, s4, s5")
    a("s_and_b32 s4, s2, 7")
    a("s_mul_i32 s4, s4, 7")
    a("s_add_u32 s5, s5, s4")
    a("v_mul_u32_u24 v10, 7168, v10")
    a("v_lshl_add_u32 v10, v9, 4, v10")
    a(f"s_mul_i32 s10, s7, {256*7168}")
    a("s_lshl_b32 s11, s5, 7")
    a("s_add_u32 s10, s10, s11")
    a("v_mov_b32 v11, -1")
    a("v_lshlrev_b32 v12, 2, v0")
    a(f"ds_write_b32 v12, v11 offset:{MLB}")
    a(f"ds_write_b32 v12, v11 offset:{FL}")
    a("s_lshl_b32 s4, s3, 2")
    a("v_mov_b32 v13, s4")
    a("s_waitcnt lgkmcnt(0)")
    load_tag()
    if cfg.b0e:
        a("s_barrier")
    srd(48, 38, WS_SIZE)
    a("s_cmp_eq_u32 s3, 2")
    a("s_cselect_b64 s[40:41], s[30:31], s[28:29]")
    a("s_mov_b32 s42, 0x700000")
    a("s_mov_b32 s43, 0x20000")
    a("s_waitcnt lgkmcnt(0)")
    if not cfg.b0e:
        a("s_barrier")
    make_tag()
    a("s_cmp_eq_u32 s3, 3")
    a("s_cbranch_scc1 L_S3")
    a("s_cmp_lt_u32 s6, 56")
    a("s_cbranch_scc1 L_S12")
    set_flag(GF - 4, 13)
    a("s_branch L_S_END")
    a.label("L_S12")
    a("v_lshlrev_b32 v12, 1, v13")
    wait_flags([(GO - 8, 2, 12)], 16, cfg.sleep_lds)
    stamp(2)
    if cfg.rank and cfg.nsh:
        a(f"ds_read_b32 v16, v14 offset:{LV}")
        a("s_waitcnt lgkmcnt(0)")
        a("v_and_b32 v16, 1, v16")
        a("v_cmp_ne_u32 vcc, 0, v16")
    wloads(7168, cfg.ns, cfg.gate)
    stamp(1)
    a("s_lshl_b32 s10, s5, 12")
    a("s_lshl_b32 s12, s7, 10")
    a("s_add_u32 s10, s10, s12")
    a("s_lshl_b32 s12, s3, 9")
    a("s_add_u32 s10, s10, s12")
    a(f"s_add_u32 s10, s10, {GP_OFF-512}")
    wait_flags([(XF, 1, 14)], 16, cfg.sleep_lds)
    get_mode(16)
    a("s_branch L_S_gemv")

    a.label("L_S1_h")
    a("v_lshlrev_b32 v12, 3, v0")
    a("s_and_b32 s10, s2, 7")
    a("s_mul_i32 s10, s10, 7")
    a("s_lshr_b32 s4, s2, 5")
    a("s_add_u32 s10, s10, s4")
    a("s_lshl_b32 s10, s10, 12")
    a(f"s_add_u32 s10, s10, {GP_OFF}")

    def ldg():
        for kq in range(4):
            for m in range(2):
                a(f"buffer_load_dwordx2 {vr(16+4*kq+2*m,2)}, v12, s[48:51], s10 offen offset:{kq*1024+m*512} sc1{MNT}")
    if not (cfg.abl & 2):
        poll(ldg, lambda: check_tag(range(16, 32), 11, 13), cfg.sleep_tail, rec=12)
    stamp(5)
    for k in range(4):
        a(f"v_add_f32 v{16+k}, v{16+k}, v{20+k}")
        a(f"v_add_f32 v{24+k}, v{24+k}, v{28+k}")
    for k in range(4):
        a(f"v_add_f32 v{16+k}, v{16+k}, v{24+k}")
    a("v_cvt_pk_bf16_f32 v20, v16, v17")
    a("v_cvt_pk_bf16_f32 v21, v18, v19")
    a("v_lshlrev_b32 v16, 16, v20")
    a("v_and_b32 v17, s66, v20")
    a("v_lshlrev_b32 v18, 16, v21")
    a("v_and_b32 v19, s66, v21")
    a(f"s_mov_b32 s10, {f32bits(0.044715):#x}")
    a(f"s_mov_b32 s11, {f32bits(-2.0 * math.sqrt(2.0 / math.pi) * math.log2(math.e)):#x}")
    for k in range(2):
        a(f"v_mul_f32 v{20+k}, v{16+k}, v{16+k}")
    for k in range(2):
        a(f"v_mul_f32 v{20+k}, v{20+k}, v{16+k}")
    for k in range(2):
        a(f"v_fma_f32 v{20+k}, v{20+k}, s10, v{16+k}")
    for k in range(2):
        a(f"v_mul_f32 v{20+k}, s11, v{20+k}")
    for k in range(2):
        a(f"v_exp_f32 v{20+k}, v{20+k}")
    a("s_nop 0")
    for k in range(2):
        a(f"v_add_f32 v{20+k}, 1.0, v{20+k}")
    for k in range(2):
        a(f"v_rcp_f32 v{20+k}, v{20+k}")
    a("s_nop 0")
    for k in range(2):
        a(f"v_mul_f32 v{20+k}, v{20+k}, v{16+k}")
    a("v_cvt_pk_bf16_f32 v22, v20, v21")
    a("v_lshlrev_b32 v20, 16, v22")
    a("v_and_b32 v21, s66, v22")
    a("v_mul_f32 v20, v20, v18")
    a("v_mul_f32 v21, v21, v19")
    a("v_cvt_pk_bf16_f32 v22, v20, v21")
    a("v_lshlrev_b32 v12, 2, v0")
    a(f"ds_write_b32 v12, v22 offset:{HB}")
    set_flag(HF)
    a("s_branch L_S_END")

    a.label("L_S3")
    if cfg.rank:
        set_flag(LV)
    a("s_getreg_b32 s4, hwreg(HW_REG_XCC_ID)")
    a("s_and_b32 s4, s4, 15")
    a("s_lshl_b32 s4, s4, 8")
    a("s_or_b32 s4, s4, s14")
    a("v_mov_b32 v16, s4")
    a("s_lshl_b32 s10, s99, 6")
    a(f"s_add_u32 s10, s10, {XT_OFF}")
    a("s_mov_b64 exec, 1")
    if not (cfg.abl & 64):
        a("buffer_store_dword v16, v14, s[48:51], s10 offen sc1")
    a("s_mov_b64 exec, -1")
    a("v_and_b32 v7, 31, v0")
    a("v_lshlrev_b32 v7, 6, v7")
    a("s_lshr_b32 s10, s99, 5")
    a("s_lshl_b32 s10, s10, 11")
    a(f"s_add_u32 s10, s10, {XT_OFF}")
    wait_flags([(PF, 1, 14)], 16, cfg.sleep_lds)

    def ldx():
        a("buffer_load_dword v16, v7, s[48:51], s10 offen sc1")

    def ckx():
        a("v_xor_b32 v17, s14, v16")
        a("v_and_b32 v17, s69, v17")
        a("v_cmp_eq_u32 vcc, 0, v17")
        a("s_cmp_eq_u64 vcc, -1")
    if not (cfg.abl & 64):
        poll(ldx, ckx, cfg.sleep)
    a("v_cmp_eq_u32 vcc, s4, v16")
    a("s_cmp_eq_u64 vcc, -1")
    a("s_cselect_b32 s101, 1, 0")
    if cfg.abl & 64:
        a("s_mov_b32 s101, 1")
    if cfg.nofast:
        a("s_mov_b32 s101, 0")
    a("v_mov_b32 v16, s101")
    a(f"ds_write_b32 v14, v16 offset:{FM}")
    stamp(4)
    a("v_and_b32 v6, 7, v0")
    a("v_lshlrev_b32 v6, 3, v6")
    a("v_and_b32 v7, 31, v0")
    a("v_lshlrev_b32 v7, 3, v7")
    a("s_lshl_b32 s13, s99, 6")
    a(f"s_add_u32 s13, s13, {ML_OFF}")

    def ldm():
        for w in range(4):
            a(f"ds_read_b64 {vr(16+2*w,2)}, v6 offset:{MLB+64*w}")
    poll(ldm, lambda: check_sentinel(range(16, 24), 11), cfg.sleep_lds, cnt="lgkmcnt")
    stamp(5)
    a(f"ds_read_b32 v30, v7 offset:{MLB}")

    def combine4(mo):
        a(f"v_max3_f32 v{mo}, v16, v18, v20")
        a(f"v_max_f32 v{mo}, v{mo}, v22")

    def wsum4(mo, lo):
        for w in range(4):
            a(f"v_sub_f32 v{16+2*w}, v{16+2*w}, v{mo}")
        for w in range(4):
            a(f"v_mul_f32 v{16+2*w}, s67, v{16+2*w}")
        for w in range(4):
            a(f"v_exp_f32 v{16+2*w}, v{16+2*w}")
        a("s_nop 0")
        a(f"v_mul_f32 v{lo}, v16, v17")
        for w in range(1, 4):
            a(f"v_fmac_f32 v{lo}, v{16+2*w}, v{17+2*w}")
    combine4(24)
    wsum4(24, 25)
    put_tag(24)
    put_tag(25)
    a("s_mov_b64 exec, 0xff")
    if not (cfg.abl & 8):
        store_mode("buffer_store_dwordx2 v[24:25], v6, s[48:51], s13 offen")
    a("s_mov_b64 exec, -1")
    a("s_lshr_b32 s10, s99, 5")
    a("s_lshl_b32 s10, s10, 11")
    a(f"s_add_u32 s10, s10, {ML_OFF}")
    a("v_lshlrev_b32 v7, 3, v0")

    if cfg.rank:
        thr_ = [int(x) for x in cfg.rank.split(":")]
        for i in range(4):
            a(f"buffer_load_dword v{16+i}, v7, s[48:51], s10 offen offset:{512*i} sc1")
        a("s_waitcnt vmcnt(0)")
        a("s_mov_b32 s4, 0")
        for i in range(4):
            a(f"v_xor_b32 v{16+i}, s14, v{16+i}")
            a(f"v_and_b32 v{16+i}, s69, v{16+i}")
            a(f"v_cmp_eq_u32 vcc, 0, v{16+i}")
            a("s_bcnt1_i32_b64 s5, vcc")
            a("s_add_u32 s4, s4, s5")
        a("s_mov_b32 s5, 0")
        a(f"s_cmp_ge_u32 s4, {8*thr_[1]}")
        a("s_cselect_b32 s5, 1, s5")
        a(f"s_cmp_ge_u32 s4, {8*thr_[2]}")
        a("s_cselect_b32 s5, 3, s5")
        a(f"s_cmp_lt_u32 s4, {8*thr_[0]}")
        a("s_cselect_b32 s5, 4, s5")
        a("v_mov_b32 v16, s5")
        a(f"ds_write_b32 v14, v16 offset:{LV}")
        if cfg.stamps:
            a(f"s_lshr_b32 s{70+2*11}, s4, 3")
    if cfg.lf:
        wait_flags([(LF, 1, 14)], 16, cfg.sleep_lds)

    def ld2():
        for i in range(4):
            a(f"buffer_load_dwordx2 {vr(16+2*i,2)}, v7, s[48:51], s10 offen offset:{512*i} sc1{MNT}")
    if not (cfg.abl & 4):
        poll(ld2, lambda: check_tag(range(16, 24), 11, 12), cfg.sleep, rec=12)
    stamp(6)
    for w in range(4):
        a(f"v_and_b32 v{16+2*w}, s66, v{16+2*w}")
    combine4(26)
    xlane("v_max_f32", 26, 11, [8, 16, 32])
    wsum4(26, 27)
    xlane("v_add_f32", 27, 11, [8, 16, 32])
    a("s_waitcnt lgkmcnt(0)")
    a("v_sub_f32 v30, v30, v26")
    a("v_mul_f32 v30, s67, v30")
    a("v_exp_f32 v30, v30")
    a("v_rcp_f32 v27, v27")
    a("v_bfe_u32 v7, v0, 3, 2")
    a("v_lshlrev_b32 v7, 2, v7")
    a("v_lshl_add_u32 v7, v6, 1, v7")
    a("v_mul_f32 v30, v30, v27")
    a(f"ds_write_b32 v7, v30 offset:{FB}")
    set_flag(FF)

    a("v_and_b32 v11, 7, v0")
    a("v_lshlrev_b32 v6, 4, v11")
    a("v_lshl_add_u32 v6, v5, 2, v6")
    a("v_lshlrev_b32 v7, 4, v0")
    a("s_lshl_b32 s10, s99, 12")
    a(f"s_add_u32 s10, s10, {OP_OFF}")
    a("s_lshl_b32 s8, s99, 7")
    a(f"s_add_u32 s8, s8, {O2_OFF}")
    wait_flags([({0: OF, 1: WF}[cfg.wf1], 4, 14)], 60, cfg.sleep_lds)
    stamp(7)

    def ld3():
        for i in range(4):
            a(f"buffer_load_dwordx4 {vr(40+4*i,4)}, v7, s[48:51], s10 offen offset:{1024*i} sc1")
    poll(ld3, lambda: check_tag(range(40, 56), 12, 13), cfg.sleep_l1, rec=13)
    stamp(8)
    for k in range(4):
        a(f"v_add_f32 v{40+k}, v{40+k}, v{44+k}")
        a(f"v_add_f32 v{48+k}, v{48+k}, v{52+k}")
    for k in range(4):
        a(f"v_add_f32 v{40+k}, v{40+k}, v{48+k}")
    a("s_nop 0")
    a("v_permlane32_swap_b32 v40, v42")
    a("v_permlane32_swap_b32 v41, v43")
    a("v_add_f32 v40, v40, v42")
    a("v_add_f32 v41, v41, v43")
    a("s_nop 1")
    a("v_permlane16_swap_b32 v40, v41")
    a("v_add_f32 v40, v40, v41")
    a("s_nop 1")
    a("v_add_f32_dpp v40, v40, v40 row_ror:8 row_mask:0xf bank_mask:0xf")
    a("v_cvt_pk_bf16_f32 v40, v40, v40")
    put_tag(40)
    a("s_mov_b32 exec_lo, 0x00ff00ff")
    a("s_mov_b32 exec_hi, 0x00ff00ff")
    a("buffer_store_dword v40, v6, s[48:51], s8 offen sc1")
    if cfg.wb == 1:
        a("s_cmp_ge_u32 s2, 8")
        a("s_cbranch_scc1 L_S_END")
        a("buffer_wbl2 sc1")
    if cfg.wb == 2:
        a("s_cmp_ge_u32 s2, 8")
        a("s_cbranch_scc1 L_S_END")
        a("s_mov_b64 exec, -1")
        wait_flags([(SF, 4, 14)], 60, cfg.sleep_lds)
        a("buffer_wbl2 sc1")
    a("s_branch L_S_END")

    a.label("L_S_tail")
    a("s_lshr_b32 s7, s98, 2")
    a("s_lshl_b32 s7, s7, 8")
    a(f"s_add_u32 s7, s7, {O2_OFF}")
    srd(60, 34, 4096)
    a("v_lshlrev_b32 v10, 2, v5")
    a("s_lshl_b32 s12, s98, 4")
    a("buffer_load_dword v36, v10, s[56:59], s12 offen")
    a("v_lshlrev_b32 v9, 7, v0")
    a("s_lshr_b32 s13, s98, 2")
    a("s_lshl_b32 s13, s13, 13")
    a("s_and_b32 s11, s98, 3")
    a("s_lshl_b32 s11, s11, 5")
    a("s_add_u32 s13, s13, s11")
    a(f"s_add_u32 s13, s13, {XP_OFF}")
    a("v_lshrrev_b32 v12, 5, v0")
    a("v_lshlrev_b32 v12, 14, v12")
    a("v_and_b32 v13, 31, v0")
    a("v_lshl_add_u32 v12, v13, 3, v12")
    a("v_lshlrev_b32 v13, 2, v0")
    wait_flags([(WF, 4, 14)], 60, cfg.sleep_lds)
    stamp(7)

    def ld5():
        a("buffer_load_dwordx2 v[40:41], v12, s[48:51], s7 offen sc1")
    poll(ld5, lambda: check_tag([40, 41], 42, 43), cfg.sleep_tail, rec=13)
    a("v_perm_b32 v40, v41, v40, s65")
    a(f"ds_write_b32 v13, v40 offset:{OB}")
    set_flag(BF)
    stamp(9)
    wait_flags([(SF, 4, 14)], 60, cfg.sleep_of)

    def ld4(r=40):
        a(f"buffer_load_dwordx4 {vr(r,4)}, v9, s[48:51], s13 offen sc1")
        a(f"buffer_load_dwordx4 {vr(r+4,4)}, v9, s[48:51], s13 offen offset:16 sc1")
    if cfg.ypipe <= 1:
        poll(ld4, lambda: check_tag(range(40, 48), 12, 13), cfg.sleep_tail)
    else:
        P = cfg.ypipe
        a(f"s_mov_b32 s15, {cfg.spin}")
        for p in range(P - 1):
            ld4(48 + 8 * p)
            a(f"s_sleep {cfg.ygap}")
        a.label("L_yloop")
        for p in range(P):
            ld4(48 + 8 * ((p + P - 1) % P))
            a(f"s_waitcnt vmcnt({2*(P-1)})")
            check_tag(range(48 + 8 * p, 56 + 8 * p), 12, 13)
            a(f"s_cbranch_scc1 L_ygot{p}")
        a("s_sub_u32 s15, s15, 1")
        a("s_cbranch_scc0 L_yloop")
        for p in range(P):
            a.label(f"L_ygot{p}")
            for k in range(8):
                a(f"v_mov_b32 v{40+k}, v{48+8*p+k}")
            if p < P - 1:
                a("s_branch L_ysum")
        a.label("L_ysum")
        a("s_nop 1")
    stamp(10)
    for k in range(4):
        a(f"v_permlane32_swap_b32 v{40+k}, v{44+k}")
    for k in range(4):
        a(f"v_add_f32 v{40+k}, v{40+k}, v{44+k}")
    a("s_nop 0")
    a("v_permlane16_swap_b32 v40, v42")
    a("v_permlane16_swap_b32 v41, v43")
    a("v_add_f32 v40, v40, v42")
    a("v_add_f32 v41, v41, v43")
    for s in (8, 4, 2, 1):
        a("s_nop 0")
        a(f"v_add_f32_dpp v40, v40, v40 row_ror:{s} row_mask:0xf bank_mask:0xf")
        a(f"v_add_f32_dpp v41, v41, v41 row_ror:{s} row_mask:0xf bank_mask:0xf")
    a("v_lshlrev_b32 v42, 16, v36")
    a("v_and_b32 v43, s66, v36")
    a("v_add_f32 v40, v40, v42")
    a("v_add_f32 v41, v41, v43")
    a("v_cvt_pk_bf16_f32 v40, v40, v41")
    a("s_mov_b32 exec_lo, 0x00010001")
    a("s_mov_b32 exec_hi, 0x00010001")
    a("buffer_store_dword v40, v10, s[60:63], s12 offen" + (" sc1" if cfg.outsc else ""))
    stamp(11)
    if cfg.padto:
        a("s_mov_b64 exec, -1")
        if cfg.padglobal:
            srd(52, 36, 256)
            a(f"buffer_load_dword v20, v14, s[52:55], 0 offen offset:{4*(cfg.padglobal-1)} sc1")
            a("s_waitcnt vmcnt(0)")
            a("v_readfirstlane_b32 s94, v20")
            if cfg.padglobal == 1:
                a("s_not_b32 s94, s94")
        a.label("L_pad")
        a("s_memrealtime s[96:97]")
        a("s_waitcnt lgkmcnt(0)")
        a("s_sub_u32 s96, s96, s94")
        a(f"s_cmp_lt_u32 s96, {cfg.padto}")
        a("s_cbranch_scc1 L_pad")
    a("s_cmp_lg_u32 s2, 0")
    a("s_cbranch_scc1 L_S_END")
    a("s_mov_b64 exec, 1")
    a(f"s_mov_b32 s9, {EP_OFF:#x}")
    a("buffer_store_dword v15, v14, s[48:51], s9 offen" + (" sc1" if cfg.outsc else ""))
    a.label("L_S_END")
    dump_stamps()
    a("s_endpgm")

    a.label("L_ATT")
    RING = 16
    SC = RING + 16 * R
    QR = SC + 32
    ST = QR + 8
    AC = QR
    PTA = AC + 32
    assert PTA + 16 <= 256 and ST + 26 <= 256 and R == 10
    a("s_sub_u32 s6, s3, 4")
    a("v_bfe_u32 v6, v4, 1, 1")
    a("v_lshrrev_b32 v7, 2, v4")
    a("v_lshl_add_u32 v6, v6, 2, v7")
    a("v_lshlrev_b32 v6, 8, v6")
    a("v_lshl_add_u32 v6, v5, 5, v6")
    a("v_and_b32 v7, 1, v4")
    a("v_lshl_add_u32 v6, v7, 4, v6")
    a("v_lshlrev_b32 v7, 4, v0")
    a("s_lshl_b32 s7, s99, 18")
    a("s_lshl_b32 s8, s6, 12")
    a("s_add_u32 s7, s7, s8")
    a("s_mov_b32 s8, s7")
    a("s_lshl_b32 s9, s6, 2")
    a("v_mov_b32 v13, s9")
    a("s_waitcnt lgkmcnt(0)")
    load_tag()
    srd(40, 18, 0x4000000)
    srd(44, 20, 0x4000000)
    srd(48, 38, WS_SIZE)
    srd(52, 24, 0x800000)
    srd(56, 32, 0x700000)
    consts()
    a("v_mul_u32_u24 v11, 272, v9")
    a("v_lshl_add_u32 v11, v5, 5, v11")
    a("v_lshl_add_u32 v11, v8, 4, v11")
    a("v_mov_b32 v10, 0xff800000")
    a("s_barrier")
    if not cfg.b0e:
        a("s_waitcnt lgkmcnt(0)")
        make_tag()
    N = cfg.n
    N0 = cfg.n0 or N
    NL = 144
    lim = [128]
    nl = [0]

    def slot_of(item):
        return RING + 16 * (item % R)

    def issue1():
        k = nl[0]
        if k >= lim[0]:
            return
        item, q = divmod(k, 4)
        slot = slot_of(item)
        if item < 16:
            a(f"buffer_load_dwordx4 {vr(slot+4*q,4)}, v6, s[40:43], s7 offen offset:{128*(q&1)+2048*(q>>1)}{KNT}")
            if q == 3 and item < 15:
                a("s_add_u32 s7, s7, 16384")
        elif item < 32:
            a(f"buffer_load_dwordx4 {vr(slot+4*q,4)}, v7, s[44:47], s8 offen offset:{1024*q}{VNT}")
            if q == 3 and item < 31:
                a("s_add_u32 s8, s8, 16384")
        elif item < 34:
            m = k - 128
            a(f"buffer_load_dwordx4 {vr(slot+4*q,4)}, v3, s[52:55], s11 offen offset:{2048*(m&1)}{NT}")
            if (m & 1) and m < 7:
                a("s_add_u32 s11, s11, 16384")
        else:
            e = k - 136
            a(f"buffer_load_dwordx4 {vr(slot+4*q,4)}, v1, s[56:59], s10 offen offset:{2048*(e&1)}{NT}")
            if (e & 1) and e < 7:
                a("s_add_u32 s10, s10, 4096")
        nl[0] += 1
        if cfg.pf and k == cfg.pf - 1:
            set_flag(PF)
        for c, (kc, thi, tlo) in enumerate(cps):
            if k == kc - 1:
                set_flag(CPF + 16 * c, 13)
        if k == cfg.go - 1:
            set_flag(GO, 13)
        if cfg.lf and k == cfg.lf - 1:
            set_flag(LF)
        if cfg.wf and k == cfg.wf - 1:
            set_flag(WF, 13)

    def wait_load(k):
        a(f"s_waitcnt vmcnt({nl[0] - k - 1})")

    NH = N
    lvl_pending = [False]
    lvl_on = [False]

    def thr():
        if not lvl_on[0]:
            return
        uid[0] += 1
        lab = f"L_go{uid[0]}"
        if cfg.nh > N + 1:
            a("s_bitcmp1_b32 s100, 1")
            a(f"s_cbranch_scc1 {lab}")
            a(f"s_waitcnt vmcnt({N})")
        a("s_bitcmp1_b32 s100, 0")
        a(f"s_cbranch_scc1 {lab}")
        a(f"s_waitcnt vmcnt({N-1})")
        a("s_bitcmp1_b32 s100, 2")
        a(f"s_cbranch_scc0 {lab}")
        a(f"s_waitcnt vmcnt({cfg.nl-1})")
        a.label(lab)

    def lvl_update():
        if lvl_pending[0]:
            a("s_waitcnt lgkmcnt(0)")
            a("v_readfirstlane_b32 s100, v2")
        a(f"ds_read_b32 v2, v14 offset:{LV}")
        lvl_pending[0] = True

    def advance(item):
        if lvl_on[0] and item < 24:
            lvl_update()
        for q in range(4):
            k = 4 * item + q
            if nl[0] < lim[0] and nl[0] - (k + 1) < NH:
                wait_load(k)
                while nl[0] < lim[0] and nl[0] - (k + 1) < NH:
                    thr()
                    issue1()
            elif q == 3:
                wait_load(k)

    for k in range(4 * R):
        if k >= N0:
            a(f"s_waitcnt vmcnt({N0-1})")
        issue1()
    stamp(1)
    wait_flags([(QF, 1, 14)], QR, 1)
    if cfg.b0e:
        make_tag()
    stamp(2)
    for c in range(2):
        a(f"ds_read_b128 {vr(QR+4*c,4)}, v11 offset:{QB+128*c}")
    a("s_mov_b64 vcc, 0")
    a("s_waitcnt lgkmcnt(0)")

    def post(i):
        t = ST + 8 * (i & 1)
        w = ST + 16
        for q in range(4):
            a(f"v_add_f32_dpp v{w+6+q}, v{t+2*q+1}, v{t+2*q} row_ror:8 row_mask:0xf bank_mask:0xf")
        s = w + 6
        a(f"v_max3_f32 v10, v10, v{s}, v{s+1}")
        a(f"v_cvt_pk_bf16_f32 v{w+4}, v{s}, v{s+1}")
        a(f"v_cvt_pk_bf16_f32 v{w+5}, v{s+2}, v{s+3}")
        a(f"v_max3_f32 v10, v10, v{s+2}, v{s+3}")
        a(f"v_lshlrev_b32 v{w}, 16, v{w+4}")
        a(f"v_and_b32 v{w+1}, s66, v{w+4}")
        a(f"v_lshlrev_b32 v{w+2}, 16, v{w+5}")
        a(f"v_and_b32 v{w+3}, s66, v{w+5}")
        for k in range(4):
            a(f"v_mul_f32 v{w+k}, s68, v{w+k}")
        a(f"v_cvt_pk_bf16_f32 v{SC+2*i}, v{w}, v{w+1}")
        a(f"v_cvt_pk_bf16_f32 v{SC+2*i+1}, v{w+2}, v{w+3}")

    for i in range(16):
        advance(i)
        slot = slot_of(i)
        t = ST + 8 * (i & 1)
        for st_ in range(2):
            for ln in range(2):
                cc = "0" if ln == 0 else vr(t + 4 * st_, 4)
                a(f"v_mfma_f32_16x16x32_bf16 {vr(t+4*st_,4)}, {vr(slot+4*(2*st_+ln),4)}, {vr(QR+4*ln,4)}, {cc}")
        if nl[0] - 4 * (i + 1) >= NH and nl[0] < 4 * (i + 1 + R):
            cnt = cfg.catch0 if i == 0 else cfg.catch
            for _ in range(cnt):
                if nl[0] < 4 * (i + 1 + R):
                    a(f"s_waitcnt vmcnt({N-1})")
                    issue1()
        if i >= 1:
            a("s_nop 3")
            post(i - 1)
    a("s_nop 7")
    post(15)
    stamp(3)
    xlane("v_max_f32", 10, 11, [16, 32])
    w = ST
    MM, LL, L2 = ST + 8, ST + 9, ST + 10
    assert MM % 2 == 0
    round_bf16(MM, 10)
    a(f"v_mul_f32 v{MM}, s68, v{MM}")
    round_bf16(MM, MM)
    a(f"v_mul_f32 v11, s67, v{MM}")
    a(f"v_mov_b32 v{LL}, 0")
    a(f"v_mov_b32 v{L2}, 0")
    for k in range(0, 32, 2):
        if k % cfg.smstep == 0:
            issue1()
        for q in range(2):
            a(f"v_lshlrev_b32 v{w+2*q}, 16, v{SC+k+q}")
            a(f"v_and_b32 v{w+2*q+1}, s66, v{SC+k+q}")
        for q in range(4):
            a(f"v_fma_f32 v{w+q}, v{w+q}, s67, -v11")
        for q in range(4):
            a(f"v_exp_f32 v{w+q}, v{w+q}")
        a(f"v_add_f32 v{LL}, v{LL}, v{w}")
        a(f"v_add_f32 v{L2}, v{L2}, v{w+1}")
        a(f"v_cvt_pk_bf16_f32 v{SC+k}, v{w}, v{w+1}")
        a(f"v_add_f32 v{LL}, v{LL}, v{w+2}")
        a(f"v_add_f32 v{L2}, v{L2}, v{w+3}")
        a(f"v_cvt_pk_bf16_f32 v{SC+k+1}, v{w+2}, v{w+3}")
    a(f"v_add_f32 v{LL}, v{LL}, v{L2}")
    xlane("v_add_f32", LL, L2, [16, 32])
    a(f"v_min_u32 v{LL}, -2, v{LL}")
    a("s_lshl_b32 s9, s6, 6")
    a("v_lshlrev_b32 v12, 3, v0")
    a("v_add_u32 v12, s9, v12")
    a("s_mov_b64 exec, 0xff")
    a(f"ds_write_b64 v12, {vr(MM,2)} offset:{MLB}")
    a("s_mov_b64 exec, -1")
    stamp(4)
    issue1()
    a("s_lshr_b32 s4, s98, 2")
    a("s_and_b32 s5, s98, 3")
    a("s_mul_i32 s9, s6, 4224")
    a("v_mul_u32_u24 v10, 528, v4")
    a("v_lshl_add_u32 v10, v5, 7, v10")
    a("v_add_u32 v10, s9, v10")
    a("v_lshrrev_b32 v3, 1, v5")
    a("v_lshlrev_b32 v3, 5, v3")
    a("v_and_b32 v1, 1, v5")
    a("v_lshl_add_u32 v3, v1, 2, v3")
    a("v_lshl_add_u32 v3, v8, 1, v3")
    a("v_lshlrev_b32 v3, 11, v3")
    a("v_lshl_add_u32 v3, v9, 4, v3")
    a("v_lshlrev_b32 v1, 3, v8")
    a("v_lshl_add_u32 v1, v5, 4, v1")
    a("v_lshlrev_b32 v1, 11, v1")
    a("v_lshl_add_u32 v1, v9, 4, v1")
    a("s_lshl_b32 s11, s5, 9")
    a("s_lshl_b32 s12, s6, 7")
    a("s_add_u32 s12, s12, s11")
    a("s_lshl_b32 s11, s4, 17")
    a("s_add_u32 s11, s11, s12")
    a("s_and_b32 s10, s2, 7")
    a("s_mul_i32 s10, s10, 7")
    a("s_lshr_b32 s13, s2, 5")
    a("s_add_u32 s10, s10, s13")
    a("s_cmp_ge_u32 s4, 56")
    a("s_cselect_b32 s10, 56, s10")
    a("s_lshl_b32 s10, s10, 17")
    a("s_add_u32 s10, s10, s12")
    a("v_bfe_u32 v12, v4, 2, 1")
    a("v_lshlrev_b32 v12, 7, v12")
    a("v_lshl_add_u32 v12, v5, 5, v12")
    a("v_and_b32 v11, 1, v4")
    a("v_lshl_add_u32 v12, v11, 4, v12")
    a("v_lshlrev_b32 v11, 18, v5")
    a("v_lshrrev_b32 v6, 2, v9")
    a("v_lshl_add_u32 v11, v6, 13, v11")
    a("v_and_b32 v6, 3, v9")
    a("v_lshl_add_u32 v11, v6, 5, v11")
    a("v_lshl_add_u32 v11, v8, 4, v11")
    a("s_lshl_b32 s9, s5, 16")
    a("s_lshl_b32 s12, s6, 14")
    a("s_add_u32 s9, s9, s12")
    a("s_lshl_b32 s12, s4, 7")
    a("s_add_u32 s9, s9, s12")
    a(f"s_add_u32 s9, s9, {XP_OFF}")
    a("v_lshrrev_b32 v4, 5, v0")
    a("s_lshl_b32 s12, s6, 1")
    a("v_add_u32 v4, s12, v4")
    a("v_lshlrev_b32 v5, 4, v4")
    a("v_mul_u32_u24 v4, 528, v4")
    a("v_and_b32 v6, 31, v0")
    a("v_lshl_add_u32 v4, v6, 4, v4")
    a("v_lshlrev_b32 v8, 4, v9")
    a("v_lshrrev_b32 v6, 3, v0")
    a("v_lshl_add_u32 v8, v6, 12, v8")
    a("v_mul_u32_u24 v6, 5, v6")
    a("v_add_u32 v6, s99, v6")
    a("v_and_b32 v6, 31, v6")
    a("v_lshl_add_u32 v8, v6, 7, v8")
    a("s_lshr_b32 s5, s99, 5")
    a("s_lshl_b32 s5, s5, 17")
    a("s_lshl_b32 s12, s6, 15")
    a("s_add_u32 s5, s5, s12")
    a(f"s_add_u32 s5, s5, {OP_OFF}")
    get_mode(6)
    if cfg.rank:
        NH = cfg.nh
        lvl_on[0] = True
        a("s_mov_b32 s100, 0")
    for it in range(16, 32):
        advance(it)
        if it & 1:
            u = (it - 16) // 2
            s0 = slot_of(16 + 2 * u)
            s1 = slot_of(17 + 2 * u)
            src = lambda e, s0=s0, s1=s1: (s0 if e < 4 else s1) + 4 * (e & 3)

            def M(i, u=u):
                for h in range(2):
                    j = 2 * i + h
                    c = "0" if u == 0 else vr(AC + 4 * j, 4)
                    a(f"v_mfma_f32_16x16x32_bf16 {vr(AC+4*j,4)}, {vr(PTA+8*(i&1)+4*h,4)}, {vr(SC+4*u,4)}, {c}")
            perms(PTA, src, 0)
            perms(PTA + 8, src, 1)
            M(0)
            perms(PTA, src, 2)
            M(1)
            perms(PTA + 8, src, 3)
            M(2)
            M(3)
    stamp(5)
    a("s_mov_b32 exec_lo, 0x00ff00ff")
    a("s_mov_b32 exec_hi, 0x00ff00ff")
    for j in range(8):
        if j == 4:
            a("s_nop 0")
        a(f"ds_write_b128 v10, {vr(AC+4*j,4)} offset:{ORED+16*j}")
    a("s_mov_b64 exec, -1")
    set_flag(OF, 13)
    T0 = slot_of(0)
    wait_flags([(OF, 4, 14), (FF, 1, 14)], T0, 0)
    a(f"ds_read_b128 {vr(T0,4)}, v5 offset:{FB}")
    for w_ in range(4):
        a(f"ds_read_b128 {vr(T0+4+4*w_,4)}, v4 offset:{ORED+4224*w_}")
    a("s_waitcnt lgkmcnt(0)")
    for w_ in range(4):
        for k in range(4):
            if w_ == 0:
                a(f"v_mul_f32 v{T0+4+k}, v{T0}, v{T0+4+k}")
            else:
                a(f"v_fmac_f32 v{T0+4+k}, v{T0+w_}, v{T0+4+4*w_+k}")
    for k in range(4):
        put_tag(T0 + 4 + k)
    store_mode(f"buffer_store_dwordx4 {vr(T0+4,4)}, v8, s[48:51], s5 offen")
    stamp(6)
    TP = slot_of(6)
    XACC = SC
    wait_flags([(GF, 2, 14)], PTA, 1)
    lim[0] = NL
    NH = cfg.nw2 or NH
    for _ in range(NH):
        if _ >= cfg.nl:
            thr()
        issue1()
    advance(32)
    advance(33)
    srco = lambda e: (lambda m: slot_of(32 + (m >> 2)) + 4 * (m & 3))(2 * (e & 3) + (e >> 2))
    for i in range(4):
        perms(TP + 8 * i, srco, i)
    advance(34)
    assert nl[0] == NL
    if cfg.diagx:
        advance(35)
        stamp(7)
    wait_flags([(BF, 1, 14)], PTA + 4, 0)
    stamp(8)
    a(f"ds_read_b128 {vr(PTA+4,4)}, v12 offset:{OB}")
    a("s_waitcnt lgkmcnt(0)")
    for j in range(8):
        a(f"v_mfma_f32_16x16x32_bf16 {vr(XACC+4*j,4)}, {vr(PTA+4,4)}, {vr(TP+4*j,4)}, 0")
    a("s_cmp_ge_u32 s4, 56")
    a("s_cbranch_scc1 L_noffn")
    wait_flags([(HF, 1, 14)], PTA, 0)
    stamp(9)
    a(f"ds_read_b128 {vr(PTA,4)}, v12 offset:{HB}")
    advance(35)
    if not cfg.diagx:
        stamp(7)
    srcd = lambda e: slot_of(34 + (e >> 2)) + 4 * (e & 3)
    perms(TP + 32, srcd, 0)
    a("s_waitcnt lgkmcnt(0)")
    for i in range(4):
        if i < 3:
            perms(TP + 32 + 8 * (i + 1), srcd, i + 1)
        else:
            a("s_nop 0")
        for j in (2 * i, 2 * i + 1):
            a(f"v_mfma_f32_16x16x32_bf16 {vr(XACC+4*j,4)}, {vr(PTA,4)}, {vr(TP+32+4*j,4)}, {vr(XACC+4*j,4)}")
    a("s_nop 1")
    a.label("L_noffn")
    a("s_nop 3")
    a("s_nop 1")
    fold(PTA + 8, XACC)
    a("s_mov_b32 exec_hi, 0")
    a(f"buffer_store_dwordx4 {vr(PTA+8,4)}, v11, s[48:51], s9 offen sc1{TNT}")
    set_flag(SF, 13)
    stamp(10)
    dump_stamps()
    a.label("L_END")
    a("s_endpgm")

    probs = check_hazards(a.lines)
    for p in probs:
        print(p, file=sys.stderr)
    if probs:
        raise SystemExit("hazards found")

    pad = ""
    if cfg.codepf:
        psz = (512 << cfg.codepf) + 256 if cfg.codepf < 7 else 24576
        pad = f".fill ({psz} - (. - {NAME}_kernel)) / 4, 4, 0xBF800000\n"
    out = HEADER
    out += "; Generated by work/gen9.py (hand-written generator). One persistent launch, 256 workgroups x 8 waves.\n"
    out += f"; @launch grid=(256,1,1) block=(512,1,1) lds={LDS_SIZE}\n"
    out += f""".amdgcn_target "amdgcn-amd-amdhsa--gfx950"
.text
.globl {NAME}_kernel
.p2align 8
.type {NAME}_kernel,@function
{NAME}_kernel:
"""
    out += a.text()
    out += pad
    out += f""".section .rodata,"a"
.p2align 6
.amdhsa_kernel {NAME}_kernel
  .amdhsa_next_free_vgpr 256
  .amdhsa_next_free_sgpr 102
  .amdhsa_accum_offset 256
  .amdhsa_group_segment_fixed_size 0
  .amdhsa_kernarg_size 96
  .amdhsa_user_sgpr_count 2
  .amdhsa_user_sgpr_kernarg_segment_ptr 1
  .amdhsa_system_sgpr_workgroup_id_x 1
  .amdhsa_float_denorm_mode_32 3
.end_amdhsa_kernel
"""
    return out


def parse_args(argv=None):
    p = argparse.ArgumentParser()
    p.add_argument("-o", default="cdna_kernels/" + NAME + ".s")
    p.add_argument("--ring", type=int, default=10)
    p.add_argument("--stamps", type=int, default=0)
    p.add_argument("--codepf", type=int, default=7)
    p.add_argument("--sleep", type=int, default=8)
    p.add_argument("--sleep_q", type=int, default=0)
    p.add_argument("--sleep_lds", type=int, default=2)
    p.add_argument("--sleep_of", type=int, default=1)
    p.add_argument("--sleep_tail", type=int, default=0)
    p.add_argument("--spin", type=int, default=2000000)
    p.add_argument("--tagmask", type=int, default=15)
    p.add_argument("--n", type=int, default=6)
    p.add_argument("--n0", type=int, default=0)
    p.add_argument("--ns", type=int, default=12)
    p.add_argument("--gate", type=int, default=32)
    p.add_argument("--crot", type=int, default=1)
    p.add_argument("--pf", type=int, default=24)
    p.add_argument("--wf", type=int, default=136)
    p.add_argument("--catch0", type=int, default=4)
    p.add_argument("--catch", type=int, default=1)
    p.add_argument("--smstep", type=int, default=6)
    p.add_argument("--abl", type=int, default=0)
    p.add_argument("--cp", default="")
    p.add_argument("--padfrom", type=int, default=0)
    p.add_argument("--rank", default="0:22:28")
    p.add_argument("--nsh", type=int, default=0)
    p.add_argument("--nw2", type=int, default=0)
    p.add_argument("--b0e", type=int, default=0)
    p.add_argument("--ypipe", type=int, default=3)
    p.add_argument("--ygap", type=int, default=5)
    p.add_argument("--wb", type=int, default=0)
    p.add_argument("--outsc", type=int, default=0)
    p.add_argument("--nont", type=int, default=0)
    p.add_argument("--diagx", type=int, default=0)
    p.add_argument("--go", type=int, default=128)
    p.add_argument("--sleep_l1", type=int, default=0)
    p.add_argument("--nofast", type=int, default=0)
    p.add_argument("--xtw", type=int, default=1)
    p.add_argument("--wf1", type=int, default=0)
    p.add_argument("--mlplain", type=int, default=0)
    p.add_argument("--satom", type=int, default=0)
    p.add_argument("--nh", type=int, default=8)
    p.add_argument("--nl", type=int, default=5)
    p.add_argument("--padto", type=int, default=0)
    p.add_argument("--padglobal", type=int, default=0)
    p.add_argument("--lf", type=int, default=108)
    p.add_argument("--k2", type=int, default=0)
    p.add_argument("--n2", type=int, default=10)
    p.add_argument("--kr", type=int, default=2)
    p.add_argument("--qmap", type=int, default=1)
    p.add_argument("--xm", type=int, default=1)
    p.add_argument("--gm", type=int, default=1)
    p.add_argument("--gpw", type=int, default=2)
    p.add_argument("--hnt", type=int, default=0)
    return p.parse_args(argv)


if __name__ == "__main__":
    cfg = parse_args()
    open(cfg.o, "w").write(gen(cfg))
    print("wrote", cfg.o)
```

```python
import sys
import argparse
import struct
import math
from asmlib import Asm, vr, check_hazards

NAME = "parallel_sum__gqa_block_cached__geglu_ffn__decode"

QP_OFF = 0x000000
GP_OFF = 0x020000
H2_OFF = 0x058000
ML_OFF = 0x060000
XT_OFF = 0x068000
EP_OFF = 0x070000
O2_OFF = 0x078000
OP_OFF = 0x080000
XP_OFF = 0x180000
ST_OFF = 0x200000
WS_SIZE = 0x400000
XN = 0x0000
QB = 0x0400
MLB = 0x0C80
FL = 0x0D80
OF = FL + 0
FF = FL + 16
LF = FL + 20
GF = FL + 24
QF = FL + 32
XF = FL + 36
PF = FL + 40
HF = FL + 48
BF = FL + 52
TG = FL + 56
LV = FL + 64
FM = FL + 68
WF = FL + 80
GO = FL + 96
SF = FL + 112
FB = 0x0E80
OB = 0x0F00
HB = 0x1100
ORED = 0x1300
LDS_SIZE = ORED + 4 * 4224

LOG2E = 0x3FB8AA3B
SCALE = 0x3DB504F3
EPS = 0x3727C5AC
MAGIC = 0x5A3C6010

HEADER = open("cdna_kernels/" + NAME + ".s.ref").read().split("; Override launch")[0]


def f32bits(x):
    return struct.unpack("<I", struct.pack("<f", x))[0]


def gen(cfg):
    a = Asm()
    R = 10
    NT = " nt"
    uid = [0]

    def newlab(p):
        uid[0] += 1
        return f"L_{p}{uid[0]}"

    def stamp(k):
        if cfg.stamps:
            a(f"s_memrealtime s[{70+2*k}:{71+2*k}]")

    def srd(d, p, size):
        a(f"s_mov_b32 s{d}, s{p}")
        a(f"s_mov_b32 s{d+1}, s{p+1}")
        a(f"s_mov_b32 s{d+2}, {size:#x}")
        a(f"s_mov_b32 s{d+3}, 0x20000")

    def dump_stamps():
        if not cfg.stamps:
            return
        a("s_waitcnt lgkmcnt(0)")
        for _ in range(3):
            a("s_sleep 127")
        a("s_mov_b64 exec, 1")
        a("s_lshl_b32 s4, s2, 10")
        a("s_lshl_b32 s5, s3, 7")
        a("s_add_u32 s4, s4, s5")
        a(f"s_add_u32 s4, s4, {ST_OFF}")
        a("v_mov_b32 v3, 0")
        for k in range(13):
            a(f"v_mov_b32 v1, s{70+2*k}")
            a(f"buffer_store_dword v1, v3, s[48:51], s4 offen offset:{4*k}")

    def poll(loads, check, sleep, cnt="vmcnt"):
        top, done = newlab("poll"), newlab("pdone")
        a(f"s_mov_b32 s15, {cfg.spin if cnt == 'vmcnt' else 8 * cfg.spin}")
        a.label(top)
        loads()
        a(f"s_waitcnt {cnt}(0)")
        check()
        a(f"s_cbranch_scc1 {done}")
        a("s_sub_u32 s15, s15, 1")
        a(f"s_cbranch_scc1 {done}")
        if sleep:
            a(f"s_sleep {sleep}")
        a(f"s_branch {top}")
        a.label(done)

    def check_tag(regs, t0, t1, full="-1"):
        regs = list(regs)
        a(f"v_xor_b32 v{t0}, s14, v{regs[0]}")
        a(f"v_xor_b32 v{t1}, s14, v{regs[1]}")
        for k, r in enumerate(regs[2:]):
            t = t0 if k % 2 == 0 else t1
            a(f"v_bitop3_b32 v{t}, v{r}, s14, v{t} bitop3:0xbe")
        a(f"v_or_b32 v{t0}, v{t0}, v{t1}")
        a(f"v_and_b32 v{t0}, 15, v{t0}")
        a(f"v_cmp_eq_u32 vcc, 0, v{t0}")
        a(f"s_cmp_eq_u64 vcc, {full}")

    def ppoll(P, gap, load, nloads, nregs, dst, t0, t1, full="-1"):
        if P <= 1:
            poll(lambda: load(dst), lambda: check_tag(range(dst, dst + nregs), t0, t1, full), gap)
            return
        base = lambda p: dst + nregs * (p + 1)
        top, out = newlab("pp"), newlab("ppo")
        got = [newlab("ppg") for _ in range(P)]
        a(f"s_mov_b32 s15, {cfg.spin}")
        for p in range(P - 1):
            load(base(p))
            a(f"s_sleep {gap}")
        a.label(top)
        for p in range(P):
            load(base((p + P - 1) % P))
            a(f"s_waitcnt vmcnt({nloads*(P-1)})")
            check_tag(range(base(p), base(p) + nregs), t0, t1, full)
            a(f"s_cbranch_scc1 {got[p]}")
        a("s_sub_u32 s15, s15, 1")
        a(f"s_cbranch_scc0 {top}")
        for p in range(P):
            a.label(got[p])
            for k in range(nregs):
                a(f"v_mov_b32 v{dst+k}, v{base(p)+k}")
            if p < P - 1:
                a(f"s_branch {out}")
        a.label(out)

    def wait_flags(reads, t, sleep):
        regs = []

        def ld():
            r = t
            regs.clear()
            for off, n, av in reads:
                op = {1: "ds_read_b32", 2: "ds_read_b64", 4: "ds_read_b128"}[n]
                a(f"{op} {vr(r,n)}, v{av} offset:{off}")
                regs.extend(range(r, r + n))
                r += (n + 1) & ~1

        def ck():
            rs = list(regs)
            while len(rs) >= 3:
                a(f"v_or3_b32 v{rs[0]}, v{rs[0]}, v{rs[1]}, v{rs[2]}")
                rs = [rs[0]] + rs[3:]
            if len(rs) == 2:
                a(f"v_or_b32 v{rs[0]}, v{rs[0]}, v{rs[1]}")
            a(f"v_cmp_eq_u32 vcc, 0, v{rs[0]}")
            a("s_cmp_eq_u64 vcc, -1")
        poll(ld, ck, sleep, cnt="lgkmcnt")

    def set_flag(off, av=14):
        a(f"ds_write_b32 v{av}, v14 offset:{off}")

    def get_mode(t):
        def ld():
            a(f"ds_read_b32 v{t}, v14 offset:{FM}")

        def ck():
            a(f"v_readfirstlane_b32 s101, v{t}")
            a("s_cmp_lg_u32 s101, -1")
        poll(ld, ck, cfg.sleep_lds, cnt="lgkmcnt")

    def store_mode(ins):
        f, d = newlab("stf"), newlab("std")
        a("s_cmp_eq_u32 s101, 1")
        a(f"s_cbranch_scc1 {f}")
        a(ins + " sc1")
        a(f"s_branch {d}")
        a.label(f)
        a(ins)
        a.label(d)

    def check_sentinel(regs, tmp):
        regs = list(regs)
        a(f"v_max3_u32 v{tmp}, v{regs[0]}, v{regs[1]}, v{regs[2]}")
        regs = regs[3:]
        while len(regs) >= 2:
            a(f"v_max3_u32 v{tmp}, v{tmp}, v{regs[0]}, v{regs[1]}")
            regs = regs[2:]
        if regs:
            a(f"v_max_u32 v{tmp}, v{tmp}, v{regs[0]}")
        a(f"v_cmp_ne_u32 vcc, -1, v{tmp}")
        a("s_cmp_eq_u64 vcc, -1")

    def put_tag(r):
        a(f"v_bfi_b32 v{r}, 15, s14, v{r}")

    def load_tag():
        a(f"s_load_dword s14, s[38:39], {EP_OFF:#x}")

    def make_tag():
        a("s_add_u32 s14, s14, 1")
        a("s_and_b32 s14, s14, 15")

    def xlane(op, x, t, steps):
        for s in steps:
            if s in (1, 2, 4, 8):
                a("s_nop 1")
                a(f"{op}_dpp v{x}, v{x}, v{x} row_ror:{s} row_mask:0xf bank_mask:0xf")
            else:
                a(f"v_mov_b32 v{t}, v{x}")
                a("s_nop 1")
                a(f"v_permlane{s}_swap_b32 v{x}, v{t}")
                a(f"{op} v{x}, v{x}, v{t}")

    def round_bf16(d, s):
        a(f"v_cvt_pk_bf16_f32 v{d}, v{s}, v{s}")
        a(f"v_lshlrev_b32 v{d}, 16, v{d}")

    def perms(dst, src_e, i):
        for p in range(4):
            a(f"v_perm_b32 v{dst+p}, v{src_e(2*p+1)+i}, v{src_e(2*p)+i}, s64")
        for p in range(4):
            a(f"v_perm_b32 v{dst+4+p}, v{src_e(2*p+1)+i}, v{src_e(2*p)+i}, s65")

    def fold(dst, acc):
        for k in range(4):
            a(f"v_add_f32_dpp v{dst+k}, v{acc+4*k+1}, v{acc+4*k} row_ror:8 row_mask:0xf bank_mask:0x3")
        for k in range(4):
            if k >= 2:
                a("s_nop 0")
            a(f"v_add_f32_dpp v{dst+k}, v{acc+4*(k+4)}, v{acc+4*(k+4)+1} row_ror:8 row_mask:0xf bank_mask:0xc")
        for k in range(4):
            put_tag(dst + k)

    def colgrp(d, ch, tmp):
        if cfg.cmap == 0:
            a(f"s_lshl1_add_u32 s{d}, s96, s{ch}")
        elif cfg.cmap == 1:
            a(f"s_lshl3_add_u32 s{d}, s{ch}, s96")
        elif cfg.cmap == 2:
            a(f"s_mul_i32 s{tmp}, s{ch}, 15")
            a(f"s_xor_b32 s{d}, s96, s{tmp}")
        else:
            a(f"s_mul_i32 s{tmp}, s{ch}, 12")
            a(f"s_xor_b32 s{d}, s96, s{tmp}")

    def consts():
        a("s_mov_b32 s64, 0x05040100")
        a("s_mov_b32 s65, 0x07060302")
        a("s_mov_b32 s66, 0xffff0000")
        a(f"s_mov_b32 s67, {LOG2E:#x}")
        a(f"s_mov_b32 s68, {SCALE:#x}")

    a("s_cmp_ge_u32 s2, 256")
    a("s_cbranch_scc1 L_END")
    a("s_load_dwordx16 s[16:31], s[0:1], 0")
    a("s_load_dwordx8 s[32:39], s[0:1], 64")
    stamp(0)
    a("v_lshrrev_b32 v3, 6, v0")
    a("s_and_b32 s96, s2, 7")
    a("s_lshr_b32 s97, s2, 3")
    a("v_and_b32 v0, 63, v0")
    a("v_readfirstlane_b32 s3, v3")
    a("s_lshl_b32 s99, s96, 5")
    a("s_or_b32 s99, s99, s97")
    a("s_lshr_b32 s98, s2, 5")
    a("v_and_b32 v4, 15, v0")
    a("v_lshrrev_b32 v5, 4, v0")
    a("v_mov_b32 v14, 0")
    a("v_lshrrev_b32 v8, 3, v4")
    a("v_and_b32 v9, 7, v4")
    a("s_cmp_ge_u32 s3, 4")
    a("s_cbranch_scc1 L_ATT")
    a("s_and_b32 s7, s97, 3")
    a("v_lshlrev_b32 v10, 3, v8")
    a("v_lshl_add_u32 v10, v5, 4, v10")
    a("s_cmp_lg_u32 s3, 0")
    a("s_cbranch_scc1 L_S123")

    XA = 16
    XO = 32
    XU = 36
    WR = 72
    ACC = 200
    PT = 232

    def wloads(stride, throttle, gate, bar=99):
        for T in range(4):
            for e in range(8):
                k = 8 * T + e
                if k == bar:
                    a("s_barrier")
                if throttle and k >= throttle:
                    a(f"s_waitcnt vmcnt({throttle-1})")
                a(f"buffer_load_dwordx4 {vr(WR+32*T+4*e,4)}, v10, s[40:43], s10 offen{NT}")
                if k < 31:
                    a(f"s_add_u32 s10, s10, {stride * (57 if e == 7 else 1)}")
                if gate and k == gate - 1:
                    set_flag(GF - 4, 13)

    if cfg.qmap == 0:
        a("s_xor_b32 s6, s98, 4")
        a("s_lshl3_add_u32 s6, s96, s6")
    elif cfg.qmap == 2:
        a("s_lshl3_add_u32 s6, s98, s96")
    elif cfg.qmap == 3:
        a("s_add_u32 s6, s96, s97")
        a("s_and_b32 s6, s6, 7")
        a("s_lshl3_add_u32 s6, s98, s6")
    else:
        a("s_lshl3_add_u32 s6, s98, s96")
        a("s_mul_i32 s4, s6, 37")
        a("s_lshr_b32 s4, s4, 8")
        a("s_mul_i32 s5, s4, 7")
        a("s_sub_u32 s5, s6, s5")
        a("s_cmp_ge_u32 s5, 3")
        a("s_addc_u32 s5, s5, 0")
        a("s_lshl_b32 s4, s4, 3")
        a("s_add_u32 s5, s5, s4")
        a("s_lshl_b32 s4, s6, 3")
        a(f"s_sub_u32 s4, s4, {56*8-3}")
        a("s_cmp_ge_u32 s6, 56")
        a("s_cselect_b32 s6, s4, s5")
    a("v_lshlrev_b32 v6, 6, v0")
    a("v_lshrrev_b32 v7, 5, v0")
    a("v_lshlrev_b32 v7, 11, v7")
    a("v_and_b32 v11, 31, v0")
    a("v_lshl_add_u32 v7, v11, 4, v7")
    a("s_lshl_b32 s12, s7, 9")
    a("v_lshlrev_b32 v10, 13, v10")
    a("v_lshl_add_u32 v10, v9, 4, v10")
    a("s_lshl_b32 s10, s7, 21")
    a("s_lshl_b32 s11, s6, 7")
    a("s_add_u32 s10, s10, s11")
    a("s_waitcnt lgkmcnt(0)")
    srd(56, 16, 4096)
    srd(40, 22, 0x800000)
    load_tag()
    for i in range(4):
        a(f"buffer_load_dwordx4 {vr(XA+4*i,4)}, v6, s[56:59], 0 offen offset:{16*i}")
    a(f"buffer_load_dwordx4 {vr(XO,4)}, v7, s[56:59], s12 offen")
    wloads(8192, 0, 0, cfg.s0b)
    stamp(1)
    if cfg.s0b >= 32:
        a("s_barrier")
    srd(48, 38, WS_SIZE)
    consts()
    a("s_mov_b32 s9, 16384")
    a("s_mov_b32 s101, 0")
    a("s_lshl_b32 s10, s7, 15")
    a("s_lshl_b32 s11, s6, 8")
    a("s_add_u32 s10, s10, s11")
    a("s_waitcnt vmcnt(32)")
    stamp(2)
    for i in range(16):
        a(f"v_lshlrev_b32 v{XU+2*i}, 16, v{XA+i}")
        a(f"v_and_b32 v{XU+2*i+1}, s66, v{XA+i}")
    for k in range(4):
        a(f"v_add_f32 v{XA+k}, v{XU+k}, v{XU+4+k}")
    for i in range(8, 32):
        a(f"v_add_f32 v{XA+(i&3)}, v{XA+(i&3)}, v{XU+i}")
    a(f"v_add_f32 v11, v{XA}, v{XA+1}")
    a(f"v_add_f32 v13, v{XA+2}, v{XA+3}")
    a("v_add_f32 v11, v11, v13")
    xlane("v_add_f32", 11, 12, [8, 4, 2, 1, 16])
    a("v_mul_f32 v11, 0x3a800000, v11")
    for i in range(32):
        a(f"v_sub_f32 v{XU+i}, v{XU+i}, v11")
    for k in range(4):
        a(f"v_mul_f32 v{XA+k}, v{XU+k}, v{XU+k}")
    for i in range(4, 32):
        a(f"v_fmac_f32 v{XA+(i&3)}, v{XU+i}, v{XU+i}")
    a(f"v_add_f32 v12, v{XA}, v{XA+1}")
    a(f"v_add_f32 v13, v{XA+2}, v{XA+3}")
    a("v_add_f32 v12, v12, v13")
    xlane("v_add_f32", 12, 13, [8, 4, 2, 1, 16])
    a("v_mul_f32 v12, 0x3a800000, v12")
    round_bf16(11, 11)
    round_bf16(12, 12)
    a(f"v_add_f32 v12, {EPS:#x}, v12")
    round_bf16(12, 12)
    a("v_sqrt_f32 v12, v12")
    a("s_nop 0")
    round_bf16(12, 12)
    a("v_rcp_f32 v13, v12")
    for i in range(4):
        a(f"v_lshlrev_b32 v{XU+2*i}, 16, v{XO+i}")
        a(f"v_and_b32 v{XU+2*i+1}, s66, v{XO+i}")
    for i in range(8):
        a(f"v_sub_f32 v{XU+i}, v{XU+i}, v11")
    for i in range(4):
        a(f"v_cvt_pk_bf16_f32 v{XO+i}, v{XU+2*i}, v{XU+2*i+1}")
    for i in range(4):
        a(f"v_lshlrev_b32 v{XU+2*i}, 16, v{XO+i}")
        a(f"v_and_b32 v{XU+2*i+1}, s66, v{XO+i}")
    for i in range(8):
        a(f"v_mul_f32 v{XU+8+i}, v{XU+i}, v13")
    for i in range(8):
        a(f"v_fma_f32 v{XU+i}, -v{XU+8+i}, v12, v{XU+i}")
    for i in range(8):
        a(f"v_fmac_f32 v{XU+8+i}, v{XU+i}, v13")
    for i in range(4):
        a(f"v_cvt_pk_bf16_f32 v{XO+i}, v{XU+8+2*i}, v{XU+8+2*i+1}")
    a("v_lshlrev_b32 v11, 4, v0")
    a(f"ds_write_b128 v11, {vr(XO,4)} offset:{XN}")
    set_flag(XF)
    a("s_waitcnt lgkmcnt(0)")
    make_tag()

    a.label("L_S_gemv")
    a("v_bfe_u32 v11, v4, 2, 1")
    a("v_lshlrev_b32 v11, 9, v11")
    a("v_lshl_add_u32 v11, v5, 5, v11")
    a("v_and_b32 v12, 1, v4")
    a("v_lshl_add_u32 v11, v12, 4, v11")
    for T in range(4):
        a(f"ds_read_b128 {vr(XU+4*T,4)}, v11 offset:{XN+128*T}")
    stamp(3)
    a("v_mul_u32_u24 v12, s9, v5")
    a("v_lshl_add_u32 v12, v9, 5, v12")
    a("v_lshl_add_u32 v12, v8, 4, v12")
    a("s_waitcnt lgkmcnt(0)")
    for T in range(4):
        a(f"s_waitcnt vmcnt({24-8*T})")
        src = lambda e, T=T: WR + 32 * T + 4 * e

        def M(i, T=T):
            for h in range(2):
                j = 2 * i + h
                c = "0" if T == 0 else vr(ACC + 4 * j, 4)
                a(f"v_mfma_f32_16x16x32_bf16 {vr(ACC+4*j,4)}, {vr(XU+4*T,4)}, {vr(PT+8*(i&1)+4*h,4)}, {c}")
        perms(PT, src, 0)
        perms(PT + 8, src, 1)
        M(0)
        perms(PT, src, 2)
        M(1)
        perms(PT + 8, src, 3)
        M(2)
        M(3)
    stamp(4)
    a("s_nop 3")
    fold(PT, ACC)
    a("s_mov_b32 exec_hi, 0")
    store_mode(f"buffer_store_dwordx4 {vr(PT,4)}, v12, s[48:51], s10 offen")
    a("s_mov_b64 exec, -1")
    a("s_cmp_eq_u32 s3, 1")
    a("s_cbranch_scc1 " + ("L_S_END" if cfg.ffn1 else "L_S1_h"))
    a("s_cmp_eq_u32 s3, 2")
    a("s_cbranch_scc1 L_S2_h")
    a("v_lshlrev_b32 v6, 4, v0")
    a("s_lshl_b32 s10, s96, 12")
    a("s_add_u32 s11, s10, 32768")
    a("s_add_u32 s12, s10, 65536")
    a("s_add_u32 s13, s10, 98304")
    a("v_lshrrev_b32 v7, 5, v0")
    a("v_mul_u32_u24 v7, 272, v7")
    a("v_and_b32 v11, 31, v0")
    a("v_lshl_add_u32 v7, v11, 3, v7")
    wait_flags([(PF, 1, 14)], 16, cfg.sleep_lds)
    stamp(6)

    def ldq():
        for kq in range(4):
            for i in range(4):
                a(f"buffer_load_dwordx4 {vr(32+16*kq+4*i,4)}, v6, s[48:51], s{10+kq} offen offset:{1024*i} sc1")
    poll(ldq, lambda: check_tag(range(32, 96), 11, 12), 0)
    stamp(5)
    for k in range(16):
        a(f"v_add_f32 v{32+k}, v{32+k}, v{48+k}")
        a(f"v_add_f32 v{64+k}, v{64+k}, v{80+k}")
    for k in range(16):
        a(f"v_add_f32 v{32+k}, v{32+k}, v{64+k}")
    for i in range(4):
        a(f"v_cvt_pk_bf16_f32 v{48+2*i}, v{32+4*i}, v{33+4*i}")
        a(f"v_cvt_pk_bf16_f32 v{49+2*i}, v{34+4*i}, v{35+4*i}")
        a(f"ds_write_b64 v7, {vr(48+2*i,2)} offset:{QB+544*i}")
    set_flag(QF)
    a("s_lshl_b32 s7, s97, 9")
    a(f"s_add_u32 s7, s7, {O2_OFF}")
    srd(56, 16, 4096)
    srd(60, 34, 4096)
    a("v_lshlrev_b32 v10, 2, v5")
    a("s_lshr_b32 s12, s97, 4")
    a("s_lshl_b32 s12, s12, 11")
    a("s_bfe_u32 s4, s97, 0x10003")
    colgrp(11, 4, 5)
    a("s_lshl_b32 s11, s11, 7")
    a("s_add_u32 s12, s12, s11")
    a("s_and_b32 s11, s97, 7")
    a("s_lshl_b32 s11, s11, 4")
    a("s_add_u32 s12, s12, s11")
    a("buffer_load_dword v36, v10, s[56:59], s12 offen")
    a("v_lshlrev_b32 v9, 7, v0")
    a("s_lshr_b32 s13, s99, 2")
    a("s_lshl_b32 s13, s13, 13")
    a("s_and_b32 s11, s97, 3")
    a("s_lshl_b32 s11, s11, 5")
    a("s_add_u32 s13, s13, s11")
    a(f"s_add_u32 s13, s13, {XP_OFF}")
    a("v_lshrrev_b32 v11, 5, v0")
    a("v_lshlrev_b32 v11, 14, v11")
    a("v_and_b32 v6, 31, v0")
    a("v_lshl_add_u32 v11, v6, 4, v11")
    a("v_lshlrev_b32 v6, 3, v0")
    wait_flags([(WF, 4, 14)], 16, cfg.sleep_lds)
    stamp(7)
    ppoll(cfg.opipe, cfg.ogap, lambda r: a(f"buffer_load_dwordx4 {vr(r,4)}, v11, s[48:51], s7 offen sc1"), 1, 4, 100, 12, 13)
    a("v_perm_b32 v100, v101, v100, s65")
    a("v_perm_b32 v101, v103, v102, s65")
    a(f"ds_write_b64 v6, v[100:101] offset:{OB}")
    set_flag(BF)
    stamp(9)
    wait_flags([(SF, 4, 14)], 16, 1)

    def ld4(r):
        a(f"buffer_load_dwordx4 {vr(r,4)}, v9, s[48:51], s13 offen sc1")
        a(f"buffer_load_dwordx4 {vr(r+4,4)}, v9, s[48:51], s13 offen offset:16 sc1")
    ppoll(cfg.ypipe, cfg.ygap, ld4, 2, 8, 40, 12, 13)
    stamp(10)
    a("s_nop 1")
    for k in range(4):
        a(f"v_permlane32_swap_b32 v{40+k}, v{44+k}")
    for k in range(4):
        a(f"v_add_f32 v{40+k}, v{40+k}, v{44+k}")
    a("s_nop 0")
    a("v_permlane16_swap_b32 v40, v42")
    a("v_permlane16_swap_b32 v41, v43")
    a("v_add_f32 v40, v40, v42")
    a("v_add_f32 v41, v41, v43")
    for s in (8, 4, 2, 1):
        a("s_nop 0")
        a(f"v_add_f32_dpp v40, v40, v40 row_ror:{s} row_mask:0xf bank_mask:0xf")
        a(f"v_add_f32_dpp v41, v41, v41 row_ror:{s} row_mask:0xf bank_mask:0xf")
    a("v_lshlrev_b32 v42, 16, v36")
    a("v_and_b32 v43, s66, v36")
    a("v_add_f32 v40, v40, v42")
    a("v_add_f32 v41, v41, v43")
    a("v_cvt_pk_bf16_f32 v40, v40, v41")
    a("s_mov_b32 exec_lo, 0x00010001")
    a("s_mov_b32 exec_hi, 0x00010001")
    a("buffer_store_dword v40, v10, s[60:63], s12 offen")
    stamp(11)
    a("s_cmp_lg_u32 s2, 0")
    a("s_cbranch_scc1 L_S_END")
    a("s_mov_b64 exec, 1")
    a(f"s_mov_b32 s9, {EP_OFF:#x}")
    a("v_mov_b32 v15, s14")
    a("buffer_store_dword v15, v14, s[48:51], s9 offen")
    a.label("L_S_END")
    dump_stamps()
    a("s_endpgm")

    a.label("L_S123")
    a("v_mov_b32 v11, -1")
    a("v_lshlrev_b32 v12, 2, v0")
    a(f"ds_write_b32 v12, v11 offset:{MLB}")
    a(f"ds_write_b32 v12, v11 offset:{FL}")
    a("s_waitcnt lgkmcnt(0)")
    load_tag()
    a("s_barrier")
    consts()
    a(f"s_mov_b32 s9, {14336 if cfg.ffn1 else 256}")
    a("s_add_u32 s5, s3, s98")
    a("s_sub_u32 s4, s5, 7")
    a("s_cmp_ge_u32 s5, 7")
    a("s_cselect_b32 s5, s4, s5")
    a("s_mul_i32 s6, s96, 7")
    a("s_add_u32 s5, s5, s6")
    a("s_add_u32 s6, s6, s98")
    if cfg.gmap == 1:
        a("s_mul_i32 s5, s3, 3")
        a("s_add_u32 s5, s5, s96")
        a("s_add_u32 s5, s5, s98")
        a("s_and_b32 s5, s5, 7")
        a("s_lshl3_add_u32 s5, s98, s5")
    if cfg.gmap == 2:
        a("s_mul_i32 s5, s3, 3")
        a("s_add_u32 s5, s5, s96")
        a("s_add_u32 s5, s5, s97")
        a("s_and_b32 s5, s5, 7")
        a("s_lshl3_add_u32 s5, s98, s5")
    a("v_mul_u32_u24 v10, 7168, v10")
    a("v_lshl_add_u32 v10, v9, 4, v10")
    a(f"s_mul_i32 s10, s7, {256*7168}")
    a("s_lshl_b32 s11, s5, 7")
    a("s_add_u32 s10, s10, s11")
    a("s_lshl_b32 s4, s3, 2")
    a("v_mov_b32 v13, s4")
    srd(48, 38, WS_SIZE)
    a("s_cmp_eq_u32 s3, 2")
    a("s_cselect_b64 s[40:41], s[30:31], s[28:29]")
    a("s_mov_b32 s42, 0x700000")
    a("s_mov_b32 s43, 0x20000")
    a("s_waitcnt lgkmcnt(0)")
    make_tag()
    if cfg.codepf:
        a(f"s_cmp_ge_u32 s2, {cfg.codepf}")
        a("s_cbranch_scc1 L_nopf")
        a("s_getpc_b64 s[12:13]")
        a.label("L_pcref")
        a(f"s_sub_u32 s12, s12, L_pcref - {NAME}_kernel + 8192")
        a("s_subb_u32 s13, s13, 0")
        a("v_lshlrev_b32 v1, 7, v0")
        a("v_lshl_add_u32 v1, v3, 13, v1")
        a("global_load_dword v2, v1, s[12:13]")
        a.label("L_nopf")
    a("s_cmp_eq_u32 s3, 3")
    a("s_cbranch_scc1 L_S3")
    set_flag(TG - 4, 13)
    a("s_cmp_lt_u32 s98, 7")
    a("s_cbranch_scc1 L_S12")
    set_flag(GF - 4, 13)
    a("s_cmp_eq_u32 s3, 1")
    a("s_cbranch_scc1 L_S_END")
    wait_flags([(WF, 4, 14)], 16, cfg.sleep_lds)
    a("s_branch L_S2_h")
    a.label("L_S12")
    a("v_lshlrev_b32 v12, 1, v13")
    wait_flags([(XF, 1, 14)], 16, cfg.sleep_lds)
    get_mode(16)
    wait_flags([(GO - 8, 2, 12)], 16, cfg.sleep_lds)
    stamp(2)
    wloads(7168, cfg.ns, cfg.gate)
    stamp(1)
    if cfg.ffn1:
        a("s_lshl1_add_u32 s10, s7, s3")
        a("s_mul_i32 s10, s10, 28672")
        a("s_lshl_b32 s12, s5, 8")
        a("s_add_u32 s10, s10, s12")
        a(f"s_add_u32 s10, s10, {GP_OFF-28672}")
        a("s_mov_b32 s101, 0")
    else:
        a("s_lshl_b32 s10, s5, 12")
        a("s_lshl_b32 s12, s7, 10")
        a("s_add_u32 s10, s10, s12")
        a("s_lshl_b32 s12, s3, 9")
        a("s_add_u32 s10, s10, s12")
        a(f"s_add_u32 s10, s10, {GP_OFF-512}")
    a("s_branch L_S_gemv")

    a.label("L_S1_h")
    a("v_lshrrev_b32 v11, 5, v0")
    a("v_lshlrev_b32 v11, 9, v11")
    a("v_and_b32 v10, 31, v0")
    a("v_lshlrev_b32 v10, 2, v10")
    a("v_add_u32 v11, v11, v10")
    a("s_lshl_b32 s10, s6, 12")
    a("s_lshl_b32 s12, s7, 7")
    a("s_add_u32 s10, s10, s12")
    a(f"s_add_u32 s10, s10, {GP_OFF}")
    a("s_lshr_b32 s8, s7, 1")
    a("s_mul_i32 s8, s8, 14336")
    a("s_lshl_b32 s12, s6, 8")
    a("s_add_u32 s8, s8, s12")
    a("s_and_b32 s12, s7, 1")
    a("s_lshl_b32 s12, s12, 7")
    a("s_add_u32 s8, s8, s12")
    a(f"s_add_u32 s8, s8, {H2_OFF}")
    a(f"s_mov_b32 s4, {f32bits(0.044715):#x}")
    a(f"s_mov_b32 s5, {f32bits(-2.0 * math.sqrt(2.0 / math.pi) * math.log2(math.e)):#x}")

    def ldg(r):
        for kq in range(4):
            a(f"buffer_load_dword v{r+kq}, v11, s[48:51], s10 offen offset:{kq*1024} sc1")
    ppoll(cfg.gpipe, cfg.ggap, ldg, 4, 4, 16, 12, 13)
    stamp(5)
    a("v_add_f32 v16, v16, v17")
    a("v_add_f32 v18, v18, v19")
    a("v_add_f32 v16, v16, v18")
    round_bf16(16, 16)
    a("v_mov_b32 v17, v16")
    a("s_nop 1")
    a("v_permlane32_swap_b32 v16, v17")
    a("v_mul_f32 v18, v16, v16")
    a("v_mul_f32 v18, v18, v16")
    a("v_fma_f32 v18, v18, s4, v16")
    a("v_mul_f32 v18, s5, v18")
    a("v_exp_f32 v18, v18")
    a("s_nop 0")
    a("v_add_f32 v18, 1.0, v18")
    a("v_rcp_f32 v18, v18")
    a("s_nop 0")
    a("v_mul_f32 v18, v18, v16")
    round_bf16(18, 18)
    a("v_mul_f32 v18, v18, v17")
    a("v_cvt_pk_bf16_f32 v18, v18, v18")
    put_tag(18)
    a("s_mov_b32 exec_hi, 0")
    a("buffer_store_dword v18, v10, s[48:51], s8 offen sc1")
    stamp(6)
    a("s_branch L_S_END")

    a.label("L_S2_h")
    a("v_mov_b32 v15, 0")
    a("v_lshlrev_b32 v6, 3, v0")
    a(f"ds_write_b64 v6, v[14:15] offset:{HB}")
    a("v_lshrrev_b32 v7, 5, v0")
    a("v_and_b32 v6, 31, v0")
    a("v_mul_u32_u24 v11, 14336, v7")
    a("v_lshl_add_u32 v11, v6, 4, v11")
    a("s_mul_i32 s10, s97, 448")
    a(f"s_add_u32 s10, s10, {H2_OFF}")
    a("v_lshlrev_b32 v7, 8, v7")
    for k in range(4):
        a(f"v_lshl_add_u32 v{60+k}, v6, 2, {k}")
        a(f"v_mul_u32_u24 v12, 147, v{60+k}")
        a("v_lshrrev_b32 v12, 10, v12")
        a(f"v_add_u32 v{60+k}, v{60+k}, v12")
        a(f"v_lshl_add_u32 v{60+k}, v{60+k}, 1, v7")
    if cfg.ffn1:
        a("s_mul_i32 s10, s97, 448")
        a(f"s_add_u32 s10, s10, {GP_OFF}")
        for z in range(1, 8):
            a(f"s_add_u32 s{16+z}, s10, {28672*z}")
        a("s_mov_b32 s16, s10")
        a(f"s_mov_b32 s4, {f32bits(0.044715):#x}")
        a(f"s_mov_b32 s5, {f32bits(-2.0 * math.sqrt(2.0 / math.pi) * math.log2(math.e)):#x}")
        wait_flags([(WF, 4, 14)], 16, cfg.sleep_lds)
    a("s_mov_b32 exec_lo, 0x0fffffff")
    a("s_mov_b32 exec_hi, 0x0fffffff")
    stamp(5)
    if cfg.ffn1:
        def ldh():
            for z in range(8):
                a(f"buffer_load_dwordx4 {vr(16+4*z,4)}, v11, s[48:51], s{16+z} offen sc1")
        poll(ldh, lambda: check_tag(range(16, 48), 12, 13, "exec"), cfg.hgap)
        for k in range(8):
            a(f"v_add_f32 v{16+k}, v{16+k}, v{24+k}")
            a(f"v_add_f32 v{32+k}, v{32+k}, v{40+k}")
        for k in range(8):
            a(f"v_add_f32 v{16+k}, v{16+k}, v{32+k}")
        for k in range(8):
            round_bf16(16 + k, 16 + k)
        for k in range(4):
            a(f"v_mul_f32 v{24+k}, v{16+k}, v{16+k}")
        for k in range(4):
            a(f"v_mul_f32 v{24+k}, v{24+k}, v{16+k}")
        for k in range(4):
            a(f"v_fma_f32 v{24+k}, v{24+k}, s4, v{16+k}")
        for k in range(4):
            a(f"v_mul_f32 v{24+k}, s5, v{24+k}")
        for k in range(4):
            a(f"v_exp_f32 v{24+k}, v{24+k}")
        for k in range(4):
            a(f"v_add_f32 v{24+k}, 1.0, v{24+k}")
        for k in range(4):
            a(f"v_rcp_f32 v{24+k}, v{24+k}")
        for k in range(4):
            a(f"v_mul_f32 v{24+k}, v{24+k}, v{16+k}")
        for k in range(4):
            round_bf16(24 + k, 24 + k)
        for k in range(4):
            a(f"v_mul_f32 v{24+k}, v{24+k}, v{20+k}")
        for k in range(4):
            a(f"v_cvt_pk_bf16_f32 v{16+k}, v{24+k}, v{24+k}")
    else:
        ppoll(cfg.hpipe, cfg.hgap, lambda r: a(f"buffer_load_dwordx4 {vr(r,4)}, v11, s[48:51], s10 offen sc1"), 1, 4, 16, 12, 13, full="exec")
    for k in range(4):
        a(f"ds_write_b16_d16_hi v{60+k}, v{16+k} offset:{HB}")
    set_flag(HF)
    stamp(6)
    a("s_branch L_S_END")

    a.label("L_S3")
    set_flag(LV)
    a("s_getreg_b32 s4, hwreg(HW_REG_XCC_ID)")
    a("s_and_b32 s4, s4, 15")
    a("s_lshl_b32 s4, s4, 8")
    a(f"s_or_b32 s5, s14, {MAGIC:#x}")
    a("s_or_b32 s4, s4, s5")
    a("v_mov_b32 v16, s4")
    a("s_lshl_b32 s10, s99, 6")
    a(f"s_add_u32 s10, s10, {XT_OFF}")
    a("s_mov_b64 exec, 1")
    a("buffer_store_dword v16, v14, s[48:51], s10 offen sc1")
    a("s_mov_b64 exec, -1")
    a("v_and_b32 v7, 31, v0")
    a("v_lshlrev_b32 v7, 6, v7")
    a("s_lshl_b32 s10, s96, 11")
    a(f"s_add_u32 s10, s10, {XT_OFF}")
    wait_flags([(TG, 2, 14), (PF, 1, 14)], 16, cfg.sleep_lds)

    def ckx():
        a("v_and_b32 v17, 0xfffff0ff, v16")
        a("v_cmp_eq_u32 vcc, s5, v17")
        a("s_cmp_eq_u64 vcc, -1")
    poll(lambda: a("buffer_load_dword v16, v7, s[48:51], s10 offen sc1"), ckx, 8)
    a("v_cmp_eq_u32 vcc, s4, v16")
    a("s_cmp_eq_u64 vcc, -1")
    a("s_cselect_b32 s101, 1, 0")
    if cfg.nofast:
        a("s_mov_b32 s101, 0")
    a("v_mov_b32 v16, s101")
    a(f"ds_write_b32 v14, v16 offset:{FM}")
    stamp(4)
    a("v_and_b32 v6, 7, v0")
    a("v_lshlrev_b32 v6, 3, v6")
    a("v_and_b32 v7, 31, v0")
    a("v_lshlrev_b32 v7, 3, v7")
    a("s_lshl_b32 s13, s99, 6")
    a(f"s_add_u32 s13, s13, {ML_OFF}")

    def ldm():
        for w in range(4):
            a(f"ds_read_b64 {vr(16+2*w,2)}, v6 offset:{MLB+64*w}")
    poll(ldm, lambda: check_sentinel(range(16, 24), 11), cfg.sleep_lds, cnt="lgkmcnt")
    stamp(5)
    a(f"ds_read_b32 v30, v7 offset:{MLB}")

    def combine4(mo):
        a(f"v_max3_f32 v{mo}, v16, v18, v20")
        a(f"v_max_f32 v{mo}, v{mo}, v22")

    def wsum4(mo, lo):
        for w in range(4):
            a(f"v_sub_f32 v{16+2*w}, v{16+2*w}, v{mo}")
        for w in range(4):
            a(f"v_mul_f32 v{16+2*w}, s67, v{16+2*w}")
        for w in range(4):
            a(f"v_exp_f32 v{16+2*w}, v{16+2*w}")
        a("s_nop 0")
        a(f"v_mul_f32 v{lo}, v16, v17")
        for w in range(1, 4):
            a(f"v_fmac_f32 v{lo}, v{16+2*w}, v{17+2*w}")
    combine4(24)
    wsum4(24, 25)
    put_tag(24)
    put_tag(25)
    a("s_mov_b64 exec, 0xff")
    store_mode("buffer_store_dwordx2 v[24:25], v6, s[48:51], s13 offen")
    a("s_mov_b64 exec, -1")
    a("s_lshl_b32 s10, s96, 11")
    a(f"s_add_u32 s10, s10, {ML_OFF}")
    a("v_lshlrev_b32 v7, 3, v0")
    if cfg.rank:
        mid, hi = (int(z) for z in cfg.rank.split(":"))
        for i in range(4):
            a(f"buffer_load_dword v{16+i}, v7, s[48:51], s10 offen offset:{512*i} sc1")
        a("s_waitcnt vmcnt(0)")
        a("s_mov_b32 s4, 0")
        for i in range(4):
            a(f"v_and_b32 v{16+i}, 0xffff, v{16+i}")
            a(f"v_cmp_eq_u32 vcc, s14, v{16+i}")
            a("s_bcnt1_i32_b64 s5, vcc")
            a("s_add_u32 s4, s4, s5")
        a(f"s_cmp_ge_u32 s4, {8*mid}")
        a("s_cselect_b32 s5, 1, 0")
        a(f"s_cmp_ge_u32 s4, {8*hi}")
        a("s_cselect_b32 s5, 3, s5")
        a("v_mov_b32 v16, s5")
        a(f"ds_write_b32 v14, v16 offset:{LV}")
    wait_flags([(LF, 1, 14)], 16, cfg.sleep_lds)

    def ld2():
        for i in range(4):
            a(f"buffer_load_dwordx2 {vr(16+2*i,2)}, v7, s[48:51], s10 offen offset:{512*i} sc1")
    poll(ld2, lambda: check_tag(range(16, 24), 11, 12), 8)
    stamp(6)
    for w in range(4):
        a(f"v_and_b32 v{16+2*w}, s66, v{16+2*w}")
    combine4(26)
    xlane("v_max_f32", 26, 11, [8, 16, 32])
    wsum4(26, 27)
    xlane("v_add_f32", 27, 11, [8, 16, 32])
    a("v_sub_f32 v30, v30, v26")
    a("v_mul_f32 v30, s67, v30")
    a("v_exp_f32 v30, v30")
    a("v_rcp_f32 v27, v27")
    a("v_bfe_u32 v7, v0, 3, 2")
    a("v_lshlrev_b32 v7, 2, v7")
    a("v_lshl_add_u32 v7, v6, 1, v7")
    a("v_mul_f32 v30, v30, v27")
    a(f"ds_write_b32 v7, v30 offset:{FB}")
    set_flag(FF)
    a("v_lshlrev_b32 v6, 4, v9")
    a("v_lshl_add_u32 v6, v5, 2, v6")
    a("v_lshlrev_b32 v7, 4, v0")
    a("s_lshl_b32 s10, s99, 12")
    a(f"s_add_u32 s10, s10, {OP_OFF}")
    a("s_lshl_b32 s8, s99, 7")
    a(f"s_add_u32 s8, s8, {O2_OFF}")
    wait_flags([(OF, 4, 14)], 16, cfg.sleep_lds)
    stamp(7)

    def ld3(r):
        for i in range(4):
            a(f"buffer_load_dwordx4 {vr(r+4*i,4)}, v7, s[48:51], s10 offen offset:{1024*i} sc1")
    ppoll(cfg.lpipe, cfg.lgap, ld3, 4, 16, 40, 12, 13)
    stamp(8)
    for k in range(4):
        a(f"v_add_f32 v{40+k}, v{40+k}, v{44+k}")
        a(f"v_add_f32 v{48+k}, v{48+k}, v{52+k}")
    for k in range(4):
        a(f"v_add_f32 v{40+k}, v{40+k}, v{48+k}")
    a("s_nop 0")
    a("v_permlane32_swap_b32 v40, v42")
    a("v_permlane32_swap_b32 v41, v43")
    a("v_add_f32 v40, v40, v42")
    a("v_add_f32 v41, v41, v43")
    a("s_nop 1")
    a("v_permlane16_swap_b32 v40, v41")
    a("v_add_f32 v40, v40, v41")
    a("s_nop 1")
    a("v_add_f32_dpp v40, v40, v40 row_ror:8 row_mask:0xf bank_mask:0xf")
    a("v_cvt_pk_bf16_f32 v40, v40, v40")
    put_tag(40)
    a("s_mov_b32 exec_lo, 0x00ff00ff")
    a("s_mov_b32 exec_hi, 0x00ff00ff")
    a("buffer_store_dword v40, v6, s[48:51], s8 offen sc1")
    a("s_branch L_S_END")

    a.label("L_ATT")
    RING = 16
    SC = RING + 16 * R
    QR = SC + 32
    ST = QR + 8
    AC = QR
    PTA = AC + 32
    a("s_sub_u32 s6, s3, 4")
    a("v_bfe_u32 v6, v4, 1, 1")
    a("v_lshrrev_b32 v7, 2, v4")
    a("v_lshl_add_u32 v6, v6, 2, v7")
    a("v_lshlrev_b32 v6, 8, v6")
    a("v_lshl_add_u32 v6, v5, 5, v6")
    a("v_and_b32 v7, 1, v4")
    a("v_lshl_add_u32 v6, v7, 4, v6")
    a("s_lshl_b32 s7, s99, 18")
    a("s_lshl_b32 s8, s6, 12")
    a("s_add_u32 s7, s7, s8")
    a("s_mov_b32 s8, s7")
    a("s_waitcnt lgkmcnt(0)")
    srd(40, 18, 0x4000000)
    N = cfg.n
    NL = 143
    NH = [N]
    lim = [128]
    nl = [0]
    lvl_pending = [False]
    lvl_on = [False]

    def slot_of(item):
        return RING + 16 * (item % R)

    def issue1():
        k = nl[0]
        if k >= lim[0]:
            return
        item, q = divmod(k, 4)
        slot = slot_of(item)
        if item < 16:
            a(f"buffer_load_dwordx4 {vr(slot+4*q,4)}, v6, s[40:43], s7 offen offset:{128*(q&1)+2048*(q>>1)}{NT}")
            if q == 3 and item < 15:
                a("s_add_u32 s7, s7, 16384")
        elif item < 32:
            a(f"buffer_load_dwordx4 {vr(slot+4*q,4)}, v7, s[44:47], s8 offen offset:{1024*q}{NT}")
            if q == 3 and item < 31:
                a("s_add_u32 s8, s8, 16384")
        elif item < 34:
            m = k - 128
            a(f"buffer_load_dwordx4 {vr(slot+4*q,4)}, v3, s[52:55], s11 offen offset:{2048*(m&1)}{NT}")
            if (m & 1) and m < 7:
                a("s_add_u32 s11, s11, 16384")
        else:
            e = k - 136
            a(f"buffer_load_dwordx4 {vr(slot+4*q,4)}, v1, s[56:59], s10 offen offset:{2048*(e&1)}{NT}")
            if e & 1:
                a("s_add_u32 s10, s10, 4096")
        nl[0] += 1
        for kk, fl, av in ((cfg.pf, PF, 14), (cfg.lf, LF, 14), (cfg.go, GO, 13), (cfg.wf, WF, 13)):
            if k == kk - 1:
                set_flag(fl, av)

    def wait_load(k):
        a(f"s_waitcnt vmcnt({nl[0] - k - 1})")

    def thr():
        if not lvl_on[0]:
            return
        lab = newlab("go")
        a("s_bitcmp1_b32 s100, 1")
        a(f"s_cbranch_scc1 {lab}")
        a(f"s_waitcnt vmcnt({N})")
        a("s_bitcmp1_b32 s100, 0")
        a(f"s_cbranch_scc1 {lab}")
        a(f"s_waitcnt vmcnt({N-1})")
        a.label(lab)

    def advance(item):
        if lvl_on[0] and item < 24:
            if lvl_pending[0]:
                a("s_waitcnt lgkmcnt(0)")
                a("v_readfirstlane_b32 s100, v2")
            a(f"ds_read_b32 v2, v14 offset:{LV}")
            lvl_pending[0] = True
        for q in range(4):
            k = 4 * item + q
            if k >= NL:
                break
            if nl[0] < lim[0] and nl[0] - (k + 1) < NH[0]:
                wait_load(k)
                while nl[0] < lim[0] and nl[0] - (k + 1) < NH[0]:
                    thr()
                    issue1()
            elif q == 3 or k == NL - 1:
                wait_load(k)

    for k in range(4 * R):
        if k == cfg.pro:
            load_tag()
            a("v_lshlrev_b32 v7, 4, v0")
            a("s_lshl_b32 s9, s6, 2")
            a("v_mov_b32 v13, s9")
            srd(44, 20, 0x4000000)
            srd(48, 38, WS_SIZE)
            srd(52, 24, 0x800000)
            srd(56, 32, 0x700000)
            consts()
            a("v_mul_u32_u24 v11, 272, v9")
            a("v_lshl_add_u32 v11, v5, 5, v11")
            a("v_lshl_add_u32 v11, v8, 4, v11")
            a("v_mov_b32 v10, 0xff800000")
        if k == cfg.b0a:
            a("s_barrier")
        if k >= N:
            a(f"s_waitcnt vmcnt({N-1})")
        issue1()
    stamp(1)
    wait_flags([(QF, 1, 14)], QR, 1)
    make_tag()
    stamp(2)
    for c in range(2):
        a(f"ds_read_b128 {vr(QR+4*c,4)}, v11 offset:{QB+128*c}")
    a("s_waitcnt lgkmcnt(0)")

    def post(i):
        t = ST + 8 * (i & 1)
        w = ST + 16
        for q in range(4):
            a(f"v_add_f32_dpp v{w+6+q}, v{t+2*q+1}, v{t+2*q} row_ror:8 row_mask:0xf bank_mask:0xf")
        s = w + 6
        a(f"v_max3_f32 v10, v10, v{s}, v{s+1}")
        a(f"v_cvt_pk_bf16_f32 v{w+4}, v{s}, v{s+1}")
        a(f"v_cvt_pk_bf16_f32 v{w+5}, v{s+2}, v{s+3}")
        a(f"v_max3_f32 v10, v10, v{s+2}, v{s+3}")
        a(f"v_lshlrev_b32 v{w}, 16, v{w+4}")
        a(f"v_and_b32 v{w+1}, s66, v{w+4}")
        a(f"v_lshlrev_b32 v{w+2}, 16, v{w+5}")
        a(f"v_and_b32 v{w+3}, s66, v{w+5}")
        for k in range(4):
            a(f"v_mul_f32 v{w+k}, s68, v{w+k}")
        a(f"v_cvt_pk_bf16_f32 v{SC+2*i}, v{w}, v{w+1}")
        a(f"v_cvt_pk_bf16_f32 v{SC+2*i+1}, v{w+2}, v{w+3}")

    for i in range(16):
        advance(i)
        slot = slot_of(i)
        t = ST + 8 * (i & 1)
        for st_ in range(2):
            for ln in range(2):
                cc = "0" if ln == 0 else vr(t + 4 * st_, 4)
                a(f"v_mfma_f32_16x16x32_bf16 {vr(t+4*st_,4)}, {vr(slot+4*(2*st_+ln),4)}, {vr(QR+4*ln,4)}, {cc}")
        if nl[0] - 4 * (i + 1) >= N and nl[0] < 4 * (i + 1 + R):
            for _ in range(4 if i == 0 else 1):
                if nl[0] < 4 * (i + 1 + R):
                    a(f"s_waitcnt vmcnt({N-1})")
                    issue1()
        if i >= 1:
            a("s_nop 3")
            post(i - 1)
    a("s_nop 7")
    post(15)
    stamp(3)
    xlane("v_max_f32", 10, 11, [16, 32])
    w = ST
    MM, LL, L2 = ST + 8, ST + 9, ST + 10
    round_bf16(MM, 10)
    a(f"v_mul_f32 v{MM}, s68, v{MM}")
    round_bf16(MM, MM)
    a(f"v_mul_f32 v11, s67, v{MM}")
    a(f"v_mov_b32 v{LL}, 0")
    a(f"v_mov_b32 v{L2}, 0")
    for k in range(0, 32, 2):
        if k % 6 == 0:
            issue1()
        for q in range(2):
            a(f"v_lshlrev_b32 v{w+2*q}, 16, v{SC+k+q}")
            a(f"v_and_b32 v{w+2*q+1}, s66, v{SC+k+q}")
        for q in range(4):
            a(f"v_fma_f32 v{w+q}, v{w+q}, s67, -v11")
        for q in range(4):
            a(f"v_exp_f32 v{w+q}, v{w+q}")
        a(f"v_add_f32 v{LL}, v{LL}, v{w}")
        a(f"v_add_f32 v{L2}, v{L2}, v{w+1}")
        a(f"v_cvt_pk_bf16_f32 v{SC+k}, v{w}, v{w+1}")
        a(f"v_add_f32 v{LL}, v{LL}, v{w+2}")
        a(f"v_add_f32 v{L2}, v{L2}, v{w+3}")
        a(f"v_cvt_pk_bf16_f32 v{SC+k+1}, v{w+2}, v{w+3}")
    a(f"v_add_f32 v{LL}, v{LL}, v{L2}")
    xlane("v_add_f32", LL, L2, [16, 32])
    a(f"v_min_u32 v{LL}, -2, v{LL}")
    a("s_lshl_b32 s9, s6, 6")
    a("v_lshlrev_b32 v12, 3, v0")
    a("v_add_u32 v12, s9, v12")
    a("s_mov_b64 exec, 0xff")
    a(f"ds_write_b64 v12, {vr(MM,2)} offset:{MLB}")
    a("s_mov_b64 exec, -1")
    stamp(4)
    issue1()
    a("s_and_b32 s4, s6, 1")
    a("s_lshr_b32 s5, s6, 1")
    a("s_mul_i32 s9, s6, 4224")
    a("v_mul_u32_u24 v10, 528, v4")
    a("v_lshl_add_u32 v10, v5, 7, v10")
    a("v_add_u32 v10, s9, v10")
    a("v_lshrrev_b32 v3, 1, v5")
    a("v_lshlrev_b32 v3, 5, v3")
    a("v_and_b32 v1, 1, v5")
    a("v_lshl_add_u32 v3, v1, 2, v3")
    a("v_lshl_add_u32 v3, v8, 1, v3")
    a("v_lshlrev_b32 v3, 11, v3")
    a("v_lshl_add_u32 v3, v9, 4, v3")
    a("v_lshl_add_u32 v1, v5, 1, v8")
    a("v_mul_u32_u24 v1, 14336, v1")
    a("v_lshl_add_u32 v1, v9, 4, v1")
    colgrp(12, 4, 13)
    a("s_lshl_b32 s12, s12, 7")
    a("s_lshl1_add_u32 s13, s97, s5")
    a("s_lshl_b32 s11, s13, 17")
    a("s_add_u32 s11, s11, s12")
    a(f"s_mul_i32 s10, s13, {56*2048}")
    a("s_add_u32 s10, s10, s12")
    a("v_bfe_u32 v12, v4, 2, 1")
    a("v_lshlrev_b32 v12, 8, v12")
    a("v_lshl_add_u32 v12, v5, 5, v12")
    a("v_and_b32 v11, 1, v4")
    a("v_lshl_add_u32 v12, v11, 4, v12")
    a("s_lshl_b32 s9, s5, 7")
    a("v_add_u32 v12, s9, v12")
    a("v_lshlrev_b32 v11, 15, v5")
    a("v_lshrrev_b32 v6, 2, v9")
    a("v_lshl_add_u32 v11, v6, 13, v11")
    a("v_and_b32 v6, 3, v9")
    a("v_lshl_add_u32 v11, v6, 5, v11")
    a("v_lshl_add_u32 v11, v8, 4, v11")
    a("s_lshl_b32 s9, s96, 16")
    a("s_lshl_b32 s12, s4, 14")
    a("s_add_u32 s9, s9, s12")
    a("s_lshl_b32 s12, s13, 7")
    a("s_add_u32 s9, s9, s12")
    a(f"s_add_u32 s9, s9, {XP_OFF}")
    a("v_lshrrev_b32 v4, 5, v0")
    a("s_lshl_b32 s12, s6, 1")
    a("v_add_u32 v4, s12, v4")
    a("v_lshlrev_b32 v5, 4, v4")
    a("v_mul_u32_u24 v4, 528, v4")
    a("v_and_b32 v6, 31, v0")
    a("v_lshl_add_u32 v4, v6, 4, v4")
    a("v_lshlrev_b32 v8, 4, v9")
    a("v_lshrrev_b32 v6, 3, v0")
    a("v_lshl_add_u32 v8, v6, 12, v8")
    a("v_mul_u32_u24 v6, 5, v6")
    a("v_add_u32 v6, s97, v6")
    a("v_and_b32 v6, 31, v6")
    a("v_lshl_add_u32 v8, v6, 7, v8")
    a("s_lshl_b32 s5, s96, 17")
    a("s_lshl_b32 s12, s6, 15")
    a("s_add_u32 s5, s5, s12")
    a(f"s_add_u32 s5, s5, {OP_OFF}")
    get_mode(6)
    if cfg.rank:
        NH[0] = N + 2
        lvl_on[0] = True
        a("s_mov_b32 s100, 0")
    for it in range(16, 32):
        advance(it)
        if it & 1:
            u = (it - 16) // 2
            s0 = slot_of(16 + 2 * u)
            s1 = slot_of(17 + 2 * u)
            src = lambda e, s0=s0, s1=s1: (s0 if e < 4 else s1) + 4 * (e & 3)

            def M(i, u=u):
                for h in range(2):
                    j = 2 * i + h
                    c = "0" if u == 0 else vr(AC + 4 * j, 4)
                    a(f"v_mfma_f32_16x16x32_bf16 {vr(AC+4*j,4)}, {vr(PTA+8*(i&1)+4*h,4)}, {vr(SC+4*u,4)}, {c}")
            perms(PTA, src, 0)
            perms(PTA + 8, src, 1)
            M(0)
            perms(PTA, src, 2)
            M(1)
            perms(PTA + 8, src, 3)
            M(2)
            M(3)
    stamp(5)
    a("s_mov_b32 exec_lo, 0x00ff00ff")
    a("s_mov_b32 exec_hi, 0x00ff00ff")
    for j in range(8):
        if j == 4:
            a("s_nop 0")
        a(f"ds_write_b128 v10, {vr(AC+4*j,4)} offset:{ORED+16*j}")
    a("s_mov_b64 exec, -1")
    set_flag(OF, 13)
    T0 = slot_of(0)
    wait_flags([(OF, 4, 14), (FF, 1, 14)], T0, 0)
    a(f"ds_read_b128 {vr(T0,4)}, v5 offset:{FB}")
    for w_ in range(4):
        a(f"ds_read_b128 {vr(T0+4+4*w_,4)}, v4 offset:{ORED+4224*w_}")
    for k in range(4):
        a(f"v_mov_b32 v{slot_of(35)+12+k}, 0")
    a("s_waitcnt lgkmcnt(0)")
    for w_ in range(4):
        for k in range(4):
            if w_ == 0:
                a(f"v_mul_f32 v{T0+4+k}, v{T0}, v{T0+4+k}")
            else:
                a(f"v_fmac_f32 v{T0+4+k}, v{T0+w_}, v{T0+4+4*w_+k}")
    for k in range(4):
        put_tag(T0 + 4 + k)
    store_mode(f"buffer_store_dwordx4 {vr(T0+4,4)}, v8, s[48:51], s5 offen")
    stamp(6)
    TP = slot_of(6)
    XACC = SC
    wait_flags([(GF, 2, 14)], PTA, 1)
    lim[0] = NL
    for z in range(NH[0]):
        if z >= N:
            thr()
        issue1()
    advance(32)
    advance(33)
    srco = lambda e: (lambda m: slot_of(32 + (m >> 2)) + 4 * (m & 3))(2 * (e & 3) + (e >> 2))
    for i in range(4):
        perms(TP + 8 * i, srco, i)
    advance(34)
    assert nl[0] == NL
    advance(35)
    stamp(7)
    srcd = lambda e: slot_of(34 + (e >> 2)) + 4 * (e & 3)
    a(f"ds_read_b64 {vr(PTA+8,2)}, v14 offset:{HF}")
    a(f"ds_read_b128 {vr(PTA+4,4)}, v12 offset:{OB}")
    a(f"ds_read_b128 {vr(PTA,4)}, v12 offset:{HB}")
    for i in range(4):
        perms(TP + 32 + 8 * i, srcd, i)
    a("s_waitcnt lgkmcnt(0)")
    a(f"v_or_b32 v{PTA+8}, v{PTA+8}, v{PTA+9}")
    a(f"v_cmp_eq_u32 vcc, 0, v{PTA+8}")
    a("s_cmp_eq_u64 vcc, -1")
    a("s_cbranch_scc1 L_xgo")
    wait_flags([(HF, 2, 14)], PTA + 8, 0)
    a(f"ds_read_b128 {vr(PTA+4,4)}, v12 offset:{OB}")
    a(f"ds_read_b128 {vr(PTA,4)}, v12 offset:{HB}")
    a("s_waitcnt lgkmcnt(0)")
    a.label("L_xgo")
    stamp(9)
    for j in range(8):
        a(f"v_mfma_f32_16x16x32_bf16 {vr(XACC+4*j,4)}, {vr(PTA+4,4)}, {vr(TP+4*j,4)}, 0")
    for j in range(8):
        a(f"v_mfma_f32_16x16x32_bf16 {vr(XACC+4*j,4)}, {vr(PTA,4)}, {vr(TP+32+4*j,4)}, {vr(XACC+4*j,4)}")
    a("s_nop 1")
    fold(PTA + 8, XACC)
    a("s_mov_b32 exec_hi, 0")
    store_mode(f"buffer_store_dwordx4 {vr(PTA+8,4)}, v11, s[48:51], s9 offen")
    set_flag(SF, 13)
    stamp(10)
    dump_stamps()
    a.label("L_END")
    a("s_endpgm")

    probs = check_hazards(a.lines)
    for p in probs:
        print(p, file=sys.stderr)
    if probs:
        raise SystemExit("hazards found")

    pad = f".fill (24576 - (. - {NAME}_kernel)) / 4, 4, 0xBF800000\n" if cfg.codepf else ""
    out = HEADER
    out += "; Generated by work/gen11.py (hand-written generator). One persistent launch, 256 workgroups x 8 waves.\n"
    out += f"; @launch grid=(256,1,1) block=(512,1,1) lds={LDS_SIZE}\n"
    out += f""".amdgcn_target "amdgcn-amd-amdhsa--gfx950"
.text
.globl {NAME}_kernel
.p2align 8
.type {NAME}_kernel,@function
{NAME}_kernel:
"""
    out += a.text()
    out += pad
    out += f""".section .rodata,"a"
.p2align 6
.amdhsa_kernel {NAME}_kernel
  .amdhsa_next_free_vgpr 256
  .amdhsa_next_free_sgpr 102
  .amdhsa_accum_offset 256
  .amdhsa_group_segment_fixed_size 0
  .amdhsa_kernarg_size 96
  .amdhsa_user_sgpr_count 2
  .amdhsa_user_sgpr_kernarg_segment_ptr 1
  .amdhsa_system_sgpr_workgroup_id_x 1
  .amdhsa_float_denorm_mode_32 3
.end_amdhsa_kernel
"""
    return out


def parse_args(argv=None):
    p = argparse.ArgumentParser()
    p.add_argument("-o", default="cdna_kernels/" + NAME + ".s")
    p.add_argument("--stamps", type=int, default=0)
    p.add_argument("--codepf", type=int, default=16)
    p.add_argument("--sleep_lds", type=int, default=2)
    p.add_argument("--spin", type=int, default=2000000)
    p.add_argument("--n", type=int, default=6)
    p.add_argument("--ns", type=int, default=12)
    p.add_argument("--gate", type=int, default=32)
    p.add_argument("--pf", type=int, default=24)
    p.add_argument("--lf", type=int, default=108)
    p.add_argument("--go", type=int, default=128)
    p.add_argument("--wf", type=int, default=140)
    p.add_argument("--rank", default="22:28")
    p.add_argument("--nofast", type=int, default=0)
    p.add_argument("--ffn1", type=int, default=1)
    p.add_argument("--s0b", type=int, default=32)
    p.add_argument("--b0a", type=int, default=3)
    p.add_argument("--pro", type=int, default=0)
    p.add_argument("--qmap", type=int, default=1)
    p.add_argument("--gmap", type=int, default=0)
    p.add_argument("--cmap", type=int, default=0)
    for nm, d, g in (("y", 2, 2), ("o", 1, 0), ("g", 1, 0), ("h", 1, 0), ("l", 1, 0)):
        p.add_argument(f"--{nm}pipe", type=int, default=d)
        p.add_argument(f"--{nm}gap", type=int, default=g)
    return p.parse_args(argv)


if __name__ == "__main__":
    cfg = parse_args()
    open(cfg.o, "w").write(gen(cfg))
    print("wrote", cfg.o)
```

```python
import sys
import argparse
import struct
import math
from asmlib import Asm, vr, sr, check_hazards

NAME = "parallel_sum__gqa_block_cached__geglu_ffn__decode"

QP_OFF = 0x000000
GP_OFF = 0x020000
ML_OFF = 0x060000
XT_OFF = 0x068000
EP_OFF = 0x070000
O2_OFF = 0x078000
OP_OFF = 0x080000
XP_OFF = 0x180000
ST_OFF = 0x200000
WS_SIZE = 0x400000
XN = 0x0000
QB = 0x0400
MLB = 0x0C80
FL = 0x0D80
OF = FL + 0
FF = FL + 16
GF = FL + 24
QF = FL + 32
XF = FL + 36
PF = FL + 40
HF = FL + 44
LF = FL + 20
WF = FL + 48
BF = FL + 72
GO = FL + 80
SF = FL + 96
FM = FL + 68
LV = FL + 64
CPF = FL + 128
FB = 0x0E80
OB = 0x0F00
HB = 0x1000
ORED = 0x1100
LDS_SIZE = ORED + 4 * 4224

LOG2E = 0x3FB8AA3B
SCALE = 0x3DB504F3
EPS = 0x3727C5AC

HEADER = open("cdna_kernels/" + NAME + ".s.ref").read().split("; Override launch")[0]


def f32bits(x):
    return struct.unpack("<I", struct.pack("<f", x))[0]


def gen(cfg):
    a = Asm()
    R = cfg.ring
    NT = " nt" if not cfg.nont & 4 else ""
    KNT = " nt" if not cfg.nont & 1 else ""
    VNT = " nt" if not cfg.nont & 2 else ""
    MLS = "" if cfg.mlplain else " sc1"
    MNT = " nt" if cfg.hnt & 1 else ""
    ONT = " nt" if cfg.hnt & 2 else ""
    XNT = " nt" if cfg.hnt & 4 else ""
    SNT = " nt" if cfg.hnt & 8 else ""
    TNT = " nt" if cfg.hnt & 16 else ""
    uid = [0]
    cps = [tuple(int(x) for x in t.split(":")) for t in cfg.cp.split(",")] if cfg.cp else []

    def stamp(k):
        if cfg.padto and cfg.padfrom == k:
            a("s_memrealtime s[94:95]")
        if cfg.stamps:
            a(f"s_memrealtime s[{70+2*k}:{71+2*k}]")

    def srd(d, p, size):
        a(f"s_mov_b32 s{d}, s{p}")
        a(f"s_mov_b32 s{d+1}, s{p+1}")
        a(f"s_mov_b32 s{d+2}, {size:#x}")
        a(f"s_mov_b32 s{d+3}, 0x20000")

    def dump_stamps():
        if not cfg.stamps:
            return
        a("s_waitcnt lgkmcnt(0)")
        for _ in range(3):
            a("s_sleep 127")
        a("s_mov_b64 exec, 1")
        a("s_lshl_b32 s4, s2, 10")
        a("s_lshl_b32 s5, s3, 7")
        a("s_add_u32 s4, s4, s5")
        a(f"s_add_u32 s4, s4, {ST_OFF}")
        a("v_mov_b32 v3, 0")
        for k in range(14):
            a(f"v_mov_b32 v1, s{70+2*k}")
            a(f"buffer_store_dword v1, v3, s[48:51], s4 offen offset:{4*k}")

    def poll(loads, check, sleep, cnt="vmcnt", rec=None):
        uid[0] += 1
        n = uid[0]
        a(f"s_mov_b32 s15, {cfg.spin if cnt == 'vmcnt' else 8 * cfg.spin}")
        a.label(f"L_poll{n}")
        loads()
        a(f"s_waitcnt {cnt}(0)")
        check()
        a(f"s_cbranch_scc1 L_pdone{n}")
        a("s_sub_u32 s15, s15, 1")
        a(f"s_cbranch_scc1 L_pdone{n}")
        if sleep:
            a(f"s_sleep {sleep}")
        a(f"s_branch L_poll{n}")
        a.label(f"L_pdone{n}")
        if rec is not None and cfg.stamps:
            a(f"s_sub_u32 s{70+2*rec}, {cfg.spin+1}, s15")

    def wait_flags(reads, t, sleep):
        regs = []

        def ld():
            r = t
            regs.clear()
            for off, n, av in reads:
                op = {1: "ds_read_b32", 2: "ds_read_b64", 4: "ds_read_b128"}[n]
                a(f"{op} {vr(r,n)}, v{av} offset:{off}")
                regs.extend(range(r, r + n))
                r += (n + 1) & ~1

        def ck():
            rs = list(regs)
            while len(rs) >= 3:
                a(f"v_or3_b32 v{rs[0]}, v{rs[0]}, v{rs[1]}, v{rs[2]}")
                rs = [rs[0]] + rs[3:]
            if len(rs) == 2:
                a(f"v_or_b32 v{rs[0]}, v{rs[0]}, v{rs[1]}")
            a(f"v_cmp_eq_u32 vcc, 0, v{rs[0]}")
            a("s_cmp_eq_u64 vcc, -1")
        poll(ld, ck, sleep, cnt="lgkmcnt")

    def set_flag(off, av=14):
        a(f"ds_write_b32 v{av}, v14 offset:{off}")

    def get_mode(t):
        def ld():
            a(f"ds_read_b32 v{t}, v14 offset:{FM}")

        def ck():
            a(f"v_readfirstlane_b32 s101, v{t}")
            a("s_cmp_lg_u32 s101, -1")
        poll(ld, ck, cfg.sleep_lds, cnt="lgkmcnt")

    def store_mode(ins):
        uid[0] += 1
        n = uid[0]
        a("s_cmp_eq_u32 s101, 1")
        a(f"s_cbranch_scc1 L_stf{n}")
        a(ins + " sc1")
        a(f"s_branch L_std{n}")
        a.label(f"L_stf{n}")
        a(ins)
        a.label(f"L_std{n}")

    def check_tag(regs, t0, t1):
        regs = list(regs)
        a(f"v_xor_b32 v{t0}, s14, v{regs[0]}")
        a(f"v_xor_b32 v{t1}, s14, v{regs[1]}")
        for k, r in enumerate(regs[2:]):
            t = t0 if k % 2 == 0 else t1
            a(f"v_bitop3_b32 v{t}, v{r}, s14, v{t} bitop3:0xbe")
        a(f"v_or_b32 v{t0}, v{t0}, v{t1}")
        a(f"v_and_b32 v{t0}, s69, v{t0}")
        a(f"v_cmp_eq_u32 vcc, 0, v{t0}")
        a("s_cmp_eq_u64 vcc, -1")

    def check_sentinel(regs, tmp):
        regs = list(regs)
        a(f"v_max3_u32 v{tmp}, v{regs[0]}, v{regs[1]}, v{regs[2]}")
        regs = regs[3:]
        while len(regs) >= 2:
            a(f"v_max3_u32 v{tmp}, v{tmp}, v{regs[0]}, v{regs[1]}")
            regs = regs[2:]
        if regs:
            a(f"v_max_u32 v{tmp}, v{tmp}, v{regs[0]}")
        a(f"v_cmp_ne_u32 vcc, -1, v{tmp}")
        a("s_cmp_eq_u64 vcc, -1")

    def put_tag(r):
        a(f"v_bfi_b32 v{r}, s69, v15, v{r}")

    def load_tag():
        a(f"s_load_dword s14, s[38:39], {EP_OFF:#x}")

    def make_tag():
        a("s_add_u32 s14, s14, 1")
        a(f"s_and_b32 s14, s14, {cfg.tagmask}")
        a("v_mov_b32 v15, s14")

    def xlane(op, x, t, steps):
        for s in steps:
            if s in (1, 2, 4, 8):
                a("s_nop 1")
                a(f"{op}_dpp v{x}, v{x}, v{x} row_ror:{s} row_mask:0xf bank_mask:0xf")
            else:
                a(f"v_mov_b32 v{t}, v{x}")
                a("s_nop 1")
                a(f"v_permlane{s}_swap_b32 v{x}, v{t}")
                a(f"{op} v{x}, v{x}, v{t}")

    def round_bf16(d, s):
        a(f"v_cvt_pk_bf16_f32 v{d}, v{s}, v{s}")
        a(f"v_lshlrev_b32 v{d}, 16, v{d}")

    def perms(dst, src_e, i):
        for p in range(4):
            a(f"v_perm_b32 v{dst+p}, v{src_e(2*p+1)+i}, v{src_e(2*p)+i}, s64")
        for p in range(4):
            a(f"v_perm_b32 v{dst+4+p}, v{src_e(2*p+1)+i}, v{src_e(2*p)+i}, s65")

    def fold(dst, acc):
        for k in range(4):
            a(f"v_add_f32_dpp v{dst+k}, v{acc+4*k+1}, v{acc+4*k} row_ror:8 row_mask:0xf bank_mask:0x3")
        for k in range(4):
            if k >= 2:
                a("s_nop 0")
            a(f"v_add_f32_dpp v{dst+k}, v{acc+4*(k+4)}, v{acc+4*(k+4)+1} row_ror:8 row_mask:0xf bank_mask:0xc")
        for k in range(4):
            put_tag(dst + k)

    def consts():
        a("s_mov_b32 s64, 0x05040100")
        a("s_mov_b32 s65, 0x07060302")
        a("s_mov_b32 s66, 0xffff0000")
        a(f"s_mov_b32 s67, {LOG2E:#x}")
        a(f"s_mov_b32 s68, {SCALE:#x}")
        a(f"s_movk_i32 s69, {cfg.tagmask}")

    a("s_cmp_ge_u32 s2, 256")
    a("s_cbranch_scc1 L_END")
    a("s_load_dwordx16 s[16:31], s[0:1], 0")
    a("s_load_dwordx8 s[32:39], s[0:1], 64")
    stamp(0)
    if cfg.padto and cfg.padfrom == 23:
        a("s_waitcnt lgkmcnt(0)")
        a("s_memrealtime s[94:95]")
    if cfg.padto and cfg.padfrom >= 100:
        for _ in range((cfg.padfrom - 28) // 4):
            a("s_nop 0")
        a("s_memrealtime s[94:95]")
    if cfg.codepf and cfg.codepf < 7:
        a("s_getpc_b64 s[4:5]")
        a(f"v_lshlrev_b32 v1, {cfg.codepf}, v0")
        a("global_load_dword v2, v1, s[4:5]")
    a("v_lshrrev_b32 v3, 6, v0")
    if cfg.xm:
        a("s_and_b32 s98, s2, 7")
        a("s_lshl_b32 s98, s98, 2")
        a("s_bfe_u32 s100, s2, 0x20003")
        a("s_or_b32 s98, s98, s100")
        a("s_and_b32 s100, s2, 0xe0")
        a("s_or_b32 s98, s98, s100")
    else:
        a("s_mov_b32 s98, s2")
    if cfg.gm:
        a("s_and_b32 s99, s2, 7")
        a("s_lshl_b32 s99, s99, 5")
        a("s_lshr_b32 s100, s2, 3")
        a("s_or_b32 s99, s99, s100")
    else:
        a("s_mov_b32 s99, s2")
    a("v_and_b32 v0, 63, v0")
    a("v_readfirstlane_b32 s3, v3")
    a("v_and_b32 v4, 15, v0")
    a("v_lshrrev_b32 v5, 4, v0")
    a("v_mov_b32 v14, 0")
    a("v_lshrrev_b32 v8, 3, v4")
    a("v_and_b32 v9, 7, v4")
    a("s_cmp_ge_u32 s3, 4")
    a("s_cbranch_scc1 L_ATT")
    a("s_lshr_b32 s6, s98, 2")
    a("s_and_b32 s7, s98, 3")
    a("v_lshlrev_b32 v10, 3, v8")
    a("v_lshl_add_u32 v10, v5, 4, v10")
    a("s_cmp_lg_u32 s3, 0")
    a("s_cbranch_scc1 L_S123")

    XA = 16
    XO = 32
    XU = 36
    WR = 72
    ACC = 200
    PT = 232

    def wloads(stride, throttle, gate):
        for T in range(4):
            for e in range(8):
                k = 8 * T + e
                if throttle and k >= throttle:
                    if cfg.rank and cfg.nsh:
                        uid[0] += 1
                        a(f"s_waitcnt vmcnt({cfg.nsh-1})")
                        a(f"s_cbranch_vccnz L_sg{uid[0]}")
                        a(f"s_waitcnt vmcnt({throttle-1})")
                        a.label(f"L_sg{uid[0]}")
                    else:
                        a(f"s_waitcnt vmcnt({throttle-1})")
                a(f"buffer_load_dwordx4 {vr(WR+32*T+4*e,4)}, v10, s[40:43], s10 offen{NT}")
                if k < 31:
                    a(f"s_add_u32 s10, s10, {stride * (57 if e == 7 else 1)}")
                if gate and k == gate - 1:
                    set_flag(GF - 4, 13)

    if cfg.qmap:
        a("s_mul_i32 s4, s6, 37")
        a("s_lshr_b32 s4, s4, 8")
        a("s_mul_i32 s5, s4, 7")
        a("s_sub_u32 s5, s6, s5")
        a("s_cmp_ge_u32 s5, 3")
        a("s_addc_u32 s5, s5, 0")
        a("s_lshl_b32 s4, s4, 3")
        a("s_add_u32 s5, s5, s4")
        a("s_lshl_b32 s4, s6, 3")
        a(f"s_sub_u32 s4, s4, {56*8-3}")
        a("s_cmp_ge_u32 s6, 56")
        a("s_cselect_b32 s6, s4, s5")
    a("s_mov_b32 s9, 14")
    a("s_mov_b32 s101, 0")
    a("v_lshlrev_b32 v6, 6, v0")
    a("v_lshrrev_b32 v7, 5, v0")
    a("v_lshlrev_b32 v7, 11, v7")
    a("v_and_b32 v11, 31, v0")
    a("v_lshl_add_u32 v7, v11, 4, v7")
    a("s_lshl_b32 s12, s7, 9")
    a("v_lshlrev_b32 v10, 13, v10")
    a("v_lshl_add_u32 v10, v9, 4, v10")
    a("s_lshl_b32 s10, s7, 21")
    a("s_lshl_b32 s11, s6, 7")
    a("s_add_u32 s10, s10, s11")
    if cfg.padto and cfg.padfrom == 20:
        a("s_memrealtime s[94:95]")
    a("s_waitcnt lgkmcnt(0)")
    if cfg.padto and cfg.padfrom == 21:
        a("s_memrealtime s[94:95]")
    srd(56, 16, 4096)
    srd(40, 22, 0x800000)
    load_tag()
    for i in range(4):
        a(f"buffer_load_dwordx4 {vr(XA+4*i,4)}, v6, s[56:59], 0 offen offset:{16*i}")
    a(f"buffer_load_dwordx4 {vr(XO,4)}, v7, s[56:59], s12 offen")
    wloads(8192, 0, 0)
    stamp(1)
    a("s_barrier")
    if cfg.padto and cfg.padfrom == 22:
        a("s_memrealtime s[94:95]")
    srd(48, 38, WS_SIZE)
    consts()
    a("s_lshl_b32 s10, s7, 15")
    a("s_lshl_b32 s11, s6, 8")
    a("s_add_u32 s10, s10, s11")
    if QP_OFF:
        a(f"s_add_u32 s10, s10, {QP_OFF}")
    a("s_waitcnt vmcnt(32)")
    stamp(2)
    for i in range(16):
        a(f"v_lshlrev_b32 v{XU+2*i}, 16, v{XA+i}")
        a(f"v_and_b32 v{XU+2*i+1}, s66, v{XA+i}")
    for k in range(4):
        a(f"v_add_f32 v{XA+k}, v{XU+k}, v{XU+4+k}")
    for i in range(8, 32):
        a(f"v_add_f32 v{XA+(i&3)}, v{XA+(i&3)}, v{XU+i}")
    a(f"v_add_f32 v11, v{XA}, v{XA+1}")
    a(f"v_add_f32 v13, v{XA+2}, v{XA+3}")
    a("v_add_f32 v11, v11, v13")
    xlane("v_add_f32", 11, 12, [8, 4, 2, 1, 16])
    a("v_mul_f32 v11, 0x3a800000, v11")
    for i in range(32):
        a(f"v_sub_f32 v{XU+i}, v{XU+i}, v11")
    for k in range(4):
        a(f"v_mul_f32 v{XA+k}, v{XU+k}, v{XU+k}")
    for i in range(4, 32):
        a(f"v_fmac_f32 v{XA+(i&3)}, v{XU+i}, v{XU+i}")
    a(f"v_add_f32 v12, v{XA}, v{XA+1}")
    a(f"v_add_f32 v13, v{XA+2}, v{XA+3}")
    a("v_add_f32 v12, v12, v13")
    xlane("v_add_f32", 12, 13, [8, 4, 2, 1, 16])
    a("v_mul_f32 v12, 0x3a800000, v12")
    round_bf16(11, 11)
    round_bf16(12, 12)
    a(f"v_add_f32 v12, {EPS:#x}, v12")
    round_bf16(12, 12)
    a("v_sqrt_f32 v12, v12")
    a("s_nop 0")
    round_bf16(12, 12)
    a("v_rcp_f32 v13, v12")
    for i in range(4):
        a(f"v_lshlrev_b32 v{XU+2*i}, 16, v{XO+i}")
        a(f"v_and_b32 v{XU+2*i+1}, s66, v{XO+i}")
    for i in range(8):
        a(f"v_sub_f32 v{XU+i}, v{XU+i}, v11")
    for i in range(4):
        a(f"v_cvt_pk_bf16_f32 v{XO+i}, v{XU+2*i}, v{XU+2*i+1}")
    for i in range(4):
        a(f"v_lshlrev_b32 v{XU+2*i}, 16, v{XO+i}")
        a(f"v_and_b32 v{XU+2*i+1}, s66, v{XO+i}")
    for i in range(8):
        a(f"v_mul_f32 v{XU+8+i}, v{XU+i}, v13")
    for i in range(8):
        a(f"v_fma_f32 v{XU+i}, -v{XU+8+i}, v12, v{XU+i}")
    for i in range(8):
        a(f"v_fmac_f32 v{XU+8+i}, v{XU+i}, v13")
    for i in range(4):
        a(f"v_cvt_pk_bf16_f32 v{XO+i}, v{XU+8+2*i}, v{XU+8+2*i+1}")
    a("v_lshlrev_b32 v11, 4, v0")
    a(f"ds_write_b128 v11, {vr(XO,4)} offset:{XN}")
    set_flag(XF)
    a("s_waitcnt lgkmcnt(0)")
    make_tag()

    a.label("L_S_gemv")
    a("v_bfe_u32 v11, v4, 2, 1")
    a("v_lshlrev_b32 v11, 9, v11")
    a("v_lshl_add_u32 v11, v5, 5, v11")
    a("v_and_b32 v12, 1, v4")
    a("v_lshl_add_u32 v11, v12, 4, v11")
    for T in range(4):
        a(f"ds_read_b128 {vr(XU+4*T,4)}, v11 offset:{XN+128*T}")
    stamp(3)
    a("v_lshlrev_b32 v12, s9, v5")
    a("v_lshl_add_u32 v12, v9, 5, v12")
    a("v_lshl_add_u32 v12, v8, 4, v12")
    a("s_waitcnt lgkmcnt(0)")
    for T in range(4):
        a(f"s_waitcnt vmcnt({24-8*T})")
        src = lambda e, T=T: WR + 32 * T + 4 * e

        def M(i, T=T):
            for h in range(2):
                j = 2 * i + h
                c = "0" if T == 0 else vr(ACC + 4 * j, 4)
                a(f"v_mfma_f32_16x16x32_bf16 {vr(ACC+4*j,4)}, {vr(XU+4*T,4)}, {vr(PT+8*(i&1)+4*h,4)}, {c}")
        perms(PT, src, 0)
        perms(PT + 8, src, 1)
        M(0)
        perms(PT, src, 2)
        M(1)
        perms(PT + 8, src, 3)
        M(2)
        M(3)
    stamp(4)
    a("s_nop 3")
    fold(PT, ACC)
    a("s_mov_b32 exec_hi, 0")
    if not (cfg.abl & 8):
        store_mode(f"buffer_store_dwordx4 {vr(PT,4)}, v12, s[48:51], s10 offen")
    a("s_mov_b64 exec, -1")
    a("s_cmp_eq_u32 s3, 1")
    a("s_cbranch_scc1 L_S1_h")
    a("s_cmp_eq_u32 s3, 2")
    a("s_cbranch_scc1 L_S_END")
    if cfg.padto and cfg.padglobal:
        srd(52, 36, 256)
        a("s_mov_b64 exec, 1")
        a("v_mov_b32 v20, s94")
        a("buffer_atomic_umax v20, v14, s[52:55], 0 offen offset:4")
        a("v_not_b32 v21, v20")
        a("buffer_atomic_umax v21, v14, s[52:55], 0 offen")
        a("s_mov_b64 exec, -1")
    a("v_lshlrev_b32 v6, 4, v0")
    a("s_lshr_b32 s10, s99, 5")
    a("s_lshl_b32 s10, s10, 12")
    if QP_OFF:
        a(f"s_add_u32 s10, s10, {QP_OFF}")
    a("s_add_u32 s11, s10, 32768")
    a("s_add_u32 s12, s10, 65536")
    a("s_add_u32 s13, s10, 98304")
    a("v_lshrrev_b32 v7, 5, v0")
    a("v_mul_u32_u24 v7, 272, v7")
    a("v_and_b32 v11, 31, v0")
    a("v_lshl_add_u32 v7, v11, 3, v7")
    if cfg.pf:
        wait_flags([(PF, 1, 14)], 16, cfg.sleep_lds)
    stamp(6)

    def ldq():
        for kq in range(4):
            for i in range(4):
                if (cfg.abl & 16) and i: continue
                a(f"buffer_load_dwordx4 {vr(32+16*kq+4*i,4)}, v6, s[48:51], s{10+kq} offen offset:{1024*i} sc1{MNT}")
    if not (cfg.abl & 1):
        poll(ldq, lambda: check_tag([r for r in range(32, 96) if not (cfg.abl & 16) or (r - 32) % 16 < 4], 11, 12), cfg.sleep_q, rec=12)
    stamp(5)
    for k in range(16):
        a(f"v_add_f32 v{32+k}, v{32+k}, v{48+k}")
        a(f"v_add_f32 v{64+k}, v{64+k}, v{80+k}")
    for k in range(16):
        a(f"v_add_f32 v{32+k}, v{32+k}, v{64+k}")
    for i in range(4):
        a(f"v_cvt_pk_bf16_f32 v{48+2*i}, v{32+4*i}, v{33+4*i}")
        a(f"v_cvt_pk_bf16_f32 v{49+2*i}, v{34+4*i}, v{35+4*i}")
        a(f"ds_write_b64 v7, {vr(48+2*i,2)} offset:{QB+544*i}")
    set_flag(QF)
    a("s_branch L_S_tail")

    a.label("L_S123")
    def codepf(sr_):
        a(f"s_getpc_b64 s[{sr_}:{sr_+1}]")
        a.label("L_pcref")
        a(f"s_sub_u32 s{sr_}, s{sr_}, L_pcref - {NAME}_kernel + 8192")
        a(f"s_subb_u32 s{sr_+1}, s{sr_+1}, 0")
        a("v_lshlrev_b32 v1, 7, v0")
        a("v_lshl_add_u32 v1, v3, 13, v1")
        a(f"global_load_dword v2, v1, s[{sr_}:{sr_+1}]")
    if cfg.codepf == 7:
        codepf(4)
    consts()
    a("s_mov_b32 s9, 8")
    a(f"s_mul_i32 s5, s3, {cfg.crot}")
    a("s_lshr_b32 s4, s2, 5")
    a("s_add_u32 s5, s5, s4")
    a("s_sub_u32 s4, s5, 7")
    a("s_cmp_ge_u32 s5, 7")
    a("s_cselect_b32 s5, s4, s5")
    a("s_and_b32 s4, s2, 7")
    a("s_mul_i32 s4, s4, 7")
    a("s_add_u32 s5, s5, s4")
    a("v_mul_u32_u24 v10, 7168, v10")
    a("v_lshl_add_u32 v10, v9, 4, v10")
    a(f"s_mul_i32 s10, s7, {256*7168}")
    a("s_lshl_b32 s11, s5, 7")
    a("s_add_u32 s10, s10, s11")
    a("v_mov_b32 v11, -1")
    a("v_lshlrev_b32 v12, 2, v0")
    a(f"ds_write_b32 v12, v11 offset:{MLB}")
    a(f"ds_write_b32 v12, v11 offset:{FL}")
    a("s_lshl_b32 s4, s3, 2")
    a("v_mov_b32 v13, s4")
    a("s_waitcnt lgkmcnt(0)")
    load_tag()
    if cfg.b0e:
        a("s_barrier")
    srd(48, 38, WS_SIZE)
    a("s_cmp_eq_u32 s3, 2")
    a("s_cselect_b64 s[40:41], s[30:31], s[28:29]")
    a("s_mov_b32 s42, 0x700000")
    a("s_mov_b32 s43, 0x20000")
    a("s_waitcnt lgkmcnt(0)")
    if not cfg.b0e:
        a("s_barrier")
    make_tag()
    if cfg.codepf == 8:
        a(f"s_cmp_ge_u32 s2, {cfg.pfwg}")
        a("s_cbranch_scc1 L_nopf")
        codepf(12)
        a.label("L_nopf")
    a("s_cmp_eq_u32 s3, 3")
    a("s_cbranch_scc1 L_S3")
    a("s_cmp_lt_u32 s6, 56")
    a("s_cbranch_scc1 L_S12")
    set_flag(GF - 4, 13)
    a("s_branch L_S_END")
    a.label("L_S12")
    a("v_lshlrev_b32 v12, 1, v13")
    wait_flags([(GO - 8, 2, 12)], 16, cfg.sleep_lds)
    stamp(2)
    if cfg.rank and cfg.nsh:
        a(f"ds_read_b32 v16, v14 offset:{LV}")
        a("s_waitcnt lgkmcnt(0)")
        a("v_and_b32 v16, 1, v16")
        a("v_cmp_ne_u32 vcc, 0, v16")
    wloads(7168, cfg.ns, cfg.gate)
    stamp(1)
    a("s_lshl_b32 s10, s5, 12")
    a("s_lshl_b32 s12, s7, 10")
    a("s_add_u32 s10, s10, s12")
    a("s_lshl_b32 s12, s3, 9")
    a("s_add_u32 s10, s10, s12")
    a(f"s_add_u32 s10, s10, {GP_OFF-512}")
    wait_flags([(XF, 1, 14)], 16, cfg.sleep_lds)
    get_mode(16)
    a("s_branch L_S_gemv")

    a.label("L_S1_h")
    a("v_lshlrev_b32 v12, 3, v0")
    a("s_and_b32 s10, s2, 7")
    a("s_mul_i32 s10, s10, 7")
    a("s_lshr_b32 s4, s2, 5")
    a("s_add_u32 s10, s10, s4")
    a("s_lshl_b32 s10, s10, 12")
    a(f"s_add_u32 s10, s10, {GP_OFF}")

    def ldg():
        for kq in range(4):
            for m in range(2):
                a(f"buffer_load_dwordx2 {vr(16+4*kq+2*m,2)}, v12, s[48:51], s10 offen offset:{kq*1024+m*512} sc1{MNT}")
    if not (cfg.abl & 2):
        poll(ldg, lambda: check_tag(range(16, 32), 11, 13), cfg.sleep_tail, rec=12)
    stamp(5)
    for k in range(4):
        a(f"v_add_f32 v{16+k}, v{16+k}, v{20+k}")
        a(f"v_add_f32 v{24+k}, v{24+k}, v{28+k}")
    for k in range(4):
        a(f"v_add_f32 v{16+k}, v{16+k}, v{24+k}")
    a("v_cvt_pk_bf16_f32 v20, v16, v17")
    a("v_cvt_pk_bf16_f32 v21, v18, v19")
    a("v_lshlrev_b32 v16, 16, v20")
    a("v_and_b32 v17, s66, v20")
    a("v_lshlrev_b32 v18, 16, v21")
    a("v_and_b32 v19, s66, v21")
    a(f"s_mov_b32 s10, {f32bits(0.044715):#x}")
    a(f"s_mov_b32 s11, {f32bits(-2.0 * math.sqrt(2.0 / math.pi) * math.log2(math.e)):#x}")
    for k in range(2):
        a(f"v_mul_f32 v{20+k}, v{16+k}, v{16+k}")
    for k in range(2):
        a(f"v_mul_f32 v{20+k}, v{20+k}, v{16+k}")
    for k in range(2):
        a(f"v_fma_f32 v{20+k}, v{20+k}, s10, v{16+k}")
    for k in range(2):
        a(f"v_mul_f32 v{20+k}, s11, v{20+k}")
    for k in range(2):
        a(f"v_exp_f32 v{20+k}, v{20+k}")
    a("s_nop 0")
    for k in range(2):
        a(f"v_add_f32 v{20+k}, 1.0, v{20+k}")
    for k in range(2):
        a(f"v_rcp_f32 v{20+k}, v{20+k}")
    a("s_nop 0")
    for k in range(2):
        a(f"v_mul_f32 v{20+k}, v{20+k}, v{16+k}")
    a("v_cvt_pk_bf16_f32 v22, v20, v21")
    a("v_lshlrev_b32 v20, 16, v22")
    a("v_and_b32 v21, s66, v22")
    a("v_mul_f32 v20, v20, v18")
    a("v_mul_f32 v21, v21, v19")
    a("v_cvt_pk_bf16_f32 v22, v20, v21")
    a("v_lshlrev_b32 v12, 2, v0")
    a(f"ds_write_b32 v12, v22 offset:{HB}")
    set_flag(HF)
    a("s_branch L_S_END")

    a.label("L_S3")
    if cfg.rank:
        set_flag(LV)
    a("s_getreg_b32 s4, hwreg(HW_REG_XCC_ID)")
    a("s_and_b32 s4, s4, 15")
    a("s_lshl_b32 s4, s4, 8")
    a("s_or_b32 s4, s4, s14")
    a("v_mov_b32 v16, s4")
    a("s_lshl_b32 s10, s99, 6")
    a(f"s_add_u32 s10, s10, {XT_OFF}")
    a("s_mov_b64 exec, 1")
    if not (cfg.abl & 64):
        a("buffer_store_dword v16, v14, s[48:51], s10 offen sc1")
    a("s_mov_b64 exec, -1")
    a("v_and_b32 v7, 31, v0")
    a("v_lshlrev_b32 v7, 6, v7")
    a("s_lshr_b32 s10, s99, 5")
    a("s_lshl_b32 s10, s10, 11")
    a(f"s_add_u32 s10, s10, {XT_OFF}")
    wait_flags([(PF, 1, 14)], 16, cfg.sleep_lds)

    def ldx():
        a("buffer_load_dword v16, v7, s[48:51], s10 offen sc1")

    def ckx():
        a("v_xor_b32 v17, s14, v16")
        a("v_and_b32 v17, s69, v17")
        a("v_cmp_eq_u32 vcc, 0, v17")
        a("s_cmp_eq_u64 vcc, -1")
    if not (cfg.abl & 64):
        poll(ldx, ckx, cfg.sleep)
    a("v_cmp_eq_u32 vcc, s4, v16")
    a("s_cmp_eq_u64 vcc, -1")
    a("s_cselect_b32 s101, 1, 0")
    if cfg.abl & 64:
        a("s_mov_b32 s101, 1")
    if cfg.nofast:
        a("s_mov_b32 s101, 0")
    a("v_mov_b32 v16, s101")
    a(f"ds_write_b32 v14, v16 offset:{FM}")
    stamp(4)
    a("v_and_b32 v6, 7, v0")
    a("v_lshlrev_b32 v6, 3, v6")
    a("v_and_b32 v7, 31, v0")
    a("v_lshlrev_b32 v7, 3, v7")
    a("s_lshl_b32 s13, s99, 6")
    a(f"s_add_u32 s13, s13, {ML_OFF}")

    def ldm():
        for w in range(4):
            a(f"ds_read_b64 {vr(16+2*w,2)}, v6 offset:{MLB+64*w}")
    poll(ldm, lambda: check_sentinel(range(16, 24), 11), cfg.sleep_lds, cnt="lgkmcnt")
    stamp(5)
    a(f"ds_read_b32 v30, v7 offset:{MLB}")

    def combine4(mo):
        a(f"v_max3_f32 v{mo}, v16, v18, v20")
        a(f"v_max_f32 v{mo}, v{mo}, v22")

    def wsum4(mo, lo):
        for w in range(4):
            a(f"v_sub_f32 v{16+2*w}, v{16+2*w}, v{mo}")
        for w in range(4):
            a(f"v_mul_f32 v{16+2*w}, s67, v{16+2*w}")
        for w in range(4):
            a(f"v_exp_f32 v{16+2*w}, v{16+2*w}")
        a("s_nop 0")
        a(f"v_mul_f32 v{lo}, v16, v17")
        for w in range(1, 4):
            a(f"v_fmac_f32 v{lo}, v{16+2*w}, v{17+2*w}")
    combine4(24)
    wsum4(24, 25)
    put_tag(24)
    put_tag(25)
    a("s_mov_b64 exec, 0xff")
    if not (cfg.abl & 8):
        store_mode("buffer_store_dwordx2 v[24:25], v6, s[48:51], s13 offen")
    a("s_mov_b64 exec, -1")
    a("s_lshr_b32 s10, s99, 5")
    a("s_lshl_b32 s10, s10, 11")
    a(f"s_add_u32 s10, s10, {ML_OFF}")
    a("v_lshlrev_b32 v7, 3, v0")

    if cfg.rank:
        thr_ = [int(x) for x in cfg.rank.split(":")]
        for i in range(4):
            a(f"buffer_load_dword v{16+i}, v7, s[48:51], s10 offen offset:{512*i} sc1")
        a("s_waitcnt vmcnt(0)")
        a("s_mov_b32 s4, 0")
        for i in range(4):
            a(f"v_xor_b32 v{16+i}, s14, v{16+i}")
            a(f"v_and_b32 v{16+i}, s69, v{16+i}")
            a(f"v_cmp_eq_u32 vcc, 0, v{16+i}")
            a("s_bcnt1_i32_b64 s5, vcc")
            a("s_add_u32 s4, s4, s5")
        a("s_mov_b32 s5, 0")
        a(f"s_cmp_ge_u32 s4, {8*thr_[1]}")
        a("s_cselect_b32 s5, 1, s5")
        a(f"s_cmp_ge_u32 s4, {8*thr_[2]}")
        a("s_cselect_b32 s5, 3, s5")
        a(f"s_cmp_lt_u32 s4, {8*thr_[0]}")
        a("s_cselect_b32 s5, 4, s5")
        a("v_mov_b32 v16, s5")
        a(f"ds_write_b32 v14, v16 offset:{LV}")
        if cfg.stamps:
            a(f"s_lshr_b32 s{70+2*11}, s4, 3")
    if cfg.lf:
        wait_flags([(LF, 1, 14)], 16, cfg.sleep_lds)

    def ld2():
        for i in range(4):
            a(f"buffer_load_dwordx2 {vr(16+2*i,2)}, v7, s[48:51], s10 offen offset:{512*i} sc1{MNT}")
    if not (cfg.abl & 4):
        poll(ld2, lambda: check_tag(range(16, 24), 11, 12), cfg.sleep, rec=12)
    stamp(6)
    for w in range(4):
        a(f"v_and_b32 v{16+2*w}, s66, v{16+2*w}")
    combine4(26)
    xlane("v_max_f32", 26, 11, [8, 16, 32])
    wsum4(26, 27)
    xlane("v_add_f32", 27, 11, [8, 16, 32])
    a("s_waitcnt lgkmcnt(0)")
    a("v_sub_f32 v30, v30, v26")
    a("v_mul_f32 v30, s67, v30")
    a("v_exp_f32 v30, v30")
    a("v_rcp_f32 v27, v27")
    a("v_bfe_u32 v7, v0, 3, 2")
    a("v_lshlrev_b32 v7, 2, v7")
    a("v_lshl_add_u32 v7, v6, 1, v7")
    a("v_mul_f32 v30, v30, v27")
    a(f"ds_write_b32 v7, v30 offset:{FB}")
    set_flag(FF)

    a("v_and_b32 v11, 7, v0")
    a("v_lshlrev_b32 v6, 4, v11")
    a("v_lshl_add_u32 v6, v5, 2, v6")
    a("v_lshlrev_b32 v7, 4, v0")
    a("s_lshl_b32 s10, s99, 12")
    a(f"s_add_u32 s10, s10, {OP_OFF}")
    a("s_lshl_b32 s8, s99, 7")
    a(f"s_add_u32 s8, s8, {O2_OFF}")
    wait_flags([({0: OF, 1: WF}[cfg.wf1], 4, 14)], 60, cfg.sleep_lds)
    stamp(7)

    def ld3():
        for i in range(4):
            a(f"buffer_load_dwordx4 {vr(40+4*i,4)}, v7, s[48:51], s10 offen offset:{1024*i} sc1")
    poll(ld3, lambda: check_tag(range(40, 56), 12, 13), cfg.sleep_l1, rec=13)
    stamp(8)
    for k in range(4):
        a(f"v_add_f32 v{40+k}, v{40+k}, v{44+k}")
        a(f"v_add_f32 v{48+k}, v{48+k}, v{52+k}")
    for k in range(4):
        a(f"v_add_f32 v{40+k}, v{40+k}, v{48+k}")
    a("s_nop 0")
    a("v_permlane32_swap_b32 v40, v42")
    a("v_permlane32_swap_b32 v41, v43")
    a("v_add_f32 v40, v40, v42")
    a("v_add_f32 v41, v41, v43")
    a("s_nop 1")
    a("v_permlane16_swap_b32 v40, v41")
    a("v_add_f32 v40, v40, v41")
    a("s_nop 1")
    a("v_add_f32_dpp v40, v40, v40 row_ror:8 row_mask:0xf bank_mask:0xf")
    a("v_cvt_pk_bf16_f32 v40, v40, v40")
    put_tag(40)
    a("s_mov_b32 exec_lo, 0x00ff00ff")
    a("s_mov_b32 exec_hi, 0x00ff00ff")
    a("buffer_store_dword v40, v6, s[48:51], s8 offen sc1")
    if cfg.wb == 1:
        a("s_cmp_ge_u32 s2, 8")
        a("s_cbranch_scc1 L_S_END")
        a("buffer_wbl2 sc1")
    if cfg.wb == 2:
        a("s_cmp_ge_u32 s2, 8")
        a("s_cbranch_scc1 L_S_END")
        a("s_mov_b64 exec, -1")
        wait_flags([(SF, 4, 14)], 60, cfg.sleep_lds)
        a("buffer_wbl2 sc1")
    a("s_branch L_S_END")

    a.label("L_S_tail")
    a("s_lshr_b32 s7, s98, 2")
    a("s_lshl_b32 s7, s7, 8")
    a(f"s_add_u32 s7, s7, {O2_OFF}")
    srd(56, 16, 4096)
    srd(60, 34, 4096)
    a("v_lshlrev_b32 v10, 2, v5")
    a("s_lshl_b32 s12, s98, 4")
    a("buffer_load_dword v36, v10, s[56:59], s12 offen")
    a("v_lshlrev_b32 v9, 7, v0")
    a("s_lshr_b32 s13, s98, 2" if not cfg.exp_local else "s_lshr_b32 s13, s99, 2")
    a("s_lshl_b32 s13, s13, 13")
    a("s_and_b32 s11, s98, 3")
    a("s_lshl_b32 s11, s11, 5")
    a("s_add_u32 s13, s13, s11")
    a(f"s_add_u32 s13, s13, {XP_OFF}")
    a("v_lshrrev_b32 v12, 5, v0")
    a("v_lshlrev_b32 v12, 14, v12")
    a("v_and_b32 v13, 31, v0")
    a("v_lshl_add_u32 v12, v13, 3, v12")
    a("v_lshlrev_b32 v13, 2, v0")
    wait_flags([(WF, 4, 14)], 60, cfg.sleep_lds)
    stamp(7)

    def ld5():
        a("buffer_load_dwordx2 v[40:41], v12, s[48:51], s7 offen sc1")
    poll(ld5, lambda: check_tag([40, 41], 42, 43), cfg.sleep_tail, rec=13)
    a("v_perm_b32 v40, v41, v40, s65")
    a(f"ds_write_b32 v13, v40 offset:{OB}")
    set_flag(BF)
    stamp(9)
    wait_flags([(SF, 4, 14)], 60, cfg.sleep_of)

    def ld4(r=40):
        a(f"buffer_load_dwordx4 {vr(r,4)}, v9, s[48:51], s13 offen sc1")
        a(f"buffer_load_dwordx4 {vr(r+4,4)}, v9, s[48:51], s13 offen offset:16 sc1")
    if cfg.ypipe <= 1:
        poll(ld4, lambda: check_tag(range(40, 48), 12, 13), cfg.sleep_tail)
    else:
        P = cfg.ypipe
        a(f"s_mov_b32 s15, {cfg.spin}")
        for p in range(P - 1):
            ld4(48 + 8 * p)
            a(f"s_sleep {cfg.ygap}")
        a.label("L_yloop")
        for p in range(P):
            ld4(48 + 8 * ((p + P - 1) % P))
            a(f"s_waitcnt vmcnt({2*(P-1)})")
            check_tag(range(48 + 8 * p, 56 + 8 * p), 12, 13)
            a(f"s_cbranch_scc1 L_ygot{p}")
        a("s_sub_u32 s15, s15, 1")
        a("s_cbranch_scc0 L_yloop")
        for p in range(P):
            a.label(f"L_ygot{p}")
            for k in range(8):
                a(f"v_mov_b32 v{40+k}, v{48+8*p+k}")
            if p < P - 1:
                a("s_branch L_ysum")
        a.label("L_ysum")
        a("s_nop 1")
    stamp(10)
    for k in range(4):
        a(f"v_permlane32_swap_b32 v{40+k}, v{44+k}")
    for k in range(4):
        a(f"v_add_f32 v{40+k}, v{40+k}, v{44+k}")
    a("s_nop 0")
    a("v_permlane16_swap_b32 v40, v42")
    a("v_permlane16_swap_b32 v41, v43")
    a("v_add_f32 v40, v40, v42")
    a("v_add_f32 v41, v41, v43")
    for s in (8, 4, 2, 1):
        a("s_nop 0")
        a(f"v_add_f32_dpp v40, v40, v40 row_ror:{s} row_mask:0xf bank_mask:0xf")
        a(f"v_add_f32_dpp v41, v41, v41 row_ror:{s} row_mask:0xf bank_mask:0xf")
    a("v_lshlrev_b32 v42, 16, v36")
    a("v_and_b32 v43, s66, v36")
    a("v_add_f32 v40, v40, v42")
    a("v_add_f32 v41, v41, v43")
    a("v_cvt_pk_bf16_f32 v40, v40, v41")
    a("s_mov_b32 exec_lo, 0x00010001")
    a("s_mov_b32 exec_hi, 0x00010001")
    a("buffer_store_dword v40, v10, s[60:63], s12 offen" + (" sc1" if cfg.outsc else ""))
    stamp(11)
    if cfg.padto:
        a("s_mov_b64 exec, -1")
        if cfg.padglobal:
            srd(52, 36, 256)
            a(f"buffer_load_dword v20, v14, s[52:55], 0 offen offset:{4*(cfg.padglobal-1)} sc1")
            a("s_waitcnt vmcnt(0)")
            a("v_readfirstlane_b32 s94, v20")
            if cfg.padglobal == 1:
                a("s_not_b32 s94, s94")
        a.label("L_pad")
        a("s_memrealtime s[96:97]")
        a("s_waitcnt lgkmcnt(0)")
        a("s_sub_u32 s96, s96, s94")
        a(f"s_cmp_lt_u32 s96, {cfg.padto}")
        a("s_cbranch_scc1 L_pad")
    a("s_cmp_lg_u32 s2, 0")
    a("s_cbranch_scc1 L_S_END")
    a("s_mov_b64 exec, 1")
    a(f"s_mov_b32 s9, {EP_OFF:#x}")
    a("buffer_store_dword v15, v14, s[48:51], s9 offen" + (" sc1" if cfg.outsc else ""))
    a.label("L_S_END")
    dump_stamps()
    a("s_endpgm")

    a.label("L_ATT")
    RING = 16
    SC = RING + 16 * R
    QR = SC + 32
    ST = QR + 8
    AC = QR
    PTA = AC + 32
    assert PTA + 16 <= 256 and ST + 26 <= 256 and R == 10
    a("s_sub_u32 s6, s3, 4")
    a("v_bfe_u32 v6, v4, 1, 1")
    a("v_lshrrev_b32 v7, 2, v4")
    a("v_lshl_add_u32 v6, v6, 2, v7")
    a("v_lshlrev_b32 v6, 8, v6")
    a("v_lshl_add_u32 v6, v5, 5, v6")
    a("v_and_b32 v7, 1, v4")
    a("v_lshl_add_u32 v6, v7, 4, v6")
    a("v_lshlrev_b32 v7, 4, v0")
    a("s_lshl_b32 s7, s99, 18")
    a("s_lshl_b32 s8, s6, 12")
    a("s_add_u32 s7, s7, s8")
    a("s_mov_b32 s8, s7")
    a("s_lshl_b32 s9, s6, 2")
    a("v_mov_b32 v13, s9")
    a("s_waitcnt lgkmcnt(0)")
    load_tag()
    srd(40, 18, 0x4000000)
    srd(44, 20, 0x4000000)
    srd(48, 38, WS_SIZE)
    srd(52, 24, 0x800000)
    srd(56, 32, 0x700000)
    consts()
    a("v_mul_u32_u24 v11, 272, v9")
    a("v_lshl_add_u32 v11, v5, 5, v11")
    a("v_lshl_add_u32 v11, v8, 4, v11")
    a("v_mov_b32 v10, 0xff800000")
    if not cfg.b0a:
        a("s_barrier")
    if not cfg.b0e:
        a("s_waitcnt lgkmcnt(0)")
        make_tag()
    N = cfg.n
    N0 = cfg.n0 or N
    NL = 144
    lim = [128]
    nl = [0]

    def slot_of(item):
        return RING + 16 * (item % R)

    def issue1():
        k = nl[0]
        if k >= lim[0]:
            return
        item, q = divmod(k, 4)
        slot = slot_of(item)
        if item < 16:
            a(f"buffer_load_dwordx4 {vr(slot+4*q,4)}, v6, s[40:43], s7 offen offset:{128*(q&1)+2048*(q>>1)}{KNT}")
            if q == 3 and item < 15:
                a("s_add_u32 s7, s7, 16384")
        elif item < 32:
            a(f"buffer_load_dwordx4 {vr(slot+4*q,4)}, v7, s[44:47], s8 offen offset:{1024*q}{VNT}")
            if q == 3 and item < 31:
                a("s_add_u32 s8, s8, 16384")
        elif item < 34:
            m = k - 128
            a(f"buffer_load_dwordx4 {vr(slot+4*q,4)}, v3, s[52:55], s11 offen offset:{2048*(m&1)}{NT}")
            if (m & 1) and m < 7:
                a("s_add_u32 s11, s11, 16384")
        else:
            e = k - 136
            a(f"buffer_load_dwordx4 {vr(slot+4*q,4)}, v1, s[56:59], s10 offen offset:{2048*(e&1)}{NT}")
            if (e & 1) and e < 7:
                a("s_add_u32 s10, s10, 4096")
        nl[0] += 1
        if cfg.pf and k == cfg.pf - 1:
            set_flag(PF)
        for c, (kc, thi, tlo) in enumerate(cps):
            if k == kc - 1:
                set_flag(CPF + 16 * c, 13)
        if k == cfg.go - 1:
            set_flag(GO, 13)
        if cfg.lf and k == cfg.lf - 1:
            set_flag(LF)
        if cfg.wf and k == cfg.wf - 1:
            set_flag(WF, 13)

    def wait_load(k):
        a(f"s_waitcnt vmcnt({nl[0] - k - 1})")

    NH = N
    lvl_pending = [False]
    lvl_on = [False]

    def thr():
        if not lvl_on[0]:
            return
        uid[0] += 1
        lab = f"L_go{uid[0]}"
        if cfg.nh > N + 1:
            a("s_bitcmp1_b32 s100, 1")
            a(f"s_cbranch_scc1 {lab}")
            a(f"s_waitcnt vmcnt({N})")
        a("s_bitcmp1_b32 s100, 0")
        a(f"s_cbranch_scc1 {lab}")
        a(f"s_waitcnt vmcnt({N-1})")
        a("s_bitcmp1_b32 s100, 2")
        a(f"s_cbranch_scc0 {lab}")
        a(f"s_waitcnt vmcnt({cfg.nl-1})")
        a.label(lab)

    def lvl_update():
        if lvl_pending[0]:
            a("s_waitcnt lgkmcnt(0)")
            a("v_readfirstlane_b32 s100, v2")
        a(f"ds_read_b32 v2, v14 offset:{LV}")
        lvl_pending[0] = True

    def advance(item):
        if lvl_on[0] and item < 24:
            lvl_update()
        for q in range(4):
            k = 4 * item + q
            if nl[0] < lim[0] and nl[0] - (k + 1) < NH:
                wait_load(k)
                while nl[0] < lim[0] and nl[0] - (k + 1) < NH:
                    thr()
                    issue1()
            elif q == 3:
                wait_load(k)

    for k in range(4 * R):
        if cfg.b0a and k == cfg.b0a:
            a("s_barrier")
        if k >= N0:
            a(f"s_waitcnt vmcnt({N0-1})")
        issue1()
    stamp(1)
    wait_flags([(QF, 1, 14)], QR, 1)
    if cfg.b0e:
        make_tag()
    stamp(2)
    for c in range(2):
        a(f"ds_read_b128 {vr(QR+4*c,4)}, v11 offset:{QB+128*c}")
    a("s_mov_b64 vcc, 0")
    a("s_waitcnt lgkmcnt(0)")

    def post(i):
        t = ST + 8 * (i & 1)
        w = ST + 16
        for q in range(4):
            a(f"v_add_f32_dpp v{w+6+q}, v{t+2*q+1}, v{t+2*q} row_ror:8 row_mask:0xf bank_mask:0xf")
        s = w + 6
        a(f"v_max3_f32 v10, v10, v{s}, v{s+1}")
        a(f"v_cvt_pk_bf16_f32 v{w+4}, v{s}, v{s+1}")
        a(f"v_cvt_pk_bf16_f32 v{w+5}, v{s+2}, v{s+3}")
        a(f"v_max3_f32 v10, v10, v{s+2}, v{s+3}")
        a(f"v_lshlrev_b32 v{w}, 16, v{w+4}")
        a(f"v_and_b32 v{w+1}, s66, v{w+4}")
        a(f"v_lshlrev_b32 v{w+2}, 16, v{w+5}")
        a(f"v_and_b32 v{w+3}, s66, v{w+5}")
        for k in range(4):
            a(f"v_mul_f32 v{w+k}, s68, v{w+k}")
        a(f"v_cvt_pk_bf16_f32 v{SC+2*i}, v{w}, v{w+1}")
        a(f"v_cvt_pk_bf16_f32 v{SC+2*i+1}, v{w+2}, v{w+3}")

    for i in range(16):
        advance(i)
        slot = slot_of(i)
        t = ST + 8 * (i & 1)
        for st_ in range(2):
            for ln in range(2):
                cc = "0" if ln == 0 else vr(t + 4 * st_, 4)
                a(f"v_mfma_f32_16x16x32_bf16 {vr(t+4*st_,4)}, {vr(slot+4*(2*st_+ln),4)}, {vr(QR+4*ln,4)}, {cc}")
        if nl[0] - 4 * (i + 1) >= NH and nl[0] < 4 * (i + 1 + R):
            cnt = cfg.catch0 if i == 0 else cfg.catch
            for _ in range(cnt):
                if nl[0] < 4 * (i + 1 + R):
                    a(f"s_waitcnt vmcnt({N-1})")
                    issue1()
        if i >= 1:
            a("s_nop 3")
            post(i - 1)
    a("s_nop 7")
    post(15)
    stamp(3)
    xlane("v_max_f32", 10, 11, [16, 32])
    w = ST
    MM, LL, L2 = ST + 8, ST + 9, ST + 10
    assert MM % 2 == 0
    round_bf16(MM, 10)
    a(f"v_mul_f32 v{MM}, s68, v{MM}")
    round_bf16(MM, MM)
    a(f"v_mul_f32 v11, s67, v{MM}")
    a(f"v_mov_b32 v{LL}, 0")
    a(f"v_mov_b32 v{L2}, 0")
    for k in range(0, 32, 2):
        if k % cfg.smstep == 0:
            issue1()
        for q in range(2):
            a(f"v_lshlrev_b32 v{w+2*q}, 16, v{SC+k+q}")
            a(f"v_and_b32 v{w+2*q+1}, s66, v{SC+k+q}")
        for q in range(4):
            a(f"v_fma_f32 v{w+q}, v{w+q}, s67, -v11")
        for q in range(4):
            a(f"v_exp_f32 v{w+q}, v{w+q}")
        a(f"v_add_f32 v{LL}, v{LL}, v{w}")
        a(f"v_add_f32 v{L2}, v{L2}, v{w+1}")
        a(f"v_cvt_pk_bf16_f32 v{SC+k}, v{w}, v{w+1}")
        a(f"v_add_f32 v{LL}, v{LL}, v{w+2}")
        a(f"v_add_f32 v{L2}, v{L2}, v{w+3}")
        a(f"v_cvt_pk_bf16_f32 v{SC+k+1}, v{w+2}, v{w+3}")
    a(f"v_add_f32 v{LL}, v{LL}, v{L2}")
    xlane("v_add_f32", LL, L2, [16, 32])
    a(f"v_min_u32 v{LL}, -2, v{LL}")
    a("s_lshl_b32 s9, s6, 6")
    a("v_lshlrev_b32 v12, 3, v0")
    a("v_add_u32 v12, s9, v12")
    a("s_mov_b64 exec, 0xff")
    a(f"ds_write_b64 v12, {vr(MM,2)} offset:{MLB}")
    a("s_mov_b64 exec, -1")
    stamp(4)
    issue1()
    a("s_lshr_b32 s4, s98, 2")
    a("s_and_b32 s5, s98, 3")
    a("s_mul_i32 s9, s6, 4224")
    a("v_mul_u32_u24 v10, 528, v4")
    a("v_lshl_add_u32 v10, v5, 7, v10")
    a("v_add_u32 v10, s9, v10")
    a("v_lshrrev_b32 v3, 1, v5")
    a("v_lshlrev_b32 v3, 5, v3")
    a("v_and_b32 v1, 1, v5")
    a("v_lshl_add_u32 v3, v1, 2, v3")
    a("v_lshl_add_u32 v3, v8, 1, v3")
    a("v_lshlrev_b32 v3, 11, v3")
    a("v_lshl_add_u32 v3, v9, 4, v3")
    a("v_lshlrev_b32 v1, 3, v8")
    a("v_lshl_add_u32 v1, v5, 4, v1")
    a("v_lshlrev_b32 v1, 11, v1")
    a("v_lshl_add_u32 v1, v9, 4, v1")
    a("s_lshl_b32 s11, s5, 9")
    a("s_lshl_b32 s12, s6, 7")
    a("s_add_u32 s12, s12, s11")
    a("s_lshl_b32 s11, s4, 17")
    a("s_add_u32 s11, s11, s12")
    a("s_and_b32 s10, s2, 7")
    a("s_mul_i32 s10, s10, 7")
    a("s_lshr_b32 s13, s2, 5")
    a("s_add_u32 s10, s10, s13")
    a("s_cmp_ge_u32 s4, 56")
    a("s_cselect_b32 s10, 56, s10")
    a("s_lshl_b32 s10, s10, 17")
    a("s_add_u32 s10, s10, s12")
    a("v_bfe_u32 v12, v4, 2, 1")
    a("v_lshlrev_b32 v12, 7, v12")
    a("v_lshl_add_u32 v12, v5, 5, v12")
    a("v_and_b32 v11, 1, v4")
    a("v_lshl_add_u32 v12, v11, 4, v12")
    a("v_lshlrev_b32 v11, 18, v5")
    a("v_lshrrev_b32 v6, 2, v9")
    a("v_lshl_add_u32 v11, v6, 13, v11")
    a("v_and_b32 v6, 3, v9")
    a("v_lshl_add_u32 v11, v6, 5, v11")
    a("v_lshl_add_u32 v11, v8, 4, v11")
    a("s_lshl_b32 s9, s5, 16")
    a("s_lshl_b32 s12, s6, 14")
    a("s_add_u32 s9, s9, s12")
    a("s_lshl_b32 s12, s4, 7")
    a("s_add_u32 s9, s9, s12")
    a(f"s_add_u32 s9, s9, {XP_OFF}")
    if cfg.exp_local:
        a("v_lshlrev_b32 v11, 15, v5")
        a("v_lshrrev_b32 v6, 2, v9")
        a("v_lshl_add_u32 v11, v6, 13, v11")
        a("v_and_b32 v6, 3, v9")
        a("v_lshl_add_u32 v11, v6, 5, v11")
        a("v_lshl_add_u32 v11, v8, 4, v11")
        a("s_and_b32 s9, s2, 7")
        a("s_lshl_b32 s9, s9, 16")
        a("s_and_b32 s12, s6, 1")
        a("s_lshl_b32 s12, s12, 14")
        a("s_add_u32 s9, s9, s12")
        a("s_lshr_b32 s12, s2, 3")
        a("s_lshl_b32 s12, s12, 8")
        a("s_add_u32 s9, s9, s12")
        a("s_lshr_b32 s12, s6, 1")
        a("s_lshl_b32 s12, s12, 7")
        a("s_add_u32 s9, s9, s12")
        a(f"s_add_u32 s9, s9, {XP_OFF}")
    a("v_lshrrev_b32 v4, 5, v0")
    a("s_lshl_b32 s12, s6, 1")
    a("v_add_u32 v4, s12, v4")
    a("v_lshlrev_b32 v5, 4, v4")
    a("v_mul_u32_u24 v4, 528, v4")
    a("v_and_b32 v6, 31, v0")
    a("v_lshl_add_u32 v4, v6, 4, v4")
    a("v_lshlrev_b32 v8, 4, v9")
    a("v_lshrrev_b32 v6, 3, v0")
    a("v_lshl_add_u32 v8, v6, 12, v8")
    a("v_mul_u32_u24 v6, 5, v6")
    a("v_add_u32 v6, s99, v6")
    a("v_and_b32 v6, 31, v6")
    a("v_lshl_add_u32 v8, v6, 7, v8")
    a("s_lshr_b32 s5, s99, 5")
    a("s_lshl_b32 s5, s5, 17")
    a("s_lshl_b32 s12, s6, 15")
    a("s_add_u32 s5, s5, s12")
    a(f"s_add_u32 s5, s5, {OP_OFF}")
    get_mode(6)
    if cfg.nv:
        N = NH = cfg.nv
    if cfg.rank:
        NH = cfg.nh
        lvl_on[0] = True
        a("s_mov_b32 s100, 0")
    for it in range(16, 32):
        advance(it)
        if it & 1:
            u = (it - 16) // 2
            s0 = slot_of(16 + 2 * u)
            s1 = slot_of(17 + 2 * u)
            src = lambda e, s0=s0, s1=s1: (s0 if e < 4 else s1) + 4 * (e & 3)

            def M(i, u=u):
                for h in range(2):
                    j = 2 * i + h
                    c = "0" if u == 0 else vr(AC + 4 * j, 4)
                    a(f"v_mfma_f32_16x16x32_bf16 {vr(AC+4*j,4)}, {vr(PTA+8*(i&1)+4*h,4)}, {vr(SC+4*u,4)}, {c}")
            perms(PTA, src, 0)
            perms(PTA + 8, src, 1)
            M(0)
            perms(PTA, src, 2)
            M(1)
            perms(PTA + 8, src, 3)
            M(2)
            M(3)
    stamp(5)
    a("s_mov_b32 exec_lo, 0x00ff00ff")
    a("s_mov_b32 exec_hi, 0x00ff00ff")
    for j in range(8):
        if j == 4:
            a("s_nop 0")
        a(f"ds_write_b128 v10, {vr(AC+4*j,4)} offset:{ORED+16*j}")
    a("s_mov_b64 exec, -1")
    set_flag(OF, 13)
    T0 = slot_of(0)
    wait_flags([(OF, 4, 14), (FF, 1, 14)], T0, 0)
    a(f"ds_read_b128 {vr(T0,4)}, v5 offset:{FB}")
    for w_ in range(4):
        a(f"ds_read_b128 {vr(T0+4+4*w_,4)}, v4 offset:{ORED+4224*w_}")
    a("s_waitcnt lgkmcnt(0)")
    for w_ in range(4):
        for k in range(4):
            if w_ == 0:
                a(f"v_mul_f32 v{T0+4+k}, v{T0}, v{T0+4+k}")
            else:
                a(f"v_fmac_f32 v{T0+4+k}, v{T0+w_}, v{T0+4+4*w_+k}")
    for k in range(4):
        put_tag(T0 + 4 + k)
    store_mode(f"buffer_store_dwordx4 {vr(T0+4,4)}, v8, s[48:51], s5 offen")
    stamp(6)
    TP = slot_of(6)
    XACC = SC
    wait_flags([(GF, 2, 14)], PTA, 1)
    lim[0] = NL
    NH = cfg.nw2 or NH
    for _ in range(NH):
        if _ >= cfg.nl:
            thr()
        issue1()
    advance(32)
    advance(33)
    srco = lambda e: (lambda m: slot_of(32 + (m >> 2)) + 4 * (m & 3))(2 * (e & 3) + (e >> 2))
    for i in range(4):
        perms(TP + 8 * i, srco, i)
    advance(34)
    assert nl[0] == NL
    if cfg.diagx:
        advance(35)
        stamp(7)
    wait_flags([(BF, 1, 14)], PTA + 4, 0)
    stamp(8)
    a(f"ds_read_b128 {vr(PTA+4,4)}, v12 offset:{OB}")
    a("s_waitcnt lgkmcnt(0)")
    for j in range(8):
        a(f"v_mfma_f32_16x16x32_bf16 {vr(XACC+4*j,4)}, {vr(PTA+4,4)}, {vr(TP+4*j,4)}, 0")
    a("s_cmp_ge_u32 s4, 56")
    a("s_cbranch_scc1 L_noffn")
    wait_flags([(HF, 1, 14)], PTA, 0)
    stamp(9)
    a(f"ds_read_b128 {vr(PTA,4)}, v12 offset:{HB}")
    advance(35)
    if not cfg.diagx:
        stamp(7)
    srcd = lambda e: slot_of(34 + (e >> 2)) + 4 * (e & 3)
    perms(TP + 32, srcd, 0)
    a("s_waitcnt lgkmcnt(0)")
    for i in range(4):
        if i < 3:
            perms(TP + 32 + 8 * (i + 1), srcd, i + 1)
        else:
            a("s_nop 0")
        for j in (2 * i, 2 * i + 1):
            a(f"v_mfma_f32_16x16x32_bf16 {vr(XACC+4*j,4)}, {vr(PTA,4)}, {vr(TP+32+4*j,4)}, {vr(XACC+4*j,4)}")
    a("s_nop 1")
    a.label("L_noffn")
    a("s_nop 3")
    a("s_nop 1")
    fold(PTA + 8, XACC)
    a("s_mov_b32 exec_hi, 0")
    a(f"buffer_store_dwordx4 {vr(PTA+8,4)}, v11, s[48:51], s9 offen" + ("" if cfg.exp_local == 1 else " sc1"))
    set_flag(SF, 13)
    stamp(10)
    dump_stamps()
    a.label("L_END")
    a("s_endpgm")

    probs = check_hazards(a.lines)
    for p in probs:
        print(p, file=sys.stderr)
    if probs:
        raise SystemExit("hazards found")

    pad = ""
    if cfg.codepf:
        psz = (512 << cfg.codepf) + 256 if cfg.codepf < 7 else 24576
        pad = f".fill ({psz} - (. - {NAME}_kernel)) / 4, 4, 0xBF800000\n"
    out = HEADER
    out += "; Generated by work/gen9.py (hand-written generator). One persistent launch, 256 workgroups x 8 waves.\n"
    out += f"; @launch grid=(256,1,1) block=(512,1,1) lds={LDS_SIZE}\n"
    out += f""".amdgcn_target "amdgcn-amd-amdhsa--gfx950"
.text
.globl {NAME}_kernel
.p2align 8
.type {NAME}_kernel,@function
{NAME}_kernel:
"""
    out += a.text()
    out += pad
    out += f""".section .rodata,"a"
.p2align 6
.amdhsa_kernel {NAME}_kernel
  .amdhsa_next_free_vgpr 256
  .amdhsa_next_free_sgpr 102
  .amdhsa_accum_offset 256
  .amdhsa_group_segment_fixed_size 0
  .amdhsa_kernarg_size 96
  .amdhsa_user_sgpr_count 2
  .amdhsa_user_sgpr_kernarg_segment_ptr 1
  .amdhsa_system_sgpr_workgroup_id_x 1
  .amdhsa_float_denorm_mode_32 3
.end_amdhsa_kernel
"""
    return out


def parse_args(argv=None):
    p = argparse.ArgumentParser()
    p.add_argument("-o", default="cdna_kernels/" + NAME + ".s")
    p.add_argument("--ring", type=int, default=10)
    p.add_argument("--stamps", type=int, default=0)
    p.add_argument("--codepf", type=int, default=8)
    p.add_argument("--sleep", type=int, default=8)
    p.add_argument("--sleep_q", type=int, default=0)
    p.add_argument("--sleep_lds", type=int, default=2)
    p.add_argument("--sleep_of", type=int, default=1)
    p.add_argument("--sleep_tail", type=int, default=0)
    p.add_argument("--spin", type=int, default=2000000)
    p.add_argument("--tagmask", type=int, default=15)
    p.add_argument("--n", type=int, default=6)
    p.add_argument("--n0", type=int, default=0)
    p.add_argument("--ns", type=int, default=12)
    p.add_argument("--gate", type=int, default=32)
    p.add_argument("--crot", type=int, default=1)
    p.add_argument("--pf", type=int, default=24)
    p.add_argument("--wf", type=int, default=136)
    p.add_argument("--catch0", type=int, default=4)
    p.add_argument("--catch", type=int, default=1)
    p.add_argument("--smstep", type=int, default=6)
    p.add_argument("--abl", type=int, default=0)
    p.add_argument("--cp", default="")
    p.add_argument("--exp_local", type=int, default=0)
    p.add_argument("--nv", type=int, default=0)
    p.add_argument("--b0a", type=int, default=6)
    p.add_argument("--pfwg", type=int, default=16)
    p.add_argument("--padfrom", type=int, default=0)
    p.add_argument("--rank", default="0:22:28")
    p.add_argument("--nsh", type=int, default=0)
    p.add_argument("--nw2", type=int, default=0)
    p.add_argument("--b0e", type=int, default=1)
    p.add_argument("--ypipe", type=int, default=3)
    p.add_argument("--ygap", type=int, default=5)
    p.add_argument("--wb", type=int, default=0)
    p.add_argument("--outsc", type=int, default=0)
    p.add_argument("--nont", type=int, default=0)
    p.add_argument("--diagx", type=int, default=0)
    p.add_argument("--go", type=int, default=128)
    p.add_argument("--sleep_l1", type=int, default=0)
    p.add_argument("--nofast", type=int, default=0)
    p.add_argument("--xtw", type=int, default=1)
    p.add_argument("--wf1", type=int, default=0)
    p.add_argument("--mlplain", type=int, default=0)
    p.add_argument("--satom", type=int, default=0)
    p.add_argument("--nh", type=int, default=8)
    p.add_argument("--nl", type=int, default=5)
    p.add_argument("--padto", type=int, default=0)
    p.add_argument("--padglobal", type=int, default=0)
    p.add_argument("--lf", type=int, default=108)
    p.add_argument("--k2", type=int, default=0)
    p.add_argument("--n2", type=int, default=10)
    p.add_argument("--kr", type=int, default=2)
    p.add_argument("--qmap", type=int, default=1)
    p.add_argument("--xm", type=int, default=1)
    p.add_argument("--gm", type=int, default=1)
    p.add_argument("--gpw", type=int, default=2)
    p.add_argument("--hnt", type=int, default=0)
    return p.parse_args(argv)


if __name__ == "__main__":
    cfg = parse_args()
    open(cfg.o, "w").write(gen(cfg))
    print("wrote", cfg.o)
```

```python
import sys
import argparse
import struct
import math
from asmlib import Asm, vr, check_hazards

NAME = "parallel_sum__gqa_block_cached__geglu_ffn__decode"

QP_OFF = 0x000000
GP_OFF = 0x020000
H2_OFF = 0x058000
ML_OFF = 0x060000
XT_OFF = 0x068000
EP_OFF = 0x070000
O2_OFF = 0x078000
OP_OFF = 0x080000
XP_OFF = 0x180000
ST_OFF = 0x200000
WS_SIZE = 0x400000
XN = 0x0000
QB = 0x0400
MLB = 0x0C80
FL = 0x0D80
OF = FL + 0
FF = FL + 16
LF = FL + 20
GF = FL + 24
QF = FL + 32
XF = FL + 36
PF = FL + 40
HF = FL + 48
BF = FL + 52
TG = FL + 56
LV = FL + 64
FM = FL + 68
WF = FL + 80
GO = FL + 96
SF = FL + 112
FB = 0x0E80
OB = 0x0F00
HB = 0x1100
ORED = 0x1300
LDS_SIZE = ORED + 4 * 4224

LOG2E = 0x3FB8AA3B
SCALE = 0x3DB504F3
EPS = 0x3727C5AC
MAGIC = 0x5A3C6000

HEADER = open("cdna_kernels/" + NAME + ".s.ref").read().split("; Override launch")[0]


def f32bits(x):
    return struct.unpack("<I", struct.pack("<f", x))[0]


def gen(cfg):
    a = Asm()
    R = 10
    NT = " nt"
    uid = [0]

    def newlab(p):
        uid[0] += 1
        return f"L_{p}{uid[0]}"

    def stamp(k):
        if cfg.stamps:
            a(f"s_memrealtime s[{70+2*k}:{71+2*k}]")

    def srd(d, p, size):
        a(f"s_mov_b32 s{d}, s{p}")
        a(f"s_mov_b32 s{d+1}, s{p+1}")
        a(f"s_mov_b32 s{d+2}, {size:#x}")
        a(f"s_mov_b32 s{d+3}, 0x20000")

    def dump_stamps():
        if not cfg.stamps:
            return
        a("s_waitcnt lgkmcnt(0)")
        for _ in range(3):
            a("s_sleep 127")
        a("s_mov_b64 exec, 1")
        a("s_lshl_b32 s4, s2, 10")
        a("s_lshl_b32 s5, s3, 7")
        a("s_add_u32 s4, s4, s5")
        a(f"s_add_u32 s4, s4, {ST_OFF}")
        a("v_mov_b32 v3, 0")
        for k in range(13):
            a(f"v_mov_b32 v1, s{70+2*k}")
            a(f"buffer_store_dword v1, v3, s[48:51], s4 offen offset:{4*k}")

    def poll(loads, check, sleep, cnt="vmcnt"):
        top, done = newlab("poll"), newlab("pdone")
        a(f"s_mov_b32 s15, {cfg.spin if cnt == 'vmcnt' else 8 * cfg.spin}")
        a.label(top)
        loads()
        a(f"s_waitcnt {cnt}(0)")
        check()
        a(f"s_cbranch_scc1 {done}")
        a("s_sub_u32 s15, s15, 1")
        a(f"s_cbranch_scc1 {done}")
        if sleep:
            a(f"s_sleep {sleep}")
        a(f"s_branch {top}")
        a.label(done)

    def check_tag(regs, t0, t1, full="-1", mask=0xff):
        regs = list(regs)
        a(f"v_xor_b32 v{t0}, s14, v{regs[0]}")
        a(f"v_xor_b32 v{t1}, s14, v{regs[1]}")
        for k, r in enumerate(regs[2:]):
            t = t0 if k % 2 == 0 else t1
            a(f"v_bitop3_b32 v{t}, v{r}, s14, v{t} bitop3:0xbe")
        a(f"v_or_b32 v{t0}, v{t0}, v{t1}")
        a(f"v_and_b32 v{t0}, {mask}, v{t0}")
        a(f"v_cmp_eq_u32 vcc, 0, v{t0}")
        a(f"s_cmp_eq_u64 vcc, {full}")

    def ppoll(P, gap, load, nloads, nregs, dst, t0, t1, full="-1"):
        if P <= 1:
            poll(lambda: load(dst), lambda: check_tag(range(dst, dst + nregs), t0, t1, full), gap)
            return
        base = lambda p: dst + nregs * (p + 1)
        top, out = newlab("pp"), newlab("ppo")
        got = [newlab("ppg") for _ in range(P)]
        a(f"s_mov_b32 s15, {cfg.spin}")
        for p in range(P - 1):
            load(base(p))
            a(f"s_sleep {gap}")
        a.label(top)
        for p in range(P):
            load(base((p + P - 1) % P))
            a(f"s_waitcnt vmcnt({nloads*(P-1)})")
            check_tag(range(base(p), base(p) + nregs), t0, t1, full)
            a(f"s_cbranch_scc1 {got[p]}")
        a("s_sub_u32 s15, s15, 1")
        a(f"s_cbranch_scc0 {top}")
        for p in range(P):
            a.label(got[p])
            for k in range(nregs):
                a(f"v_mov_b32 v{dst+k}, v{base(p)+k}")
            if p < P - 1:
                a(f"s_branch {out}")
        a.label(out)

    def wait_flags(reads, t, sleep):
        regs = []

        def ld():
            r = t
            regs.clear()
            for off, n, av in reads:
                op = {1: "ds_read_b32", 2: "ds_read_b64", 4: "ds_read_b128"}[n]
                a(f"{op} {vr(r,n)}, v{av} offset:{off}")
                regs.extend(range(r, r + n))
                r += (n + 1) & ~1

        def ck():
            rs = list(regs)
            while len(rs) >= 3:
                a(f"v_or3_b32 v{rs[0]}, v{rs[0]}, v{rs[1]}, v{rs[2]}")
                rs = [rs[0]] + rs[3:]
            if len(rs) == 2:
                a(f"v_or_b32 v{rs[0]}, v{rs[0]}, v{rs[1]}")
            a(f"v_cmp_eq_u32 vcc, 0, v{rs[0]}")
            a("s_cmp_eq_u64 vcc, -1")
        poll(ld, ck, sleep, cnt="lgkmcnt")

    def set_flag(off, av=14):
        a(f"ds_write_b32 v{av}, v14 offset:{off}")

    def get_mode(t):
        def ld():
            a(f"ds_read_b32 v{t}, v14 offset:{FM}")

        def ck():
            a(f"v_readfirstlane_b32 s101, v{t}")
            a("s_cmp_lg_u32 s101, -1")
        poll(ld, ck, cfg.sleep_lds, cnt="lgkmcnt")

    def store_mode(ins):
        f, d = newlab("stf"), newlab("std")
        a("s_cmp_eq_u32 s101, 1")
        a(f"s_cbranch_scc1 {f}")
        a(ins + " sc1")
        a(f"s_branch {d}")
        a.label(f)
        a(ins)
        a.label(d)

    def check_sentinel(regs, tmp):
        regs = list(regs)
        a(f"v_max3_u32 v{tmp}, v{regs[0]}, v{regs[1]}, v{regs[2]}")
        regs = regs[3:]
        while len(regs) >= 2:
            a(f"v_max3_u32 v{tmp}, v{tmp}, v{regs[0]}, v{regs[1]}")
            regs = regs[2:]
        if regs:
            a(f"v_max_u32 v{tmp}, v{tmp}, v{regs[0]}")
        a(f"v_cmp_ne_u32 vcc, -1, v{tmp}")
        a("s_cmp_eq_u64 vcc, -1")

    def put_tag(r):
        a(f"v_bfi_b32 v{r}, s69, v15, v{r}")

    def load_tag():
        a(f"s_load_dword s14, s[38:39], {EP_OFF:#x}")

    def make_tag():
        a("s_add_u32 s14, s14, 1")
        a("s_and_b32 s14, s14, 0xff")
        a("v_mov_b32 v15, s14")

    def xlane(op, x, t, steps):
        for s in steps:
            if s in (1, 2, 4, 8):
                a("s_nop 1")
                a(f"{op}_dpp v{x}, v{x}, v{x} row_ror:{s} row_mask:0xf bank_mask:0xf")
            else:
                a(f"v_mov_b32 v{t}, v{x}")
                a("s_nop 1")
                a(f"v_permlane{s}_swap_b32 v{x}, v{t}")
                a(f"{op} v{x}, v{x}, v{t}")

    def round_bf16(d, s):
        a(f"v_cvt_pk_bf16_f32 v{d}, v{s}, v{s}")
        a(f"v_lshlrev_b32 v{d}, 16, v{d}")

    def perms(dst, src_e, i):
        for p in range(4):
            a(f"v_perm_b32 v{dst+p}, v{src_e(2*p+1)+i}, v{src_e(2*p)+i}, s64")
        for p in range(4):
            a(f"v_perm_b32 v{dst+4+p}, v{src_e(2*p+1)+i}, v{src_e(2*p)+i}, s65")

    def fold(dst, acc):
        for k in range(4):
            a(f"v_add_f32_dpp v{dst+k}, v{acc+4*k+1}, v{acc+4*k} row_ror:8 row_mask:0xf bank_mask:0x3")
        for k in range(4):
            if k >= 2:
                a("s_nop 0")
            a(f"v_add_f32_dpp v{dst+k}, v{acc+4*(k+4)}, v{acc+4*(k+4)+1} row_ror:8 row_mask:0xf bank_mask:0xc")
        for k in range(4):
            put_tag(dst + k)

    def colgrp(d, ch, tmp):
        if cfg.cmap == 0:
            a(f"s_lshl1_add_u32 s{d}, s96, s{ch}")
        elif cfg.cmap == 1:
            a(f"s_lshl3_add_u32 s{d}, s{ch}, s96")
        elif cfg.cmap == 2:
            a(f"s_mul_i32 s{tmp}, s{ch}, 15")
            a(f"s_xor_b32 s{d}, s96, s{tmp}")
        else:
            a(f"s_mul_i32 s{tmp}, s{ch}, 12")
            a(f"s_xor_b32 s{d}, s96, s{tmp}")

    def consts():
        a("s_mov_b32 s64, 0x05040100")
        a("s_mov_b32 s65, 0x07060302")
        a("s_mov_b32 s66, 0xffff0000")
        a(f"s_mov_b32 s67, {LOG2E:#x}")
        a(f"s_mov_b32 s68, {SCALE:#x}")
        a("s_movk_i32 s69, 0xff")

    a("s_cmp_ge_u32 s2, 256")
    a("s_cbranch_scc1 L_END")
    a("s_load_dwordx16 s[16:31], s[0:1], 0")
    a("s_load_dwordx8 s[32:39], s[0:1], 64")
    stamp(0)
    a("v_lshrrev_b32 v3, 6, v0")
    a("s_and_b32 s96, s2, 7")
    a("s_lshr_b32 s97, s2, 3")
    a("v_and_b32 v0, 63, v0")
    a("v_readfirstlane_b32 s3, v3")
    a("s_lshl_b32 s99, s96, 5")
    a("s_or_b32 s99, s99, s97")
    a("s_lshr_b32 s98, s2, 5")
    a("v_and_b32 v4, 15, v0")
    a("v_lshrrev_b32 v5, 4, v0")
    a("v_mov_b32 v14, 0")
    a("v_lshrrev_b32 v8, 3, v4")
    a("v_and_b32 v9, 7, v4")
    a("s_cmp_ge_u32 s3, 4")
    a("s_cbranch_scc1 L_ATT")
    a("s_and_b32 s7, s97, 3")
    a("v_lshlrev_b32 v10, 3, v8")
    a("v_lshl_add_u32 v10, v5, 4, v10")
    a("s_cmp_lg_u32 s3, 0")
    a("s_cbranch_scc1 L_S123")

    XA = 16
    XO = 32
    XU = 36
    WR = 72
    ACC = 200
    PT = 232

    def wloads(stride, throttle, gate, bar=99):
        for T in range(4):
            for e in range(8):
                k = 8 * T + e
                if k == bar:
                    a("s_barrier")
                if throttle and k >= throttle:
                    a(f"s_waitcnt vmcnt({throttle-1})")
                a(f"buffer_load_dwordx4 {vr(WR+32*T+4*e,4)}, v10, s[40:43], s10 offen{NT}")
                if k < 31:
                    a(f"s_add_u32 s10, s10, {stride * (57 if e == 7 else 1)}")
                if gate and k == gate - 1:
                    set_flag(GF - 4, 13)

    if cfg.qmap == 0:
        a("s_xor_b32 s6, s98, 4")
        a("s_lshl3_add_u32 s6, s96, s6")
    elif cfg.qmap == 2:
        a("s_lshl3_add_u32 s6, s98, s96")
    elif cfg.qmap == 3:
        a("s_add_u32 s6, s96, s97")
        a("s_and_b32 s6, s6, 7")
        a("s_lshl3_add_u32 s6, s98, s6")
    else:
        a("s_lshl3_add_u32 s6, s98, s96")
        a("s_mul_i32 s4, s6, 37")
        a("s_lshr_b32 s4, s4, 8")
        a("s_mul_i32 s5, s4, 7")
        a("s_sub_u32 s5, s6, s5")
        a("s_cmp_ge_u32 s5, 3")
        a("s_addc_u32 s5, s5, 0")
        a("s_lshl_b32 s4, s4, 3")
        a("s_add_u32 s5, s5, s4")
        a("s_lshl_b32 s4, s6, 3")
        a(f"s_sub_u32 s4, s4, {56*8-3}")
        a("s_cmp_ge_u32 s6, 56")
        a("s_cselect_b32 s6, s4, s5")
    a("v_lshlrev_b32 v6, 6, v0")
    a("v_lshrrev_b32 v7, 5, v0")
    a("v_lshlrev_b32 v7, 11, v7")
    a("v_and_b32 v11, 31, v0")
    a("v_lshl_add_u32 v7, v11, 4, v7")
    a("s_lshl_b32 s12, s7, 9")
    a("v_lshlrev_b32 v10, 13, v10")
    a("v_lshl_add_u32 v10, v9, 4, v10")
    a("s_lshl_b32 s10, s7, 21")
    a("s_lshl_b32 s11, s6, 7")
    a("s_add_u32 s10, s10, s11")
    a("s_waitcnt lgkmcnt(0)")
    srd(56, 16, 4096)
    srd(40, 22, 0x800000)
    load_tag()
    for i in range(4):
        a(f"buffer_load_dwordx4 {vr(XA+4*i,4)}, v6, s[56:59], 0 offen offset:{16*i}")
    a(f"buffer_load_dwordx4 {vr(XO,4)}, v7, s[56:59], s12 offen")
    wloads(8192, 0, 0, cfg.s0b)
    stamp(1)
    if cfg.s0b >= 32:
        a("s_barrier")
    srd(48, 38, WS_SIZE)
    consts()
    a("s_mov_b32 s69, 15")
    a("s_mov_b32 s9, 16384")
    a("s_mov_b32 s101, 0")
    a("s_lshl_b32 s10, s7, 15")
    a("s_lshl_b32 s11, s6, 8")
    a("s_add_u32 s10, s10, s11")
    a("s_waitcnt vmcnt(32)")
    stamp(2)
    for i in range(16):
        a(f"v_lshlrev_b32 v{XU+2*i}, 16, v{XA+i}")
        a(f"v_and_b32 v{XU+2*i+1}, s66, v{XA+i}")
    for k in range(4):
        a(f"v_add_f32 v{XA+k}, v{XU+k}, v{XU+4+k}")
    for i in range(8, 32):
        a(f"v_add_f32 v{XA+(i&3)}, v{XA+(i&3)}, v{XU+i}")
    a(f"v_add_f32 v11, v{XA}, v{XA+1}")
    a(f"v_add_f32 v13, v{XA+2}, v{XA+3}")
    a("v_add_f32 v11, v11, v13")
    xlane("v_add_f32", 11, 12, [8, 4, 2, 1, 16])
    a("v_mul_f32 v11, 0x3a800000, v11")
    for i in range(32):
        a(f"v_sub_f32 v{XU+i}, v{XU+i}, v11")
    for k in range(4):
        a(f"v_mul_f32 v{XA+k}, v{XU+k}, v{XU+k}")
    for i in range(4, 32):
        a(f"v_fmac_f32 v{XA+(i&3)}, v{XU+i}, v{XU+i}")
    a(f"v_add_f32 v12, v{XA}, v{XA+1}")
    a(f"v_add_f32 v13, v{XA+2}, v{XA+3}")
    a("v_add_f32 v12, v12, v13")
    xlane("v_add_f32", 12, 13, [8, 4, 2, 1, 16])
    a("v_mul_f32 v12, 0x3a800000, v12")
    round_bf16(11, 11)
    round_bf16(12, 12)
    a(f"v_add_f32 v12, {EPS:#x}, v12")
    round_bf16(12, 12)
    a("v_sqrt_f32 v12, v12")
    a("s_nop 0")
    round_bf16(12, 12)
    a("v_rcp_f32 v13, v12")
    for i in range(4):
        a(f"v_lshlrev_b32 v{XU+2*i}, 16, v{XO+i}")
        a(f"v_and_b32 v{XU+2*i+1}, s66, v{XO+i}")
    for i in range(8):
        a(f"v_sub_f32 v{XU+i}, v{XU+i}, v11")
    for i in range(4):
        a(f"v_cvt_pk_bf16_f32 v{XO+i}, v{XU+2*i}, v{XU+2*i+1}")
    for i in range(4):
        a(f"v_lshlrev_b32 v{XU+2*i}, 16, v{XO+i}")
        a(f"v_and_b32 v{XU+2*i+1}, s66, v{XO+i}")
    for i in range(8):
        a(f"v_mul_f32 v{XU+8+i}, v{XU+i}, v13")
    for i in range(8):
        a(f"v_fma_f32 v{XU+i}, -v{XU+8+i}, v12, v{XU+i}")
    for i in range(8):
        a(f"v_fmac_f32 v{XU+8+i}, v{XU+i}, v13")
    for i in range(4):
        a(f"v_cvt_pk_bf16_f32 v{XO+i}, v{XU+8+2*i}, v{XU+8+2*i+1}")
    a("v_lshlrev_b32 v11, 4, v0")
    a(f"ds_write_b128 v11, {vr(XO,4)} offset:{XN}")
    set_flag(XF)
    a("s_waitcnt lgkmcnt(0)")
    make_tag()

    a.label("L_S_gemv")
    a("v_bfe_u32 v11, v4, 2, 1")
    a("v_lshlrev_b32 v11, 9, v11")
    a("v_lshl_add_u32 v11, v5, 5, v11")
    a("v_and_b32 v12, 1, v4")
    a("v_lshl_add_u32 v11, v12, 4, v11")
    for T in range(4):
        a(f"ds_read_b128 {vr(XU+4*T,4)}, v11 offset:{XN+128*T}")
    stamp(3)
    a("v_mul_u32_u24 v12, s9, v5")
    a("v_lshl_add_u32 v12, v9, 5, v12")
    a("v_lshl_add_u32 v12, v8, 4, v12")
    a("s_waitcnt lgkmcnt(0)")
    for T in range(4):
        a(f"s_waitcnt vmcnt({24-8*T})")
        src = lambda e, T=T: WR + 32 * T + 4 * e

        def M(i, T=T):
            for h in range(2):
                j = 2 * i + h
                c = "0" if T == 0 else vr(ACC + 4 * j, 4)
                a(f"v_mfma_f32_16x16x32_bf16 {vr(ACC+4*j,4)}, {vr(XU+4*T,4)}, {vr(PT+8*(i&1)+4*h,4)}, {c}")
        perms(PT, src, 0)
        perms(PT + 8, src, 1)
        M(0)
        perms(PT, src, 2)
        M(1)
        perms(PT + 8, src, 3)
        M(2)
        M(3)
    stamp(4)
    a("s_nop 3")
    fold(PT, ACC)
    a("s_mov_b32 exec_hi, 0")
    store_mode(f"buffer_store_dwordx4 {vr(PT,4)}, v12, s[48:51], s10 offen")
    a("s_mov_b64 exec, -1")
    a("s_cmp_eq_u32 s3, 1")
    a("s_cbranch_scc1 " + ("L_S_END" if cfg.ffn1 else "L_S1_h"))
    a("s_cmp_eq_u32 s3, 2")
    a("s_cbranch_scc1 L_S2_h")
    a("v_lshlrev_b32 v6, 4, v0")
    a("s_lshl_b32 s10, s96, 12")
    a("s_add_u32 s11, s10, 32768")
    a("s_add_u32 s12, s10, 65536")
    a("s_add_u32 s13, s10, 98304")
    a("v_lshrrev_b32 v7, 5, v0")
    a("v_mul_u32_u24 v7, 272, v7")
    a("v_and_b32 v11, 31, v0")
    a("v_lshl_add_u32 v7, v11, 3, v7")
    wait_flags([(PF, 1, 14)], 16, cfg.sleep_lds)
    stamp(6)

    def ldq():
        for kq in range(4):
            for i in range(4):
                a(f"buffer_load_dwordx4 {vr(32+16*kq+4*i,4)}, v6, s[48:51], s{10+kq} offen offset:{1024*i} sc1")
    poll(ldq, lambda: check_tag(range(32, 96), 11, 12, mask=15), 0)
    stamp(5)
    for k in range(16):
        a(f"v_add_f32 v{32+k}, v{32+k}, v{48+k}")
        a(f"v_add_f32 v{64+k}, v{64+k}, v{80+k}")
    for k in range(16):
        a(f"v_add_f32 v{32+k}, v{32+k}, v{64+k}")
    for i in range(4):
        a(f"v_cvt_pk_bf16_f32 v{48+2*i}, v{32+4*i}, v{33+4*i}")
        a(f"v_cvt_pk_bf16_f32 v{49+2*i}, v{34+4*i}, v{35+4*i}")
        a(f"ds_write_b64 v7, {vr(48+2*i,2)} offset:{QB+544*i}")
    set_flag(QF)
    a("s_lshl_b32 s7, s97, 9")
    a(f"s_add_u32 s7, s7, {O2_OFF}")
    srd(56, 16, 4096)
    srd(60, 34, 4096)
    a("v_and_b32 v10, 1, v0")
    a("v_lshl_add_u32 v10, v10, 2, v5")
    a("v_lshlrev_b32 v10, 1, v10")
    a("s_lshr_b32 s12, s97, 4")
    a("s_lshl_b32 s12, s12, 11")
    a("s_bfe_u32 s4, s97, 0x10003")
    colgrp(11, 4, 5)
    a("s_lshl_b32 s11, s11, 7")
    a("s_add_u32 s12, s12, s11")
    a("s_and_b32 s11, s97, 7")
    a("s_lshl_b32 s11, s11, 4")
    a("s_add_u32 s12, s12, s11")
    a("buffer_load_ushort v36, v10, s[56:59], s12 offen")
    a("v_lshrrev_b32 v9, 1, v0")
    a("v_lshlrev_b32 v9, 7, v9")
    a("v_and_b32 v6, 1, v0")
    a("v_lshl_add_u32 v9, v6, 4, v9")
    a("s_lshr_b32 s13, s99, 2")
    a("s_lshl_b32 s13, s13, 13")
    a("s_and_b32 s11, s97, 3")
    a("s_lshl_b32 s11, s11, 5")
    a("s_add_u32 s13, s13, s11")
    a(f"s_add_u32 s13, s13, {XP_OFF}")
    a("s_add_u32 s8, s13, 4096")
    a("v_lshrrev_b32 v11, 5, v0")
    a("v_lshlrev_b32 v11, 14, v11")
    a("v_and_b32 v6, 31, v0")
    a("v_lshl_add_u32 v11, v6, 4, v11")
    a("v_lshlrev_b32 v6, 3, v0")
    wait_flags([(WF, 4, 14)], 16, cfg.sleep_lds)
    stamp(7)
    ppoll(cfg.opipe, cfg.ogap, lambda r: a(f"buffer_load_dwordx4 {vr(r,4)}, v11, s[48:51], s7 offen sc1"), 1, 4, 100, 12, 13)
    a("v_perm_b32 v100, v101, v100, s65")
    a("v_perm_b32 v101, v103, v102, s65")
    a(f"ds_write_b64 v6, v[100:101] offset:{OB}")
    set_flag(BF)
    stamp(9)
    wait_flags([(SF, 4, 14)], 16, 1)

    def ld4(r):
        a(f"buffer_load_dwordx4 {vr(r,4)}, v9, s[48:51], s13 offen sc1")
        a(f"buffer_load_dwordx4 {vr(r+4,4)}, v9, s[48:51], s8 offen sc1")
    ppoll(cfg.ypipe, cfg.ygap, ld4, 2, 8, 40, 12, 13)
    stamp(10)
    for k in range(4):
        a(f"v_add_f32 v{40+k}, v{40+k}, v{44+k}")
    a("v_lshlrev_b32 v36, 16, v36")
    a("v_permlane32_swap_b32 v40, v42")
    a("v_permlane32_swap_b32 v41, v43")
    a("v_add_f32 v40, v40, v42")
    a("v_add_f32 v41, v41, v43")
    a("s_nop 1")
    a("v_permlane16_swap_b32 v40, v41")
    a("v_add_f32 v40, v40, v41")
    for s in (8, 4, 2):
        a("s_nop 1")
        a(f"v_add_f32_dpp v40, v40, v40 row_ror:{s} row_mask:0xf bank_mask:0xf")
    a("v_add_f32 v40, v40, v36")
    a("v_cvt_pk_bf16_f32 v40, v40, v40")
    a("s_mov_b32 exec_lo, 0x00030003")
    a("s_mov_b32 exec_hi, 0x00030003")
    a("buffer_store_short v40, v10, s[60:63], s12 offen")
    stamp(11)
    a("s_cmp_lg_u32 s2, 0")
    a("s_cbranch_scc1 L_S_END")
    a("s_mov_b64 exec, 1")
    a(f"s_mov_b32 s9, {EP_OFF:#x}")
    a("buffer_store_dword v15, v14, s[48:51], s9 offen")
    a.label("L_S_END")
    dump_stamps()
    a("s_endpgm")

    a.label("L_S123")
    a("v_mov_b32 v11, -1")
    a("v_lshlrev_b32 v12, 2, v0")
    a(f"ds_write_b32 v12, v11 offset:{MLB}")
    a(f"ds_write_b32 v12, v11 offset:{FL}")
    a("s_waitcnt lgkmcnt(0)")
    load_tag()
    a("s_barrier")
    consts()
    a(f"s_mov_b32 s9, {14336 if cfg.ffn1 else 256}")
    a("s_add_u32 s5, s3, s98")
    a("s_sub_u32 s4, s5, 7")
    a("s_cmp_ge_u32 s5, 7")
    a("s_cselect_b32 s5, s4, s5")
    a("s_mul_i32 s6, s96, 7")
    a("s_add_u32 s5, s5, s6")
    a("s_add_u32 s6, s6, s98")
    if cfg.gmap == 1:
        a("s_mul_i32 s5, s3, 3")
        a("s_add_u32 s5, s5, s96")
        a("s_add_u32 s5, s5, s98")
        a("s_and_b32 s5, s5, 7")
        a("s_lshl3_add_u32 s5, s98, s5")
    if cfg.gmap == 2:
        a("s_mul_i32 s5, s3, 3")
        a("s_add_u32 s5, s5, s96")
        a("s_add_u32 s5, s5, s97")
        a("s_and_b32 s5, s5, 7")
        a("s_lshl3_add_u32 s5, s98, s5")
    a("v_mul_u32_u24 v10, 7168, v10")
    a("v_lshl_add_u32 v10, v9, 4, v10")
    a(f"s_mul_i32 s10, s7, {256*7168}")
    a("s_lshl_b32 s11, s5, 7")
    a("s_add_u32 s10, s10, s11")
    a("s_lshl_b32 s4, s3, 2")
    a("v_mov_b32 v13, s4")
    srd(48, 38, WS_SIZE)
    a("s_cmp_eq_u32 s3, 2")
    a("s_cselect_b64 s[40:41], s[30:31], s[28:29]")
    a("s_mov_b32 s42, 0x700000")
    a("s_mov_b32 s43, 0x20000")
    a("s_waitcnt lgkmcnt(0)")
    make_tag()
    if cfg.codepf:
        a(f"s_cmp_ge_u32 s2, {cfg.codepf}")
        a("s_cbranch_scc1 L_nopf")
        a("s_getpc_b64 s[12:13]")
        a.label("L_pcref")
        a(f"s_sub_u32 s12, s12, L_pcref - {NAME}_kernel + 8192")
        a("s_subb_u32 s13, s13, 0")
        a("v_lshlrev_b32 v1, 7, v0")
        a("v_lshl_add_u32 v1, v3, 13, v1")
        a("global_load_dword v2, v1, s[12:13]")
        a.label("L_nopf")
    a("s_cmp_eq_u32 s3, 3")
    a("s_cbranch_scc1 L_S3")
    set_flag(TG - 4, 13)
    a("s_cmp_lt_u32 s98, 7")
    a("s_cbranch_scc1 L_S12")
    set_flag(GF - 4, 13)
    a("s_cmp_eq_u32 s3, 1")
    a("s_cbranch_scc1 L_S_END")
    wait_flags([(WF, 4, 14)], 16, cfg.sleep_lds)
    a("s_branch L_S2_h")
    a.label("L_S12")
    a("v_lshlrev_b32 v12, 1, v13")
    wait_flags([(XF, 1, 14)], 16, cfg.sleep_lds)
    get_mode(16)
    wait_flags([(GO - 8, 2, 12)], 16, cfg.sleep_lds)
    stamp(2)
    wloads(7168, cfg.ns, cfg.gate)
    stamp(1)
    if cfg.ffn1:
        a("s_lshl1_add_u32 s10, s7, s3")
        a("s_mul_i32 s10, s10, 28672")
        a("s_lshl_b32 s12, s5, 8")
        a("s_add_u32 s10, s10, s12")
        a(f"s_add_u32 s10, s10, {GP_OFF-28672}")
        a("s_mov_b32 s101, 0")
    else:
        a("s_lshl_b32 s10, s5, 12")
        a("s_lshl_b32 s12, s7, 10")
        a("s_add_u32 s10, s10, s12")
        a("s_lshl_b32 s12, s3, 9")
        a("s_add_u32 s10, s10, s12")
        a(f"s_add_u32 s10, s10, {GP_OFF-512}")
    a("s_branch L_S_gemv")

    a.label("L_S2_h")
    a("v_mov_b32 v15, 0")
    a("v_lshlrev_b32 v6, 3, v0")
    a(f"ds_write_b64 v6, v[14:15] offset:{HB}")
    a("v_lshrrev_b32 v7, 5, v0")
    a("v_and_b32 v6, 31, v0")
    a("v_mul_u32_u24 v11, 14336, v7")
    a("v_lshl_add_u32 v11, v6, 4, v11")
    a("s_mul_i32 s10, s97, 448")
    a(f"s_add_u32 s10, s10, {H2_OFF}")
    a("v_lshlrev_b32 v7, 8, v7")
    for k in range(4):
        a(f"v_lshl_add_u32 v{60+k}, v6, 2, {k}")
        a(f"v_mul_u32_u24 v12, 147, v{60+k}")
        a("v_lshrrev_b32 v12, 10, v12")
        a(f"v_add_u32 v{60+k}, v{60+k}, v12")
        a(f"v_lshl_add_u32 v{60+k}, v{60+k}, 1, v7")
    if cfg.ffn1:
        a("s_mul_i32 s10, s97, 448")
        a(f"s_add_u32 s10, s10, {GP_OFF}")
        for z in range(1, 8):
            a(f"s_add_u32 s{16+z}, s10, {28672*z}")
        a("s_mov_b32 s16, s10")
        a(f"s_mov_b32 s4, {f32bits(0.044715):#x}")
        a(f"s_mov_b32 s5, {f32bits(-2.0 * math.sqrt(2.0 / math.pi) * math.log2(math.e)):#x}")
        wait_flags([(WF, 4, 14)], 16, cfg.sleep_lds)
    a("s_mov_b32 exec_lo, 0x0fffffff")
    a("s_mov_b32 exec_hi, 0x0fffffff")
    stamp(5)
    if cfg.ffn1:
        def ldh():
            for z in range(8):
                a(f"buffer_load_dwordx4 {vr(16+4*z,4)}, v11, s[48:51], s{16+z} offen sc1")
        poll(ldh, lambda: check_tag(range(16, 48), 12, 13, "exec"), cfg.hgap)
        for k in range(8):
            a(f"v_add_f32 v{16+k}, v{16+k}, v{24+k}")
            a(f"v_add_f32 v{32+k}, v{32+k}, v{40+k}")
        for k in range(8):
            a(f"v_add_f32 v{16+k}, v{16+k}, v{32+k}")
        for k in range(8):
            round_bf16(16 + k, 16 + k)
        for k in range(4):
            a(f"v_mul_f32 v{24+k}, v{16+k}, v{16+k}")
        for k in range(4):
            a(f"v_mul_f32 v{24+k}, v{24+k}, v{16+k}")
        for k in range(4):
            a(f"v_fma_f32 v{24+k}, v{24+k}, s4, v{16+k}")
        for k in range(4):
            a(f"v_mul_f32 v{24+k}, s5, v{24+k}")
        for k in range(4):
            a(f"v_exp_f32 v{24+k}, v{24+k}")
        for k in range(4):
            a(f"v_add_f32 v{24+k}, 1.0, v{24+k}")
        for k in range(4):
            a(f"v_rcp_f32 v{24+k}, v{24+k}")
        for k in range(4):
            a(f"v_mul_f32 v{24+k}, v{24+k}, v{16+k}")
        for k in range(4):
            round_bf16(24 + k, 24 + k)
        for k in range(4):
            a(f"v_mul_f32 v{24+k}, v{24+k}, v{20+k}")
        for k in range(4):
            a(f"v_cvt_pk_bf16_f32 v{16+k}, v{24+k}, v{24+k}")
    else:
        ppoll(cfg.hpipe, cfg.hgap, lambda r: a(f"buffer_load_dwordx4 {vr(r,4)}, v11, s[48:51], s10 offen sc1"), 1, 4, 16, 12, 13, full="exec")
    for k in range(4):
        a(f"ds_write_b16_d16_hi v{60+k}, v{16+k} offset:{HB}")
    set_flag(HF)
    stamp(6)
    a("s_branch L_S_END")

    a.label("L_S3")
    set_flag(LV)
    a("s_getreg_b32 s4, hwreg(HW_REG_XCC_ID)")
    a("s_and_b32 s4, s4, 15")
    a("s_lshl_b32 s4, s4, 8")
    a(f"s_or_b32 s5, s14, {MAGIC:#x}")
    a("s_or_b32 s4, s4, s5")
    a("v_mov_b32 v16, s4")
    a("s_lshl_b32 s10, s99, 6")
    a(f"s_add_u32 s10, s10, {XT_OFF}")
    a("s_mov_b64 exec, 1")
    a("buffer_store_dword v16, v14, s[48:51], s10 offen sc1")
    a("s_mov_b64 exec, -1")
    a("v_and_b32 v7, 31, v0")
    a("v_lshlrev_b32 v7, 6, v7")
    a("s_lshl_b32 s10, s96, 11")
    a(f"s_add_u32 s10, s10, {XT_OFF}")
    wait_flags([(TG, 2, 14), (PF, 1, 14)], 16, cfg.sleep_lds)

    def ckx():
        a("v_and_b32 v17, 0xfffff0ff, v16")
        a("v_cmp_eq_u32 vcc, s5, v17")
        a("s_cmp_eq_u64 vcc, -1")
    poll(lambda: a("buffer_load_dword v16, v7, s[48:51], s10 offen sc1"), ckx, 8)
    a("v_cmp_eq_u32 vcc, s4, v16")
    a("s_cmp_eq_u64 vcc, -1")
    a("s_cselect_b32 s101, 1, 0")
    if cfg.nofast:
        a("s_mov_b32 s101, 0")
    a("v_mov_b32 v16, s101")
    a(f"ds_write_b32 v14, v16 offset:{FM}")
    stamp(4)
    a("v_and_b32 v6, 7, v0")
    a("v_lshlrev_b32 v6, 3, v6")
    a("v_and_b32 v7, 31, v0")
    a("v_lshlrev_b32 v7, 3, v7")
    a("s_lshl_b32 s13, s99, 6")
    a(f"s_add_u32 s13, s13, {ML_OFF}")

    def ldm():
        for w in range(4):
            a(f"ds_read_b64 {vr(16+2*w,2)}, v6 offset:{MLB+64*w}")
    poll(ldm, lambda: check_sentinel(range(16, 24), 11), cfg.sleep_lds, cnt="lgkmcnt")
    stamp(5)
    a(f"ds_read_b32 v30, v7 offset:{MLB}")

    def combine4(mo):
        a(f"v_max3_f32 v{mo}, v16, v18, v20")
        a(f"v_max_f32 v{mo}, v{mo}, v22")

    def wsum4(mo, lo):
        for w in range(4):
            a(f"v_sub_f32 v{16+2*w}, v{16+2*w}, v{mo}")
        for w in range(4):
            a(f"v_mul_f32 v{16+2*w}, s67, v{16+2*w}")
        for w in range(4):
            a(f"v_exp_f32 v{16+2*w}, v{16+2*w}")
        a("s_nop 0")
        a(f"v_mul_f32 v{lo}, v16, v17")
        for w in range(1, 4):
            a(f"v_fmac_f32 v{lo}, v{16+2*w}, v{17+2*w}")
    combine4(24)
    wsum4(24, 25)
    put_tag(24)
    put_tag(25)
    a("s_mov_b64 exec, 0xff")
    store_mode("buffer_store_dwordx2 v[24:25], v6, s[48:51], s13 offen")
    a("s_mov_b64 exec, -1")
    a("s_lshl_b32 s10, s96, 11")
    a(f"s_add_u32 s10, s10, {ML_OFF}")
    a("v_lshlrev_b32 v7, 3, v0")
    if cfg.rank:
        mid, hi = (int(z) for z in cfg.rank.split(":"))
        for i in range(4):
            a(f"buffer_load_dword v{16+i}, v7, s[48:51], s10 offen offset:{512*i} sc1")
        a("s_waitcnt vmcnt(0)")
        a("s_mov_b32 s4, 0")
        for i in range(4):
            a(f"v_and_b32 v{16+i}, 0xffff, v{16+i}")
            a(f"v_cmp_eq_u32 vcc, s14, v{16+i}")
            a("s_bcnt1_i32_b64 s5, vcc")
            a("s_add_u32 s4, s4, s5")
        a(f"s_cmp_ge_u32 s4, {8*mid}")
        a("s_cselect_b32 s5, 1, 0")
        a(f"s_cmp_ge_u32 s4, {8*hi}")
        a("s_cselect_b32 s5, 3, s5")
        a("v_mov_b32 v16, s5")
        a(f"ds_write_b32 v14, v16 offset:{LV}")
    wait_flags([(LF, 1, 14)], 16, cfg.sleep_lds)

    def ld2():
        for i in range(4):
            a(f"buffer_load_dwordx2 {vr(16+2*i,2)}, v7, s[48:51], s10 offen offset:{512*i} sc1")
    poll(ld2, lambda: check_tag(range(16, 24), 11, 12), 8)
    stamp(6)
    for w in range(4):
        a(f"v_and_b32 v{16+2*w}, s66, v{16+2*w}")
    combine4(26)
    xlane("v_max_f32", 26, 11, [8, 16, 32])
    wsum4(26, 27)
    xlane("v_add_f32", 27, 11, [8, 16, 32])
    a("v_sub_f32 v30, v30, v26")
    a("v_mul_f32 v30, s67, v30")
    a("v_exp_f32 v30, v30")
    a("v_rcp_f32 v27, v27")
    a("v_bfe_u32 v7, v0, 3, 2")
    a("v_lshlrev_b32 v7, 2, v7")
    a("v_lshl_add_u32 v7, v6, 1, v7")
    a("v_mul_f32 v30, v30, v27")
    a(f"ds_write_b32 v7, v30 offset:{FB}")
    set_flag(FF)
    a("v_lshlrev_b32 v6, 4, v9")
    a("v_lshl_add_u32 v6, v5, 2, v6")
    a("v_lshlrev_b32 v7, 4, v0")
    a("s_lshl_b32 s10, s99, 12")
    a(f"s_add_u32 s10, s10, {OP_OFF}")
    a("s_lshl_b32 s8, s99, 7")
    a(f"s_add_u32 s8, s8, {O2_OFF}")
    wait_flags([(OF, 4, 14)], 16, cfg.sleep_lds)
    stamp(7)

    def ld3(r):
        for i in range(4):
            a(f"buffer_load_dwordx4 {vr(r+4*i,4)}, v7, s[48:51], s10 offen offset:{1024*i} sc1")
    ppoll(cfg.lpipe, cfg.lgap, ld3, 4, 16, 40, 12, 13)
    stamp(8)
    for k in range(4):
        a(f"v_add_f32 v{40+k}, v{40+k}, v{44+k}")
        a(f"v_add_f32 v{48+k}, v{48+k}, v{52+k}")
    for k in range(4):
        a(f"v_add_f32 v{40+k}, v{40+k}, v{48+k}")
    a("s_nop 0")
    a("v_permlane32_swap_b32 v40, v42")
    a("v_permlane32_swap_b32 v41, v43")
    a("v_add_f32 v40, v40, v42")
    a("v_add_f32 v41, v41, v43")
    a("s_nop 1")
    a("v_permlane16_swap_b32 v40, v41")
    a("v_add_f32 v40, v40, v41")
    a("s_nop 1")
    a("v_add_f32_dpp v40, v40, v40 row_ror:8 row_mask:0xf bank_mask:0xf")
    a("v_cvt_pk_bf16_f32 v40, v40, v40")
    put_tag(40)
    a("s_mov_b32 exec_lo, 0x00ff00ff")
    a("s_mov_b32 exec_hi, 0x00ff00ff")
    a("buffer_store_dword v40, v6, s[48:51], s8 offen sc1")
    a("s_branch L_S_END")

    a.label("L_ATT")
    RING = 16
    SC = RING + 16 * R
    QR = SC + 32
    ST = QR + 8
    AC = QR
    PTA = AC + 32
    a("s_sub_u32 s6, s3, 4")
    a("v_bfe_u32 v6, v4, 1, 1")
    a("v_lshrrev_b32 v7, 2, v4")
    a("v_lshl_add_u32 v6, v6, 2, v7")
    a("v_lshlrev_b32 v6, 8, v6")
    a("v_lshl_add_u32 v6, v5, 5, v6")
    a("v_and_b32 v7, 1, v4")
    a("v_lshl_add_u32 v6, v7, 4, v6")
    a("s_lshl_b32 s7, s99, 18")
    a("s_lshl_b32 s8, s6, 12")
    a("s_add_u32 s7, s7, s8")
    a("s_mov_b32 s8, s7")
    a("s_waitcnt lgkmcnt(0)")
    srd(40, 18, 0x4000000)
    N = cfg.n
    NL = 143
    NH = [N]
    lim = [128]
    nl = [0]
    lvl_pending = [False]
    lvl_on = [False]

    def slot_of(item):
        return RING + 16 * (item % R)

    def issue1():
        k = nl[0]
        if k >= lim[0]:
            return
        item, q = divmod(k, 4)
        slot = slot_of(item)
        if item < 16:
            a(f"buffer_load_dwordx4 {vr(slot+4*q,4)}, v6, s[40:43], s7 offen offset:{128*(q&1)+2048*(q>>1)}{NT}")
            if q == 3 and item < 15:
                a("s_add_u32 s7, s7, 16384")
        elif item < 32:
            a(f"buffer_load_dwordx4 {vr(slot+4*q,4)}, v7, s[44:47], s8 offen offset:{1024*q}{NT}")
            if q == 3 and item < 31:
                a("s_add_u32 s8, s8, 16384")
        elif item < 34:
            m = k - 128
            a(f"buffer_load_dwordx4 {vr(slot+4*q,4)}, v3, s[52:55], s11 offen offset:{2048*(m&1)}{NT}")
            if (m & 1) and m < 7:
                a("s_add_u32 s11, s11, 16384")
        else:
            e = k - 136
            a(f"buffer_load_dwordx4 {vr(slot+4*q,4)}, v1, s[56:59], s10 offen offset:{2048*(e&1)}{NT}")
            if e & 1:
                a("s_add_u32 s10, s10, 4096")
        nl[0] += 1
        for kk, fl, av in ((cfg.pf, PF, 14), (cfg.lf, LF, 14), (cfg.go, GO, 13), (cfg.wf, WF, 13)):
            if k == kk - 1:
                set_flag(fl, av)

    def wait_load(k):
        a(f"s_waitcnt vmcnt({nl[0] - k - 1})")

    def thr():
        if not lvl_on[0]:
            return
        lab = newlab("go")
        a("s_bitcmp1_b32 s100, 1")
        a(f"s_cbranch_scc1 {lab}")
        a(f"s_waitcnt vmcnt({N})")
        a("s_bitcmp1_b32 s100, 0")
        a(f"s_cbranch_scc1 {lab}")
        a(f"s_waitcnt vmcnt({N-1})")
        a.label(lab)

    def advance(item):
        if lvl_on[0] and item < 24:
            if lvl_pending[0]:
                a("s_waitcnt lgkmcnt(0)")
                a("v_readfirstlane_b32 s100, v2")
            a(f"ds_read_b32 v2, v14 offset:{LV}")
            lvl_pending[0] = True
        for q in range(4):
            k = 4 * item + q
            if k >= NL:
                break
            if nl[0] < lim[0] and nl[0] - (k + 1) < NH[0]:
                wait_load(k)
                while nl[0] < lim[0] and nl[0] - (k + 1) < NH[0]:
                    thr()
                    issue1()
            elif q == 3 or k == NL - 1:
                wait_load(k)

    for k in range(4 * R):
        if k == cfg.pro:
            load_tag()
            a("v_lshlrev_b32 v7, 4, v0")
            a("s_lshl_b32 s9, s6, 2")
            a("v_mov_b32 v13, s9")
            srd(44, 20, 0x4000000)
            srd(48, 38, WS_SIZE)
            srd(52, 24, 0x800000)
            srd(56, 32, 0x700000)
            consts()
            a("v_mul_u32_u24 v11, 272, v9")
            a("v_lshl_add_u32 v11, v5, 5, v11")
            a("v_lshl_add_u32 v11, v8, 4, v11")
            a("v_mov_b32 v10, 0xff800000")
        if k == cfg.b0a:
            a("s_barrier")
        if k >= N:
            a(f"s_waitcnt vmcnt({N-1})")
        issue1()
    stamp(1)
    wait_flags([(QF, 1, 14)], QR, 1)
    make_tag()
    stamp(2)
    for c in range(2):
        a(f"ds_read_b128 {vr(QR+4*c,4)}, v11 offset:{QB+128*c}")
    a("s_waitcnt lgkmcnt(0)")

    def post(i):
        t = ST + 8 * (i & 1)
        w = ST + 16
        for q in range(4):
            a(f"v_add_f32_dpp v{w+6+q}, v{t+2*q+1}, v{t+2*q} row_ror:8 row_mask:0xf bank_mask:0xf")
        s = w + 6
        a(f"v_max3_f32 v10, v10, v{s}, v{s+1}")
        a(f"v_cvt_pk_bf16_f32 v{w+4}, v{s}, v{s+1}")
        a(f"v_cvt_pk_bf16_f32 v{w+5}, v{s+2}, v{s+3}")
        a(f"v_max3_f32 v10, v10, v{s+2}, v{s+3}")
        a(f"v_lshlrev_b32 v{w}, 16, v{w+4}")
        a(f"v_and_b32 v{w+1}, s66, v{w+4}")
        a(f"v_lshlrev_b32 v{w+2}, 16, v{w+5}")
        a(f"v_and_b32 v{w+3}, s66, v{w+5}")
        for k in range(4):
            a(f"v_mul_f32 v{w+k}, s68, v{w+k}")
        a(f"v_cvt_pk_bf16_f32 v{SC+2*i}, v{w}, v{w+1}")
        a(f"v_cvt_pk_bf16_f32 v{SC+2*i+1}, v{w+2}, v{w+3}")

    for i in range(16):
        advance(i)
        slot = slot_of(i)
        t = ST + 8 * (i & 1)
        for st_ in range(2):
            for ln in range(2):
                cc = "0" if ln == 0 else vr(t + 4 * st_, 4)
                a(f"v_mfma_f32_16x16x32_bf16 {vr(t+4*st_,4)}, {vr(slot+4*(2*st_+ln),4)}, {vr(QR+4*ln,4)}, {cc}")
        if nl[0] - 4 * (i + 1) >= N and nl[0] < 4 * (i + 1 + R):
            for _ in range(4 if i == 0 else 1):
                if nl[0] < 4 * (i + 1 + R):
                    a(f"s_waitcnt vmcnt({N-1})")
                    issue1()
        if i >= 1:
            a("s_nop 3")
            post(i - 1)
    a("s_nop 7")
    post(15)
    stamp(3)
    xlane("v_max_f32", 10, 11, [16, 32])
    w = ST
    MM, LL, L2 = ST + 8, ST + 9, ST + 10
    round_bf16(MM, 10)
    a(f"v_mul_f32 v{MM}, s68, v{MM}")
    round_bf16(MM, MM)
    a(f"v_mul_f32 v11, s67, v{MM}")
    a(f"v_mov_b32 v{LL}, 0")
    a(f"v_mov_b32 v{L2}, 0")
    for k in range(0, 32, 2):
        if k % 6 == 0:
            issue1()
        for q in range(2):
            a(f"v_lshlrev_b32 v{w+2*q}, 16, v{SC+k+q}")
            a(f"v_and_b32 v{w+2*q+1}, s66, v{SC+k+q}")
        for q in range(4):
            a(f"v_fma_f32 v{w+q}, v{w+q}, s67, -v11")
        for q in range(4):
            a(f"v_exp_f32 v{w+q}, v{w+q}")
        a(f"v_add_f32 v{LL}, v{LL}, v{w}")
        a(f"v_add_f32 v{L2}, v{L2}, v{w+1}")
        a(f"v_cvt_pk_bf16_f32 v{SC+k}, v{w}, v{w+1}")
        a(f"v_add_f32 v{LL}, v{LL}, v{w+2}")
        a(f"v_add_f32 v{L2}, v{L2}, v{w+3}")
        a(f"v_cvt_pk_bf16_f32 v{SC+k+1}, v{w+2}, v{w+3}")
    a(f"v_add_f32 v{LL}, v{LL}, v{L2}")
    xlane("v_add_f32", LL, L2, [16, 32])
    a(f"v_min_u32 v{LL}, -2, v{LL}")
    a("s_lshl_b32 s9, s6, 6")
    a("v_lshlrev_b32 v12, 3, v0")
    a("v_add_u32 v12, s9, v12")
    a("s_mov_b64 exec, 0xff")
    a(f"ds_write_b64 v12, {vr(MM,2)} offset:{MLB}")
    a("s_mov_b64 exec, -1")
    stamp(4)
    issue1()
    a("s_and_b32 s4, s6, 1")
    a("s_lshr_b32 s5, s6, 1")
    a("s_mul_i32 s9, s6, 4224")
    a("v_mul_u32_u24 v10, 528, v4")
    a("v_lshl_add_u32 v10, v5, 7, v10")
    a("v_add_u32 v10, s9, v10")
    a("v_lshrrev_b32 v3, 1, v5")
    a("v_lshlrev_b32 v3, 5, v3")
    a("v_and_b32 v1, 1, v5")
    a("v_lshl_add_u32 v3, v1, 2, v3")
    a("v_lshl_add_u32 v3, v8, 1, v3")
    a("v_lshlrev_b32 v3, 11, v3")
    a("v_lshl_add_u32 v3, v9, 4, v3")
    a("v_lshl_add_u32 v1, v5, 1, v8")
    a("v_mul_u32_u24 v1, 14336, v1")
    a("v_lshl_add_u32 v1, v9, 4, v1")
    colgrp(12, 4, 13)
    a("s_lshl_b32 s12, s12, 7")
    a("s_lshl1_add_u32 s13, s97, s5")
    a("s_lshl_b32 s11, s13, 17")
    a("s_add_u32 s11, s11, s12")
    a(f"s_mul_i32 s10, s13, {56*2048}")
    a("s_add_u32 s10, s10, s12")
    a("v_bfe_u32 v12, v4, 2, 1")
    a("v_lshlrev_b32 v12, 8, v12")
    a("v_lshl_add_u32 v12, v5, 5, v12")
    a("v_and_b32 v11, 1, v4")
    a("v_lshl_add_u32 v12, v11, 4, v12")
    a("s_lshl_b32 s9, s5, 7")
    a("v_add_u32 v12, s9, v12")
    a("v_lshlrev_b32 v11, 15, v5")
    a("v_lshrrev_b32 v6, 2, v9")
    a("v_lshl_add_u32 v11, v6, 13, v11")
    a("v_and_b32 v6, 3, v9")
    a("v_lshl_add_u32 v11, v6, 5, v11")
    a("v_lshl_add_u32 v11, v8, 4, v11")
    a("s_lshl_b32 s9, s96, 16")
    a("s_lshl_b32 s12, s4, 14")
    a("s_add_u32 s9, s9, s12")
    a("s_lshl_b32 s12, s13, 7")
    a("s_add_u32 s9, s9, s12")
    a(f"s_add_u32 s9, s9, {XP_OFF}")
    a("v_lshrrev_b32 v4, 5, v0")
    a("s_lshl_b32 s12, s6, 1")
    a("v_add_u32 v4, s12, v4")
    a("v_lshlrev_b32 v5, 4, v4")
    a("v_mul_u32_u24 v4, 528, v4")
    a("v_and_b32 v6, 31, v0")
    a("v_lshl_add_u32 v4, v6, 4, v4")
    a("v_lshlrev_b32 v8, 4, v9")
    a("v_lshrrev_b32 v6, 3, v0")
    a("v_lshl_add_u32 v8, v6, 12, v8")
    a("v_mul_u32_u24 v6, 5, v6")
    a("v_add_u32 v6, s97, v6")
    a("v_and_b32 v6, 31, v6")
    a("v_lshl_add_u32 v8, v6, 7, v8")
    a("s_lshl_b32 s5, s96, 17")
    a("s_lshl_b32 s12, s6, 15")
    a("s_add_u32 s5, s5, s12")
    a(f"s_add_u32 s5, s5, {OP_OFF}")
    get_mode(6)
    if cfg.rank:
        NH[0] = N + 2
        lvl_on[0] = True
        a("s_mov_b32 s100, 0")
    for it in range(16, 32):
        advance(it)
        if it & 1:
            u = (it - 16) // 2
            s0 = slot_of(16 + 2 * u)
            s1 = slot_of(17 + 2 * u)
            src = lambda e, s0=s0, s1=s1: (s0 if e < 4 else s1) + 4 * (e & 3)

            def M(i, u=u):
                for h in range(2):
                    j = 2 * i + h
                    c = "0" if u == 0 else vr(AC + 4 * j, 4)
                    a(f"v_mfma_f32_16x16x32_bf16 {vr(AC+4*j,4)}, {vr(PTA+8*(i&1)+4*h,4)}, {vr(SC+4*u,4)}, {c}")
            perms(PTA, src, 0)
            perms(PTA + 8, src, 1)
            M(0)
            perms(PTA, src, 2)
            M(1)
            perms(PTA + 8, src, 3)
            M(2)
            M(3)
    stamp(5)
    a("s_mov_b32 exec_lo, 0x00ff00ff")
    a("s_mov_b32 exec_hi, 0x00ff00ff")
    for j in range(8):
        if j == 4:
            a("s_nop 0")
        a(f"ds_write_b128 v10, {vr(AC+4*j,4)} offset:{ORED+16*j}")
    a("s_mov_b64 exec, -1")
    set_flag(OF, 13)
    T0 = slot_of(0)
    wait_flags([(OF, 4, 14), (FF, 1, 14)], T0, 0)
    a(f"ds_read_b128 {vr(T0,4)}, v5 offset:{FB}")
    for w_ in range(4):
        a(f"ds_read_b128 {vr(T0+4+4*w_,4)}, v4 offset:{ORED+4224*w_}")
    for k in range(4):
        a(f"v_mov_b32 v{slot_of(35)+12+k}, 0")
    a("s_waitcnt lgkmcnt(0)")
    for w_ in range(4):
        for k in range(4):
            if w_ == 0:
                a(f"v_mul_f32 v{T0+4+k}, v{T0}, v{T0+4+k}")
            else:
                a(f"v_fmac_f32 v{T0+4+k}, v{T0+w_}, v{T0+4+4*w_+k}")
    for k in range(4):
        put_tag(T0 + 4 + k)
    store_mode(f"buffer_store_dwordx4 {vr(T0+4,4)}, v8, s[48:51], s5 offen")
    stamp(6)
    TP = slot_of(6)
    XACC = SC
    wait_flags([(GF, 2, 14)], PTA, 1)
    lim[0] = NL
    for z in range(NH[0]):
        if z >= N:
            thr()
        issue1()
    advance(32)
    advance(33)
    srco = lambda e: (lambda m: slot_of(32 + (m >> 2)) + 4 * (m & 3))(2 * (e & 3) + (e >> 2))
    for i in range(4):
        perms(TP + 8 * i, srco, i)
    advance(34)
    assert nl[0] == NL
    advance(35)
    stamp(7)
    srcd = lambda e: slot_of(34 + (e >> 2)) + 4 * (e & 3)
    a(f"ds_read_b64 {vr(PTA+8,2)}, v14 offset:{HF}")
    a(f"ds_read_b128 {vr(PTA+4,4)}, v12 offset:{OB}")
    a(f"ds_read_b128 {vr(PTA,4)}, v12 offset:{HB}")
    for i in range(4):
        perms(TP + 32 + 8 * i, srcd, i)
    a("s_waitcnt lgkmcnt(0)")
    a(f"v_or_b32 v{PTA+8}, v{PTA+8}, v{PTA+9}")
    a(f"v_cmp_eq_u32 vcc, 0, v{PTA+8}")
    a("s_cmp_eq_u64 vcc, -1")
    a("s_cbranch_scc1 L_xgo")
    wait_flags([(HF, 2, 14)], PTA + 8, 0)
    a(f"ds_read_b128 {vr(PTA+4,4)}, v12 offset:{OB}")
    a(f"ds_read_b128 {vr(PTA,4)}, v12 offset:{HB}")
    a("s_waitcnt lgkmcnt(0)")
    a.label("L_xgo")
    stamp(9)
    for j in range(8):
        a(f"v_mfma_f32_16x16x32_bf16 {vr(XACC+4*j,4)}, {vr(PTA+4,4)}, {vr(TP+4*j,4)}, 0")
    for j in range(8):
        a(f"v_mfma_f32_16x16x32_bf16 {vr(XACC+4*j,4)}, {vr(PTA,4)}, {vr(TP+32+4*j,4)}, {vr(XACC+4*j,4)}")
    a("s_nop 1")
    fold(PTA + 8, XACC)
    a("s_mov_b32 exec_hi, 0")
    store_mode(f"buffer_store_dwordx4 {vr(PTA+8,4)}, v11, s[48:51], s9 offen")
    set_flag(SF, 13)
    stamp(10)
    dump_stamps()
    a.label("L_END")
    a("s_endpgm")

    probs = check_hazards(a.lines)
    for p in probs:
        print(p, file=sys.stderr)
    if probs:
        raise SystemExit("hazards found")

    pad = f".fill (24576 - (. - {NAME}_kernel)) / 4, 4, 0xBF800000\n" if cfg.codepf else ""
    out = HEADER
    out += "; Generated by work/gen11.py (hand-written generator). One persistent launch, 256 workgroups x 8 waves.\n"
    out += f"; @launch grid=(256,1,1) block=(512,1,1) lds={LDS_SIZE}\n"
    out += f""".amdgcn_target "amdgcn-amd-amdhsa--gfx950"
.text
.globl {NAME}_kernel
.p2align 8
.type {NAME}_kernel,@function
{NAME}_kernel:
"""
    out += a.text()
    out += pad
    out += f""".section .rodata,"a"
.p2align 6
.amdhsa_kernel {NAME}_kernel
  .amdhsa_next_free_vgpr 256
  .amdhsa_next_free_sgpr 102
  .amdhsa_accum_offset 256
  .amdhsa_group_segment_fixed_size 0
  .amdhsa_kernarg_size 96
  .amdhsa_user_sgpr_count 2
  .amdhsa_user_sgpr_kernarg_segment_ptr 1
  .amdhsa_system_sgpr_workgroup_id_x 1
  .amdhsa_float_denorm_mode_32 3
.end_amdhsa_kernel
"""
    return out


def parse_args(argv=None):
    p = argparse.ArgumentParser()
    p.add_argument("-o", default="cdna_kernels/" + NAME + ".s")
    p.add_argument("--stamps", type=int, default=0)
    p.add_argument("--codepf", type=int, default=16)
    p.add_argument("--sleep_lds", type=int, default=2)
    p.add_argument("--spin", type=int, default=2000000)
    p.add_argument("--n", type=int, default=6)
    p.add_argument("--ns", type=int, default=12)
    p.add_argument("--gate", type=int, default=32)
    p.add_argument("--pf", type=int, default=24)
    p.add_argument("--lf", type=int, default=108)
    p.add_argument("--go", type=int, default=128)
    p.add_argument("--wf", type=int, default=140)
    p.add_argument("--rank", default="22:28")
    p.add_argument("--nofast", type=int, default=0)
    p.add_argument("--ffn1", type=int, default=1)
    p.add_argument("--s0b", type=int, default=32)
    p.add_argument("--b0a", type=int, default=3)
    p.add_argument("--pro", type=int, default=0)
    p.add_argument("--qmap", type=int, default=1)
    p.add_argument("--gmap", type=int, default=0)
    p.add_argument("--cmap", type=int, default=0)
    for nm, d, g in (("y", 2, 2), ("o", 1, 0), ("g", 1, 0), ("h", 1, 0), ("l", 1, 0)):
        p.add_argument(f"--{nm}pipe", type=int, default=d)
        p.add_argument(f"--{nm}gap", type=int, default=g)
    return p.parse_args(argv)


if __name__ == "__main__":
    cfg = parse_args()
    open(cfg.o, "w").write(gen(cfg))
    print("wrote", cfg.o)
```

```python
import sys
import argparse
import struct
import math
from asmlib import Asm, vr, check_hazards

NAME = "parallel_sum__gqa_block_cached__geglu_ffn__decode"

QP_OFF = 0x000000
GP_OFF = 0x020000
H2_OFF = 0x058000
ML_OFF = 0x060000
XT_OFF = 0x068000
EP_OFF = 0x070000
O2_OFF = 0x078000
OP_OFF = 0x080000
XP_OFF = 0x180000
ST_OFF = 0x200000
WS_SIZE = 0x400000
XN = 0x0000
QB = 0x0400
MLB = 0x0C80
FL = 0x0D80
OF = FL + 0
FF = FL + 16
LF = FL + 20
GF = FL + 24
QF = FL + 32
XF = FL + 36
PF = FL + 40
HF = FL + 48
BF = FL + 52
TG = FL + 56
LV = FL + 64
FM = FL + 68
WF = FL + 80
GO = FL + 96
WH = FL + 128
SF = FL + 112
FB = 0x0E80
OB = 0x0F00
HB = 0x1100
ORED = 0x1300
LDS_SIZE = ORED + 4 * 4224

LOG2E = 0x3FB8AA3B
SCALE = 0x3DB504F3
EPS = 0x3727C5AC
MAGIC = 0x5A3C6000

HEADER = open("cdna_kernels/" + NAME + ".s.ref").read().split("; Override launch")[0]


def f32bits(x):
    return struct.unpack("<I", struct.pack("<f", x))[0]


def gen(cfg):
    a = Asm()
    R = 10
    NT = " nt"
    uid = [0]

    def newlab(p):
        uid[0] += 1
        return f"L_{p}{uid[0]}"

    def stamp(k):
        if cfg.padto and cfg.padfrom == k:
            a("s_memrealtime s[94:95]")
        if cfg.stamps:
            a(f"s_memrealtime s[{70+2*k}:{71+2*k}]")

    def srd(d, p, size):
        a(f"s_mov_b32 s{d}, s{p}")
        a(f"s_mov_b32 s{d+1}, s{p+1}")
        a(f"s_mov_b32 s{d+2}, {size:#x}")
        a(f"s_mov_b32 s{d+3}, 0x20000")

    def dump_stamps():
        if not cfg.stamps:
            return
        a("s_waitcnt lgkmcnt(0)")
        for _ in range(3):
            a("s_sleep 127")
        a("s_mov_b64 exec, 1")
        a("s_lshl_b32 s4, s2, 10")
        a("s_lshl_b32 s5, s3, 7")
        a("s_add_u32 s4, s4, s5")
        a(f"s_add_u32 s4, s4, {ST_OFF}")
        a("v_mov_b32 v3, 0")
        for k in range(13):
            a(f"v_mov_b32 v1, s{70+2*k}")
            a(f"buffer_store_dword v1, v3, s[48:51], s4 offen offset:{4*k}")

    def poll(loads, check, sleep, cnt="vmcnt"):
        top, done = newlab("poll"), newlab("pdone")
        a(f"s_mov_b32 s15, {cfg.spin if cnt == 'vmcnt' else 8 * cfg.spin}")
        a.label(top)
        loads()
        a(f"s_waitcnt {cnt}(0)")
        check()
        a(f"s_cbranch_scc1 {done}")
        a("s_sub_u32 s15, s15, 1")
        a(f"s_cbranch_scc1 {done}")
        if sleep:
            a(f"s_sleep {sleep}")
        a(f"s_branch {top}")
        a.label(done)

    def check_tag(regs, t0, t1, full="-1", narrow=False):
        regs = list(regs)
        for r in regs:
            a(f"v_xor_b32 v{r}, {'s62' if narrow else 's14'}, v{r}")
        acc = [None, None]
        k = 0
        while regs:
            t = (t0, t1)[k & 1]
            if acc[k & 1] is None and len(regs) >= 3:
                a(f"v_or3_b32 v{t}, v{regs[0]}, v{regs[1]}, v{regs[2]}")
                regs = regs[3:]
                acc[k & 1] = t
            elif acc[k & 1] is None:
                k += 1
                continue
            elif len(regs) >= 2:
                a(f"v_or3_b32 v{t}, v{t}, v{regs[0]}, v{regs[1]}")
                regs = regs[2:]
            else:
                a(f"v_or_b32 v{t}, v{t}, v{regs[0]}")
                regs = regs[1:]
            k += 1
        if acc[1] is not None:
            a(f"v_or_b32 v{t0}, v{t0}, v{t1}")
        a(f"v_and_b32 v{t0}, {63 if narrow else 255}, v{t0}")
        a(f"v_cmp_eq_u32 vcc, 0, v{t0}")
        a(f"s_cmp_eq_u64 vcc, {full}")

    def ppoll(P, gap, load, nloads, nregs, dst, t0, t1, full="-1"):
        if P <= 1:
            poll(lambda: load(dst), lambda: check_tag(range(dst, dst + nregs), t0, t1, full), gap)
            return
        base = lambda p: dst + nregs * (p + 1)
        top, out = newlab("pp"), newlab("ppo")
        got = [newlab("ppg") for _ in range(P)]
        a(f"s_mov_b32 s15, {cfg.spin}")
        for p in range(P - 1):
            load(base(p))
            a(f"s_sleep {gap}")
        a.label(top)
        for p in range(P):
            load(base((p + P - 1) % P))
            a(f"s_waitcnt vmcnt({nloads*(P-1)})")
            check_tag(range(base(p), base(p) + nregs), t0, t1, full)
            a(f"s_cbranch_scc1 {got[p]}")
        a("s_sub_u32 s15, s15, 1")
        a(f"s_cbranch_scc0 {top}")
        for p in range(P):
            a.label(got[p])
            for k in range(nregs):
                a(f"v_mov_b32 v{dst+k}, v{base(p)+k}")
            if p < P - 1:
                a(f"s_branch {out}")
        a.label(out)

    def wait_flags(reads, t, sleep):
        regs = []

        def ld():
            r = t
            regs.clear()
            for off, n, av in reads:
                op = {1: "ds_read_b32", 2: "ds_read_b64", 4: "ds_read_b128"}[n]
                a(f"{op} {vr(r,n)}, v{av} offset:{off}")
                regs.extend(range(r, r + n))
                r += (n + 1) & ~1

        def ck():
            rs = list(regs)
            while len(rs) >= 3:
                a(f"v_or3_b32 v{rs[0]}, v{rs[0]}, v{rs[1]}, v{rs[2]}")
                rs = [rs[0]] + rs[3:]
            if len(rs) == 2:
                a(f"v_or_b32 v{rs[0]}, v{rs[0]}, v{rs[1]}")
            a(f"v_cmp_eq_u32 vcc, 0, v{rs[0]}")
            a("s_cmp_eq_u64 vcc, -1")
        poll(ld, ck, sleep, cnt="lgkmcnt")

    def set_flag(off, av=14):
        a(f"ds_write_b32 v{av}, v14 offset:{off}")

    def get_mode(t):
        def ld():
            a(f"ds_read_b32 v{t}, v14 offset:{FM}")

        def ck():
            a(f"v_readfirstlane_b32 s101, v{t}")
            a("s_cmp_lg_u32 s101, -1")
        poll(ld, ck, cfg.sleep_lds, cnt="lgkmcnt")

    def store_mode(ins):
        f, d = newlab("stf"), newlab("std")
        a("s_cmp_eq_u32 s101, 1")
        a(f"s_cbranch_scc1 {f}")
        a(ins + " sc1")
        a(f"s_branch {d}")
        a.label(f)
        a(ins)
        a.label(d)

    def check_sentinel(regs, tmp):
        regs = list(regs)
        a(f"v_max3_u32 v{tmp}, v{regs[0]}, v{regs[1]}, v{regs[2]}")
        regs = regs[3:]
        while len(regs) >= 2:
            a(f"v_max3_u32 v{tmp}, v{tmp}, v{regs[0]}, v{regs[1]}")
            regs = regs[2:]
        if regs:
            a(f"v_max_u32 v{tmp}, v{tmp}, v{regs[0]}")
        a(f"v_cmp_ne_u32 vcc, -1, v{tmp}")
        a("s_cmp_eq_u64 vcc, -1")

    def put_tag(r):
        a(f"v_bfi_b32 v{r}, s69, v15, v{r}")

    def load_tag():
        a(f"s_load_dword s14, s[38:39], {EP_OFF:#x}")

    def make_tag():
        a("s_add_u32 s14, s14, 1")
        a("s_and_b32 s14, s14, 0xff")
        a("v_mov_b32 v15, s14")

    def xlane(op, x, t, steps):
        for s in steps:
            if s in (1, 2, 4, 8):
                a("s_nop 1")
                a(f"{op}_dpp v{x}, v{x}, v{x} row_ror:{s} row_mask:0xf bank_mask:0xf")
            else:
                a(f"v_mov_b32 v{t}, v{x}")
                a("s_nop 1")
                a(f"v_permlane{s}_swap_b32 v{x}, v{t}")
                a(f"{op} v{x}, v{x}, v{t}")

    def round_bf16(d, s):
        a(f"v_cvt_pk_bf16_f32 v{d}, v{s}, v{s}")
        a(f"v_lshlrev_b32 v{d}, 16, v{d}")

    def perms(dst, src_e, i):
        for p in range(4):
            a(f"v_perm_b32 v{dst+p}, v{src_e(2*p+1)+i}, v{src_e(2*p)+i}, s64")
        for p in range(4):
            a(f"v_perm_b32 v{dst+4+p}, v{src_e(2*p+1)+i}, v{src_e(2*p)+i}, s65")

    def fold(dst, acc, rnd=0):
        for k in range(4):
            a(f"v_add_f32_dpp v{dst+k}, v{acc+4*k+1}, v{acc+4*k} row_ror:8 row_mask:0xf bank_mask:0x3")
        for k in range(4):
            if k >= 2:
                a("s_nop 0")
            a(f"v_add_f32_dpp v{dst+k}, v{acc+4*(k+4)}, v{acc+4*(k+4)+1} row_ror:8 row_mask:0xf bank_mask:0xc")
        for k in range(4):
            if rnd:
                a(f"v_add_u32 v{dst+k}, {rnd}, v{dst+k}")
            put_tag(dst + k)

    def colgrp(d, ch, tmp):
        if cfg.cmap == 0:
            a(f"s_lshl1_add_u32 s{d}, s96, s{ch}")
        elif cfg.cmap == 1:
            a(f"s_lshl3_add_u32 s{d}, s{ch}, s96")
        elif cfg.cmap == 2:
            a(f"s_mul_i32 s{tmp}, s{ch}, 15")
            a(f"s_xor_b32 s{d}, s96, s{tmp}")
        else:
            a(f"s_mul_i32 s{tmp}, s{ch}, 12")
            a(f"s_xor_b32 s{d}, s96, s{tmp}")

    def consts():
        a("s_mov_b32 s64, 0x05040100")
        a("s_mov_b32 s65, 0x07060302")
        a("s_mov_b32 s66, 0xffff0000")
        a(f"s_mov_b32 s67, {LOG2E:#x}")
        a(f"s_mov_b32 s68, {SCALE:#x}")
        a("s_movk_i32 s69, 0xff")

    a("s_cmp_ge_u32 s2, 256")
    a("s_cbranch_scc1 L_END")
    a("s_load_dwordx16 s[16:31], s[0:1], 0")
    a("s_load_dwordx8 s[32:39], s[0:1], 64")
    stamp(0)
    a("v_lshrrev_b32 v3, 6, v0")
    a("s_and_b32 s96, s2, 7")
    a("s_lshr_b32 s97, s2, 3")
    a("v_and_b32 v0, 63, v0")
    a("v_readfirstlane_b32 s3, v3")
    a("s_lshl_b32 s99, s96, 5")
    a("s_or_b32 s99, s99, s97")
    a("s_lshr_b32 s98, s2, 5")
    a("v_and_b32 v4, 15, v0")
    a("v_lshrrev_b32 v5, 4, v0")
    a("v_mov_b32 v14, 0")
    a("v_lshrrev_b32 v8, 3, v4")
    a("v_and_b32 v9, 7, v4")
    a("s_cmp_ge_u32 s3, 4")
    a("s_cbranch_scc1 L_ATT")
    a("s_and_b32 s7, s97, 3")
    a("v_lshlrev_b32 v10, 3, v8")
    a("v_lshl_add_u32 v10, v5, 4, v10")
    a("s_cmp_lg_u32 s3, 0")
    a("s_cbranch_scc1 L_S123")

    XA = 16
    XO = 32
    XU = 36
    WR = 72
    ACC = 200
    PT = 232

    def wloads(stride, throttle, gate, bar=99):
        for T in range(4):
            for e in range(8):
                k = 8 * T + e
                if k == bar:
                    a("s_barrier")
                if throttle and k >= throttle:
                    a(f"s_waitcnt vmcnt({throttle-1})")
                a(f"buffer_load_dwordx4 {vr(WR+32*T+4*e,4)}, v10, s[40:43], s10 offen{NT}")
                if k < 31:
                    a(f"s_add_u32 s10, s10, {stride * (57 if e == 7 else 1)}")
                if gate and k == gate - 1:
                    set_flag(GF - 4, 13)

    if cfg.qmap == 0:
        a("s_xor_b32 s6, s98, 4")
        a("s_lshl3_add_u32 s6, s96, s6")
    elif cfg.qmap == 2:
        a("s_lshl3_add_u32 s6, s98, s96")
    elif cfg.qmap == 3:
        a("s_add_u32 s6, s96, s97")
        a("s_and_b32 s6, s6, 7")
        a("s_lshl3_add_u32 s6, s98, s6")
    else:
        a("s_lshl3_add_u32 s6, s98, s96")
        a("s_mul_i32 s4, s6, 37")
        a("s_lshr_b32 s4, s4, 8")
        a("s_mul_i32 s5, s4, 7")
        a("s_sub_u32 s5, s6, s5")
        a("s_cmp_ge_u32 s5, 3")
        a("s_addc_u32 s5, s5, 0")
        a("s_lshl_b32 s4, s4, 3")
        a("s_add_u32 s5, s5, s4")
        a("s_lshl_b32 s4, s6, 3")
        a(f"s_sub_u32 s4, s4, {56*8-3}")
        a("s_cmp_ge_u32 s6, 56")
        a("s_cselect_b32 s6, s4, s5")
    a("v_lshlrev_b32 v6, 6, v0")
    a("v_lshrrev_b32 v7, 5, v0")
    a("v_lshlrev_b32 v7, 11, v7")
    a("v_and_b32 v11, 31, v0")
    a("v_lshl_add_u32 v7, v11, 4, v7")
    a("s_lshl_b32 s12, s7, 9")
    a("v_lshlrev_b32 v10, 13, v10")
    a("v_lshl_add_u32 v10, v9, 4, v10")
    a("s_lshl_b32 s10, s7, 21")
    a("s_lshl_b32 s11, s6, 7")
    a("s_add_u32 s10, s10, s11")
    a("s_waitcnt lgkmcnt(0)")
    srd(56, 16, 4096)
    srd(40, 22, 0x800000)
    load_tag()
    for i in range(4):
        a(f"buffer_load_dwordx4 {vr(XA+4*i,4)}, v6, s[56:59], 0 offen offset:{16*i}")
    a(f"buffer_load_dwordx4 {vr(XO,4)}, v7, s[56:59], s12 offen")
    wloads(8192, 0, 0, cfg.s0b)
    stamp(1)
    if cfg.s0b >= 32:
        a("s_barrier")
    srd(48, 38, WS_SIZE)
    consts()
    a("s_mov_b32 s9, 16384")
    a("s_mov_b32 s101, 0")
    a("s_lshl_b32 s10, s7, 15")
    a("s_lshl_b32 s11, s6, 8")
    a("s_add_u32 s10, s10, s11")
    a("s_waitcnt vmcnt(32)")
    stamp(2)
    for i in range(16):
        a(f"v_lshlrev_b32 v{XU+2*i}, 16, v{XA+i}")
        a(f"v_and_b32 v{XU+2*i+1}, s66, v{XA+i}")
    for k in range(4):
        a(f"v_add_f32 v{XA+k}, v{XU+k}, v{XU+4+k}")
    for i in range(8, 32):
        a(f"v_add_f32 v{XA+(i&3)}, v{XA+(i&3)}, v{XU+i}")
    a(f"v_add_f32 v11, v{XA}, v{XA+1}")
    a(f"v_add_f32 v13, v{XA+2}, v{XA+3}")
    a("v_add_f32 v11, v11, v13")
    xlane("v_add_f32", 11, 12, [8, 4, 2, 1, 16])
    a("v_mul_f32 v11, 0x3a800000, v11")
    for i in range(32):
        a(f"v_sub_f32 v{XU+i}, v{XU+i}, v11")
    for k in range(4):
        a(f"v_mul_f32 v{XA+k}, v{XU+k}, v{XU+k}")
    for i in range(4, 32):
        a(f"v_fmac_f32 v{XA+(i&3)}, v{XU+i}, v{XU+i}")
    a(f"v_add_f32 v12, v{XA}, v{XA+1}")
    a(f"v_add_f32 v13, v{XA+2}, v{XA+3}")
    a("v_add_f32 v12, v12, v13")
    xlane("v_add_f32", 12, 13, [8, 4, 2, 1, 16])
    a("v_mul_f32 v12, 0x3a800000, v12")
    round_bf16(11, 11)
    round_bf16(12, 12)
    a(f"v_add_f32 v12, {EPS:#x}, v12")
    round_bf16(12, 12)
    a("v_sqrt_f32 v12, v12")
    a("s_nop 0")
    round_bf16(12, 12)
    a("v_rcp_f32 v13, v12")
    for i in range(4):
        a(f"v_lshlrev_b32 v{XU+2*i}, 16, v{XO+i}")
        a(f"v_and_b32 v{XU+2*i+1}, s66, v{XO+i}")
    for i in range(8):
        a(f"v_sub_f32 v{XU+i}, v{XU+i}, v11")
    for i in range(4):
        a(f"v_cvt_pk_bf16_f32 v{XO+i}, v{XU+2*i}, v{XU+2*i+1}")
    for i in range(4):
        a(f"v_lshlrev_b32 v{XU+2*i}, 16, v{XO+i}")
        a(f"v_and_b32 v{XU+2*i+1}, s66, v{XO+i}")
    for i in range(8):
        a(f"v_mul_f32 v{XU+8+i}, v{XU+i}, v13")
    for i in range(8):
        a(f"v_fma_f32 v{XU+i}, -v{XU+8+i}, v12, v{XU+i}")
    for i in range(8):
        a(f"v_fmac_f32 v{XU+8+i}, v{XU+i}, v13")
    for i in range(4):
        a(f"v_cvt_pk_bf16_f32 v{XO+i}, v{XU+8+2*i}, v{XU+8+2*i+1}")
    a("v_lshlrev_b32 v11, 4, v0")
    a(f"ds_write_b128 v11, {vr(XO,4)} offset:{XN}")
    set_flag(XF)
    a("s_waitcnt lgkmcnt(0)")
    make_tag()

    a.label("L_S_gemv")
    a("s_mov_b32 s69, 63")
    a("v_bfe_u32 v11, v4, 2, 1")
    a("v_lshlrev_b32 v11, 9, v11")
    a("v_lshl_add_u32 v11, v5, 5, v11")
    a("v_and_b32 v12, 1, v4")
    a("v_lshl_add_u32 v11, v12, 4, v11")
    for T in range(4):
        a(f"ds_read_b128 {vr(XU+4*T,4)}, v11 offset:{XN+128*T}")
    stamp(3)
    a("v_mul_u32_u24 v12, s9, v5")
    a("v_lshl_add_u32 v12, v9, 5, v12")
    a("v_lshl_add_u32 v12, v8, 4, v12")
    a("s_waitcnt lgkmcnt(0)")
    for T in range(4):
        a(f"s_waitcnt vmcnt({24-8*T})")
        src = lambda e, T=T: WR + 32 * T + 4 * e

        def M(i, T=T):
            for h in range(2):
                j = 2 * i + h
                c = "0" if T == 0 else vr(ACC + 4 * j, 4)
                a(f"v_mfma_f32_16x16x32_bf16 {vr(ACC+4*j,4)}, {vr(XU+4*T,4)}, {vr(PT+8*(i&1)+4*h,4)}, {c}")
        perms(PT, src, 0)
        perms(PT + 8, src, 1)
        M(0)
        perms(PT, src, 2)
        M(1)
        perms(PT + 8, src, 3)
        M(2)
        M(3)
    stamp(4)
    a("s_nop 3")
    fold(PT, ACC, 32)
    a("s_mov_b32 exec_hi, 0")
    store_mode(f"buffer_store_dwordx4 {vr(PT,4)}, v12, s[48:51], s10 offen")
    a("s_mov_b64 exec, -1")
    a("s_cmp_eq_u32 s3, 1")
    a("s_cbranch_scc1 " + ("L_S_END" if cfg.ffn1 else "L_S1_h"))
    a("s_cmp_eq_u32 s3, 2")
    a("s_cbranch_scc1 L_S2_h")
    a("s_and_b32 s62, s14, 63")
    a("v_lshlrev_b32 v6, 4, v0")
    a("s_lshl_b32 s10, s96, 12")
    a("s_add_u32 s11, s10, 32768")
    a("s_add_u32 s12, s10, 65536")
    a("s_add_u32 s13, s10, 98304")
    a("v_lshrrev_b32 v7, 5, v0")
    a("v_mul_u32_u24 v7, 272, v7")
    a("v_and_b32 v11, 31, v0")
    a("v_lshl_add_u32 v7, v11, 3, v7")
    wait_flags([(PF, 1, 14)], 16, cfg.sleep_lds)
    stamp(6)

    def ldq():
        for kq in range(4):
            for i in range(4):
                a(f"buffer_load_dwordx4 {vr(32+16*kq+4*i,4)}, v6, s[48:51], s{10+kq} offen offset:{1024*i} sc1")
    poll(ldq, lambda: check_tag(range(32, 96), 11, 12, narrow=True), 0)
    stamp(5)
    for k in range(16):
        a(f"v_add_f32 v{32+k}, v{32+k}, v{48+k}")
        a(f"v_add_f32 v{64+k}, v{64+k}, v{80+k}")
    for k in range(16):
        a(f"v_add_f32 v{32+k}, v{32+k}, v{64+k}")
    for i in range(4):
        a(f"v_cvt_pk_bf16_f32 v{48+2*i}, v{32+4*i}, v{33+4*i}")
        a(f"v_cvt_pk_bf16_f32 v{49+2*i}, v{34+4*i}, v{35+4*i}")
        a(f"ds_write_b64 v7, {vr(48+2*i,2)} offset:{QB+544*i}")
    set_flag(QF)
    a("s_lshl_b32 s7, s97, 9")
    a(f"s_add_u32 s7, s7, {O2_OFF}")
    srd(56, 16, 4096)
    srd(60, 34, 4096)
    a("v_and_b32 v10, 1, v0")
    a("v_lshl_add_u32 v10, v10, 2, v5")
    a("v_lshlrev_b32 v10, 1, v10")
    a("s_lshr_b32 s12, s97, 4")
    a("s_lshl_b32 s12, s12, 11")
    a("s_bfe_u32 s4, s97, 0x10003")
    colgrp(11, 4, 5)
    a("s_lshl_b32 s11, s11, 7")
    a("s_add_u32 s12, s12, s11")
    a("s_and_b32 s11, s97, 7")
    a("s_lshl_b32 s11, s11, 4")
    a("s_add_u32 s12, s12, s11")
    a("buffer_load_ushort v36, v10, s[56:59], s12 offen")
    a("v_lshrrev_b32 v9, 1, v0")
    a("v_lshlrev_b32 v9, 7, v9")
    a("v_and_b32 v6, 1, v0")
    a("v_lshl_add_u32 v9, v6, 4, v9")
    a("s_lshr_b32 s13, s99, 2")
    a("s_lshl_b32 s13, s13, 13")
    a("s_and_b32 s11, s97, 3")
    a("s_lshl_b32 s11, s11, 5")
    a("s_add_u32 s13, s13, s11")
    a(f"s_add_u32 s13, s13, {XP_OFF}")
    a("s_add_u32 s8, s13, 4096")
    a("v_lshrrev_b32 v11, 5, v0")
    a("v_lshlrev_b32 v11, 14, v11")
    a("v_and_b32 v6, 31, v0")
    a("v_lshl_add_u32 v11, v6, 4, v11")
    a("v_lshlrev_b32 v6, 3, v0")
    wait_flags([(WF, 4, 14)], 16, cfg.sleep_w)
    stamp(7)
    ppoll(cfg.opipe, cfg.ogap, lambda r: a(f"buffer_load_dwordx4 {vr(r,4)}, v11, s[48:51], s7 offen sc1"), 1, 4, 100, 12, 13)
    a("v_perm_b32 v100, v101, v100, s65")
    a("v_perm_b32 v101, v103, v102, s65")
    a(f"ds_write_b64 v6, v[100:101] offset:{OB}")
    set_flag(BF)
    stamp(9)
    wait_flags([(SF, 4, 14)], 16, 1)

    def ld4(r):
        a(f"buffer_load_dwordx4 {vr(r,4)}, v9, s[48:51], s13 offen sc1")
        a(f"buffer_load_dwordx4 {vr(r+4,4)}, v9, s[48:51], s8 offen sc1")
    ppoll(cfg.ypipe, cfg.ygap, ld4, 2, 8, 40, 12, 13)
    stamp(10)
    for k in range(4):
        a(f"v_add_f32 v{40+k}, v{40+k}, v{44+k}")
    a("v_lshlrev_b32 v36, 16, v36")
    a("v_permlane32_swap_b32 v40, v42")
    a("v_permlane32_swap_b32 v41, v43")
    a("v_add_f32 v40, v40, v42")
    a("v_add_f32 v41, v41, v43")
    a("s_nop 1")
    a("v_permlane16_swap_b32 v40, v41")
    a("v_add_f32 v40, v40, v41")
    for s in (8, 4, 2):
        a("s_nop 1")
        a(f"v_add_f32_dpp v40, v40, v40 row_ror:{s} row_mask:0xf bank_mask:0xf")
    a("v_add_f32 v40, v40, v36")
    a("v_cvt_pk_bf16_f32 v40, v40, v40")
    a("s_mov_b32 exec_lo, 0x00030003")
    a("s_mov_b32 exec_hi, 0x00030003")
    a("buffer_store_short v40, v10, s[60:63], s12 offen")
    stamp(11)
    if cfg.padto:
        a.label("L_pad")
        a("s_memrealtime s[92:93]")
        a("s_waitcnt lgkmcnt(0)")
        a("s_sub_u32 s92, s92, s94")
        a(f"s_cmp_lt_u32 s92, {cfg.padto}")
        a("s_cbranch_scc1 L_pad")
    a("s_cmp_lg_u32 s2, 0")
    a("s_cbranch_scc1 L_S_END")
    a("s_mov_b64 exec, 1")
    a(f"s_mov_b32 s9, {EP_OFF:#x}")
    a("buffer_store_dword v15, v14, s[48:51], s9 offen")
    a.label("L_S_END")
    dump_stamps()
    a("s_endpgm")

    a.label("L_S123")
    a("v_mov_b32 v11, -1")
    a("v_lshlrev_b32 v12, 2, v0")
    a(f"ds_write_b32 v12, v11 offset:{MLB}")
    a(f"ds_write_b32 v12, v11 offset:{FL}")
    a("s_waitcnt lgkmcnt(0)")
    load_tag()
    a("s_barrier")
    consts()
    a(f"s_mov_b32 s9, {14336 if cfg.ffn1 else 256}")
    a("s_add_u32 s5, s3, s98")
    a("s_sub_u32 s4, s5, 7")
    a("s_cmp_ge_u32 s5, 7")
    a("s_cselect_b32 s5, s4, s5")
    a("s_mul_i32 s6, s96, 7")
    a("s_add_u32 s5, s5, s6")
    a("s_add_u32 s6, s6, s98")
    if cfg.gmap == 1:
        a("s_mul_i32 s5, s3, 3")
        a("s_add_u32 s5, s5, s96")
        a("s_add_u32 s5, s5, s98")
        a("s_and_b32 s5, s5, 7")
        a("s_lshl3_add_u32 s5, s98, s5")
    if cfg.gmap == 2:
        a("s_mul_i32 s5, s3, 3")
        a("s_add_u32 s5, s5, s96")
        a("s_add_u32 s5, s5, s97")
        a("s_and_b32 s5, s5, 7")
        a("s_lshl3_add_u32 s5, s98, s5")
    a("v_mul_u32_u24 v10, 7168, v10")
    a("v_lshl_add_u32 v10, v9, 4, v10")
    a(f"s_mul_i32 s10, s7, {256*7168}")
    a("s_lshl_b32 s11, s5, 7")
    a("s_add_u32 s10, s10, s11")
    a("s_lshl_b32 s4, s3, 2")
    a("v_mov_b32 v13, s4")
    srd(48, 38, WS_SIZE)
    a("s_cmp_eq_u32 s3, 2")
    a("s_cselect_b64 s[40:41], s[30:31], s[28:29]")
    a("s_mov_b32 s42, 0x700000")
    a("s_mov_b32 s43, 0x20000")
    a("s_waitcnt lgkmcnt(0)")
    make_tag()
    if cfg.codepf:
        a(f"s_cmp_ge_u32 s2, {cfg.codepf}")
        a("s_cbranch_scc1 L_nopf")
        a("s_getpc_b64 s[12:13]")
        a.label("L_pcref")
        a(f"s_sub_u32 s12, s12, L_pcref - {NAME}_kernel + 8192")
        a("s_subb_u32 s13, s13, 0")
        a("v_lshlrev_b32 v1, 7, v0")
        a("v_lshl_add_u32 v1, v3, 13, v1")
        a("global_load_dword v2, v1, s[12:13]")
        a.label("L_nopf")
    a("s_cmp_eq_u32 s3, 3")
    a("s_cbranch_scc1 L_S3")
    set_flag(TG - 4, 13)
    a("s_cmp_lt_u32 s98, 7")
    a("s_cbranch_scc1 L_S12")
    set_flag(GF - 4, 13)
    a("s_cmp_eq_u32 s3, 1")
    a("s_cbranch_scc1 L_S_END")
    a("s_branch L_S2_h")
    a.label("L_S12")
    a("v_lshlrev_b32 v12, 1, v13")
    wait_flags([(XF, 1, 14)], 16, cfg.sleep_lds)
    get_mode(16)
    wait_flags([(GO - 8, 2, 12)], 16, cfg.sleep_lds)
    stamp(2)
    wloads(7168, cfg.ns, cfg.gate)
    stamp(1)
    if cfg.ffn1:
        a("s_lshl1_add_u32 s10, s7, s3")
        a("s_mul_i32 s10, s10, 28672")
        a("s_lshl_b32 s12, s5, 8")
        a("s_add_u32 s10, s10, s12")
        a(f"s_add_u32 s10, s10, {GP_OFF-28672}")
        a("s_mov_b32 s101, 0")
    else:
        a("s_lshl_b32 s10, s5, 12")
        a("s_lshl_b32 s12, s7, 10")
        a("s_add_u32 s10, s10, s12")
        a("s_lshl_b32 s12, s3, 9")
        a("s_add_u32 s10, s10, s12")
        a(f"s_add_u32 s10, s10, {GP_OFF-512}")
    a("s_branch L_S_gemv")

    a.label("L_S2_h")
    a("s_and_b32 s62, s14, 63")
    a("v_mov_b32 v15, 0")
    a("v_lshlrev_b32 v6, 3, v0")
    a(f"ds_write_b64 v6, v[14:15] offset:{HB}")
    a("v_lshrrev_b32 v7, 5, v0")
    a("v_and_b32 v6, 31, v0")
    a("v_mul_u32_u24 v11, 14336, v7")
    a("v_lshl_add_u32 v11, v6, 4, v11")
    a("s_mul_i32 s10, s97, 448")
    a(f"s_add_u32 s10, s10, {H2_OFF}")
    a("v_lshlrev_b32 v7, 8, v7")
    for k in range(4):
        a(f"v_lshl_add_u32 v{60+k}, v6, 2, {k}")
        a(f"v_mul_u32_u24 v12, 147, v{60+k}")
        a("v_lshrrev_b32 v12, 10, v12")
        a(f"v_add_u32 v{60+k}, v{60+k}, v12")
        a(f"v_lshl_add_u32 v{60+k}, v{60+k}, 1, v7")
    if cfg.ffn1:
        a("s_mul_i32 s10, s97, 448")
        a(f"s_add_u32 s10, s10, {GP_OFF}")
        for z in range(1, 8):
            a(f"s_add_u32 s{16+z}, s10, {28672*z}")
        a("s_mov_b32 s16, s10")
        a(f"s_mov_b32 s4, {f32bits(0.044715):#x}")
        a(f"s_mov_b32 s5, {f32bits(-2.0 * math.sqrt(2.0 / math.pi) * math.log2(math.e)):#x}")
        wait_flags([(WH, 4, 14)], 16, cfg.sleep_w)
    a("s_mov_b32 exec_lo, 0x0fffffff")
    a("s_mov_b32 exec_hi, 0x0fffffff")
    stamp(5)
    if cfg.ffn1:
        def ldh():
            for z in range(8):
                a(f"buffer_load_dwordx4 {vr(16+4*z,4)}, v11, s[48:51], s{16+z} offen sc1")
        poll(ldh, lambda: check_tag(range(16, 48), 12, 13, "exec", narrow=True), cfg.hgap)
        for k in range(8):
            a(f"v_add_f32 v{16+k}, v{16+k}, v{24+k}")
            a(f"v_add_f32 v{32+k}, v{32+k}, v{40+k}")
        for k in range(8):
            a(f"v_add_f32 v{16+k}, v{16+k}, v{32+k}")
        for k in range(8):
            round_bf16(16 + k, 16 + k)
        for k in range(4):
            a(f"v_mul_f32 v{24+k}, v{16+k}, v{16+k}")
        for k in range(4):
            a(f"v_mul_f32 v{24+k}, v{24+k}, v{16+k}")
        for k in range(4):
            a(f"v_fma_f32 v{24+k}, v{24+k}, s4, v{16+k}")
        for k in range(4):
            a(f"v_mul_f32 v{24+k}, s5, v{24+k}")
        for k in range(4):
            a(f"v_exp_f32 v{24+k}, v{24+k}")
        for k in range(4):
            a(f"v_add_f32 v{24+k}, 1.0, v{24+k}")
        for k in range(4):
            a(f"v_rcp_f32 v{24+k}, v{24+k}")
        for k in range(4):
            a(f"v_mul_f32 v{24+k}, v{24+k}, v{16+k}")
        for k in range(4):
            round_bf16(24 + k, 24 + k)
        for k in range(4):
            a(f"v_mul_f32 v{24+k}, v{24+k}, v{20+k}")
        for k in range(4):
            a(f"v_cvt_pk_bf16_f32 v{16+k}, v{24+k}, v{24+k}")
    else:
        ppoll(cfg.hpipe, cfg.hgap, lambda r: a(f"buffer_load_dwordx4 {vr(r,4)}, v11, s[48:51], s10 offen sc1"), 1, 4, 16, 12, 13, full="exec")
    for k in range(4):
        a(f"ds_write_b16_d16_hi v{60+k}, v{16+k} offset:{HB}")
    set_flag(HF)
    stamp(6)
    a("s_branch L_S_END")

    a.label("L_S3")
    set_flag(LV)
    a("s_getreg_b32 s4, hwreg(HW_REG_XCC_ID)")
    a("s_and_b32 s4, s4, 15")
    a("s_lshl_b32 s4, s4, 8")
    a(f"s_or_b32 s5, s14, {MAGIC:#x}")
    a("s_or_b32 s4, s4, s5")
    a("v_mov_b32 v16, s4")
    a("s_lshl_b32 s10, s99, 6")
    a(f"s_add_u32 s10, s10, {XT_OFF}")
    a("s_mov_b64 exec, 1")
    a("buffer_store_dword v16, v14, s[48:51], s10 offen sc1")
    a("s_mov_b64 exec, -1")
    a("v_and_b32 v7, 31, v0")
    a("v_lshlrev_b32 v7, 6, v7")
    a("s_lshl_b32 s10, s96, 11")
    a(f"s_add_u32 s10, s10, {XT_OFF}")
    wait_flags([(TG, 2, 14), (PF, 1, 14)], 16, cfg.sleep_lds)

    def ckx():
        a("v_and_b32 v17, 0xfffff0ff, v16")
        a("v_cmp_eq_u32 vcc, s5, v17")
        a("s_cmp_eq_u64 vcc, -1")
    poll(lambda: a("buffer_load_dword v16, v7, s[48:51], s10 offen sc1"), ckx, 8)
    a("v_cmp_eq_u32 vcc, s4, v16")
    a("s_cmp_eq_u64 vcc, -1")
    a("s_cselect_b32 s101, 1, 0")
    if cfg.nofast:
        a("s_mov_b32 s101, 0")
    a("v_mov_b32 v16, s101")
    a(f"ds_write_b32 v14, v16 offset:{FM}")
    stamp(4)
    a("v_and_b32 v6, 7, v0")
    a("v_lshlrev_b32 v6, 3, v6")
    a("v_and_b32 v7, 31, v0")
    a("v_lshlrev_b32 v7, 3, v7")
    a("s_lshl_b32 s13, s99, 6")
    a(f"s_add_u32 s13, s13, {ML_OFF}")

    def ldm():
        for w in range(4):
            a(f"ds_read_b64 {vr(16+2*w,2)}, v6 offset:{MLB+64*w}")
    poll(ldm, lambda: check_sentinel(range(16, 24), 11), cfg.sleep_lds, cnt="lgkmcnt")
    stamp(5)
    a(f"ds_read_b32 v30, v7 offset:{MLB}")

    def combine4(mo):
        a(f"v_max3_f32 v{mo}, v16, v18, v20")
        a(f"v_max_f32 v{mo}, v{mo}, v22")

    def wsum4(mo, lo):
        for w in range(4):
            a(f"v_sub_f32 v{16+2*w}, v{16+2*w}, v{mo}")
        for w in range(4):
            a(f"v_mul_f32 v{16+2*w}, s67, v{16+2*w}")
        for w in range(4):
            a(f"v_exp_f32 v{16+2*w}, v{16+2*w}")
        a("s_nop 0")
        a(f"v_mul_f32 v{lo}, v16, v17")
        for w in range(1, 4):
            a(f"v_fmac_f32 v{lo}, v{16+2*w}, v{17+2*w}")
    combine4(24)
    wsum4(24, 25)
    put_tag(24)
    put_tag(25)
    a("s_mov_b64 exec, 0xff")
    store_mode("buffer_store_dwordx2 v[24:25], v6, s[48:51], s13 offen")
    a("s_mov_b64 exec, -1")
    a("s_lshl_b32 s10, s96, 11")
    a(f"s_add_u32 s10, s10, {ML_OFF}")
    a("v_lshlrev_b32 v7, 3, v0")
    if cfg.rank:
        mid, hi = (int(z) for z in cfg.rank.split(":"))
        for i in range(4):
            a(f"buffer_load_dword v{16+i}, v7, s[48:51], s10 offen offset:{512*i} sc1")
        a("s_waitcnt vmcnt(0)")
        a("s_mov_b32 s4, 0")
        for i in range(4):
            a(f"v_and_b32 v{16+i}, 0xffff, v{16+i}")
            a(f"v_cmp_eq_u32 vcc, s14, v{16+i}")
            a("s_bcnt1_i32_b64 s5, vcc")
            a("s_add_u32 s4, s4, s5")
        a(f"s_cmp_ge_u32 s4, {8*mid}")
        a("s_cselect_b32 s5, 1, 0")
        a(f"s_cmp_ge_u32 s4, {8*hi}")
        a("s_cselect_b32 s5, 3, s5")
        a("v_mov_b32 v16, s5")
        a(f"ds_write_b32 v14, v16 offset:{LV}")
    wait_flags([(LF, 1, 14)], 16, cfg.sleep_lds)
    if cfg.touch & 1:
        a("v_lshlrev_b32 v31, 6, v0")
        a("s_lshl_b32 s4, s99, 12")
        a(f"s_add_u32 s4, s4, {OP_OFF}")
        a("buffer_load_dword v2, v31, s[48:51], s4 offen sc1")
    if cfg.touch & 2:
        a("v_lshlrev_b32 v31, 5, v0")
        a("s_lshl_b32 s4, s99, 11")
        a(f"s_add_u32 s4, s4, {XP_OFF}")
        a("buffer_load_dword v1, v31, s[48:51], s4 offen sc1")

    def ld2():
        for i in range(4):
            a(f"buffer_load_dwordx2 {vr(16+2*i,2)}, v7, s[48:51], s10 offen offset:{512*i} sc1")
    poll(ld2, lambda: check_tag(range(16, 24), 11, 12), 8)
    stamp(6)
    combine4(26)
    xlane("v_max_f32", 26, 11, [8, 16, 32])
    wsum4(26, 27)
    xlane("v_add_f32", 27, 11, [8, 16, 32])
    a("v_sub_f32 v30, v30, v26")
    a("v_mul_f32 v30, s67, v30")
    a("v_exp_f32 v30, v30")
    a("v_rcp_f32 v27, v27")
    a("v_bfe_u32 v7, v0, 3, 2")
    a("v_lshlrev_b32 v7, 2, v7")
    a("v_lshl_add_u32 v7, v6, 1, v7")
    a("v_mul_f32 v30, v30, v27")
    a(f"ds_write_b32 v7, v30 offset:{FB}")
    set_flag(FF)
    a("v_lshlrev_b32 v6, 4, v9")
    a("v_lshl_add_u32 v6, v5, 2, v6")
    a("v_lshlrev_b32 v7, 4, v0")
    a("s_lshl_b32 s10, s99, 12")
    a(f"s_add_u32 s10, s10, {OP_OFF}")
    a("s_lshl_b32 s8, s99, 7")
    a(f"s_add_u32 s8, s8, {O2_OFF}")
    wait_flags([(OF, 4, 14)], 16, cfg.sleep_lds)
    stamp(7)

    def ld3(r):
        for i in range(4):
            a(f"buffer_load_dwordx4 {vr(r+4*i,4)}, v7, s[48:51], s10 offen offset:{1024*i} sc1")
    ppoll(cfg.lpipe, cfg.lgap, ld3, 4, 16, 40, 12, 13)
    stamp(8)
    for k in range(4):
        a(f"v_add_f32 v{40+k}, v{40+k}, v{44+k}")
        a(f"v_add_f32 v{48+k}, v{48+k}, v{52+k}")
    for k in range(4):
        a(f"v_add_f32 v{40+k}, v{40+k}, v{48+k}")
    a("s_nop 0")
    a("v_permlane32_swap_b32 v40, v42")
    a("v_permlane32_swap_b32 v41, v43")
    a("v_add_f32 v40, v40, v42")
    a("v_add_f32 v41, v41, v43")
    a("s_nop 1")
    a("v_permlane16_swap_b32 v40, v41")
    a("v_add_f32 v40, v40, v41")
    a("s_nop 1")
    a("v_add_f32_dpp v40, v40, v40 row_ror:8 row_mask:0xf bank_mask:0xf")
    a("v_cvt_pk_bf16_f32 v40, v40, v40")
    put_tag(40)
    a("s_mov_b32 exec_lo, 0x00ff00ff")
    a("s_mov_b32 exec_hi, 0x00ff00ff")
    a("buffer_store_dword v40, v6, s[48:51], s8 offen sc1")
    a("s_branch L_S_END")

    a.label("L_ATT")
    RING = 16
    SC = RING + 16 * R
    QR = SC + 32
    ST = QR + 8
    AC = QR
    PTA = AC + 32
    a("s_sub_u32 s6, s3, 4")
    a("v_bfe_u32 v6, v4, 1, 1")
    a("v_lshrrev_b32 v7, 2, v4")
    a("v_lshl_add_u32 v6, v6, 2, v7")
    a("v_lshlrev_b32 v6, 8, v6")
    a("v_lshl_add_u32 v6, v5, 5, v6")
    a("v_and_b32 v7, 1, v4")
    a("v_lshl_add_u32 v6, v7, 4, v6")
    a("s_lshl_b32 s7, s99, 18")
    a("s_lshl_b32 s8, s6, 12")
    a("s_add_u32 s7, s7, s8")
    a("s_mov_b32 s8, s7")
    a("s_waitcnt lgkmcnt(0)")
    srd(40, 18, 0x4000000)
    N = cfg.n
    NL = 143
    NH = [N]
    lim = [128]
    nl = [0]
    lvl_pending = [False]
    lvl_on = [False]

    def slot_of(item):
        return RING + 16 * (item % R)

    def issue1():
        k = nl[0]
        if k >= lim[0]:
            return
        item, q = divmod(k, 4)
        slot = slot_of(item)
        if item < 16:
            a(f"buffer_load_dwordx4 {vr(slot+4*q,4)}, v6, s[40:43], s7 offen offset:{128*(q&1)+2048*(q>>1)}{NT}")
            if q == 3 and item < 15:
                a("s_add_u32 s7, s7, 16384")
        elif item < 32:
            a(f"buffer_load_dwordx4 {vr(slot+4*q,4)}, v7, s[44:47], s8 offen offset:{1024*q}{NT}")
            if q == 3 and item < 31:
                a("s_add_u32 s8, s8, 16384")
        elif item < 34:
            m = k - 128
            a(f"buffer_load_dwordx4 {vr(slot+4*q,4)}, v3, s[52:55], s11 offen offset:{2048*(m&1)}{NT}")
            if (m & 1) and m < 7:
                a("s_add_u32 s11, s11, 16384")
        else:
            e = k - 136
            a(f"buffer_load_dwordx4 {vr(slot+4*q,4)}, v1, s[56:59], s10 offen offset:{2048*(e&1)}{NT}")
            if e & 1:
                a("s_add_u32 s10, s10, 4096")
        nl[0] += 1
        for kk, fl, av in ((cfg.pf, PF, 14), (cfg.lf, LF, 14), (cfg.go, GO, 13), (cfg.wf, WF, 13), (cfg.wh, WH, 13)):
            if k == kk - 1:
                set_flag(fl, av)

    def wait_load(k):
        a(f"s_waitcnt vmcnt({nl[0] - k - 1})")

    def thr():
        if not lvl_on[0]:
            return
        lab = newlab("go")
        a("s_bitcmp1_b32 s100, 1")
        a(f"s_cbranch_scc1 {lab}")
        a(f"s_waitcnt vmcnt({N})")
        a("s_bitcmp1_b32 s100, 0")
        a(f"s_cbranch_scc1 {lab}")
        a(f"s_waitcnt vmcnt({N-1})")
        a.label(lab)

    def advance(item):
        if lvl_on[0] and item < 24:
            if lvl_pending[0]:
                a("s_waitcnt lgkmcnt(0)")
                a("v_readfirstlane_b32 s100, v2")
            a(f"ds_read_b32 v2, v14 offset:{LV}")
            lvl_pending[0] = True
        for q in range(4):
            k = 4 * item + q
            if k >= NL:
                break
            if nl[0] < lim[0] and nl[0] - (k + 1) < NH[0]:
                wait_load(k)
                while nl[0] < lim[0] and nl[0] - (k + 1) < NH[0]:
                    thr()
                    issue1()
            elif q == 3 or k == NL - 1:
                wait_load(k)

    for k in range(4 * R):
        if k == cfg.pro:
            load_tag()
            a("v_lshlrev_b32 v7, 4, v0")
            a("s_lshl_b32 s9, s6, 2")
            a("v_mov_b32 v13, s9")
            srd(44, 20, 0x4000000)
            srd(48, 38, WS_SIZE)
            srd(52, 24, 0x800000)
            srd(56, 32, 0x700000)
            consts()
            a("v_mul_u32_u24 v11, 272, v9")
            a("v_lshl_add_u32 v11, v5, 5, v11")
            a("v_lshl_add_u32 v11, v8, 4, v11")
            a("v_mov_b32 v10, 0xff800000")
        if k == cfg.b0a:
            a("s_barrier")
        if k >= N:
            a(f"s_waitcnt vmcnt({N-1})")
        issue1()
    stamp(1)
    wait_flags([(QF, 1, 14)], QR, 1)
    make_tag()
    stamp(2)
    for c in range(2):
        a(f"ds_read_b128 {vr(QR+4*c,4)}, v11 offset:{QB+128*c}")
    a("s_waitcnt lgkmcnt(0)")

    def post(i):
        t = ST + 8 * (i & 1)
        w = ST + 16
        for q in range(4):
            a(f"v_add_f32_dpp v{w+6+q}, v{t+2*q+1}, v{t+2*q} row_ror:8 row_mask:0xf bank_mask:0xf")
        s = w + 6
        a(f"v_max3_f32 v10, v10, v{s}, v{s+1}")
        a(f"v_cvt_pk_bf16_f32 v{w+4}, v{s}, v{s+1}")
        a(f"v_cvt_pk_bf16_f32 v{w+5}, v{s+2}, v{s+3}")
        a(f"v_max3_f32 v10, v10, v{s+2}, v{s+3}")
        a(f"v_lshlrev_b32 v{w}, 16, v{w+4}")
        a(f"v_and_b32 v{w+1}, s66, v{w+4}")
        a(f"v_lshlrev_b32 v{w+2}, 16, v{w+5}")
        a(f"v_and_b32 v{w+3}, s66, v{w+5}")
        for k in range(4):
            a(f"v_mul_f32 v{w+k}, s68, v{w+k}")
        a(f"v_cvt_pk_bf16_f32 v{SC+2*i}, v{w}, v{w+1}")
        a(f"v_cvt_pk_bf16_f32 v{SC+2*i+1}, v{w+2}, v{w+3}")

    for i in range(16):
        advance(i)
        slot = slot_of(i)
        t = ST + 8 * (i & 1)
        for st_ in range(2):
            for ln in range(2):
                cc = "0" if ln == 0 else vr(t + 4 * st_, 4)
                a(f"v_mfma_f32_16x16x32_bf16 {vr(t+4*st_,4)}, {vr(slot+4*(2*st_+ln),4)}, {vr(QR+4*ln,4)}, {cc}")
        if nl[0] - 4 * (i + 1) >= N and nl[0] < 4 * (i + 1 + R):
            for _ in range(4 if i == 0 else 1):
                if nl[0] < 4 * (i + 1 + R):
                    a(f"s_waitcnt vmcnt({N-1})")
                    issue1()
        if i >= 1:
            a("s_nop 3")
            post(i - 1)
    a("s_nop 7")
    post(15)
    stamp(3)
    xlane("v_max_f32", 10, 11, [16, 32])
    w = ST
    MM, LL, L2 = ST + 8, ST + 9, ST + 10
    round_bf16(MM, 10)
    a(f"v_mul_f32 v{MM}, s68, v{MM}")
    round_bf16(MM, MM)
    a(f"v_mul_f32 v11, s67, v{MM}")
    a(f"v_mov_b32 v{LL}, 0")
    a(f"v_mov_b32 v{L2}, 0")
    for k in range(0, 32, 2):
        if k % 6 == 0:
            issue1()
        for q in range(2):
            a(f"v_lshlrev_b32 v{w+2*q}, 16, v{SC+k+q}")
            a(f"v_and_b32 v{w+2*q+1}, s66, v{SC+k+q}")
        for q in range(4):
            a(f"v_fma_f32 v{w+q}, v{w+q}, s67, -v11")
        for q in range(4):
            a(f"v_exp_f32 v{w+q}, v{w+q}")
        a(f"v_add_f32 v{LL}, v{LL}, v{w}")
        a(f"v_add_f32 v{L2}, v{L2}, v{w+1}")
        a(f"v_cvt_pk_bf16_f32 v{SC+k}, v{w}, v{w+1}")
        a(f"v_add_f32 v{LL}, v{LL}, v{w+2}")
        a(f"v_add_f32 v{L2}, v{L2}, v{w+3}")
        a(f"v_cvt_pk_bf16_f32 v{SC+k+1}, v{w+2}, v{w+3}")
    a(f"v_add_f32 v{LL}, v{LL}, v{L2}")
    xlane("v_add_f32", LL, L2, [16, 32])
    a(f"v_min_u32 v{LL}, -2, v{LL}")
    a("s_lshl_b32 s9, s6, 6")
    a("v_lshlrev_b32 v12, 3, v0")
    a("v_add_u32 v12, s9, v12")
    a("s_mov_b64 exec, 0xff")
    a(f"ds_write_b64 v12, {vr(MM,2)} offset:{MLB}")
    a("s_mov_b64 exec, -1")
    stamp(4)
    issue1()
    a("s_and_b32 s4, s6, 1")
    a("s_lshr_b32 s5, s6, 1")
    a("s_mul_i32 s9, s6, 4224")
    a("v_mul_u32_u24 v10, 528, v4")
    a("v_lshl_add_u32 v10, v5, 7, v10")
    a("v_add_u32 v10, s9, v10")
    a("v_lshrrev_b32 v3, 1, v5")
    a("v_lshlrev_b32 v3, 5, v3")
    a("v_and_b32 v1, 1, v5")
    a("v_lshl_add_u32 v3, v1, 2, v3")
    a("v_lshl_add_u32 v3, v8, 1, v3")
    a("v_lshlrev_b32 v3, 11, v3")
    a("v_lshl_add_u32 v3, v9, 4, v3")
    a("v_lshl_add_u32 v1, v5, 1, v8")
    a("v_mul_u32_u24 v1, 14336, v1")
    a("v_lshl_add_u32 v1, v9, 4, v1")
    colgrp(12, 4, 13)
    a("s_lshl_b32 s12, s12, 7")
    a("s_lshl1_add_u32 s13, s97, s5")
    a("s_lshl_b32 s11, s13, 17")
    a("s_add_u32 s11, s11, s12")
    a(f"s_mul_i32 s10, s13, {56*2048}")
    a("s_add_u32 s10, s10, s12")
    a("v_bfe_u32 v12, v4, 2, 1")
    a("v_lshlrev_b32 v12, 8, v12")
    a("v_lshl_add_u32 v12, v5, 5, v12")
    a("v_and_b32 v11, 1, v4")
    a("v_lshl_add_u32 v12, v11, 4, v12")
    a("s_lshl_b32 s9, s5, 7")
    a("v_add_u32 v12, s9, v12")
    a("v_lshlrev_b32 v11, 15, v5")
    a("v_lshrrev_b32 v6, 2, v9")
    a("v_lshl_add_u32 v11, v6, 13, v11")
    a("v_and_b32 v6, 3, v9")
    a("v_lshl_add_u32 v11, v6, 5, v11")
    a("v_lshl_add_u32 v11, v8, 4, v11")
    a("s_lshl_b32 s9, s96, 16")
    a("s_lshl_b32 s12, s4, 14")
    a("s_add_u32 s9, s9, s12")
    a("s_lshl_b32 s12, s13, 7")
    a("s_add_u32 s9, s9, s12")
    a(f"s_add_u32 s9, s9, {XP_OFF}")
    a("v_lshrrev_b32 v4, 5, v0")
    a("s_lshl_b32 s12, s6, 1")
    a("v_add_u32 v4, s12, v4")
    a("v_lshlrev_b32 v5, 4, v4")
    a("v_mul_u32_u24 v4, 528, v4")
    a("v_and_b32 v6, 31, v0")
    a("v_lshl_add_u32 v4, v6, 4, v4")
    a("v_lshlrev_b32 v8, 4, v9")
    a("v_lshrrev_b32 v6, 3, v0")
    a("v_lshl_add_u32 v8, v6, 12, v8")
    a("v_mul_u32_u24 v6, 5, v6")
    a("v_add_u32 v6, s97, v6")
    a("v_and_b32 v6, 31, v6")
    a("v_lshl_add_u32 v8, v6, 7, v8")
    a("s_lshl_b32 s5, s96, 17")
    a("s_lshl_b32 s12, s6, 15")
    a("s_add_u32 s5, s5, s12")
    a(f"s_add_u32 s5, s5, {OP_OFF}")
    get_mode(6)
    if cfg.rank:
        NH[0] = N + 2
        lvl_on[0] = True
        a("s_mov_b32 s100, 0")
    for it in range(16, 32):
        advance(it)
        if it & 1:
            u = (it - 16) // 2
            s0 = slot_of(16 + 2 * u)
            s1 = slot_of(17 + 2 * u)
            src = lambda e, s0=s0, s1=s1: (s0 if e < 4 else s1) + 4 * (e & 3)

            def M(i, u=u):
                for h in range(2):
                    j = 2 * i + h
                    c = "0" if u == 0 else vr(AC + 4 * j, 4)
                    a(f"v_mfma_f32_16x16x32_bf16 {vr(AC+4*j,4)}, {vr(PTA+8*(i&1)+4*h,4)}, {vr(SC+4*u,4)}, {c}")
            perms(PTA, src, 0)
            perms(PTA + 8, src, 1)
            M(0)
            perms(PTA, src, 2)
            M(1)
            perms(PTA + 8, src, 3)
            M(2)
            M(3)
    stamp(5)
    a("s_mov_b32 exec_lo, 0x00ff00ff")
    a("s_mov_b32 exec_hi, 0x00ff00ff")
    for j in range(8):
        if j == 4:
            a("s_nop 0")
        a(f"ds_write_b128 v10, {vr(AC+4*j,4)} offset:{ORED+16*j}")
    a("s_mov_b64 exec, -1")
    set_flag(OF, 13)
    T0 = slot_of(0)
    wait_flags([(OF, 4, 14), (FF, 1, 14)], T0, 0)
    a(f"ds_read_b128 {vr(T0,4)}, v5 offset:{FB}")
    for w_ in range(4):
        a(f"ds_read_b128 {vr(T0+4+4*w_,4)}, v4 offset:{ORED+4224*w_}")
    for k in range(4):
        a(f"v_mov_b32 v{slot_of(35)+12+k}, 0")
    a("s_waitcnt lgkmcnt(0)")
    for w_ in range(4):
        for k in range(4):
            if w_ == 0:
                a(f"v_mul_f32 v{T0+4+k}, v{T0}, v{T0+4+k}")
            else:
                a(f"v_fmac_f32 v{T0+4+k}, v{T0+w_}, v{T0+4+4*w_+k}")
    for k in range(4):
        put_tag(T0 + 4 + k)
    store_mode(f"buffer_store_dwordx4 {vr(T0+4,4)}, v8, s[48:51], s5 offen")
    stamp(6)
    TP = slot_of(6)
    XACC = SC
    wait_flags([(GF, 2, 14)], PTA, 1)
    lim[0] = NL
    if cfg.w2lvl:
        a(f"s_or_b32 s100, s100, {cfg.w2lvl}")
    for z in range(NH[0]):
        if z >= N:
            thr()
        issue1()
    advance(32)
    advance(33)
    srco = lambda e: (lambda m: slot_of(32 + (m >> 2)) + 4 * (m & 3))(2 * (e & 3) + (e >> 2))
    for i in range(4):
        perms(TP + 8 * i, srco, i)
    srcd = lambda e: slot_of(34 + (e >> 2)) + 4 * (e & 3)

    def operand(flag, buf, dst, lab):
        a(f"ds_read_b32 v{PTA+8}, v14 offset:{flag}")
        a(f"ds_read_b128 {vr(dst,4)}, v12 offset:{buf}")

    def operand_ok(flag, buf, dst, lab):
        a("s_waitcnt lgkmcnt(0)")
        a(f"v_cmp_eq_u32 vcc, 0, v{PTA+8}")
        a("s_cmp_eq_u64 vcc, -1")
        a(f"s_cbranch_scc1 {lab}")
        wait_flags([(flag, 1, 14)], PTA + 8, 0)
        a(f"ds_read_b128 {vr(dst,4)}, v12 offset:{buf}")
        a("s_waitcnt lgkmcnt(0)")
        a.label(lab)
    advance(34)
    assert nl[0] == NL
    if cfg.tail2:
        for i in range(4):
            for hh, sel in ((0, "s64"), (1, "s65")):
                for p in range(2):
                    a(f"v_perm_b32 v{TP+32+8*i+4*hh+p}, v{srcd(2*p+1)+i}, v{srcd(2*p)+i}, {sel}")
        advance(35)
        stamp(7)
        operand(BF, OB, PTA + 4, "L_ogo")
        for i in range(4):
            for hh, sel in ((0, "s64"), (1, "s65")):
                for p in range(2, 4):
                    a(f"v_perm_b32 v{TP+32+8*i+4*hh+p}, v{srcd(2*p+1)+i}, v{srcd(2*p)+i}, {sel}")
        operand_ok(BF, OB, PTA + 4, "L_ogo")
        operand(HF, HB, PTA, "L_hgo")
        for j in range(8):
            a(f"v_mfma_f32_16x16x32_bf16 {vr(XACC+4*j,4)}, {vr(PTA+4,4)}, {vr(TP+4*j,4)}, 0")
        operand_ok(HF, HB, PTA, "L_hgo")
        stamp(9)
        for j in range(8):
            a(f"v_mfma_f32_16x16x32_bf16 {vr(XACC+4*j,4)}, {vr(PTA,4)}, {vr(TP+32+4*j,4)}, {vr(XACC+4*j,4)}")
    else:
        advance(35)
        stamp(7)
        a(f"ds_read_b64 {vr(PTA+8,2)}, v14 offset:{HF}")
        a(f"ds_read_b128 {vr(PTA+4,4)}, v12 offset:{OB}")
        a(f"ds_read_b128 {vr(PTA,4)}, v12 offset:{HB}")
        for i in range(4):
            perms(TP + 32 + 8 * i, srcd, i)
        a("s_waitcnt lgkmcnt(0)")
        a(f"v_or_b32 v{PTA+8}, v{PTA+8}, v{PTA+9}")
        a(f"v_cmp_eq_u32 vcc, 0, v{PTA+8}")
        a("s_cmp_eq_u64 vcc, -1")
        a("s_cbranch_scc1 L_xgo")
        wait_flags([(HF, 2, 14)], PTA + 8, 0)
        a(f"ds_read_b128 {vr(PTA+4,4)}, v12 offset:{OB}")
        a(f"ds_read_b128 {vr(PTA,4)}, v12 offset:{HB}")
        a("s_waitcnt lgkmcnt(0)")
        a.label("L_xgo")
        stamp(9)
        for j in range(8):
            a(f"v_mfma_f32_16x16x32_bf16 {vr(XACC+4*j,4)}, {vr(PTA+4,4)}, {vr(TP+4*j,4)}, 0")
        for j in range(8):
            a(f"v_mfma_f32_16x16x32_bf16 {vr(XACC+4*j,4)}, {vr(PTA,4)}, {vr(TP+32+4*j,4)}, {vr(XACC+4*j,4)}")
    a("s_nop 1")
    fold(PTA + 8, XACC)
    a("s_mov_b32 exec_hi, 0")
    store_mode(f"buffer_store_dwordx4 {vr(PTA+8,4)}, v11, s[48:51], s9 offen")
    set_flag(SF, 13)
    stamp(10)
    dump_stamps()
    a.label("L_END")
    a("s_endpgm")

    probs = check_hazards(a.lines)
    for p in probs:
        print(p, file=sys.stderr)
    if probs:
        raise SystemExit("hazards found")

    pad = f".fill (24576 - (. - {NAME}_kernel)) / 4, 4, 0xBF800000\n" if cfg.codepf else ""
    out = HEADER
    out += "; Generated by work/gen11.py (hand-written generator). One persistent launch, 256 workgroups x 8 waves.\n"
    out += f"; @launch grid=(256,1,1) block=(512,1,1) lds={LDS_SIZE}\n"
    out += f""".amdgcn_target "amdgcn-amd-amdhsa--gfx950"
.text
.globl {NAME}_kernel
.p2align 8
.type {NAME}_kernel,@function
{NAME}_kernel:
"""
    out += a.text()
    out += pad
    out += f""".section .rodata,"a"
.p2align 6
.amdhsa_kernel {NAME}_kernel
  .amdhsa_next_free_vgpr 256
  .amdhsa_next_free_sgpr 102
  .amdhsa_accum_offset 256
  .amdhsa_group_segment_fixed_size 0
  .amdhsa_kernarg_size 96
  .amdhsa_user_sgpr_count 2
  .amdhsa_user_sgpr_kernarg_segment_ptr 1
  .amdhsa_system_sgpr_workgroup_id_x 1
  .amdhsa_float_denorm_mode_32 3
.end_amdhsa_kernel
"""
    return out


def parse_args(argv=None):
    p = argparse.ArgumentParser()
    p.add_argument("-o", default="cdna_kernels/" + NAME + ".s")
    p.add_argument("--stamps", type=int, default=0)
    p.add_argument("--codepf", type=int, default=16)
    p.add_argument("--sleep_lds", type=int, default=2)
    p.add_argument("--spin", type=int, default=2000000)
    p.add_argument("--n", type=int, default=6)
    p.add_argument("--ns", type=int, default=12)
    p.add_argument("--gate", type=int, default=32)
    p.add_argument("--pf", type=int, default=24)
    p.add_argument("--lf", type=int, default=108)
    p.add_argument("--go", type=int, default=128)
    p.add_argument("--wf", type=int, default=143)
    p.add_argument("--rank", default="22:28")
    p.add_argument("--nofast", type=int, default=0)
    p.add_argument("--padto", type=int, default=0)
    p.add_argument("--padfrom", type=int, default=0)
    p.add_argument("--touch", type=int, default=0)
    p.add_argument("--wh", type=int, default=139)
    p.add_argument("--sleep_w", type=int, default=1)
    p.add_argument("--tail2", type=int, default=1)
    p.add_argument("--w2lvl", type=int, default=0)
    p.add_argument("--ffn1", type=int, default=1)
    p.add_argument("--s0b", type=int, default=32)
    p.add_argument("--b0a", type=int, default=3)
    p.add_argument("--pro", type=int, default=0)
    p.add_argument("--qmap", type=int, default=1)
    p.add_argument("--gmap", type=int, default=0)
    p.add_argument("--cmap", type=int, default=0)
    for nm, d, g in (("y", 2, 2), ("o", 1, 0), ("g", 1, 0), ("h", 1, 0), ("l", 1, 0)):
        p.add_argument(f"--{nm}pipe", type=int, default=d)
        p.add_argument(f"--{nm}gap", type=int, default=g)
    return p.parse_args(argv)


if __name__ == "__main__":
    cfg = parse_args()
    open(cfg.o, "w").write(gen(cfg))
    print("wrote", cfg.o)
```

```python
import sys
import argparse
import struct
import math
from asmlib import Asm, vr, check_hazards

NAME = "parallel_sum__gqa_block_cached__geglu_ffn__decode"

QP_OFF = 0x000000
GP_OFF = 0x020000
H2_OFF = 0x058000
ML_OFF = 0x060000
XT_OFF = 0x068000
EP_OFF = 0x070000
O2_OFF = 0x078000
OP_OFF = 0x080000
XP_OFF = 0x180000
ST_OFF = 0x200000
SP_OFF = 0x2000000
WS_SIZE = 0x4000000
XN = 0x0000
QB = 0x0400
MLB = 0x0C80
FL = 0x0D80
OF = FL + 0
FF = FL + 16
LF = FL + 20
GF = FL + 24
QF = FL + 32
XF = FL + 36
PF = FL + 40
HF = FL + 48
BF = FL + 52
TG = FL + 56
LV = FL + 64
FM = FL + 68
WF = FL + 80
GO = FL + 96
WH = FL + 128
SF = FL + 112
FB = 0x0E80
OB = 0x0F00
HB = 0x1100
ORED = 0x1300
LDS_SIZE = ORED + 4 * 4224

LOG2E = 0x3FB8AA3B
SCALE = 0x3DB504F3
EPS = 0x3727C5AC
MAGIC = 0x5A3C6000

HEADER = open("cdna_kernels/" + NAME + ".s.ref").read().split("; Override launch")[0]


def f32bits(x):
    return struct.unpack("<I", struct.pack("<f", x))[0]


def gen(cfg):
    global GP_OFF
    GP_OFF = cfg.gpoff or GP_OFF
    a = Asm()
    R = 10
    NT = " nt"
    uid = [0]

    def newlab(p):
        uid[0] += 1
        return f"L_{p}{uid[0]}"

    def stamp(k):
        if cfg.padto and cfg.padfrom == k:
            a("s_memrealtime s[94:95]")
        if cfg.stamps:
            a(f"s_memrealtime s[{70+2*k}:{71+2*k}]")

    def srd(d, p, size):
        a(f"s_mov_b32 s{d}, s{p}")
        a(f"s_mov_b32 s{d+1}, s{p+1}")
        a(f"s_mov_b32 s{d+2}, {size:#x}")
        a(f"s_mov_b32 s{d+3}, 0x20000")

    def dump_stamps():
        if not cfg.stamps:
            return
        a("s_waitcnt lgkmcnt(0)")
        for _ in range(3):
            a("s_sleep 127")
        a("s_mov_b64 exec, 1")
        a("s_lshl_b32 s4, s2, 10")
        a("s_lshl_b32 s5, s3, 7")
        a("s_add_u32 s4, s4, s5")
        a(f"s_add_u32 s4, s4, {ST_OFF}")
        a("v_mov_b32 v3, 0")
        for k in range(13):
            a(f"v_mov_b32 v1, s{70+2*k}")
            a(f"buffer_store_dword v1, v3, s[48:51], s4 offen offset:{4*k}")

    def poll(loads, check, sleep, cnt="vmcnt"):
        top, done = newlab("poll"), newlab("pdone")
        a(f"s_mov_b32 s15, {cfg.spin if cnt == 'vmcnt' else 8 * cfg.spin}")
        a.label(top)
        loads()
        a(f"s_waitcnt {cnt}(0)")
        check()
        a(f"s_cbranch_scc1 {done}")
        a("s_sub_u32 s15, s15, 1")
        a(f"s_cbranch_scc1 {done}")
        if sleep:
            a(f"s_sleep {sleep}")
        a(f"s_branch {top}")
        a.label(done)

    def check_tag(regs, t0, t1, full="-1", narrow=False):
        regs = list(regs)
        for r in regs:
            a(f"v_xor_b32 v{r}, {'s62' if narrow else 's14'}, v{r}")
        acc = [None, None]
        k = 0
        while regs:
            t = (t0, t1)[k & 1]
            if acc[k & 1] is None and len(regs) >= 3:
                a(f"v_or3_b32 v{t}, v{regs[0]}, v{regs[1]}, v{regs[2]}")
                regs = regs[3:]
                acc[k & 1] = t
            elif acc[k & 1] is None:
                k += 1
                continue
            elif len(regs) >= 2:
                a(f"v_or3_b32 v{t}, v{t}, v{regs[0]}, v{regs[1]}")
                regs = regs[2:]
            else:
                a(f"v_or_b32 v{t}, v{t}, v{regs[0]}")
                regs = regs[1:]
            k += 1
        if acc[1] is not None:
            a(f"v_or_b32 v{t0}, v{t0}, v{t1}")
        a(f"v_and_b32 v{t0}, {63 if narrow else 255}, v{t0}")
        a(f"v_cmp_eq_u32 vcc, 0, v{t0}")
        a(f"s_cmp_eq_u64 vcc, {full}")

    def ppoll(P, gap, load, nloads, nregs, dst, t0, t1, full="-1"):
        if P <= 1:
            poll(lambda: load(dst), lambda: check_tag(range(dst, dst + nregs), t0, t1, full), gap)
            return
        base = lambda p: dst + nregs * (p + 1)
        top, out = newlab("pp"), newlab("ppo")
        got = [newlab("ppg") for _ in range(P)]
        a(f"s_mov_b32 s15, {cfg.spin}")
        for p in range(P - 1):
            load(base(p))
            a(f"s_sleep {gap}")
        a.label(top)
        for p in range(P):
            load(base((p + P - 1) % P))
            a(f"s_waitcnt vmcnt({nloads*(P-1)})")
            check_tag(range(base(p), base(p) + nregs), t0, t1, full)
            a(f"s_cbranch_scc1 {got[p]}")
        a("s_sub_u32 s15, s15, 1")
        a(f"s_cbranch_scc0 {top}")
        for p in range(P):
            a.label(got[p])
            for k in range(nregs):
                a(f"v_mov_b32 v{dst+k}, v{base(p)+k}")
            if p < P - 1:
                a(f"s_branch {out}")
        a.label(out)

    def wait_flags(reads, t, sleep):
        regs = []

        def ld():
            r = t
            regs.clear()
            for off, n, av in reads:
                op = {1: "ds_read_b32", 2: "ds_read_b64", 4: "ds_read_b128"}[n]
                a(f"{op} {vr(r,n)}, v{av} offset:{off}")
                regs.extend(range(r, r + n))
                r += (n + 1) & ~1

        def ck():
            rs = list(regs)
            while len(rs) >= 3:
                a(f"v_or3_b32 v{rs[0]}, v{rs[0]}, v{rs[1]}, v{rs[2]}")
                rs = [rs[0]] + rs[3:]
            if len(rs) == 2:
                a(f"v_or_b32 v{rs[0]}, v{rs[0]}, v{rs[1]}")
            a(f"v_cmp_eq_u32 vcc, 0, v{rs[0]}")
            a("s_cmp_eq_u64 vcc, -1")
        poll(ld, ck, sleep, cnt="lgkmcnt")

    def set_flag(off, av=14):
        a(f"ds_write_b32 v{av}, v14 offset:{off}")

    def get_mode(t):
        def ld():
            a(f"ds_read_b32 v{t}, v14 offset:{FM}")

        def ck():
            a(f"v_readfirstlane_b32 s101, v{t}")
            a("s_cmp_lg_u32 s101, -1")
        poll(ld, ck, cfg.sleep_lds, cnt="lgkmcnt")

    def store_mode(ins):
        f, d = newlab("stf"), newlab("std")
        a("s_cmp_eq_u32 s101, 1")
        a(f"s_cbranch_scc1 {f}")
        a(ins + " sc1")
        a(f"s_branch {d}")
        a.label(f)
        a(ins)
        a.label(d)

    def check_sentinel(regs, tmp):
        regs = list(regs)
        a(f"v_max3_u32 v{tmp}, v{regs[0]}, v{regs[1]}, v{regs[2]}")
        regs = regs[3:]
        while len(regs) >= 2:
            a(f"v_max3_u32 v{tmp}, v{tmp}, v{regs[0]}, v{regs[1]}")
            regs = regs[2:]
        if regs:
            a(f"v_max_u32 v{tmp}, v{tmp}, v{regs[0]}")
        a(f"v_cmp_ne_u32 vcc, -1, v{tmp}")
        a("s_cmp_eq_u64 vcc, -1")

    def put_tag(r):
        a(f"v_bfi_b32 v{r}, s69, v15, v{r}")

    def load_tag():
        a(f"s_load_dword s14, s[38:39], {EP_OFF:#x}")

    def make_tag():
        a("s_add_u32 s14, s14, 1")
        a("s_and_b32 s14, s14, 0xff")
        a("v_mov_b32 v15, s14")

    def xlane(op, x, t, steps):
        for s in steps:
            if s in (1, 2, 4, 8):
                a("s_nop 1")
                a(f"{op}_dpp v{x}, v{x}, v{x} row_ror:{s} row_mask:0xf bank_mask:0xf")
            else:
                a(f"v_mov_b32 v{t}, v{x}")
                a("s_nop 1")
                a(f"v_permlane{s}_swap_b32 v{x}, v{t}")
                a(f"{op} v{x}, v{x}, v{t}")

    def round_bf16(d, s):
        a(f"v_cvt_pk_bf16_f32 v{d}, v{s}, v{s}")
        a(f"v_lshlrev_b32 v{d}, 16, v{d}")

    def perms(dst, src_e, i):
        for p in range(4):
            a(f"v_perm_b32 v{dst+p}, v{src_e(2*p+1)+i}, v{src_e(2*p)+i}, s64")
        for p in range(4):
            a(f"v_perm_b32 v{dst+4+p}, v{src_e(2*p+1)+i}, v{src_e(2*p)+i}, s65")

    def fold(dst, acc, rnd=0):
        for k in range(4):
            a(f"v_add_f32_dpp v{dst+k}, v{acc+4*k+1}, v{acc+4*k} row_ror:8 row_mask:0xf bank_mask:0x3")
        for k in range(4):
            if k >= 2:
                a("s_nop 0")
            a(f"v_add_f32_dpp v{dst+k}, v{acc+4*(k+4)}, v{acc+4*(k+4)+1} row_ror:8 row_mask:0xf bank_mask:0xc")
        for k in range(4):
            if rnd:
                a(f"v_add_u32 v{dst+k}, {rnd}, v{dst+k}")
            put_tag(dst + k)

    def colgrp(d, ch, tmp):
        if cfg.cmap == 0:
            a(f"s_lshl1_add_u32 s{d}, s96, s{ch}")
        elif cfg.cmap == 1:
            a(f"s_lshl3_add_u32 s{d}, s{ch}, s96")
        elif cfg.cmap == 2:
            a(f"s_mul_i32 s{tmp}, s{ch}, 15")
            a(f"s_xor_b32 s{d}, s96, s{tmp}")
        else:
            a(f"s_mul_i32 s{tmp}, s{ch}, 12")
            a(f"s_xor_b32 s{d}, s96, s{tmp}")

    def consts():
        a("s_mov_b32 s64, 0x05040100")
        a("s_mov_b32 s65, 0x07060302")
        a("s_mov_b32 s66, 0xffff0000")
        a(f"s_mov_b32 s67, {LOG2E:#x}")
        a(f"s_mov_b32 s68, {SCALE:#x}")
        a("s_movk_i32 s69, 0xff")

    a("s_cmp_ge_u32 s2, 256")
    a("s_cbranch_scc1 L_END")
    a("s_load_dwordx16 s[16:31], s[0:1], 0")
    a("s_load_dwordx8 s[32:39], s[0:1], 64")
    stamp(0)
    a("v_lshrrev_b32 v3, 6, v0")
    a("s_and_b32 s96, s2, 7")
    a("s_lshr_b32 s97, s2, 3")
    a("v_and_b32 v0, 63, v0")
    a("v_readfirstlane_b32 s3, v3")
    a("s_lshl_b32 s99, s96, 5")
    a("s_or_b32 s99, s99, s97")
    a("s_lshr_b32 s98, s2, 5")
    a("v_and_b32 v4, 15, v0")
    a("v_lshrrev_b32 v5, 4, v0")
    a("v_mov_b32 v14, 0")
    a("v_lshrrev_b32 v8, 3, v4")
    a("v_and_b32 v9, 7, v4")
    a("s_cmp_ge_u32 s3, 4")
    a("s_cbranch_scc1 L_ATT")
    a("s_and_b32 s7, s97, 3")
    a("v_lshlrev_b32 v10, 3, v8")
    a("v_lshl_add_u32 v10, v5, 4, v10")
    a("s_cmp_lg_u32 s3, 0")
    a("s_cbranch_scc1 L_S123")

    XA = 16
    XO = 32
    XU = 36
    WR = 72
    ACC = 200
    PT = 232

    def wloads(stride, throttle, gate, bar=99):
        for T in range(4):
            for e in range(8):
                k = 8 * T + e
                if k == bar:
                    a("s_barrier")
                if throttle and k >= throttle:
                    a(f"s_waitcnt vmcnt({throttle-1})")
                a(f"buffer_load_dwordx4 {vr(WR+32*T+4*e,4)}, v10, s[40:43], s10 offen{NT}")
                if k < 31:
                    a(f"s_add_u32 s10, s10, {stride * (57 if e == 7 else 1)}")
                if gate and k == gate - 1:
                    set_flag(GF - 4, 13)

    if cfg.qmap == 0:
        a("s_xor_b32 s6, s98, 4")
        a("s_lshl3_add_u32 s6, s96, s6")
    elif cfg.qmap == 2:
        a("s_lshl3_add_u32 s6, s98, s96")
    elif cfg.qmap == 3:
        a("s_add_u32 s6, s96, s97")
        a("s_and_b32 s6, s6, 7")
        a("s_lshl3_add_u32 s6, s98, s6")
    else:
        a("s_lshl3_add_u32 s6, s98, s96")
        a("s_mul_i32 s4, s6, 37")
        a("s_lshr_b32 s4, s4, 8")
        a("s_mul_i32 s5, s4, 7")
        a("s_sub_u32 s5, s6, s5")
        a("s_cmp_ge_u32 s5, 3")
        a("s_addc_u32 s5, s5, 0")
        a("s_lshl_b32 s4, s4, 3")
        a("s_add_u32 s5, s5, s4")
        a("s_lshl_b32 s4, s6, 3")
        a(f"s_sub_u32 s4, s4, {56*8-3}")
        a("s_cmp_ge_u32 s6, 56")
        a("s_cselect_b32 s6, s4, s5")
    a("v_lshlrev_b32 v6, 6, v0")
    a("v_lshrrev_b32 v7, 5, v0")
    a("v_lshlrev_b32 v7, 11, v7")
    a("v_and_b32 v11, 31, v0")
    a("v_lshl_add_u32 v7, v11, 4, v7")
    a("s_lshl_b32 s12, s7, 9")
    a("v_lshlrev_b32 v10, 13, v10")
    a("v_lshl_add_u32 v10, v9, 4, v10")
    a("s_lshl_b32 s10, s7, 21")
    a("s_lshl_b32 s11, s6, 7")
    a("s_add_u32 s10, s10, s11")
    a("s_waitcnt lgkmcnt(0)")
    srd(56, 16, 4096)
    srd(40, 22, 0x800000)
    load_tag()
    for i in range(4):
        a(f"buffer_load_dwordx4 {vr(XA+4*i,4)}, v6, s[56:59], 0 offen offset:{16*i}")
    a(f"buffer_load_dwordx4 {vr(XO,4)}, v7, s[56:59], s12 offen")
    wloads(8192, cfg.ns0, 0, cfg.s0b)
    stamp(1)
    if cfg.s0b >= 32:
        a("s_barrier")
    srd(48, 38, WS_SIZE)
    consts()
    a("s_mov_b32 s101, 0")
    if cfg.spread & 1:
        a("s_mov_b32 s9, 4096")
        a("s_and_b32 s10, s6, 7")
        a("s_mul_i32 s10, s10, 0x42000")
        a("s_bfe_u32 s11, s6, 0x10003")
        a("s_mul_i32 s11, s11, 0x1010000")
        a("s_add_u32 s10, s10, s11")
        a("s_lshr_b32 s11, s6, 4")
        a("s_lshl2_add_u32 s11, s11, s7")
        a("s_lshl_b32 s11, s11, 8")
        a("s_add_u32 s10, s10, s11")
        a(f"s_add_u32 s10, s10, {SP_OFF}")
    else:
        a("s_mov_b32 s9, 16384")
        a("s_lshl_b32 s10, s7, 15")
        a("s_lshl_b32 s11, s6, 8")
        a("s_add_u32 s10, s10, s11")
    a("s_waitcnt vmcnt(32)")
    stamp(2)
    for i in range(16):
        a(f"v_lshlrev_b32 v{XU+2*i}, 16, v{XA+i}")
        a(f"v_and_b32 v{XU+2*i+1}, s66, v{XA+i}")
    for k in range(4):
        a(f"v_add_f32 v{XA+k}, v{XU+k}, v{XU+4+k}")
    for i in range(8, 32):
        a(f"v_add_f32 v{XA+(i&3)}, v{XA+(i&3)}, v{XU+i}")
    a(f"v_add_f32 v11, v{XA}, v{XA+1}")
    a(f"v_add_f32 v13, v{XA+2}, v{XA+3}")
    a("v_add_f32 v11, v11, v13")
    xlane("v_add_f32", 11, 12, [8, 4, 2, 1, 16])
    a("v_mul_f32 v11, 0x3a800000, v11")
    for i in range(32):
        a(f"v_sub_f32 v{XU+i}, v{XU+i}, v11")
    for k in range(4):
        a(f"v_mul_f32 v{XA+k}, v{XU+k}, v{XU+k}")
    for i in range(4, 32):
        a(f"v_fmac_f32 v{XA+(i&3)}, v{XU+i}, v{XU+i}")
    a(f"v_add_f32 v12, v{XA}, v{XA+1}")
    a(f"v_add_f32 v13, v{XA+2}, v{XA+3}")
    a("v_add_f32 v12, v12, v13")
    xlane("v_add_f32", 12, 13, [8, 4, 2, 1, 16])
    a("v_mul_f32 v12, 0x3a800000, v12")
    round_bf16(11, 11)
    round_bf16(12, 12)
    a(f"v_add_f32 v12, {EPS:#x}, v12")
    round_bf16(12, 12)
    a("v_sqrt_f32 v12, v12")
    a("s_nop 0")
    round_bf16(12, 12)
    a("v_rcp_f32 v13, v12")
    for i in range(4):
        a(f"v_lshlrev_b32 v{XU+2*i}, 16, v{XO+i}")
        a(f"v_and_b32 v{XU+2*i+1}, s66, v{XO+i}")
    for i in range(8):
        a(f"v_sub_f32 v{XU+i}, v{XU+i}, v11")
    for i in range(4):
        a(f"v_cvt_pk_bf16_f32 v{XO+i}, v{XU+2*i}, v{XU+2*i+1}")
    for i in range(4):
        a(f"v_lshlrev_b32 v{XU+2*i}, 16, v{XO+i}")
        a(f"v_and_b32 v{XU+2*i+1}, s66, v{XO+i}")
    for i in range(8):
        a(f"v_mul_f32 v{XU+8+i}, v{XU+i}, v13")
    for i in range(8):
        a(f"v_fma_f32 v{XU+i}, -v{XU+8+i}, v12, v{XU+i}")
    for i in range(8):
        a(f"v_fmac_f32 v{XU+8+i}, v{XU+i}, v13")
    for i in range(4):
        a(f"v_cvt_pk_bf16_f32 v{XO+i}, v{XU+8+2*i}, v{XU+8+2*i+1}")
    a("v_lshlrev_b32 v11, 4, v0")
    a(f"ds_write_b128 v11, {vr(XO,4)} offset:{XN}")
    set_flag(XF)
    a("s_waitcnt lgkmcnt(0)")
    make_tag()

    a.label("L_S_gemv")
    a("s_mov_b32 s69, 63")
    a("v_bfe_u32 v11, v4, 2, 1")
    a("v_lshlrev_b32 v11, 9, v11")
    a("v_lshl_add_u32 v11, v5, 5, v11")
    a("v_and_b32 v12, 1, v4")
    a("v_lshl_add_u32 v11, v12, 4, v11")
    for T in range(4):
        a(f"ds_read_b128 {vr(XU+4*T,4)}, v11 offset:{XN+128*T}")
    stamp(3)
    a("v_mul_u32_u24 v12, s9, v5")
    a("v_lshl_add_u32 v12, v9, 5, v12")
    a("v_lshl_add_u32 v12, v8, 4, v12")
    a("s_waitcnt lgkmcnt(0)")
    for T in range(4):
        a(f"s_waitcnt vmcnt({24-8*T})")
        src = lambda e, T=T: WR + 32 * T + 4 * e

        def M(i, T=T):
            for h in range(2):
                j = 2 * i + h
                c = "0" if T == 0 else vr(ACC + 4 * j, 4)
                a(f"v_mfma_f32_16x16x32_bf16 {vr(ACC+4*j,4)}, {vr(XU+4*T,4)}, {vr(PT+8*(i&1)+4*h,4)}, {c}")
        perms(PT, src, 0)
        perms(PT + 8, src, 1)
        M(0)
        perms(PT, src, 2)
        M(1)
        perms(PT + 8, src, 3)
        M(2)
        M(3)
    stamp(4)
    a("s_nop 3")
    fold(PT, ACC, 32)
    a("s_mov_b32 exec_hi, 0")
    store_mode(f"buffer_store_dwordx4 {vr(PT,4)}, v12, s[48:51], s10 offen")
    a("s_mov_b64 exec, -1")
    a("s_cmp_eq_u32 s3, 1")
    a("s_cbranch_scc1 " + ("L_S_END" if cfg.ffn1 else "L_S1_h"))
    a("s_cmp_eq_u32 s3, 2")
    a("s_cbranch_scc1 L_S2_h")
    a("s_and_b32 s62, s14, 63")
    if cfg.spread & 1:
        a("v_mul_u32_u24 v6, 0x42000, v5")
        a("v_lshl_add_u32 v6, v4, 4, v6")
        a("s_lshl_b32 s10, s96, 10")
        a(f"s_add_u32 s10, s10, {SP_OFF}")
        a(f"s_add_u32 s11, s10, {4*0x42000}")
        a(f"s_add_u32 s12, s10, {0x1010000}")
        a(f"s_add_u32 s13, s10, {0x1010000 + 4*0x42000}")
    else:
        a("v_lshlrev_b32 v6, 4, v0")
        a("s_lshl_b32 s10, s96, 12")
        a("s_add_u32 s11, s10, 32768")
        a("s_add_u32 s12, s10, 65536")
        a("s_add_u32 s13, s10, 98304")
    a("v_lshrrev_b32 v7, 5, v0")
    a("v_mul_u32_u24 v7, 272, v7")
    a("v_and_b32 v11, 31, v0")
    a("v_lshl_add_u32 v7, v11, 3, v7")
    wait_flags([(PF, 1, 14)], 16, cfg.sleep_lds)
    stamp(6)

    def ldq():
        for kq in range(4):
            for i in range(4):
                if cfg.spread & 1:
                    a(f"buffer_load_dwordx4 {vr(32+16*kq+4*i,4)}, v6, s[48:51], s{10+i} offen offset:{256*kq} sc1")
                else:
                    a(f"buffer_load_dwordx4 {vr(32+16*kq+4*i,4)}, v6, s[48:51], s{10+kq} offen offset:{1024*i} sc1")
    poll(ldq, lambda: check_tag(range(32, 96), 11, 12, narrow=True), 0)
    stamp(5)
    for k in range(16):
        a(f"v_add_f32 v{32+k}, v{32+k}, v{48+k}")
        a(f"v_add_f32 v{64+k}, v{64+k}, v{80+k}")
    for k in range(16):
        a(f"v_add_f32 v{32+k}, v{32+k}, v{64+k}")
    for i in range(4):
        a(f"v_cvt_pk_bf16_f32 v{48+2*i}, v{32+4*i}, v{33+4*i}")
        a(f"v_cvt_pk_bf16_f32 v{49+2*i}, v{34+4*i}, v{35+4*i}")
        a(f"ds_write_b64 v7, {vr(48+2*i,2)} offset:{QB+544*i}")
    set_flag(QF)
    a("s_lshl_b32 s7, s97, 9")
    a(f"s_add_u32 s7, s7, {O2_OFF}")
    srd(56, 16, 4096)
    srd(60, 34, 4096)
    a("v_and_b32 v10, 1, v0")
    a("v_lshl_add_u32 v10, v10, 2, v5")
    a("v_lshlrev_b32 v10, 1, v10")
    a("s_lshr_b32 s12, s97, 4")
    a("s_lshl_b32 s12, s12, 11")
    a("s_bfe_u32 s4, s97, 0x10003")
    colgrp(11, 4, 5)
    a("s_lshl_b32 s11, s11, 7")
    a("s_add_u32 s12, s12, s11")
    a("s_and_b32 s11, s97, 7")
    a("s_lshl_b32 s11, s11, 4")
    a("s_add_u32 s12, s12, s11")
    a("buffer_load_ushort v36, v10, s[56:59], s12 offen")
    a("v_lshrrev_b32 v9, 1, v0")
    a("v_lshlrev_b32 v9, 7, v9")
    a("v_and_b32 v6, 1, v0")
    a("v_lshl_add_u32 v9, v6, 4, v9")
    a("s_lshr_b32 s13, s99, 2")
    a("s_lshl_b32 s13, s13, 13")
    a("s_and_b32 s11, s97, 3")
    a("s_lshl_b32 s11, s11, 5")
    a("s_add_u32 s13, s13, s11")
    a(f"s_add_u32 s13, s13, {XP_OFF}")
    a("s_add_u32 s8, s13, 4096")
    a("v_lshrrev_b32 v11, 5, v0")
    a("v_lshlrev_b32 v11, 14, v11")
    a("v_and_b32 v6, 31, v0")
    a("v_lshl_add_u32 v11, v6, 4, v11")
    a("v_lshlrev_b32 v6, 3, v0")
    wait_flags([(WF, 4, 14)], 16, cfg.sleep_w)
    stamp(7)
    ppoll(cfg.opipe, cfg.ogap, lambda r: a(f"buffer_load_dwordx4 {vr(r,4)}, v11, s[48:51], s7 offen sc1"), 1, 4, 100, 12, 13)
    a("v_perm_b32 v100, v101, v100, s65")
    a("v_perm_b32 v101, v103, v102, s65")
    a(f"ds_write_b64 v6, v[100:101] offset:{OB}")
    set_flag(BF)
    stamp(9)
    wait_flags([(SF, 4, 14)], 16, 1)

    def ld4(r):
        a(f"buffer_load_dwordx4 {vr(r,4)}, v9, s[48:51], s13 offen sc1")
        a(f"buffer_load_dwordx4 {vr(r+4,4)}, v9, s[48:51], s8 offen sc1")
    ppoll(cfg.ypipe, cfg.ygap, ld4, 2, 8, 40, 12, 13)
    stamp(10)
    for k in range(4):
        a(f"v_add_f32 v{40+k}, v{40+k}, v{44+k}")
    a("v_lshlrev_b32 v36, 16, v36")
    a("v_permlane32_swap_b32 v40, v42")
    a("v_permlane32_swap_b32 v41, v43")
    a("v_add_f32 v40, v40, v42")
    a("v_add_f32 v41, v41, v43")
    a("s_nop 1")
    a("v_permlane16_swap_b32 v40, v41")
    a("v_add_f32 v40, v40, v41")
    for s in (8, 4, 2):
        a("s_nop 1")
        a(f"v_add_f32_dpp v40, v40, v40 row_ror:{s} row_mask:0xf bank_mask:0xf")
    a("v_add_f32 v40, v40, v36")
    a("v_cvt_pk_bf16_f32 v40, v40, v40")
    a("s_mov_b32 exec_lo, 0x00030003")
    a("s_mov_b32 exec_hi, 0x00030003")
    a("buffer_store_short v40, v10, s[60:63], s12 offen")
    stamp(11)
    if cfg.padto:
        a.label("L_pad")
        a("s_memrealtime s[92:93]")
        a("s_waitcnt lgkmcnt(0)")
        a("s_sub_u32 s92, s92, s94")
        a(f"s_cmp_lt_u32 s92, {cfg.padto}")
        a("s_cbranch_scc1 L_pad")
    a("s_cmp_lg_u32 s2, 0")
    a("s_cbranch_scc1 L_S_END")
    a("s_mov_b64 exec, 1")
    a(f"s_mov_b32 s9, {EP_OFF:#x}")
    a("buffer_store_dword v15, v14, s[48:51], s9 offen")
    a.label("L_S_END")
    dump_stamps()
    a("s_endpgm")

    a.label("L_S123")
    a("v_mov_b32 v11, -1")
    a("v_lshlrev_b32 v12, 2, v0")
    a(f"ds_write_b32 v12, v11 offset:{MLB}")
    a(f"ds_write_b32 v12, v11 offset:{FL}")
    a("s_waitcnt lgkmcnt(0)")
    load_tag()
    a("s_barrier")
    consts()
    a(f"s_mov_b32 s9, {14336 if cfg.ffn1 else 256}")
    a("s_add_u32 s5, s3, s98")
    a("s_sub_u32 s4, s5, 7")
    a("s_cmp_ge_u32 s5, 7")
    a("s_cselect_b32 s5, s4, s5")
    a("s_mul_i32 s6, s96, 7")
    a("s_add_u32 s5, s5, s6")
    a("s_add_u32 s6, s6, s98")
    if cfg.gmap == 1:
        a("s_mul_i32 s5, s3, 3")
        a("s_add_u32 s5, s5, s96")
        a("s_add_u32 s5, s5, s98")
        a("s_and_b32 s5, s5, 7")
        a("s_lshl3_add_u32 s5, s98, s5")
    if cfg.gmap == 2:
        a("s_mul_i32 s5, s3, 3")
        a("s_add_u32 s5, s5, s96")
        a("s_add_u32 s5, s5, s97")
        a("s_and_b32 s5, s5, 7")
        a("s_lshl3_add_u32 s5, s98, s5")
    a("v_mul_u32_u24 v10, 7168, v10")
    a("v_lshl_add_u32 v10, v9, 4, v10")
    a(f"s_mul_i32 s10, s7, {256*7168}")
    a("s_lshl_b32 s11, s5, 7")
    a("s_add_u32 s10, s10, s11")
    a("s_lshl_b32 s4, s3, 2")
    a("v_mov_b32 v13, s4")
    srd(48, 38, WS_SIZE)
    a("s_cmp_eq_u32 s3, 2")
    a("s_cselect_b64 s[40:41], s[30:31], s[28:29]")
    a("s_mov_b32 s42, 0x700000")
    a("s_mov_b32 s43, 0x20000")
    a("s_waitcnt lgkmcnt(0)")
    make_tag()
    if cfg.codepf > 0:
        a(f"s_cmp_ge_u32 s2, {cfg.codepf}")
        a("s_cbranch_scc1 L_nopf")
        a("s_getpc_b64 s[12:13]")
        a.label("L_pcref")
        a(f"s_sub_u32 s12, s12, L_pcref - {NAME}_kernel + 8192")
        a("s_subb_u32 s13, s13, 0")
        a("v_lshlrev_b32 v1, 7, v0")
        a("v_lshl_add_u32 v1, v3, 13, v1")
        a("global_load_dword v2, v1, s[12:13]")
        a.label("L_nopf")
    if cfg.codepf < 0:
        a("s_getpc_b64 s[12:13]")
        a.label("L_pcref")
        a(f"s_sub_u32 s12, s12, L_pcref - {NAME}_kernel + 8192")
        a("s_subb_u32 s13, s13, 0")
        a("s_lshl_b32 s4, s97, 8")
        a("v_lshl_add_u32 v1, v0, 7, s4")
        a("v_lshl_add_u32 v1, v3, 13, v1")
        a("s_mov_b64 exec, 3")
        a("global_load_dword v2, v1, s[12:13]")
        a("s_mov_b64 exec, -1")
    a("s_cmp_eq_u32 s3, 3")
    a("s_cbranch_scc1 L_S3")
    set_flag(TG - 4, 13)
    a("s_cmp_lt_u32 s98, 7")
    a("s_cbranch_scc1 L_S12")
    set_flag(GF - 4, 13)
    a("s_cmp_eq_u32 s3, 1")
    a("s_cbranch_scc1 L_S_END")
    a("s_branch L_S2_h")
    a.label("L_S12")
    a("v_lshlrev_b32 v12, 1, v13")
    wait_flags([(XF, 1, 14)], 16, cfg.sleep_lds)
    get_mode(16)
    wait_flags([(GO - 8, 2, 12)], 16, cfg.sleep_lds)
    stamp(2)
    wloads(7168, cfg.ns, cfg.gate)
    stamp(1)
    if cfg.ffn1:
        a("s_lshl1_add_u32 s10, s7, s3")
        a("s_mul_i32 s10, s10, 28672")
        a("s_lshl_b32 s12, s5, 8")
        a("s_add_u32 s10, s10, s12")
        a(f"s_add_u32 s10, s10, {GP_OFF-28672}")
        a("s_mov_b32 s101, 0")
    else:
        a("s_lshl_b32 s10, s5, 12")
        a("s_lshl_b32 s12, s7, 10")
        a("s_add_u32 s10, s10, s12")
        a("s_lshl_b32 s12, s3, 9")
        a("s_add_u32 s10, s10, s12")
        a(f"s_add_u32 s10, s10, {GP_OFF-512}")
    a("s_branch L_S_gemv")

    a.label("L_S2_h")
    a("s_and_b32 s62, s14, 63")
    a("v_mov_b32 v15, 0")
    a("v_lshlrev_b32 v6, 3, v0")
    a(f"ds_write_b64 v6, v[14:15] offset:{HB}")
    a("v_lshrrev_b32 v7, 5, v0")
    a("v_and_b32 v6, 31, v0")
    a("v_mul_u32_u24 v11, 14336, v7")
    a("v_lshl_add_u32 v11, v6, 4, v11")
    a("s_mul_i32 s10, s97, 448")
    a(f"s_add_u32 s10, s10, {H2_OFF}")
    a("v_lshlrev_b32 v7, 8, v7")
    for k in range(4):
        a(f"v_lshl_add_u32 v{60+k}, v6, 2, {k}")
        a(f"v_mul_u32_u24 v12, 147, v{60+k}")
        a("v_lshrrev_b32 v12, 10, v12")
        a(f"v_add_u32 v{60+k}, v{60+k}, v12")
        a(f"v_lshl_add_u32 v{60+k}, v{60+k}, 1, v7")
    if cfg.ffn1:
        a("s_mul_i32 s10, s97, 448")
        a(f"s_add_u32 s10, s10, {GP_OFF}")
        for z in range(1, 8):
            a(f"s_add_u32 s{16+z}, s10, {28672*z}")
        a("s_mov_b32 s16, s10")
        a(f"s_mov_b32 s4, {f32bits(0.044715):#x}")
        a(f"s_mov_b32 s5, {f32bits(-2.0 * math.sqrt(2.0 / math.pi) * math.log2(math.e)):#x}")
        wait_flags([(WH, 4, 14)], 16, cfg.sleep_w)
    a("s_mov_b32 exec_lo, 0x0fffffff")
    a("s_mov_b32 exec_hi, 0x0fffffff")
    stamp(5)
    if cfg.ffn1:
        def ldh():
            for z in range(8):
                a(f"buffer_load_dwordx4 {vr(16+4*z,4)}, v11, s[48:51], s{16+z} offen sc1")
        poll(ldh, lambda: check_tag(range(16, 48), 12, 13, "exec", narrow=True), cfg.hgap)
        for k in range(8):
            a(f"v_add_f32 v{16+k}, v{16+k}, v{24+k}")
            a(f"v_add_f32 v{32+k}, v{32+k}, v{40+k}")
        for k in range(8):
            a(f"v_add_f32 v{16+k}, v{16+k}, v{32+k}")
        for k in range(8):
            round_bf16(16 + k, 16 + k)
        for k in range(4):
            a(f"v_mul_f32 v{24+k}, v{16+k}, v{16+k}")
        for k in range(4):
            a(f"v_mul_f32 v{24+k}, v{24+k}, v{16+k}")
        for k in range(4):
            a(f"v_fma_f32 v{24+k}, v{24+k}, s4, v{16+k}")
        for k in range(4):
            a(f"v_mul_f32 v{24+k}, s5, v{24+k}")
        for k in range(4):
            a(f"v_exp_f32 v{24+k}, v{24+k}")
        for k in range(4):
            a(f"v_add_f32 v{24+k}, 1.0, v{24+k}")
        for k in range(4):
            a(f"v_rcp_f32 v{24+k}, v{24+k}")
        for k in range(4):
            a(f"v_mul_f32 v{24+k}, v{24+k}, v{16+k}")
        for k in range(4):
            round_bf16(24 + k, 24 + k)
        for k in range(4):
            a(f"v_mul_f32 v{24+k}, v{24+k}, v{20+k}")
        for k in range(4):
            a(f"v_cvt_pk_bf16_f32 v{16+k}, v{24+k}, v{24+k}")
    else:
        ppoll(cfg.hpipe, cfg.hgap, lambda r: a(f"buffer_load_dwordx4 {vr(r,4)}, v11, s[48:51], s10 offen sc1"), 1, 4, 16, 12, 13, full="exec")
    for k in range(4):
        a(f"ds_write_b16_d16_hi v{60+k}, v{16+k} offset:{HB}")
    set_flag(HF)
    stamp(6)
    a("s_branch L_S_END")

    a.label("L_S3")
    set_flag(LV)
    a("s_getreg_b32 s4, hwreg(HW_REG_XCC_ID)")
    a("s_and_b32 s4, s4, 15")
    a("s_lshl_b32 s4, s4, 8")
    a(f"s_or_b32 s5, s14, {MAGIC:#x}")
    a("s_or_b32 s4, s4, s5")
    a("v_mov_b32 v16, s4")
    if cfg.spread & 2:
        a("v_and_b32 v7, 7, v0")
        a("v_mul_u32_u24 v7, 0x41000, v7")
        a("v_bfe_u32 v6, v0, 3, 1")
        a("v_lshlrev_b32 v17, 24, v6")
        a("v_lshl_add_u32 v7, v6, 15, v7")
        a("v_add_u32 v7, v7, v17")
        a("v_bfe_u32 v6, v0, 4, 1")
        a("v_lshl_add_u32 v7, v6, 8, v7")
        a("s_lshl_b32 s10, s96, 9")
        a(f"s_add_u32 s10, s10, {SP_OFF + 0x20000}")
        a("s_lshl_b64 exec, 1, s97")
        a("buffer_store_dword v16, v7, s[48:51], s10 offen sc1")
        a("s_mov_b64 exec, -1")
    else:
        xt = cfg.xtoff or XT_OFF
        a(f"s_lshl_b32 s10, s99, {cfg.xts}")
        a(f"s_add_u32 s10, s10, {xt}")
        a("s_mov_b64 exec, 1")
        a("buffer_store_dword v16, v14, s[48:51], s10 offen" + ("" if cfg.xtp else " sc1"))
        a("s_mov_b64 exec, -1")
        a("v_and_b32 v7, 31, v0")
        a(f"v_lshlrev_b32 v7, {cfg.xts}, v7")
        a(f"s_lshl_b32 s10, s96, {cfg.xts+5}")
        a(f"s_add_u32 s10, s10, {xt}")
    wait_flags([(TG, 2, 14), (QF if cfg.xtp else PF, 1, 14)], 16, cfg.sleep_lds)

    def ckx():
        a("v_and_b32 v17, 0xfffff0ff, v16")
        a("v_cmp_eq_u32 vcc, s5, v17")
        a("s_cmp_eq_u64 vcc, -1")
    if cfg.xtp:
        a("buffer_load_dword v16, v7, s[48:51], s10 offen sc1")
        a("s_waitcnt vmcnt(0)")
    else:
        poll(lambda: a("buffer_load_dword v16, v7, s[48:51], s10 offen sc1"), ckx, 8)
    a("v_cmp_eq_u32 vcc, s4, v16")
    a("s_cmp_eq_u64 vcc, -1")
    a("s_cselect_b32 s101, 1, 0")
    if cfg.nofast:
        a("s_mov_b32 s101, 0")
    a("v_mov_b32 v16, s101")
    a(f"ds_write_b32 v14, v16 offset:{FM}")
    stamp(4)
    a("v_and_b32 v6, 7, v0")
    a("v_lshlrev_b32 v6, 3, v6")
    a("v_and_b32 v7, 31, v0")
    a("v_lshlrev_b32 v7, 3, v7")
    a("s_lshl_b32 s13, s99, 6")
    a(f"s_add_u32 s13, s13, {ML_OFF}")

    def ldm():
        for w in range(4):
            a(f"ds_read_b64 {vr(16+2*w,2)}, v6 offset:{MLB+64*w}")
    poll(ldm, lambda: check_sentinel(range(16, 24), 11), cfg.sleep_lds, cnt="lgkmcnt")
    stamp(5)
    a(f"ds_read_b32 v30, v7 offset:{MLB}")

    def combine4(mo):
        a(f"v_max3_f32 v{mo}, v16, v18, v20")
        a(f"v_max_f32 v{mo}, v{mo}, v22")

    def wsum4(mo, lo):
        for w in range(4):
            a(f"v_sub_f32 v{16+2*w}, v{16+2*w}, v{mo}")
        for w in range(4):
            a(f"v_mul_f32 v{16+2*w}, s67, v{16+2*w}")
        for w in range(4):
            a(f"v_exp_f32 v{16+2*w}, v{16+2*w}")
        a("s_nop 0")
        a(f"v_mul_f32 v{lo}, v16, v17")
        for w in range(1, 4):
            a(f"v_fmac_f32 v{lo}, v{16+2*w}, v{17+2*w}")
    combine4(24)
    wsum4(24, 25)
    put_tag(24)
    put_tag(25)
    a("s_mov_b64 exec, 0xff")
    store_mode("buffer_store_dwordx2 v[24:25], v6, s[48:51], s13 offen")
    a("s_mov_b64 exec, -1")
    a("s_lshl_b32 s10, s96, 11")
    a(f"s_add_u32 s10, s10, {ML_OFF}")
    a("v_lshlrev_b32 v7, 3, v0")
    if cfg.rank:
        mid, hi = (int(z) for z in cfg.rank.split(":"))
        for i in range(4):
            a(f"buffer_load_dword v{16+i}, v7, s[48:51], s10 offen offset:{512*i} sc1")
        a("s_waitcnt vmcnt(0)")
        a("s_mov_b32 s4, 0")
        for i in range(4):
            a(f"v_and_b32 v{16+i}, 0xffff, v{16+i}")
            a(f"v_cmp_eq_u32 vcc, s14, v{16+i}")
            a("s_bcnt1_i32_b64 s5, vcc")
            a("s_add_u32 s4, s4, s5")
        a(f"s_cmp_ge_u32 s4, {8*mid}")
        a("s_cselect_b32 s5, 1, 0")
        a(f"s_cmp_ge_u32 s4, {8*hi}")
        a("s_cselect_b32 s5, 3, s5")
        a("v_mov_b32 v16, s5")
        a(f"ds_write_b32 v14, v16 offset:{LV}")
    wait_flags([(LF, 1, 14)], 16, cfg.sleep_lds)
    if cfg.touch & 1:
        a("v_lshlrev_b32 v31, 6, v0")
        a("s_lshl_b32 s4, s99, 12")
        a(f"s_add_u32 s4, s4, {OP_OFF}")
        a("buffer_load_dword v2, v31, s[48:51], s4 offen sc1")
    if cfg.touch & 2:
        a("v_lshlrev_b32 v31, 5, v0")
        a("s_lshl_b32 s4, s99, 11")
        a(f"s_add_u32 s4, s4, {XP_OFF}")
        a("buffer_load_dword v1, v31, s[48:51], s4 offen sc1")

    def ld2():
        for i in range(4):
            a(f"buffer_load_dwordx2 {vr(16+2*i,2)}, v7, s[48:51], s10 offen offset:{512*i} sc1")
    poll(ld2, lambda: check_tag(range(16, 24), 11, 12), 8)
    stamp(6)
    combine4(26)
    xlane("v_max_f32", 26, 11, [8, 16, 32])
    wsum4(26, 27)
    xlane("v_add_f32", 27, 11, [8, 16, 32])
    a("v_sub_f32 v30, v30, v26")
    a("v_mul_f32 v30, s67, v30")
    a("v_exp_f32 v30, v30")
    a("v_rcp_f32 v27, v27")
    a("v_bfe_u32 v7, v0, 3, 2")
    a("v_lshlrev_b32 v7, 2, v7")
    a("v_lshl_add_u32 v7, v6, 1, v7")
    a("v_mul_f32 v30, v30, v27")
    a(f"ds_write_b32 v7, v30 offset:{FB}")
    set_flag(FF)
    a("v_lshlrev_b32 v6, 4, v9")
    a("v_lshl_add_u32 v6, v5, 2, v6")
    a("v_lshlrev_b32 v7, 4, v0")
    a("s_lshl_b32 s10, s99, 12")
    a(f"s_add_u32 s10, s10, {OP_OFF}")
    a("s_lshl_b32 s8, s99, 7")
    a(f"s_add_u32 s8, s8, {O2_OFF}")
    wait_flags([(OF, 4, 14)], 16, cfg.sleep_lds)
    stamp(7)

    def ld3(r):
        for i in range(4):
            a(f"buffer_load_dwordx4 {vr(r+4*i,4)}, v7, s[48:51], s10 offen offset:{1024*i} sc1")
    ppoll(cfg.lpipe, cfg.lgap, ld3, 4, 16, 40, 12, 13)
    stamp(8)
    for k in range(4):
        a(f"v_add_f32 v{40+k}, v{40+k}, v{44+k}")
        a(f"v_add_f32 v{48+k}, v{48+k}, v{52+k}")
    for k in range(4):
        a(f"v_add_f32 v{40+k}, v{40+k}, v{48+k}")
    a("s_nop 0")
    a("v_permlane32_swap_b32 v40, v42")
    a("v_permlane32_swap_b32 v41, v43")
    a("v_add_f32 v40, v40, v42")
    a("v_add_f32 v41, v41, v43")
    a("s_nop 1")
    a("v_permlane16_swap_b32 v40, v41")
    a("v_add_f32 v40, v40, v41")
    a("s_nop 1")
    a("v_add_f32_dpp v40, v40, v40 row_ror:8 row_mask:0xf bank_mask:0xf")
    a("v_cvt_pk_bf16_f32 v40, v40, v40")
    put_tag(40)
    a("s_mov_b32 exec_lo, 0x00ff00ff")
    a("s_mov_b32 exec_hi, 0x00ff00ff")
    a("buffer_store_dword v40, v6, s[48:51], s8 offen sc1")
    a("s_branch L_S_END")

    a.label("L_ATT")
    RING = 16
    SC = RING + 16 * R
    QR = SC + 32
    ST = QR + 8
    AC = QR
    PTA = AC + 32
    a("s_sub_u32 s6, s3, 4")
    a("v_bfe_u32 v6, v4, 1, 1")
    a("v_lshrrev_b32 v7, 2, v4")
    a("v_lshl_add_u32 v6, v6, 2, v7")
    a("v_lshlrev_b32 v6, 8, v6")
    a("v_lshl_add_u32 v6, v5, 5, v6")
    a("v_and_b32 v7, 1, v4")
    a("v_lshl_add_u32 v6, v7, 4, v6")
    a("s_lshl_b32 s7, s99, 18")
    a("s_lshl_b32 s8, s6, 12")
    a("s_add_u32 s7, s7, s8")
    a("s_mov_b32 s8, s7")
    a("s_waitcnt lgkmcnt(0)")
    srd(40, 18, 0x4000000)
    N = cfg.n
    NL = 143
    NH = [N]
    lim = [128]
    nl = [0]
    lvl_pending = [False]
    lvl_on = [False]

    def slot_of(item):
        return RING + 16 * (item % R)

    def issue1():
        k = nl[0]
        if k >= lim[0]:
            return
        item, q = divmod(k, 4)
        slot = slot_of(item)
        if item < 16:
            a(f"buffer_load_dwordx4 {vr(slot+4*q,4)}, v6, s[40:43], s7 offen offset:{128*(q&1)+2048*(q>>1)}{NT}")
            if q == 3 and item < 15:
                a("s_add_u32 s7, s7, 16384")
        elif item < 32:
            a(f"buffer_load_dwordx4 {vr(slot+4*q,4)}, v7, s[44:47], s8 offen offset:{1024*q}{NT}")
            if q == 3 and item < 31:
                a("s_add_u32 s8, s8, 16384")
        elif item < 34:
            m = k - 128
            a(f"buffer_load_dwordx4 {vr(slot+4*q,4)}, v3, s[52:55], s11 offen offset:{2048*(m&1)}{NT}")
            if (m & 1) and m < 7:
                a("s_add_u32 s11, s11, 16384")
        else:
            e = k - 136
            a(f"buffer_load_dwordx4 {vr(slot+4*q,4)}, v1, s[56:59], s10 offen offset:{2048*(e&1)}{NT}")
            if e & 1:
                a("s_add_u32 s10, s10, 4096")
        nl[0] += 1
        for kk, fl, av in ((cfg.pf, PF, 14), (cfg.lf, LF, 14), (cfg.go, GO, 13), (cfg.wf, WF, 13), (cfg.wh, WH, 13)):
            if k == kk - 1:
                set_flag(fl, av)

    def wait_load(k):
        a(f"s_waitcnt vmcnt({nl[0] - k - 1})")

    def thr():
        if not lvl_on[0]:
            return
        lab = newlab("go")
        a("s_bitcmp1_b32 s100, 1")
        a(f"s_cbranch_scc1 {lab}")
        a(f"s_waitcnt vmcnt({N})")
        a("s_bitcmp1_b32 s100, 0")
        a(f"s_cbranch_scc1 {lab}")
        a(f"s_waitcnt vmcnt({N-1})")
        a.label(lab)

    def advance(item):
        if lvl_on[0] and item < 24:
            if lvl_pending[0]:
                a("s_waitcnt lgkmcnt(0)")
                a("v_readfirstlane_b32 s100, v2")
            a(f"ds_read_b32 v2, v14 offset:{LV}")
            lvl_pending[0] = True
        for q in range(4):
            k = 4 * item + q
            if k >= NL:
                break
            if nl[0] < lim[0] and nl[0] - (k + 1) < NH[0]:
                wait_load(k)
                while nl[0] < lim[0] and nl[0] - (k + 1) < NH[0]:
                    thr()
                    issue1()
            elif q == 3 or k == NL - 1:
                wait_load(k)

    for k in range(4 * R):
        if k == cfg.pro:
            load_tag()
            a("v_lshlrev_b32 v7, 4, v0")
            a("s_lshl_b32 s9, s6, 2")
            a("v_mov_b32 v13, s9")
            srd(44, 20, 0x4000000)
            srd(48, 38, WS_SIZE)
            srd(52, 24, 0x800000)
            srd(56, 32, 0x700000)
            consts()
            a("v_mul_u32_u24 v11, 272, v9")
            a("v_lshl_add_u32 v11, v5, 5, v11")
            a("v_lshl_add_u32 v11, v8, 4, v11")
            a("v_mov_b32 v10, 0xff800000")
        if k == cfg.b0a:
            a("s_barrier")
        Nk = cfg.n0 if k < cfg.k0 else N
        if k >= Nk:
            a(f"s_waitcnt vmcnt({Nk-1})")
        issue1()
    stamp(1)
    wait_flags([(QF, 1, 14)], QR, 1)
    make_tag()
    stamp(2)
    for c in range(2):
        a(f"ds_read_b128 {vr(QR+4*c,4)}, v11 offset:{QB+128*c}")
    a("s_waitcnt lgkmcnt(0)")

    def post(i):
        t = ST + 8 * (i & 1)
        w = ST + 16
        for q in range(4):
            a(f"v_add_f32_dpp v{w+6+q}, v{t+2*q+1}, v{t+2*q} row_ror:8 row_mask:0xf bank_mask:0xf")
        s = w + 6
        a(f"v_max3_f32 v10, v10, v{s}, v{s+1}")
        a(f"v_cvt_pk_bf16_f32 v{w+4}, v{s}, v{s+1}")
        a(f"v_cvt_pk_bf16_f32 v{w+5}, v{s+2}, v{s+3}")
        a(f"v_max3_f32 v10, v10, v{s+2}, v{s+3}")
        a(f"v_lshlrev_b32 v{w}, 16, v{w+4}")
        a(f"v_and_b32 v{w+1}, s66, v{w+4}")
        a(f"v_lshlrev_b32 v{w+2}, 16, v{w+5}")
        a(f"v_and_b32 v{w+3}, s66, v{w+5}")
        for k in range(4):
            a(f"v_mul_f32 v{w+k}, s68, v{w+k}")
        a(f"v_cvt_pk_bf16_f32 v{SC+2*i}, v{w}, v{w+1}")
        a(f"v_cvt_pk_bf16_f32 v{SC+2*i+1}, v{w+2}, v{w+3}")

    for i in range(16):
        advance(i)
        slot = slot_of(i)
        t = ST + 8 * (i & 1)
        for st_ in range(2):
            for ln in range(2):
                cc = "0" if ln == 0 else vr(t + 4 * st_, 4)
                a(f"v_mfma_f32_16x16x32_bf16 {vr(t+4*st_,4)}, {vr(slot+4*(2*st_+ln),4)}, {vr(QR+4*ln,4)}, {cc}")
        if nl[0] - 4 * (i + 1) >= N and nl[0] < 4 * (i + 1 + R):
            for _ in range(4 if i == 0 else 1):
                if nl[0] < 4 * (i + 1 + R):
                    a(f"s_waitcnt vmcnt({N-1})")
                    issue1()
        if i >= 1:
            a("s_nop 3")
            post(i - 1)
    a("s_nop 7")
    post(15)
    stamp(3)
    xlane("v_max_f32", 10, 11, [16, 32])
    w = ST
    MM, LL, L2 = ST + 8, ST + 9, ST + 10
    round_bf16(MM, 10)
    a(f"v_mul_f32 v{MM}, s68, v{MM}")
    round_bf16(MM, MM)
    a(f"v_mul_f32 v11, s67, v{MM}")
    a(f"v_mov_b32 v{LL}, 0")
    a(f"v_mov_b32 v{L2}, 0")
    for k in range(0, 32, 2):
        if k % 6 == 0:
            issue1()
        for q in range(2):
            a(f"v_lshlrev_b32 v{w+2*q}, 16, v{SC+k+q}")
            a(f"v_and_b32 v{w+2*q+1}, s66, v{SC+k+q}")
        for q in range(4):
            a(f"v_fma_f32 v{w+q}, v{w+q}, s67, -v11")
        for q in range(4):
            a(f"v_exp_f32 v{w+q}, v{w+q}")
        a(f"v_add_f32 v{LL}, v{LL}, v{w}")
        a(f"v_add_f32 v{L2}, v{L2}, v{w+1}")
        a(f"v_cvt_pk_bf16_f32 v{SC+k}, v{w}, v{w+1}")
        a(f"v_add_f32 v{LL}, v{LL}, v{w+2}")
        a(f"v_add_f32 v{L2}, v{L2}, v{w+3}")
        a(f"v_cvt_pk_bf16_f32 v{SC+k+1}, v{w+2}, v{w+3}")
    a(f"v_add_f32 v{LL}, v{LL}, v{L2}")
    xlane("v_add_f32", LL, L2, [16, 32])
    a(f"v_min_u32 v{LL}, -2, v{LL}")
    a("s_lshl_b32 s9, s6, 6")
    a("v_lshlrev_b32 v12, 3, v0")
    a("v_add_u32 v12, s9, v12")
    a("s_mov_b64 exec, 0xff")
    a(f"ds_write_b64 v12, {vr(MM,2)} offset:{MLB}")
    a("s_mov_b64 exec, -1")
    stamp(4)
    issue1()
    a("s_and_b32 s4, s6, 1")
    a("s_lshr_b32 s5, s6, 1")
    a("s_mul_i32 s9, s6, 4224")
    a("v_mul_u32_u24 v10, 528, v4")
    a("v_lshl_add_u32 v10, v5, 7, v10")
    a("v_add_u32 v10, s9, v10")
    a("v_lshrrev_b32 v3, 1, v5")
    a("v_lshlrev_b32 v3, 5, v3")
    a("v_and_b32 v1, 1, v5")
    a("v_lshl_add_u32 v3, v1, 2, v3")
    a("v_lshl_add_u32 v3, v8, 1, v3")
    a("v_lshlrev_b32 v3, 11, v3")
    a("v_lshl_add_u32 v3, v9, 4, v3")
    a("v_lshl_add_u32 v1, v5, 1, v8")
    a("v_mul_u32_u24 v1, 14336, v1")
    a("v_lshl_add_u32 v1, v9, 4, v1")
    colgrp(12, 4, 13)
    a("s_lshl_b32 s12, s12, 7")
    a("s_lshl1_add_u32 s13, s97, s5")
    a("s_lshl_b32 s11, s13, 17")
    a("s_add_u32 s11, s11, s12")
    a(f"s_mul_i32 s10, s13, {56*2048}")
    a("s_add_u32 s10, s10, s12")
    a("v_bfe_u32 v12, v4, 2, 1")
    a("v_lshlrev_b32 v12, 8, v12")
    a("v_lshl_add_u32 v12, v5, 5, v12")
    a("v_and_b32 v11, 1, v4")
    a("v_lshl_add_u32 v12, v11, 4, v12")
    a("s_lshl_b32 s9, s5, 7")
    a("v_add_u32 v12, s9, v12")
    a("v_lshlrev_b32 v11, 15, v5")
    a("v_lshrrev_b32 v6, 2, v9")
    a("v_lshl_add_u32 v11, v6, 13, v11")
    a("v_and_b32 v6, 3, v9")
    a("v_lshl_add_u32 v11, v6, 5, v11")
    a("v_lshl_add_u32 v11, v8, 4, v11")
    a("s_lshl_b32 s9, s96, 16")
    a("s_lshl_b32 s12, s4, 14")
    a("s_add_u32 s9, s9, s12")
    a("s_lshl_b32 s12, s13, 7")
    a("s_add_u32 s9, s9, s12")
    a(f"s_add_u32 s9, s9, {XP_OFF}")
    a("v_lshrrev_b32 v4, 5, v0")
    a("s_lshl_b32 s12, s6, 1")
    a("v_add_u32 v4, s12, v4")
    a("v_lshlrev_b32 v5, 4, v4")
    a("v_mul_u32_u24 v4, 528, v4")
    a("v_and_b32 v6, 31, v0")
    a("v_lshl_add_u32 v4, v6, 4, v4")
    a("v_lshlrev_b32 v8, 4, v9")
    a("v_lshrrev_b32 v6, 3, v0")
    a("v_lshl_add_u32 v8, v6, 12, v8")
    a("v_mul_u32_u24 v6, 5, v6")
    a("v_add_u32 v6, s97, v6")
    a("v_and_b32 v6, 31, v6")
    a("v_lshl_add_u32 v8, v6, 7, v8")
    a("s_lshl_b32 s5, s96, 17")
    a("s_lshl_b32 s12, s6, 15")
    a("s_add_u32 s5, s5, s12")
    a(f"s_add_u32 s5, s5, {OP_OFF}")
    get_mode(6)
    if cfg.rank:
        NH[0] = N + 2
        lvl_on[0] = True
        a("s_mov_b32 s100, 0")
    for it in range(16, 32):
        advance(it)
        if it & 1:
            u = (it - 16) // 2
            s0 = slot_of(16 + 2 * u)
            s1 = slot_of(17 + 2 * u)
            src = lambda e, s0=s0, s1=s1: (s0 if e < 4 else s1) + 4 * (e & 3)

            def M(i, u=u):
                for h in range(2):
                    j = 2 * i + h
                    c = "0" if u == 0 else vr(AC + 4 * j, 4)
                    a(f"v_mfma_f32_16x16x32_bf16 {vr(AC+4*j,4)}, {vr(PTA+8*(i&1)+4*h,4)}, {vr(SC+4*u,4)}, {c}")
            perms(PTA, src, 0)
            perms(PTA + 8, src, 1)
            M(0)
            perms(PTA, src, 2)
            M(1)
            perms(PTA + 8, src, 3)
            M(2)
            M(3)
    stamp(5)
    a("s_mov_b32 exec_lo, 0x00ff00ff")
    a("s_mov_b32 exec_hi, 0x00ff00ff")
    for j in range(8):
        if j == 4:
            a("s_nop 0")
        a(f"ds_write_b128 v10, {vr(AC+4*j,4)} offset:{ORED+16*j}")
    a("s_mov_b64 exec, -1")
    set_flag(OF, 13)
    T0 = slot_of(0)
    wait_flags([(OF, 4, 14), (FF, 1, 14)], T0, 0)
    a(f"ds_read_b128 {vr(T0,4)}, v5 offset:{FB}")
    for w_ in range(4):
        a(f"ds_read_b128 {vr(T0+4+4*w_,4)}, v4 offset:{ORED+4224*w_}")
    for k in range(4):
        a(f"v_mov_b32 v{slot_of(35)+12+k}, 0")
    a("s_waitcnt lgkmcnt(0)")
    for w_ in range(4):
        for k in range(4):
            if w_ == 0:
                a(f"v_mul_f32 v{T0+4+k}, v{T0}, v{T0+4+k}")
            else:
                a(f"v_fmac_f32 v{T0+4+k}, v{T0+w_}, v{T0+4+4*w_+k}")
    for k in range(4):
        put_tag(T0 + 4 + k)
    store_mode(f"buffer_store_dwordx4 {vr(T0+4,4)}, v8, s[48:51], s5 offen")
    stamp(6)
    TP = slot_of(6)
    XACC = SC
    wait_flags([(GF, 2, 14)], PTA, 1)
    lim[0] = NL
    if cfg.w2lvl:
        a(f"s_or_b32 s100, s100, {cfg.w2lvl}")
    for z in range(NH[0]):
        if z >= N:
            thr()
        issue1()
    advance(32)
    advance(33)
    srco = lambda e: (lambda m: slot_of(32 + (m >> 2)) + 4 * (m & 3))(2 * (e & 3) + (e >> 2))
    for i in range(4):
        perms(TP + 8 * i, srco, i)
    srcd = lambda e: slot_of(34 + (e >> 2)) + 4 * (e & 3)

    def operand(flag, buf, dst, lab):
        a(f"ds_read_b32 v{PTA+8}, v14 offset:{flag}")
        a(f"ds_read_b128 {vr(dst,4)}, v12 offset:{buf}")

    def operand_ok(flag, buf, dst, lab):
        a("s_waitcnt lgkmcnt(0)")
        a(f"v_cmp_eq_u32 vcc, 0, v{PTA+8}")
        a("s_cmp_eq_u64 vcc, -1")
        a(f"s_cbranch_scc1 {lab}")
        wait_flags([(flag, 1, 14)], PTA + 8, 0)
        a(f"ds_read_b128 {vr(dst,4)}, v12 offset:{buf}")
        a("s_waitcnt lgkmcnt(0)")
        a.label(lab)
    advance(34)
    assert nl[0] == NL
    if cfg.tail2:
        for i in range(4):
            for hh, sel in ((0, "s64"), (1, "s65")):
                for p in range(2):
                    a(f"v_perm_b32 v{TP+32+8*i+4*hh+p}, v{srcd(2*p+1)+i}, v{srcd(2*p)+i}, {sel}")
        advance(35)
        stamp(7)
        operand(BF, OB, PTA + 4, "L_ogo")
        for i in range(4):
            for hh, sel in ((0, "s64"), (1, "s65")):
                for p in range(2, 4):
                    a(f"v_perm_b32 v{TP+32+8*i+4*hh+p}, v{srcd(2*p+1)+i}, v{srcd(2*p)+i}, {sel}")
        operand_ok(BF, OB, PTA + 4, "L_ogo")
        operand(HF, HB, PTA, "L_hgo")
        for j in range(8):
            a(f"v_mfma_f32_16x16x32_bf16 {vr(XACC+4*j,4)}, {vr(PTA+4,4)}, {vr(TP+4*j,4)}, 0")
        operand_ok(HF, HB, PTA, "L_hgo")
        stamp(9)
        for j in range(8):
            a(f"v_mfma_f32_16x16x32_bf16 {vr(XACC+4*j,4)}, {vr(PTA,4)}, {vr(TP+32+4*j,4)}, {vr(XACC+4*j,4)}")
    else:
        advance(35)
        stamp(7)
        a(f"ds_read_b64 {vr(PTA+8,2)}, v14 offset:{HF}")
        a(f"ds_read_b128 {vr(PTA+4,4)}, v12 offset:{OB}")
        a(f"ds_read_b128 {vr(PTA,4)}, v12 offset:{HB}")
        for i in range(4):
            perms(TP + 32 + 8 * i, srcd, i)
        a("s_waitcnt lgkmcnt(0)")
        a(f"v_or_b32 v{PTA+8}, v{PTA+8}, v{PTA+9}")
        a(f"v_cmp_eq_u32 vcc, 0, v{PTA+8}")
        a("s_cmp_eq_u64 vcc, -1")
        a("s_cbranch_scc1 L_xgo")
        wait_flags([(HF, 2, 14)], PTA + 8, 0)
        a(f"ds_read_b128 {vr(PTA+4,4)}, v12 offset:{OB}")
        a(f"ds_read_b128 {vr(PTA,4)}, v12 offset:{HB}")
        a("s_waitcnt lgkmcnt(0)")
        a.label("L_xgo")
        stamp(9)
        for j in range(8):
            a(f"v_mfma_f32_16x16x32_bf16 {vr(XACC+4*j,4)}, {vr(PTA+4,4)}, {vr(TP+4*j,4)}, 0")
        for j in range(8):
            a(f"v_mfma_f32_16x16x32_bf16 {vr(XACC+4*j,4)}, {vr(PTA,4)}, {vr(TP+32+4*j,4)}, {vr(XACC+4*j,4)}")
    a("s_nop 1")
    fold(PTA + 8, XACC)
    a("s_mov_b32 exec_hi, 0")
    store_mode(f"buffer_store_dwordx4 {vr(PTA+8,4)}, v11, s[48:51], s9 offen")
    set_flag(SF, 13)
    stamp(10)
    dump_stamps()
    a.label("L_END")
    a("s_endpgm")

    probs = check_hazards(a.lines)
    for p in probs:
        print(p, file=sys.stderr)
    if probs:
        raise SystemExit("hazards found")

    pad = f".fill (24576 - (. - {NAME}_kernel)) / 4, 4, 0xBF800000\n" if cfg.codepf else ""
    out = HEADER
    out += "; Generated by work/gen11.py (hand-written generator). One persistent launch, 256 workgroups x 8 waves.\n"
    out += f"; @launch grid=(256,1,1) block=(512,1,1) lds={LDS_SIZE}\n"
    out += f""".amdgcn_target "amdgcn-amd-amdhsa--gfx950"
.text
.globl {NAME}_kernel
.p2align 8
.type {NAME}_kernel,@function
{NAME}_kernel:
"""
    out += a.text()
    out += pad
    out += f""".section .rodata,"a"
.p2align 6
.amdhsa_kernel {NAME}_kernel
  .amdhsa_next_free_vgpr 256
  .amdhsa_next_free_sgpr 102
  .amdhsa_accum_offset 256
  .amdhsa_group_segment_fixed_size 0
  .amdhsa_kernarg_size 96
  .amdhsa_user_sgpr_count 2
  .amdhsa_user_sgpr_kernarg_segment_ptr 1
  .amdhsa_system_sgpr_workgroup_id_x 1
  .amdhsa_float_denorm_mode_32 3
.end_amdhsa_kernel
"""
    return out


def parse_args(argv=None):
    p = argparse.ArgumentParser()
    p.add_argument("-o", default="cdna_kernels/" + NAME + ".s")
    p.add_argument("--stamps", type=int, default=0)
    p.add_argument("--codepf", type=int, default=-1)
    p.add_argument("--sleep_lds", type=int, default=2)
    p.add_argument("--spin", type=int, default=2000000)
    p.add_argument("--n", type=int, default=6)
    p.add_argument("--ns", type=int, default=12)
    p.add_argument("--gate", type=int, default=32)
    p.add_argument("--pf", type=int, default=24)
    p.add_argument("--lf", type=int, default=108)
    p.add_argument("--go", type=int, default=128)
    p.add_argument("--wf", type=int, default=143)
    p.add_argument("--rank", default="22:28")
    p.add_argument("--nofast", type=int, default=0)
    p.add_argument("--spread", type=int, default=0)
    p.add_argument("--xtp", type=int, default=1)
    p.add_argument("--xts", type=int, default=2)
    p.add_argument("--xtoff", type=lambda z: int(z, 0), default=0)
    p.add_argument("--gpoff", type=lambda z: int(z, 0), default=0)
    p.add_argument("--ns0", type=int, default=0)
    p.add_argument("--n0", type=int, default=0)
    p.add_argument("--k0", type=int, default=0)
    p.add_argument("--padto", type=int, default=0)
    p.add_argument("--padfrom", type=int, default=0)
    p.add_argument("--touch", type=int, default=0)
    p.add_argument("--wh", type=int, default=139)
    p.add_argument("--sleep_w", type=int, default=1)
    p.add_argument("--tail2", type=int, default=1)
    p.add_argument("--w2lvl", type=int, default=0)
    p.add_argument("--ffn1", type=int, default=1)
    p.add_argument("--s0b", type=int, default=32)
    p.add_argument("--b0a", type=int, default=3)
    p.add_argument("--pro", type=int, default=0)
    p.add_argument("--qmap", type=int, default=1)
    p.add_argument("--gmap", type=int, default=0)
    p.add_argument("--cmap", type=int, default=0)
    for nm, d, g in (("y", 2, 2), ("o", 1, 0), ("g", 1, 0), ("h", 1, 0), ("l", 1, 0)):
        p.add_argument(f"--{nm}pipe", type=int, default=d)
        p.add_argument(f"--{nm}gap", type=int, default=g)
    return p.parse_args(argv)


if __name__ == "__main__":
    cfg = parse_args()
    open(cfg.o, "w").write(gen(cfg))
    print("wrote", cfg.o)
```

```python
import sys
import argparse
import struct
import math
from asmlib import Asm, vr, check_hazards

NAME = "parallel_sum__gqa_block_cached__geglu_ffn__decode"

QP_OFF = 0x000000
GP_OFF = 0x020000
H2_OFF = 0x058000
ML_OFF = 0x060000
XT_OFF = 0x068000
EP_OFF = 0x070000
O2_OFF = 0x078000
OP_OFF = 0x080000
XP_OFF = 0x180000
ST_OFF = 0x200000
SP_OFF = 0x2000000
WS_SIZE = 0x4000000
XN = 0x0000
QB = 0x0400
MLB = 0x0C80
FL = 0x0D80
OF = FL + 0
FF = FL + 16
LF = FL + 20
GF = FL + 24
QF = FL + 32
XF = FL + 36
PF = FL + 40
HF = FL + 48
BF = FL + 52
TG = FL + 56
LV = FL + 64
FM = FL + 68
WF = FL + 80
GO = FL + 96
WH = FL + 128
SF = FL + 112
FB = 0x0E80
OB = 0x0F00
HB = 0x1100
ORED = 0x1300
LDS_SIZE = ORED + 4 * 4224

LOG2E = 0x3FB8AA3B
SCALE = 0x3DB504F3
EPS = 0x3727C5AC
MAGIC = 0x5A3C6000

HEADER = open("cdna_kernels/" + NAME + ".s.ref").read().split("; Override launch")[0]


DOC = """; Written with my own generator script (work/gen11.py).  One persistent launch: 256 workgroups x 8 waves,
"""


def f32bits(x):
    return struct.unpack("<I", struct.pack("<f", x))[0]


def gen(cfg):
    global GP_OFF
    GP_OFF = cfg.gpoff or GP_OFF
    a = Asm()
    R = 10
    NT = " nt"
    uid = [0]

    def newlab(p):
        uid[0] += 1
        return f"L_{p}{uid[0]}"

    def stamp(k):
        if cfg.padto and cfg.padfrom == k:
            a("s_memrealtime s[94:95]")
        if cfg.stamps:
            a(f"s_memrealtime s[{70+2*k}:{71+2*k}]")

    def srd(d, p, size):
        a(f"s_mov_b32 s{d}, s{p}")
        a(f"s_mov_b32 s{d+1}, s{p+1}")
        a(f"s_mov_b32 s{d+2}, {size:#x}")
        a(f"s_mov_b32 s{d+3}, 0x20000")

    def dump_stamps():
        if not cfg.stamps:
            return
        a("s_waitcnt lgkmcnt(0)")
        for _ in range(3):
            a("s_sleep 127")
        a("s_mov_b64 exec, 1")
        a("s_lshl_b32 s4, s2, 10")
        a("s_lshl_b32 s5, s3, 7")
        a("s_add_u32 s4, s4, s5")
        a(f"s_add_u32 s4, s4, {ST_OFF}")
        a("v_mov_b32 v3, 0")
        for k in range(13):
            a(f"v_mov_b32 v1, s{70+2*k}")
            a(f"buffer_store_dword v1, v3, s[48:51], s4 offen offset:{4*k}")

    def poll(loads, check, sleep, cnt="vmcnt"):
        top, done = newlab("poll"), newlab("pdone")
        a(f"s_mov_b32 s15, {cfg.spin if cnt == 'vmcnt' else 8 * cfg.spin}")
        a.label(top)
        loads()
        a(f"s_waitcnt {cnt}(0)")
        check()
        a(f"s_cbranch_scc1 {done}")
        a("s_sub_u32 s15, s15, 1")
        a(f"s_cbranch_scc1 {done}")
        if sleep:
            a(f"s_sleep {sleep}")
        a(f"s_branch {top}")
        a.label(done)

    def check_tag(regs, t0, t1, full="-1", narrow=False):
        regs = list(regs)
        for r in regs:
            a(f"v_xor_b32 v{r}, {'s62' if narrow else 's14'}, v{r}")
        acc = [None, None]
        k = 0
        while regs:
            t = (t0, t1)[k & 1]
            if acc[k & 1] is None and len(regs) >= 3:
                a(f"v_or3_b32 v{t}, v{regs[0]}, v{regs[1]}, v{regs[2]}")
                regs = regs[3:]
                acc[k & 1] = t
            elif acc[k & 1] is None:
                k += 1
                continue
            elif len(regs) >= 2:
                a(f"v_or3_b32 v{t}, v{t}, v{regs[0]}, v{regs[1]}")
                regs = regs[2:]
            else:
                a(f"v_or_b32 v{t}, v{t}, v{regs[0]}")
                regs = regs[1:]
            k += 1
        if acc[1] is not None:
            a(f"v_or_b32 v{t0}, v{t0}, v{t1}")
        a(f"v_and_b32 v{t0}, {63 if narrow else 255}, v{t0}")
        a(f"v_cmp_eq_u32 vcc, 0, v{t0}")
        a(f"s_cmp_eq_u64 vcc, {full}")

    def ppoll(P, gap, load, nloads, nregs, dst, t0, t1, full="-1"):
        if P <= 1:
            poll(lambda: load(dst), lambda: check_tag(range(dst, dst + nregs), t0, t1, full), gap)
            return
        base = lambda p: dst + nregs * (p + 1)
        top, out = newlab("pp"), newlab("ppo")
        got = [newlab("ppg") for _ in range(P)]
        a(f"s_mov_b32 s15, {cfg.spin}")
        for p in range(P - 1):
            load(base(p))
            a(f"s_sleep {gap}")
        a.label(top)
        for p in range(P):
            load(base((p + P - 1) % P))
            a(f"s_waitcnt vmcnt({nloads*(P-1)})")
            check_tag(range(base(p), base(p) + nregs), t0, t1, full)
            a(f"s_cbranch_scc1 {got[p]}")
        a("s_sub_u32 s15, s15, 1")
        a(f"s_cbranch_scc0 {top}")
        for p in range(P):
            a.label(got[p])
            for k in range(nregs):
                a(f"v_mov_b32 v{dst+k}, v{base(p)+k}")
            if p < P - 1:
                a(f"s_branch {out}")
        a.label(out)

    def wait_flags(reads, t, sleep):
        regs = []

        def ld():
            r = t
            regs.clear()
            for off, n, av in reads:
                op = {1: "ds_read_b32", 2: "ds_read_b64", 4: "ds_read_b128"}[n]
                a(f"{op} {vr(r,n)}, v{av} offset:{off}")
                regs.extend(range(r, r + n))
                r += (n + 1) & ~1

        def ck():
            rs = list(regs)
            while len(rs) >= 3:
                a(f"v_or3_b32 v{rs[0]}, v{rs[0]}, v{rs[1]}, v{rs[2]}")
                rs = [rs[0]] + rs[3:]
            if len(rs) == 2:
                a(f"v_or_b32 v{rs[0]}, v{rs[0]}, v{rs[1]}")
            a(f"v_cmp_eq_u32 vcc, 0, v{rs[0]}")
            a("s_cmp_eq_u64 vcc, -1")
        poll(ld, ck, sleep, cnt="lgkmcnt")

    def set_flag(off, av=14):
        a(f"ds_write_b32 v{av}, v14 offset:{off}")

    def get_mode(t):
        def ld():
            a(f"ds_read_b32 v{t}, v14 offset:{FM}")

        def ck():
            a(f"v_readfirstlane_b32 s101, v{t}")
            a("s_cmp_lg_u32 s101, -1")
        poll(ld, ck, cfg.sleep_lds, cnt="lgkmcnt")

    def store_mode(ins):
        f, d = newlab("stf"), newlab("std")
        a("s_cmp_eq_u32 s101, 1")
        a(f"s_cbranch_scc1 {f}")
        a(ins + " sc1")
        a(f"s_branch {d}")
        a.label(f)
        a(ins)
        a.label(d)

    def check_sentinel(regs, tmp):
        regs = list(regs)
        a(f"v_max3_u32 v{tmp}, v{regs[0]}, v{regs[1]}, v{regs[2]}")
        regs = regs[3:]
        while len(regs) >= 2:
            a(f"v_max3_u32 v{tmp}, v{tmp}, v{regs[0]}, v{regs[1]}")
            regs = regs[2:]
        if regs:
            a(f"v_max_u32 v{tmp}, v{tmp}, v{regs[0]}")
        a(f"v_cmp_ne_u32 vcc, -1, v{tmp}")
        a("s_cmp_eq_u64 vcc, -1")

    def put_tag(r):
        a(f"v_bfi_b32 v{r}, s69, v15, v{r}")

    def load_tag():
        a(f"s_load_dword s14, s[38:39], {EP_OFF:#x}")

    def make_tag():
        a("s_add_u32 s14, s14, 1")
        a("s_and_b32 s14, s14, 0xff")
        a("v_mov_b32 v15, s14")

    def xlane(op, x, t, steps):
        for s in steps:
            if s in (1, 2, 4, 8):
                a("s_nop 1")
                a(f"{op}_dpp v{x}, v{x}, v{x} row_ror:{s} row_mask:0xf bank_mask:0xf")
            else:
                a(f"v_mov_b32 v{t}, v{x}")
                a("s_nop 1")
                a(f"v_permlane{s}_swap_b32 v{x}, v{t}")
                a(f"{op} v{x}, v{x}, v{t}")

    def round_bf16(d, s):
        a(f"v_cvt_pk_bf16_f32 v{d}, v{s}, v{s}")
        a(f"v_lshlrev_b32 v{d}, 16, v{d}")

    def perms(dst, src_e, i):
        for p in range(4):
            a(f"v_perm_b32 v{dst+p}, v{src_e(2*p+1)+i}, v{src_e(2*p)+i}, s64")
        for p in range(4):
            a(f"v_perm_b32 v{dst+4+p}, v{src_e(2*p+1)+i}, v{src_e(2*p)+i}, s65")

    def fold(dst, acc, rnd=0):
        for k in range(4):
            a(f"v_add_f32_dpp v{dst+k}, v{acc+4*k+1}, v{acc+4*k} row_ror:8 row_mask:0xf bank_mask:0x3")
        for k in range(4):
            if k >= 2:
                a("s_nop 0")
            a(f"v_add_f32_dpp v{dst+k}, v{acc+4*(k+4)}, v{acc+4*(k+4)+1} row_ror:8 row_mask:0xf bank_mask:0xc")
        for k in range(4):
            if rnd:
                a(f"v_add_u32 v{dst+k}, {rnd}, v{dst+k}")
            put_tag(dst + k)

    def colgrp(d, ch, tmp):
        if cfg.cmap == 0:
            a(f"s_lshl1_add_u32 s{d}, s96, s{ch}")
        elif cfg.cmap == 1:
            a(f"s_lshl3_add_u32 s{d}, s{ch}, s96")
        elif cfg.cmap == 2:
            a(f"s_mul_i32 s{tmp}, s{ch}, 15")
            a(f"s_xor_b32 s{d}, s96, s{tmp}")
        else:
            a(f"s_mul_i32 s{tmp}, s{ch}, 12")
            a(f"s_xor_b32 s{d}, s96, s{tmp}")

    def consts():
        a("s_mov_b32 s64, 0x05040100")
        a("s_mov_b32 s65, 0x07060302")
        a("s_mov_b32 s66, 0xffff0000")
        a(f"s_mov_b32 s67, {LOG2E:#x}")
        a(f"s_mov_b32 s68, {SCALE:#x}")
        a("s_movk_i32 s69, 0xff")

    a("s_cmp_ge_u32 s2, 256")
    a("s_cbranch_scc1 L_END")
    a("s_load_dwordx16 s[16:31], s[0:1], 0")
    a("s_load_dwordx8 s[32:39], s[0:1], 64")
    stamp(0)
    a("v_lshrrev_b32 v3, 6, v0")
    a("s_and_b32 s96, s2, 7")
    a("s_lshr_b32 s97, s2, 3")
    a("v_and_b32 v0, 63, v0")
    a("v_readfirstlane_b32 s3, v3")
    a("s_lshl_b32 s99, s96, 5")
    a("s_or_b32 s99, s99, s97")
    a("s_lshr_b32 s98, s2, 5")
    a("v_and_b32 v4, 15, v0")
    a("v_lshrrev_b32 v5, 4, v0")
    a("v_mov_b32 v14, 0")
    a("v_lshrrev_b32 v8, 3, v4")
    a("v_and_b32 v9, 7, v4")
    if cfg.inl:
        a("s_cmp_lt_u32 s3, 4")
        a("s_cbranch_scc1 L_SVC")
        a.lines.append("@@ATT_HEAD@@")
        a("s_branch L_ATT2")
        a.label("L_SVC")
    else:
        a("s_cmp_ge_u32 s3, 4")
        a("s_cbranch_scc1 L_ATT")
    a("s_and_b32 s7, s97, 3")
    a("v_lshlrev_b32 v10, 3, v8")
    a("v_lshl_add_u32 v10, v5, 4, v10")
    a("s_cmp_lg_u32 s3, 0")
    a("s_cbranch_scc1 L_S123")

    XA = 16
    XO = 32
    XU = 36
    WR = 72
    ACC = 200
    PT = 232

    def wloads(stride, throttle, gate, bar=99):
        for T in range(4):
            for e in range(8):
                k = 8 * T + e
                if k == bar:
                    a("s_barrier")
                if throttle and k >= throttle:
                    a(f"s_waitcnt vmcnt({throttle-1})")
                a(f"buffer_load_dwordx4 {vr(WR+32*T+4*e,4)}, v10, s[40:43], s10 offen{NT}")
                if k < 31:
                    a(f"s_add_u32 s10, s10, {stride * (57 if e == 7 else 1)}")
                if gate and k == gate - 1:
                    set_flag(GF - 4, 13)

    if cfg.qmap == 0:
        a("s_xor_b32 s6, s98, 4")
        a("s_lshl3_add_u32 s6, s96, s6")
    elif cfg.qmap == 2:
        a("s_lshl3_add_u32 s6, s98, s96")
    elif cfg.qmap == 3:
        a("s_add_u32 s6, s96, s97")
        a("s_and_b32 s6, s6, 7")
        a("s_lshl3_add_u32 s6, s98, s6")
    else:
        a("s_lshl3_add_u32 s6, s98, s96")
        a("s_mul_i32 s4, s6, 37")
        a("s_lshr_b32 s4, s4, 8")
        a("s_mul_i32 s5, s4, 7")
        a("s_sub_u32 s5, s6, s5")
        a("s_cmp_ge_u32 s5, 3")
        a("s_addc_u32 s5, s5, 0")
        a("s_lshl_b32 s4, s4, 3")
        a("s_add_u32 s5, s5, s4")
        a("s_lshl_b32 s4, s6, 3")
        a(f"s_sub_u32 s4, s4, {56*8-3}")
        a("s_cmp_ge_u32 s6, 56")
        a("s_cselect_b32 s6, s4, s5")
    a("v_lshlrev_b32 v6, 6, v0")
    a("v_lshrrev_b32 v7, 5, v0")
    a("v_lshlrev_b32 v7, 11, v7")
    a("v_and_b32 v11, 31, v0")
    a("v_lshl_add_u32 v7, v11, 4, v7")
    a("s_lshl_b32 s12, s7, 9")
    a("v_lshlrev_b32 v10, 13, v10")
    a("v_lshl_add_u32 v10, v9, 4, v10")
    a("s_lshl_b32 s10, s7, 21")
    a("s_lshl_b32 s11, s6, 7")
    a("s_add_u32 s10, s10, s11")
    a("s_waitcnt lgkmcnt(0)")
    srd(56, 16, 4096)
    srd(40, 22, 0x800000)
    load_tag()
    for i in range(4):
        a(f"buffer_load_dwordx4 {vr(XA+4*i,4)}, v6, s[56:59], 0 offen offset:{16*i}")
    a(f"buffer_load_dwordx4 {vr(XO,4)}, v7, s[56:59], s12 offen")
    wloads(8192, cfg.ns0, 0, cfg.s0b)
    stamp(1)
    if cfg.s0b >= 32:
        a("s_barrier")
    srd(48, 38, WS_SIZE)
    consts()
    a(f"s_mov_b32 s101, {1 if cfg.abl & 2 else 0}")
    if cfg.spread & 1:
        a("s_mov_b32 s9, 4096")
        a("s_and_b32 s10, s6, 7")
        a("s_mul_i32 s10, s10, 0x42000")
        a("s_bfe_u32 s11, s6, 0x10003")
        a("s_mul_i32 s11, s11, 0x1010000")
        a("s_add_u32 s10, s10, s11")
        a("s_lshr_b32 s11, s6, 4")
        a("s_lshl2_add_u32 s11, s11, s7")
        a("s_lshl_b32 s11, s11, 8")
        a("s_add_u32 s10, s10, s11")
        a(f"s_add_u32 s10, s10, {SP_OFF}")
    else:
        a("s_mov_b32 s9, 16384")
        a("s_lshl_b32 s10, s7, 15")
        a("s_lshl_b32 s11, s6, 8")
        a("s_add_u32 s10, s10, s11")
    a("s_waitcnt vmcnt(32)")
    stamp(2)
    for i in range(16):
        a(f"v_lshlrev_b32 v{XU+2*i}, 16, v{XA+i}")
        a(f"v_and_b32 v{XU+2*i+1}, s66, v{XA+i}")
    for k in range(4):
        a(f"v_add_f32 v{XA+k}, v{XU+k}, v{XU+4+k}")
    for i in range(8, 32):
        a(f"v_add_f32 v{XA+(i&3)}, v{XA+(i&3)}, v{XU+i}")
    a(f"v_add_f32 v11, v{XA}, v{XA+1}")
    a(f"v_add_f32 v13, v{XA+2}, v{XA+3}")
    a("v_add_f32 v11, v11, v13")
    xlane("v_add_f32", 11, 12, [8, 4, 2, 1, 16])
    a("v_mul_f32 v11, 0x3a800000, v11")
    for i in range(32):
        a(f"v_sub_f32 v{XU+i}, v{XU+i}, v11")
    for k in range(4):
        a(f"v_mul_f32 v{XA+k}, v{XU+k}, v{XU+k}")
    for i in range(4, 32):
        a(f"v_fmac_f32 v{XA+(i&3)}, v{XU+i}, v{XU+i}")
    a(f"v_add_f32 v12, v{XA}, v{XA+1}")
    a(f"v_add_f32 v13, v{XA+2}, v{XA+3}")
    a("v_add_f32 v12, v12, v13")
    xlane("v_add_f32", 12, 13, [8, 4, 2, 1, 16])
    a("v_mul_f32 v12, 0x3a800000, v12")
    round_bf16(11, 11)
    round_bf16(12, 12)
    a(f"v_add_f32 v12, {EPS:#x}, v12")
    round_bf16(12, 12)
    a("v_sqrt_f32 v12, v12")
    a("s_nop 0")
    round_bf16(12, 12)
    a("v_rcp_f32 v13, v12")
    for i in range(4):
        a(f"v_lshlrev_b32 v{XU+2*i}, 16, v{XO+i}")
        a(f"v_and_b32 v{XU+2*i+1}, s66, v{XO+i}")
    for i in range(8):
        a(f"v_sub_f32 v{XU+i}, v{XU+i}, v11")
    for i in range(4):
        a(f"v_cvt_pk_bf16_f32 v{XO+i}, v{XU+2*i}, v{XU+2*i+1}")
    for i in range(4):
        a(f"v_lshlrev_b32 v{XU+2*i}, 16, v{XO+i}")
        a(f"v_and_b32 v{XU+2*i+1}, s66, v{XO+i}")
    for i in range(8):
        a(f"v_mul_f32 v{XU+8+i}, v{XU+i}, v13")
    for i in range(8):
        a(f"v_fma_f32 v{XU+i}, -v{XU+8+i}, v12, v{XU+i}")
    for i in range(8):
        a(f"v_fmac_f32 v{XU+8+i}, v{XU+i}, v13")
    for i in range(4):
        a(f"v_cvt_pk_bf16_f32 v{XO+i}, v{XU+8+2*i}, v{XU+8+2*i+1}")
    a("v_lshlrev_b32 v11, 4, v0")
    a(f"ds_write_b128 v11, {vr(XO,4)} offset:{XN}")
    set_flag(XF)
    a("s_waitcnt lgkmcnt(0)")
    make_tag()

    a.label("L_S_gemv")
    a("s_mov_b32 s69, 63")
    a("v_bfe_u32 v11, v4, 2, 1")
    a("v_lshlrev_b32 v11, 9, v11")
    a("v_lshl_add_u32 v11, v5, 5, v11")
    a("v_and_b32 v12, 1, v4")
    a("v_lshl_add_u32 v11, v12, 4, v11")
    for T in range(4):
        a(f"ds_read_b128 {vr(XU+4*T,4)}, v11 offset:{XN+128*T}")
    stamp(3)
    a("v_mul_u32_u24 v12, s9, v5")
    a("v_lshl_add_u32 v12, v9, 5, v12")
    a("v_lshl_add_u32 v12, v8, 4, v12")
    a("s_waitcnt lgkmcnt(0)")
    for T in range(4):
        a(f"s_waitcnt vmcnt({24-8*T})")
        src = lambda e, T=T: WR + 32 * T + 4 * e

        def M(i, T=T):
            for h in range(2):
                j = 2 * i + h
                c = "0" if T == 0 else vr(ACC + 4 * j, 4)
                a(f"v_mfma_f32_16x16x32_bf16 {vr(ACC+4*j,4)}, {vr(XU+4*T,4)}, {vr(PT+8*(i&1)+4*h,4)}, {c}")
        perms(PT, src, 0)
        perms(PT + 8, src, 1)
        M(0)
        perms(PT, src, 2)
        M(1)
        perms(PT + 8, src, 3)
        M(2)
        M(3)
    stamp(4)
    a("s_nop 3")
    fold(PT, ACC, 32)
    a("s_mov_b32 exec_hi, 0")
    store_mode(f"buffer_store_dwordx4 {vr(PT,4)}, v12, s[48:51], s10 offen")
    a("s_mov_b64 exec, -1")
    a("s_cmp_eq_u32 s3, 1")
    a("s_cbranch_scc1 " + ("L_S_END" if cfg.ffn1 else "L_S1_h"))
    a("s_cmp_eq_u32 s3, 2")
    a("s_cbranch_scc1 L_S2_h")
    a("s_and_b32 s62, s14, 63")
    if cfg.spread & 1:
        a("v_mul_u32_u24 v6, 0x42000, v5")
        a("v_lshl_add_u32 v6, v4, 4, v6")
        a("s_lshl_b32 s10, s96, 10")
        a(f"s_add_u32 s10, s10, {SP_OFF}")
        a(f"s_add_u32 s11, s10, {4*0x42000}")
        a(f"s_add_u32 s12, s10, {0x1010000}")
        a(f"s_add_u32 s13, s10, {0x1010000 + 4*0x42000}")
    else:
        a("v_lshlrev_b32 v6, 4, v0")
        a("s_lshl_b32 s10, s96, 12")
        a("s_add_u32 s11, s10, 32768")
        a("s_add_u32 s12, s10, 65536")
        a("s_add_u32 s13, s10, 98304")
    a("v_lshrrev_b32 v7, 5, v0")
    a("v_mul_u32_u24 v7, 272, v7")
    a("v_and_b32 v11, 31, v0")
    a("v_lshl_add_u32 v7, v11, 3, v7")
    wait_flags([(PF, 1, 14)], 16, cfg.sleep_lds)
    stamp(6)

    def ldq():
        for kq in range(4):
            for i in range(4):
                if cfg.spread & 1:
                    a(f"buffer_load_dwordx4 {vr(32+16*kq+4*i,4)}, v6, s[48:51], s{10+i} offen offset:{256*kq} sc1")
                else:
                    a(f"buffer_load_dwordx4 {vr(32+16*kq+4*i,4)}, v6, s[48:51], s{10+kq} offen offset:{1024*i} sc1")
    if not cfg.abl & 1:
        poll(ldq, lambda: check_tag(range(32, 96), 11, 12, narrow=True), 0)
    stamp(5)
    for k in range(16):
        a(f"v_add_f32 v{32+k}, v{32+k}, v{48+k}")
        a(f"v_add_f32 v{64+k}, v{64+k}, v{80+k}")
    for k in range(16):
        a(f"v_add_f32 v{32+k}, v{32+k}, v{64+k}")
    for i in range(4):
        a(f"v_cvt_pk_bf16_f32 v{48+2*i}, v{32+4*i}, v{33+4*i}")
        a(f"v_cvt_pk_bf16_f32 v{49+2*i}, v{34+4*i}, v{35+4*i}")
        a(f"ds_write_b64 v7, {vr(48+2*i,2)} offset:{QB+544*i}")
    set_flag(QF)
    a("s_lshl_b32 s7, s97, 9")
    a(f"s_add_u32 s7, s7, {O2_OFF}")
    srd(56, 16, 4096)
    srd(60, 34, 4096)
    a("v_and_b32 v10, 1, v0")
    a("v_lshl_add_u32 v10, v10, 2, v5")
    a("v_lshlrev_b32 v10, 1, v10")
    a("s_lshr_b32 s12, s97, 4")
    a("s_lshl_b32 s12, s12, 11")
    a("s_bfe_u32 s4, s97, 0x10003")
    colgrp(11, 4, 5)
    a("s_lshl_b32 s11, s11, 7")
    a("s_add_u32 s12, s12, s11")
    a("s_and_b32 s11, s97, 7")
    a("s_lshl_b32 s11, s11, 4")
    a("s_add_u32 s12, s12, s11")
    a("buffer_load_ushort v36, v10, s[56:59], s12 offen")
    a("v_lshrrev_b32 v9, 1, v0")
    a("v_lshlrev_b32 v9, 7, v9")
    a("v_and_b32 v6, 1, v0")
    a("v_lshl_add_u32 v9, v6, 4, v9")
    a("s_lshr_b32 s13, s99, 2")
    a("s_lshl_b32 s13, s13, 13")
    a("s_and_b32 s11, s97, 3")
    a("s_lshl_b32 s11, s11, 5")
    a("s_add_u32 s13, s13, s11")
    a(f"s_add_u32 s13, s13, {XP_OFF}")
    a("s_add_u32 s8, s13, 4096")
    a("v_lshrrev_b32 v11, 5, v0")
    a("v_lshlrev_b32 v11, 14, v11")
    a("v_and_b32 v6, 31, v0")
    a("v_lshl_add_u32 v11, v6, 4, v11")
    a("v_lshlrev_b32 v6, 3, v0")
    wait_flags([(WF, 4, 14)], 16, cfg.sleep_w)
    stamp(7)
    if not cfg.abl & 16:
      ppoll(cfg.opipe, cfg.ogap, lambda r: a(f"buffer_load_dwordx4 {vr(r,4)}, v11, s[48:51], s7 offen sc1"), 1, 4, 100, 12, 13)
    a("v_perm_b32 v100, v101, v100, s65")
    a("v_perm_b32 v101, v103, v102, s65")
    a(f"ds_write_b64 v6, v[100:101] offset:{OB}")
    set_flag(BF)
    stamp(9)
    wait_flags([(SF, 4, 14)], 16, cfg.sfsleep)

    def ld4(r):
        a(f"buffer_load_dwordx4 {vr(r,4)}, v9, s[48:51], s13 offen sc1")
        a(f"buffer_load_dwordx4 {vr(r+4,4)}, v9, s[48:51], s8 offen sc1")
    ppoll(cfg.ypipe, cfg.ygap, ld4, 2, 8, 40, 12, 13)
    stamp(10)
    for k in range(4):
        a(f"v_add_f32 v{40+k}, v{40+k}, v{44+k}")
    a("v_lshlrev_b32 v36, 16, v36")
    a("v_permlane32_swap_b32 v40, v42")
    a("v_permlane32_swap_b32 v41, v43")
    a("v_add_f32 v40, v40, v42")
    a("v_add_f32 v41, v41, v43")
    a("s_nop 1")
    a("v_permlane16_swap_b32 v40, v41")
    a("v_add_f32 v40, v40, v41")
    for s in (8, 4, 2):
        a("s_nop 1")
        a(f"v_add_f32_dpp v40, v40, v40 row_ror:{s} row_mask:0xf bank_mask:0xf")
    a("v_add_f32 v40, v40, v36")
    a("v_cvt_pk_bf16_f32 v40, v40, v40")
    a("s_mov_b32 exec_lo, 0x00030003")
    a("s_mov_b32 exec_hi, 0x00030003")
    a("buffer_store_short v40, v10, s[60:63], s12 offen")
    stamp(11)
    if cfg.padto:
        a.label("L_pad")
        a("s_memrealtime s[92:93]")
        a("s_waitcnt lgkmcnt(0)")
        a("s_sub_u32 s92, s92, s94")
        a(f"s_cmp_lt_u32 s92, {cfg.padto}")
        a("s_cbranch_scc1 L_pad")
    a("s_cmp_lg_u32 s2, 0")
    a("s_cbranch_scc1 L_S_END")
    a("s_mov_b64 exec, 1")
    a(f"s_mov_b32 s9, {EP_OFF:#x}")
    a("buffer_store_dword v15, v14, s[48:51], s9 offen")
    a.label("L_S_END")
    dump_stamps()
    a("s_endpgm")

    a.label("L_S123")
    a("v_mov_b32 v11, -1")
    a("v_lshlrev_b32 v12, 2, v0")
    a(f"ds_write_b32 v12, v11 offset:{MLB}")
    a(f"ds_write_b32 v12, v11 offset:{FL}")
    a("s_waitcnt lgkmcnt(0)")
    load_tag()
    a("s_barrier")
    consts()
    a(f"s_mov_b32 s9, {14336 if cfg.ffn1 else 256}")
    a("s_add_u32 s5, s3, s98")
    a("s_sub_u32 s4, s5, 7")
    a("s_cmp_ge_u32 s5, 7")
    a("s_cselect_b32 s5, s4, s5")
    a("s_mul_i32 s6, s96, 7")
    a("s_add_u32 s5, s5, s6")
    a("s_add_u32 s6, s6, s98")
    if cfg.gmap == 1:
        a("s_mul_i32 s5, s3, 3")
        a("s_add_u32 s5, s5, s96")
        a("s_add_u32 s5, s5, s98")
        a("s_and_b32 s5, s5, 7")
        a("s_lshl3_add_u32 s5, s98, s5")
    a("s_mov_b32 s61, s3")
    if cfg.gmap in (3, 4):
        if cfg.gmap == 3:
            a("s_lshl3_add_u32 s4, s98, s96")
        else:
            a("s_mov_b32 s4, s6")
        a("s_and_b32 s61, s4, 1")
        a("s_add_u32 s61, s61, 1")
        a("s_and_b32 s5, s4, 62")
        a("s_add_u32 s5, s5, s3")
        a("s_sub_u32 s5, s5, 1")
    if cfg.gmap == 2:
        a("s_mul_i32 s5, s3, 3")
        a("s_add_u32 s5, s5, s96")
        a("s_add_u32 s5, s5, s97")
        a("s_and_b32 s5, s5, 7")
        a("s_lshl3_add_u32 s5, s98, s5")
    a("v_mul_u32_u24 v10, 7168, v10")
    a("v_lshl_add_u32 v10, v9, 4, v10")
    a(f"s_mul_i32 s10, s7, {256*7168}")
    a("s_lshl_b32 s11, s5, 7")
    a("s_add_u32 s10, s10, s11")
    a("s_lshl_b32 s4, s3, 2")
    a("v_mov_b32 v13, s4")
    srd(48, 38, WS_SIZE)
    a("s_cmp_eq_u32 s61, 2")
    a("s_cselect_b64 s[40:41], s[30:31], s[28:29]")
    a("s_mov_b32 s42, 0x700000")
    a("s_mov_b32 s43, 0x20000")
    a("s_waitcnt lgkmcnt(0)")
    make_tag()
    if cfg.codepf > 0:
        a(f"s_cmp_ge_u32 s2, {cfg.codepf}")
        a("s_cbranch_scc1 L_nopf")
        a("s_getpc_b64 s[12:13]")
        a.label("L_pcref")
        a(f"s_sub_u32 s12, s12, L_pcref - {NAME}_kernel + 8192")
        a("s_subb_u32 s13, s13, 0")
        a("v_lshlrev_b32 v1, 7, v0")
        a("v_lshl_add_u32 v1, v3, 13, v1")
        a("global_load_dword v2, v1, s[12:13]")
        a.label("L_nopf")
    if cfg.codepf < 0:
        a("s_getpc_b64 s[12:13]")
        a.label("L_pcref")
        a(f"s_sub_u32 s12, s12, L_pcref - {NAME}_kernel + 8192")
        a("s_subb_u32 s13, s13, 0")
        a("s_lshl_b32 s4, s97, 8")
        a("v_lshl_add_u32 v1, v0, 7, s4")
        a("v_lshl_add_u32 v1, v3, 13, v1")
        a("s_mov_b64 exec, 3")
        a("global_load_dword v2, v1, s[12:13]")
        a("s_mov_b64 exec, -1")
    a("s_cmp_eq_u32 s3, 3")
    a("s_cbranch_scc1 L_S3")
    set_flag(TG - 4, 13)
    a("s_cmp_lt_u32 s98, 7")
    a("s_cbranch_scc1 L_S12")
    set_flag(GF - 4, 13)
    a("s_cmp_eq_u32 s3, 1")
    a("s_cbranch_scc1 L_S_END")
    a("s_branch L_S2_h")
    a.label("L_S12")
    a("v_lshlrev_b32 v12, 1, v13")
    wait_flags([(XF, 1, 14)], 16, cfg.sleep_lds)
    get_mode(16)
    if cfg.gotog:
        wait_flags([(GO, 2, 14)], 16, 1)
    else:
        wait_flags([(GO - 8, 2, 12)], 16, cfg.sleep_lds)
    stamp(2)
    wloads(7168, cfg.ns, cfg.gate)
    stamp(1)
    if cfg.ffn1:
        a("s_lshl1_add_u32 s10, s7, s61")
        a("s_mul_i32 s10, s10, 28672")
        a("s_lshl_b32 s12, s5, 8")
        a("s_add_u32 s10, s10, s12")
        a(f"s_add_u32 s10, s10, {GP_OFF-28672}")
        a(f"s_mov_b32 s101, {1 if cfg.abl & 8 else 0}")
    else:
        a("s_lshl_b32 s10, s5, 12")
        a("s_lshl_b32 s12, s7, 10")
        a("s_add_u32 s10, s10, s12")
        a("s_lshl_b32 s12, s3, 9")
        a("s_add_u32 s10, s10, s12")
        a(f"s_add_u32 s10, s10, {GP_OFF-512}")
    a("s_branch L_S_gemv")

    a.label("L_S2_h")
    a("s_and_b32 s62, s14, 63")
    a("v_mov_b32 v15, 0")
    a("v_lshlrev_b32 v6, 3, v0")
    a(f"ds_write_b64 v6, v[14:15] offset:{HB}")
    a("v_lshrrev_b32 v7, 5, v0")
    a("v_and_b32 v6, 31, v0")
    a("v_mul_u32_u24 v11, 14336, v7")
    a("v_lshl_add_u32 v11, v6, 4, v11")
    a("s_mul_i32 s10, s97, 448")
    a(f"s_add_u32 s10, s10, {H2_OFF}")
    a("v_lshlrev_b32 v7, 8, v7")
    for k in range(4):
        a(f"v_lshl_add_u32 v{60+k}, v6, 2, {k}")
        a(f"v_mul_u32_u24 v12, 147, v{60+k}")
        a("v_lshrrev_b32 v12, 10, v12")
        a(f"v_add_u32 v{60+k}, v{60+k}, v12")
        a(f"v_lshl_add_u32 v{60+k}, v{60+k}, 1, v7")
    if cfg.ffn1:
        a("s_mul_i32 s10, s97, 448")
        a(f"s_add_u32 s10, s10, {GP_OFF}")
        for z in range(1, 8):
            a(f"s_add_u32 s{16+z}, s10, {28672*z}")
        a("s_mov_b32 s16, s10")
        a(f"s_mov_b32 s4, {f32bits(0.044715):#x}")
        a(f"s_mov_b32 s5, {f32bits(-2.0 * math.sqrt(2.0 / math.pi) * math.log2(math.e)):#x}")
        wait_flags([(WH, 4, 14)], 16, cfg.sleep_w)
    a("s_mov_b32 exec_lo, 0x0fffffff")
    a("s_mov_b32 exec_hi, 0x0fffffff")
    stamp(5)
    if cfg.ffn1:
        def ldh():
            for z in range(8):
                a(f"buffer_load_dwordx4 {vr(16+4*z,4)}, v11, s[48:51], s{16+z} offen sc1")
        if not cfg.abl & 4:
            poll(ldh, lambda: check_tag(range(16, 48), 12, 13, "exec", narrow=True), cfg.hgap)
        for k in range(8):
            a(f"v_add_f32 v{16+k}, v{16+k}, v{24+k}")
            a(f"v_add_f32 v{32+k}, v{32+k}, v{40+k}")
        for k in range(8):
            a(f"v_add_f32 v{16+k}, v{16+k}, v{32+k}")
        for k in range(8):
            round_bf16(16 + k, 16 + k)
        for k in range(4):
            a(f"v_mul_f32 v{24+k}, v{16+k}, v{16+k}")
        for k in range(4):
            a(f"v_mul_f32 v{24+k}, v{24+k}, v{16+k}")
        for k in range(4):
            a(f"v_fma_f32 v{24+k}, v{24+k}, s4, v{16+k}")
        for k in range(4):
            a(f"v_mul_f32 v{24+k}, s5, v{24+k}")
        for k in range(4):
            a(f"v_exp_f32 v{24+k}, v{24+k}")
        for k in range(4):
            a(f"v_add_f32 v{24+k}, 1.0, v{24+k}")
        for k in range(4):
            a(f"v_rcp_f32 v{24+k}, v{24+k}")
        for k in range(4):
            a(f"v_mul_f32 v{24+k}, v{24+k}, v{16+k}")
        for k in range(4):
            round_bf16(24 + k, 24 + k)
        for k in range(4):
            a(f"v_mul_f32 v{24+k}, v{24+k}, v{20+k}")
        for k in range(4):
            a(f"v_cvt_pk_bf16_f32 v{16+k}, v{24+k}, v{24+k}")
    else:
        ppoll(cfg.hpipe, cfg.hgap, lambda r: a(f"buffer_load_dwordx4 {vr(r,4)}, v11, s[48:51], s10 offen sc1"), 1, 4, 16, 12, 13, full="exec")
    for k in range(4):
        a(f"ds_write_b16_d16_hi v{60+k}, v{16+k} offset:{HB}")
    set_flag(HF)
    stamp(6)
    a("s_branch L_S_END")

    a.label("L_S3")
    set_flag(LV)
    a("s_getreg_b32 s4, hwreg(HW_REG_XCC_ID)")
    a("s_and_b32 s4, s4, 15")
    a("s_lshl_b32 s4, s4, 8")
    a(f"s_or_b32 s5, s14, {MAGIC:#x}")
    a("s_or_b32 s4, s4, s5")
    a("v_mov_b32 v16, s4")
    if cfg.spread & 2:
        a("v_and_b32 v7, 7, v0")
        a("v_mul_u32_u24 v7, 0x41000, v7")
        a("v_bfe_u32 v6, v0, 3, 1")
        a("v_lshlrev_b32 v17, 24, v6")
        a("v_lshl_add_u32 v7, v6, 15, v7")
        a("v_add_u32 v7, v7, v17")
        a("v_bfe_u32 v6, v0, 4, 1")
        a("v_lshl_add_u32 v7, v6, 8, v7")
        a("s_lshl_b32 s10, s96, 9")
        a(f"s_add_u32 s10, s10, {SP_OFF + 0x20000}")
        a("s_lshl_b64 exec, 1, s97")
        a("buffer_store_dword v16, v7, s[48:51], s10 offen sc1")
        a("s_mov_b64 exec, -1")
    else:
        xt = cfg.xtoff or XT_OFF
        a(f"s_lshl_b32 s10, s99, {cfg.xts}")
        a(f"s_add_u32 s10, s10, {xt}")
        a("s_mov_b64 exec, 1")
        a("buffer_store_dword v16, v14, s[48:51], s10 offen" + ("" if cfg.xtp else " sc1"))
        a("s_mov_b64 exec, -1")
        a("v_and_b32 v7, 31, v0")
        a(f"v_lshlrev_b32 v7, {cfg.xts}, v7")
        a(f"s_lshl_b32 s10, s96, {cfg.xts+5}")
        a(f"s_add_u32 s10, s10, {xt}")
    wait_flags([(TG, 2, 14), (QF if cfg.xtp else PF, 1, 14)], 16, cfg.sleep_lds)

    def ckx():
        a("v_and_b32 v17, 0xfffff0ff, v16")
        a("v_cmp_eq_u32 vcc, s5, v17")
        a("s_cmp_eq_u64 vcc, -1")
    if cfg.xtp:
        a("buffer_load_dword v16, v7, s[48:51], s10 offen sc1")
        a("s_waitcnt vmcnt(0)")
    else:
        poll(lambda: a("buffer_load_dword v16, v7, s[48:51], s10 offen sc1"), ckx, 8)
    a("v_cmp_eq_u32 vcc, s4, v16")
    a("s_cmp_eq_u64 vcc, -1")
    a("s_cselect_b32 s101, 1, 0")
    if cfg.nofast:
        a("s_mov_b32 s101, 0")
    a("v_mov_b32 v16, s101")
    a(f"ds_write_b32 v14, v16 offset:{FM}")
    stamp(4)
    a("v_and_b32 v6, 7, v0")
    a("v_lshlrev_b32 v6, 3, v6")
    a("v_and_b32 v7, 31, v0")
    a("v_lshlrev_b32 v7, 3, v7")
    a("s_lshl_b32 s13, s99, 6")
    a(f"s_add_u32 s13, s13, {ML_OFF}")

    def ldm():
        for w in range(4):
            a(f"ds_read_b64 {vr(16+2*w,2)}, v6 offset:{MLB+64*w}")
    poll(ldm, lambda: check_sentinel(range(16, 24), 11), cfg.sleep_lds, cnt="lgkmcnt")
    stamp(5)
    a(f"ds_read_b32 v30, v7 offset:{MLB}")

    def combine4(mo):
        a(f"v_max3_f32 v{mo}, v16, v18, v20")
        a(f"v_max_f32 v{mo}, v{mo}, v22")

    def wsum4(mo, lo):
        for w in range(4):
            a(f"v_sub_f32 v{16+2*w}, v{16+2*w}, v{mo}")
        for w in range(4):
            a(f"v_mul_f32 v{16+2*w}, s67, v{16+2*w}")
        for w in range(4):
            a(f"v_exp_f32 v{16+2*w}, v{16+2*w}")
        a("s_nop 0")
        a(f"v_mul_f32 v{lo}, v16, v17")
        for w in range(1, 4):
            a(f"v_fmac_f32 v{lo}, v{16+2*w}, v{17+2*w}")
    combine4(24)
    wsum4(24, 25)
    put_tag(24)
    put_tag(25)
    a("s_mov_b64 exec, 0xff")
    store_mode("buffer_store_dwordx2 v[24:25], v6, s[48:51], s13 offen")
    a("s_mov_b64 exec, -1")
    a("s_lshl_b32 s10, s96, 11")
    a(f"s_add_u32 s10, s10, {ML_OFF}")
    a("v_lshlrev_b32 v7, 3, v0")
    if cfg.rank:
        mid, hi = (int(z) for z in cfg.rank.split(":"))
        for i in range(4):
            a(f"buffer_load_dword v{16+i}, v7, s[48:51], s10 offen offset:{512*i} sc1")
        a("s_waitcnt vmcnt(0)")
        a("s_mov_b32 s4, 0")
        for i in range(4):
            a(f"v_and_b32 v{16+i}, 0xffff, v{16+i}")
            a(f"v_cmp_eq_u32 vcc, s14, v{16+i}")
            a("s_bcnt1_i32_b64 s5, vcc")
            a("s_add_u32 s4, s4, s5")
        a(f"s_cmp_ge_u32 s4, {8*mid}")
        a("s_cselect_b32 s5, 1, 0")
        a(f"s_cmp_ge_u32 s4, {8*hi}")
        a("s_cselect_b32 s5, 3, s5")
        a("v_mov_b32 v16, s5")
        a(f"ds_write_b32 v14, v16 offset:{LV}")
    wait_flags([(LF, 1, 14)], 16, cfg.sleep_lds)
    if cfg.touch & 1:
        a("v_lshlrev_b32 v31, 6, v0")
        a("s_lshl_b32 s4, s99, 12")
        a(f"s_add_u32 s4, s4, {OP_OFF}")
        a("buffer_load_dword v2, v31, s[48:51], s4 offen sc1")
    if cfg.touch & 2:
        a("v_lshlrev_b32 v31, 5, v0")
        a("s_lshl_b32 s4, s99, 11")
        a(f"s_add_u32 s4, s4, {XP_OFF}")
        a("buffer_load_dword v1, v31, s[48:51], s4 offen sc1")

    def ld2():
        for i in range(4):
            a(f"buffer_load_dwordx2 {vr(16+2*i,2)}, v7, s[48:51], s10 offen offset:{512*i} sc1")
    poll(ld2, lambda: check_tag(range(16, 24), 11, 12), 8)
    stamp(6)
    combine4(26)
    xlane("v_max_f32", 26, 11, [8, 16, 32])
    wsum4(26, 27)
    xlane("v_add_f32", 27, 11, [8, 16, 32])
    a("v_sub_f32 v30, v30, v26")
    a("v_mul_f32 v30, s67, v30")
    a("v_exp_f32 v30, v30")
    a("v_rcp_f32 v27, v27")
    a("v_bfe_u32 v7, v0, 3, 2")
    a("v_lshlrev_b32 v7, 2, v7")
    a("v_lshl_add_u32 v7, v6, 1, v7")
    a("v_mul_f32 v30, v30, v27")
    a(f"ds_write_b32 v7, v30 offset:{FB}")
    set_flag(FF)
    a("v_lshlrev_b32 v6, 4, v9")
    a("v_lshl_add_u32 v6, v5, 2, v6")
    a("v_lshlrev_b32 v7, 4, v0")
    a("s_lshl_b32 s10, s99, 12")
    a(f"s_add_u32 s10, s10, {OP_OFF}")
    a("s_lshl_b32 s8, s99, 7")
    a(f"s_add_u32 s8, s8, {O2_OFF}")
    wait_flags([(OF, 4, 14)], 16, cfg.sleep_lds)
    stamp(7)

    def ld3(r):
        for i in range(4):
            a(f"buffer_load_dwordx4 {vr(r+4*i,4)}, v7, s[48:51], s10 offen offset:{1024*i} sc1")
    if not cfg.abl & 32:
        ppoll(cfg.lpipe, cfg.lgap, ld3, 4, 16, 40, 12, 13)
    stamp(8)
    for k in range(4):
        a(f"v_add_f32 v{40+k}, v{40+k}, v{44+k}")
        a(f"v_add_f32 v{48+k}, v{48+k}, v{52+k}")
    for k in range(4):
        a(f"v_add_f32 v{40+k}, v{40+k}, v{48+k}")
    a("s_nop 0")
    a("v_permlane32_swap_b32 v40, v42")
    a("v_permlane32_swap_b32 v41, v43")
    a("v_add_f32 v40, v40, v42")
    a("v_add_f32 v41, v41, v43")
    a("s_nop 1")
    a("v_permlane16_swap_b32 v40, v41")
    a("v_add_f32 v40, v40, v41")
    a("s_nop 1")
    a("v_add_f32_dpp v40, v40, v40 row_ror:8 row_mask:0xf bank_mask:0xf")
    a("v_cvt_pk_bf16_f32 v40, v40, v40")
    put_tag(40)
    a("s_mov_b32 exec_lo, 0x00ff00ff")
    a("s_mov_b32 exec_hi, 0x00ff00ff")
    a("buffer_store_dword v40, v6, s[48:51], s8 offen sc1")
    a("s_branch L_S_END")

    head0 = len(a.lines)
    if not cfg.inl:
        a.label("L_ATT")
    if cfg.aprio:
        a(f"s_setprio {cfg.aprio}")
    RING = 16
    SC = RING + 16 * R
    QR = SC + 32
    ST = QR + 8
    AC = QR
    PTA = AC + 32
    a("s_sub_u32 s6, s3, 4")
    a("v_bfe_u32 v6, v4, 1, 1")
    a("v_lshrrev_b32 v7, 2, v4")
    a("v_lshl_add_u32 v6, v6, 2, v7")
    a("v_lshlrev_b32 v6, 8, v6")
    a("v_lshl_add_u32 v6, v5, 5, v6")
    a("v_and_b32 v7, 1, v4")
    a("v_lshl_add_u32 v6, v7, 4, v6")
    a("s_lshl_b32 s7, s99, 18")
    a("s_lshl_b32 s8, s6, 12")
    a("s_add_u32 s7, s7, s8")
    a("s_mov_b32 s8, s7")
    a("s_waitcnt lgkmcnt(0)")
    srd(40, 18, 0x4000000)
    N = cfg.n
    NL = 143
    NH = [N]
    lim = [128]
    nl = [0]
    lvl_pending = [False]
    lvl_on = [False]

    def slot_of(item):
        return RING + 16 * (item % R)

    def issue1():
        k = nl[0]
        if k >= lim[0]:
            return
        item, q = divmod(k, 4)
        slot = slot_of(item)
        if item < 16:
            a(f"buffer_load_dwordx4 {vr(slot+4*q,4)}, v6, s[40:43], s7 offen offset:{128*(q&1)+2048*(q>>1)}{NT}")
            if q == 3 and item < 15:
                a("s_add_u32 s7, s7, 16384")
        elif item < 32:
            a(f"buffer_load_dwordx4 {vr(slot+4*q,4)}, v7, s[44:47], s8 offen offset:{1024*q}{NT}")
            if q == 3 and item < 31:
                a("s_add_u32 s8, s8, 16384")
        elif item < 34:
            m = k - 128
            a(f"buffer_load_dwordx4 {vr(slot+4*q,4)}, v3, s[52:55], s11 offen offset:{2048*(m&1)}{NT}")
            if (m & 1) and m < 7:
                a("s_add_u32 s11, s11, 16384")
        else:
            e = k - 136
            a(f"buffer_load_dwordx4 {vr(slot+4*q,4)}, v1, s[56:59], s10 offen offset:{2048*(e&1)}{NT}")
            if e & 1:
                a("s_add_u32 s10, s10, 4096")
        nl[0] += 1
        for kk, fl, av in ((cfg.pf, PF, 14), (cfg.lf, LF, 14), (cfg.go, GO, 13), (cfg.wf, WF, 13), (cfg.wh, WH, 13)):
            if k == kk - 1:
                set_flag(fl, av)

    def wait_load(k):
        a(f"s_waitcnt vmcnt({nl[0] - k - 1})")

    def thr():
        if not lvl_on[0]:
            return
        lab = newlab("go")
        a("s_bitcmp1_b32 s100, 1")
        a(f"s_cbranch_scc1 {lab}")
        a(f"s_waitcnt vmcnt({N})")
        a("s_bitcmp1_b32 s100, 0")
        a(f"s_cbranch_scc1 {lab}")
        a(f"s_waitcnt vmcnt({N-1})")
        a.label(lab)

    def advance(item):
        if lvl_on[0] and item < 24:
            if lvl_pending[0]:
                a("s_waitcnt lgkmcnt(0)")
                a("v_readfirstlane_b32 s100, v2")
            a(f"ds_read_b32 v2, v14 offset:{LV}")
            lvl_pending[0] = True
        for q in range(4):
            k = 4 * item + q
            if k >= NL:
                break
            if nl[0] < lim[0] and nl[0] - (k + 1) < NH[0]:
                wait_load(k)
                while nl[0] < lim[0] and nl[0] - (k + 1) < NH[0]:
                    thr()
                    issue1()
            elif q == 3 or k == NL - 1:
                wait_load(k)

    for k in range(4 * R):
        if cfg.inl and k == cfg.pro:
            head = a.lines[head0:]
            del a.lines[head0:]
            z = a.lines.index("@@ATT_HEAD@@")
            a.lines[z:z+1] = head
            a.label("L_ATT2")
        if k == cfg.pro:
            load_tag()
            a("v_lshlrev_b32 v7, 4, v0")
            a("s_lshl_b32 s9, s6, 2")
            a("v_mov_b32 v13, s9")
            srd(44, 20, 0x4000000)
            srd(48, 38, WS_SIZE)
            srd(52, 24, 0x800000)
            srd(56, 32, 0x700000)
            consts()
            a("v_mul_u32_u24 v11, 272, v9")
            a("v_lshl_add_u32 v11, v5, 5, v11")
            a("v_lshl_add_u32 v11, v8, 4, v11")
            a("v_mov_b32 v10, 0xff800000")
        if k == cfg.b0a:
            a("s_barrier")
        Nk = cfg.n0 if k < cfg.k0 else N
        if k >= Nk:
            a(f"s_waitcnt vmcnt({Nk-1})")
        issue1()
    stamp(1)
    wait_flags([(QF, 1, 14)], QR, 1)
    make_tag()
    stamp(2)
    for c in range(2):
        a(f"ds_read_b128 {vr(QR+4*c,4)}, v11 offset:{QB+128*c}")
    a("s_waitcnt lgkmcnt(0)")

    def post(i):
        t = ST + 8 * (i & 1)
        w = ST + 16
        for q in range(4):
            a(f"v_add_f32_dpp v{w+6+q}, v{t+2*q+1}, v{t+2*q} row_ror:8 row_mask:0xf bank_mask:0xf")
        s = w + 6
        a(f"v_max3_f32 v10, v10, v{s}, v{s+1}")
        a(f"v_cvt_pk_bf16_f32 v{w+4}, v{s}, v{s+1}")
        a(f"v_cvt_pk_bf16_f32 v{w+5}, v{s+2}, v{s+3}")
        a(f"v_max3_f32 v10, v10, v{s+2}, v{s+3}")
        a(f"v_lshlrev_b32 v{w}, 16, v{w+4}")
        a(f"v_and_b32 v{w+1}, s66, v{w+4}")
        a(f"v_lshlrev_b32 v{w+2}, 16, v{w+5}")
        a(f"v_and_b32 v{w+3}, s66, v{w+5}")
        for k in range(4):
            a(f"v_mul_f32 v{w+k}, s68, v{w+k}")
        a(f"v_cvt_pk_bf16_f32 v{SC+2*i}, v{w}, v{w+1}")
        a(f"v_cvt_pk_bf16_f32 v{SC+2*i+1}, v{w+2}, v{w+3}")

    for i in range(16):
        advance(i)
        slot = slot_of(i)
        t = ST + 8 * (i & 1)
        for st_ in range(2):
            for ln in range(2):
                cc = "0" if ln == 0 else vr(t + 4 * st_, 4)
                a(f"v_mfma_f32_16x16x32_bf16 {vr(t+4*st_,4)}, {vr(slot+4*(2*st_+ln),4)}, {vr(QR+4*ln,4)}, {cc}")
        if nl[0] - 4 * (i + 1) >= N and nl[0] < 4 * (i + 1 + R):
            for _ in range(4 if i == 0 else 1):
                if nl[0] < 4 * (i + 1 + R):
                    a(f"s_waitcnt vmcnt({N-1})")
                    issue1()
        if i >= 1:
            a("s_nop 3")
            post(i - 1)
    a("s_nop 7")
    post(15)
    stamp(3)
    xlane("v_max_f32", 10, 11, [16, 32])
    w = ST
    MM, LL, L2 = ST + 8, ST + 9, ST + 10
    round_bf16(MM, 10)
    a(f"v_mul_f32 v{MM}, s68, v{MM}")
    round_bf16(MM, MM)
    a(f"v_mul_f32 v11, s67, v{MM}")
    a(f"v_mov_b32 v{LL}, 0")
    a(f"v_mov_b32 v{L2}, 0")
    for k in range(0, 32, 2):
        if k % 6 == 0:
            issue1()
        for q in range(2):
            a(f"v_lshlrev_b32 v{w+2*q}, 16, v{SC+k+q}")
            a(f"v_and_b32 v{w+2*q+1}, s66, v{SC+k+q}")
        for q in range(4):
            a(f"v_fma_f32 v{w+q}, v{w+q}, s67, -v11")
        for q in range(4):
            a(f"v_exp_f32 v{w+q}, v{w+q}")
        a(f"v_add_f32 v{LL}, v{LL}, v{w}")
        a(f"v_add_f32 v{L2}, v{L2}, v{w+1}")
        a(f"v_cvt_pk_bf16_f32 v{SC+k}, v{w}, v{w+1}")
        a(f"v_add_f32 v{LL}, v{LL}, v{w+2}")
        a(f"v_add_f32 v{L2}, v{L2}, v{w+3}")
        a(f"v_cvt_pk_bf16_f32 v{SC+k+1}, v{w+2}, v{w+3}")
    a(f"v_add_f32 v{LL}, v{LL}, v{L2}")
    xlane("v_add_f32", LL, L2, [16, 32])
    a(f"v_min_u32 v{LL}, -2, v{LL}")
    a("s_lshl_b32 s9, s6, 6")
    a("v_lshlrev_b32 v12, 3, v0")
    a("v_add_u32 v12, s9, v12")
    a("s_mov_b64 exec, 0xff")
    a(f"ds_write_b64 v12, {vr(MM,2)} offset:{MLB}")
    a("s_mov_b64 exec, -1")
    stamp(4)
    issue1()
    a("s_and_b32 s4, s6, 1")
    a("s_lshr_b32 s5, s6, 1")
    a("s_mul_i32 s9, s6, 4224")
    a("v_mul_u32_u24 v10, 528, v4")
    a("v_lshl_add_u32 v10, v5, 7, v10")
    a("v_add_u32 v10, s9, v10")
    a("v_lshrrev_b32 v3, 1, v5")
    a("v_lshlrev_b32 v3, 5, v3")
    a("v_and_b32 v1, 1, v5")
    a("v_lshl_add_u32 v3, v1, 2, v3")
    a("v_lshl_add_u32 v3, v8, 1, v3")
    a("v_lshlrev_b32 v3, 11, v3")
    a("v_lshl_add_u32 v3, v9, 4, v3")
    a("v_lshl_add_u32 v1, v5, 1, v8")
    a("v_mul_u32_u24 v1, 14336, v1")
    a("v_lshl_add_u32 v1, v9, 4, v1")
    colgrp(12, 4, 13)
    a("s_lshl_b32 s12, s12, 7")
    a("s_lshl1_add_u32 s13, s97, s5")
    a("s_lshl_b32 s11, s13, 17")
    a("s_add_u32 s11, s11, s12")
    a(f"s_mul_i32 s10, s13, {56*2048}")
    a("s_add_u32 s10, s10, s12")
    a("v_bfe_u32 v12, v4, 2, 1")
    a("v_lshlrev_b32 v12, 8, v12")
    a("v_lshl_add_u32 v12, v5, 5, v12")
    a("v_and_b32 v11, 1, v4")
    a("v_lshl_add_u32 v12, v11, 4, v12")
    a("s_lshl_b32 s9, s5, 7")
    a("v_add_u32 v12, s9, v12")
    a("v_lshlrev_b32 v11, 15, v5")
    a("v_lshrrev_b32 v6, 2, v9")
    a("v_lshl_add_u32 v11, v6, 13, v11")
    a("v_and_b32 v6, 3, v9")
    a("v_lshl_add_u32 v11, v6, 5, v11")
    a("v_lshl_add_u32 v11, v8, 4, v11")
    a("s_lshl_b32 s9, s96, 16")
    a("s_lshl_b32 s12, s4, 14")
    a("s_add_u32 s9, s9, s12")
    a("s_lshl_b32 s12, s13, 7")
    a("s_add_u32 s9, s9, s12")
    a(f"s_add_u32 s9, s9, {XP_OFF}")
    a("v_lshrrev_b32 v4, 5, v0")
    a("s_lshl_b32 s12, s6, 1")
    a("v_add_u32 v4, s12, v4")
    a("v_lshlrev_b32 v5, 4, v4")
    a("v_mul_u32_u24 v4, 528, v4")
    a("v_and_b32 v6, 31, v0")
    a("v_lshl_add_u32 v4, v6, 4, v4")
    a("v_lshlrev_b32 v8, 4, v9")
    a("v_lshrrev_b32 v6, 3, v0")
    a("v_lshl_add_u32 v8, v6, 12, v8")
    a("v_mul_u32_u24 v6, 5, v6")
    a("v_add_u32 v6, s97, v6")
    a("v_and_b32 v6, 31, v6")
    a("v_lshl_add_u32 v8, v6, 7, v8")
    a("s_lshl_b32 s5, s96, 17")
    a("s_lshl_b32 s12, s6, 15")
    a("s_add_u32 s5, s5, s12")
    a(f"s_add_u32 s5, s5, {OP_OFF}")
    get_mode(6)
    if cfg.rank:
        NH[0] = N + 2
        lvl_on[0] = True
        a("s_mov_b32 s100, 0")
    for it in range(16, 32):
        advance(it)
        if it & 1:
            u = (it - 16) // 2
            s0 = slot_of(16 + 2 * u)
            s1 = slot_of(17 + 2 * u)
            src = lambda e, s0=s0, s1=s1: (s0 if e < 4 else s1) + 4 * (e & 3)

            def M(i, u=u):
                for h in range(2):
                    j = 2 * i + h
                    c = "0" if u == 0 else vr(AC + 4 * j, 4)
                    a(f"v_mfma_f32_16x16x32_bf16 {vr(AC+4*j,4)}, {vr(PTA+8*(i&1)+4*h,4)}, {vr(SC+4*u,4)}, {c}")
            perms(PTA, src, 0)
            perms(PTA + 8, src, 1)
            M(0)
            perms(PTA, src, 2)
            M(1)
            perms(PTA + 8, src, 3)
            M(2)
            M(3)
    stamp(5)
    a("s_mov_b32 exec_lo, 0x00ff00ff")
    a("s_mov_b32 exec_hi, 0x00ff00ff")
    for j in range(8):
        if j == 4:
            a("s_nop 0")
        a(f"ds_write_b128 v10, {vr(AC+4*j,4)} offset:{ORED+16*j}")
    a("s_mov_b64 exec, -1")
    set_flag(OF, 13)
    T0 = slot_of(0)
    wait_flags([(OF, 4, 14), (FF, 1, 14)], T0, 0)
    a(f"ds_read_b128 {vr(T0,4)}, v5 offset:{FB}")
    for w_ in range(4):
        a(f"ds_read_b128 {vr(T0+4+4*w_,4)}, v4 offset:{ORED+4224*w_}")
    for k in range(4):
        a(f"v_mov_b32 v{slot_of(35)+12+k}, 0")
    a("s_waitcnt lgkmcnt(0)")
    for w_ in range(4):
        for k in range(4):
            if w_ == 0:
                a(f"v_mul_f32 v{T0+4+k}, v{T0}, v{T0+4+k}")
            else:
                a(f"v_fmac_f32 v{T0+4+k}, v{T0+w_}, v{T0+4+4*w_+k}")
    for k in range(4):
        put_tag(T0 + 4 + k)
    store_mode(f"buffer_store_dwordx4 {vr(T0+4,4)}, v8, s[48:51], s5 offen")
    stamp(6)
    TP = slot_of(6)
    XACC = SC
    wait_flags([(GF, 2, 14)], PTA, 1)
    lim[0] = NL
    if cfg.w2lvl:
        a(f"s_or_b32 s100, s100, {cfg.w2lvl}")
    for z in range(NH[0]):
        if z >= N:
            thr()
        issue1()
    advance(32)
    advance(33)
    srco = lambda e: (lambda m: slot_of(32 + (m >> 2)) + 4 * (m & 3))(2 * (e & 3) + (e >> 2))
    for i in range(4):
        perms(TP + 8 * i, srco, i)
    srcd = lambda e: slot_of(34 + (e >> 2)) + 4 * (e & 3)

    def operand(flag, buf, dst, lab):
        a(f"ds_read_b32 v{PTA+8}, v14 offset:{flag}")
        a(f"ds_read_b128 {vr(dst,4)}, v12 offset:{buf}")

    def operand_ok(flag, buf, dst, lab):
        a("s_waitcnt lgkmcnt(0)")
        a(f"v_cmp_eq_u32 vcc, 0, v{PTA+8}")
        a("s_cmp_eq_u64 vcc, -1")
        a(f"s_cbranch_scc1 {lab}")
        wait_flags([(flag, 1, 14)], PTA + 8, cfg.xsleep)
        a(f"ds_read_b128 {vr(dst,4)}, v12 offset:{buf}")
        a("s_waitcnt lgkmcnt(0)")
        a.label(lab)
    advance(34)
    assert nl[0] == NL
    if cfg.xprio:
        a(f"s_setprio {cfg.xprio}")
    if cfg.tail2:
        for i in range(4):
            for hh, sel in ((0, "s64"), (1, "s65")):
                for p in range(2):
                    a(f"v_perm_b32 v{TP+32+8*i+4*hh+p}, v{srcd(2*p+1)+i}, v{srcd(2*p)+i}, {sel}")
        advance(35)
        stamp(7)
        operand(BF, OB, PTA + 4, "L_ogo")
        for i in range(4):
            for hh, sel in ((0, "s64"), (1, "s65")):
                for p in range(2, 4):
                    a(f"v_perm_b32 v{TP+32+8*i+4*hh+p}, v{srcd(2*p+1)+i}, v{srcd(2*p)+i}, {sel}")
        operand_ok(BF, OB, PTA + 4, "L_ogo")
        operand(HF, HB, PTA, "L_hgo")
        for j in range(8):
            a(f"v_mfma_f32_16x16x32_bf16 {vr(XACC+4*j,4)}, {vr(PTA+4,4)}, {vr(TP+4*j,4)}, 0")
        operand_ok(HF, HB, PTA, "L_hgo")
        stamp(9)
        for j in range(8):
            a(f"v_mfma_f32_16x16x32_bf16 {vr(XACC+4*j,4)}, {vr(PTA,4)}, {vr(TP+32+4*j,4)}, {vr(XACC+4*j,4)}")
    else:
        advance(35)
        stamp(7)
        a(f"ds_read_b64 {vr(PTA+8,2)}, v14 offset:{HF}")
        a(f"ds_read_b128 {vr(PTA+4,4)}, v12 offset:{OB}")
        a(f"ds_read_b128 {vr(PTA,4)}, v12 offset:{HB}")
        for i in range(4):
            perms(TP + 32 + 8 * i, srcd, i)
        a("s_waitcnt lgkmcnt(0)")
        a(f"v_or_b32 v{PTA+8}, v{PTA+8}, v{PTA+9}")
        a(f"v_cmp_eq_u32 vcc, 0, v{PTA+8}")
        a("s_cmp_eq_u64 vcc, -1")
        a("s_cbranch_scc1 L_xgo")
        wait_flags([(HF, 2, 14)], PTA + 8, 0)
        a(f"ds_read_b128 {vr(PTA+4,4)}, v12 offset:{OB}")
        a(f"ds_read_b128 {vr(PTA,4)}, v12 offset:{HB}")
        a("s_waitcnt lgkmcnt(0)")
        a.label("L_xgo")
        stamp(9)
        for j in range(8):
            a(f"v_mfma_f32_16x16x32_bf16 {vr(XACC+4*j,4)}, {vr(PTA+4,4)}, {vr(TP+4*j,4)}, 0")
        for j in range(8):
            a(f"v_mfma_f32_16x16x32_bf16 {vr(XACC+4*j,4)}, {vr(PTA,4)}, {vr(TP+32+4*j,4)}, {vr(XACC+4*j,4)}")
    a("s_nop 1")
    fold(PTA + 8, XACC)
    a("s_mov_b32 exec_hi, 0")
    store_mode(f"buffer_store_dwordx4 {vr(PTA+8,4)}, v11, s[48:51], s9 offen")
    set_flag(SF, 13)
    stamp(10)
    dump_stamps()
    a.label("L_END")
    a("s_endpgm")

    probs = check_hazards(a.lines)
    for p in probs:
        print(p, file=sys.stderr)
    if probs:
        raise SystemExit("hazards found")

    pad = f".fill (24576 - (. - {NAME}_kernel)) / 4, 4, 0xBF800000\n" if cfg.codepf else ""
    out = HEADER
    out += DOC
    out += f"; @launch grid=(256,1,1) block=(512,1,1) lds={LDS_SIZE}\n"
    out += f""".amdgcn_target "amdgcn-amd-amdhsa--gfx950"
.text
.globl {NAME}_kernel
.p2align 8
.type {NAME}_kernel,@function
{NAME}_kernel:
"""
    out += a.text()
    out += pad
    out += f""".section .rodata,"a"
.p2align 6
.amdhsa_kernel {NAME}_kernel
  .amdhsa_next_free_vgpr 256
  .amdhsa_next_free_sgpr 102
  .amdhsa_accum_offset 256
  .amdhsa_group_segment_fixed_size 0
  .amdhsa_kernarg_size 96
  .amdhsa_user_sgpr_count 2
  .amdhsa_user_sgpr_kernarg_segment_ptr 1
  .amdhsa_system_sgpr_workgroup_id_x 1
  .amdhsa_float_denorm_mode_32 3
.end_amdhsa_kernel
"""
    return out


def parse_args(argv=None):
    p = argparse.ArgumentParser()
    p.add_argument("-o", default="cdna_kernels/" + NAME + ".s")
    p.add_argument("--stamps", type=int, default=0)
    p.add_argument("--codepf", type=int, default=-1)
    p.add_argument("--sleep_lds", type=int, default=2)
    p.add_argument("--spin", type=int, default=2000000)
    p.add_argument("--n", type=int, default=6)
    p.add_argument("--ns", type=int, default=12)
    p.add_argument("--gate", type=int, default=32)
    p.add_argument("--pf", type=int, default=24)
    p.add_argument("--lf", type=int, default=108)
    p.add_argument("--go", type=int, default=128)
    p.add_argument("--wf", type=int, default=143)
    p.add_argument("--rank", default="22:28")
    p.add_argument("--nofast", type=int, default=0)
    p.add_argument("--spread", type=int, default=0)
    p.add_argument("--inl", type=int, default=1)
    p.add_argument("--xprio", type=int, default=0)
    p.add_argument("--aprio", type=int, default=0)
    p.add_argument("--xsleep", type=int, default=1)
    p.add_argument("--sfsleep", type=int, default=1)
    p.add_argument("--gotog", type=int, default=0)
    p.add_argument("--abl", type=int, default=0)
    p.add_argument("--xtp", type=int, default=1)
    p.add_argument("--xts", type=int, default=2)
    p.add_argument("--xtoff", type=lambda z: int(z, 0), default=0)
    p.add_argument("--gpoff", type=lambda z: int(z, 0), default=0)
    p.add_argument("--ns0", type=int, default=0)
    p.add_argument("--n0", type=int, default=0)
    p.add_argument("--k0", type=int, default=0)
    p.add_argument("--padto", type=int, default=0)
    p.add_argument("--padfrom", type=int, default=0)
    p.add_argument("--touch", type=int, default=0)
    p.add_argument("--wh", type=int, default=139)
    p.add_argument("--sleep_w", type=int, default=1)
    p.add_argument("--tail2", type=int, default=1)
    p.add_argument("--w2lvl", type=int, default=0)
    p.add_argument("--ffn1", type=int, default=1)
    p.add_argument("--s0b", type=int, default=32)
    p.add_argument("--b0a", type=int, default=3)
    p.add_argument("--pro", type=int, default=2)
    p.add_argument("--qmap", type=int, default=1)
    p.add_argument("--gmap", type=int, default=0)
    p.add_argument("--cmap", type=int, default=0)
    for nm, d, g in (("y", 2, 2), ("o", 1, 0), ("g", 1, 0), ("h", 1, 0), ("l", 1, 0)):
        p.add_argument(f"--{nm}pipe", type=int, default=d)
        p.add_argument(f"--{nm}gap", type=int, default=g)
    return p.parse_args(argv)


if __name__ == "__main__":
    cfg = parse_args()
    open(cfg.o, "w").write(gen(cfg))
    print("wrote", cfg.o)
```
